```python
import torch

def _softmax(x, axis=-1):
    return torch.softmax(x, dim=axis)
def _gelu(x):
    return torch.nn.functional.gelu(x, approximate="tanh")
def _silu(x):
    return torch.nn.functional.silu(x)
def _sigmoid(x):
    return torch.sigmoid(x)
def _layernorm(x, axis=-1, eps=1e-5):
    m = x.mean(dim=axis, keepdim=True)
    v = x.var(dim=axis, keepdim=True, unbiased=False)
    return (x - m) / torch.sqrt(v + eps)
def _scatter_add(tgt, idx, src, axis=0):
    return tgt.clone().index_add_(axis, idx, src)
def _segment_sum(src, seg, n):
    out = torch.zeros((n,) + src.shape[1:], dtype=src.dtype)
    return out.index_add_(0, seg, src)
def _pad(x, pw):
    flat = tuple(v for pair in reversed(pw) for v in pair)
    return torch.nn.functional.pad(x, flat)

kernel_name = 'sequential_preLN__gqa_block_cached__glu_gated_swiglu__decode'

def setup_inputs():

    _w = (lambda a: (lambda t: t.to(torch.bfloat16) if t.is_floating_point() else t)(torch.as_tensor(a)))
    def _A_setup():
        B, Sq, D = 1, 1, 512
        Hq, Hkv, Sk, Dh = 32, 8, 65536, 128
        assert Hq % Hkv == 0, (Hq, Hkv)
        return {
            "x": _w((lambda *s: torch.randn(*s, dtype=torch.bfloat16) * 0.05)(B, Sq, D)),
            "k_cache": _w((lambda *s: torch.randn(*s, dtype=torch.bfloat16) * 3.2)(B, Hkv, Sk, Dh)),
            "v_cache": _w((lambda *s: torch.randn(*s, dtype=torch.bfloat16) * 1.6)(B, Hkv, Sk, Dh)),
            "wq": _w((lambda *s: torch.randn(*s, dtype=torch.bfloat16) * 3.2)(D, Hq * Dh) * (D ** -0.5)),
            "wo": _w((lambda *s: torch.randn(*s, dtype=torch.bfloat16) * 1.6)(Hq * Dh, D) * ((Hq * Dh) ** -0.5)),
        }
    _A_in = _A_setup()

    def _B_setup():
        B, S, D, F = 1, 1, 512, 1792
        return {
            "x": _w((lambda *s: torch.randn(*s, dtype=torch.bfloat16) * 0.05)(B, S, D)),
            "w1": _w((lambda *s: torch.randn(*s, dtype=torch.bfloat16) * 1.6)(D, F) * (2.0 / D) ** 0.5),
            "w3": _w((lambda *s: torch.randn(*s, dtype=torch.bfloat16) * 1.6)(D, F) * (2.0 / D) ** 0.5),
            "w2": _w((lambda *s: torch.randn(*s, dtype=torch.bfloat16) * 1.6)(F, D) * (2.0 / F) ** 0.5),
        }
    _B_in = _B_setup()

    return {
        "A_x": _A_in["x"],
        "A_k_cache": _A_in["k_cache"],
        "A_v_cache": _A_in["v_cache"],
        "A_wq": _A_in["wq"],
        "A_wo": _A_in["wo"],
        "B_x": _B_in["x"],
        "B_w1": _B_in["w1"],
        "B_w3": _B_in["w3"],
        "B_w2": _B_in["w2"],
    }

def reference(A_x, A_k_cache, A_v_cache, A_wq, A_wo, B_x, B_w1, B_w3, B_w2):
    def _A_ref(x, k_cache, v_cache, wq, wo):
        B, Sq, D = x.shape
        Hq, Dh = 32, 128
        Hkv = k_cache.shape[1]
        rep = Hq // Hkv
        q = (lambda x, *d: x.permute(*d))((x @ wq).reshape(B, Sq, Hq, Dh), 0, 2, 1, 3)
        k = (lambda x, n, axis: torch.repeat_interleave(x, n, dim=axis))(k_cache, rep, axis=1)
        v = (lambda x, n, axis: torch.repeat_interleave(x, n, dim=axis))(v_cache, rep, axis=1)
        scores = torch.einsum("bhqd,bhkd->bhqk", q, k) * (Dh ** -0.5)
        p = _softmax(scores, axis=-1)
        o = torch.einsum("bhqk,bhkd->bhqd", p, v)
        return (lambda x, *d: x.permute(*d))(o, 0, 2, 1, 3).reshape(B, Sq, Hq * Dh) @ wo

    def _B_ref(x, w1, w3, w2):
        gate = torch.einsum("bsd,df->bsf", x, w1)
        up = torch.einsum("bsd,df->bsf", x, w3)
        h = _silu(gate) * up
        out = torch.einsum("bsf,fd->bsd", h, w2)
        return out

    x = A_x
    h = x + _A_ref(_layernorm(x, axis=-1), A_k_cache, A_v_cache, A_wq, A_wo)
    h2 = h + _B_ref(_layernorm(h, axis=-1), B_w1, B_w3, B_w2)
    return h2
```

```python
import re

TRANS = ("v_exp_f32", "v_log_f32", "v_rcp_f32", "v_rsq_f32", "v_sqrt_f32", "v_sin_f32", "v_cos_f32")

def parse_regs(tok):
    tok = tok.strip()
    tok = tok.lstrip("-")
    if tok.startswith("abs(") or tok.startswith("|"):
        tok = tok.replace("abs(", "").replace(")", "").replace("|", "")
    m = re.fullmatch(r"([vsa])(\d+)", tok)
    if m:
        return [(m.group(1), int(m.group(2)))]
    m = re.fullmatch(r"([vsa])\[(\d+):(\d+)\]", tok)
    if m:
        return [(m.group(1), i) for i in range(int(m.group(2)), int(m.group(3)) + 1)]
    if tok == "vcc":
        return [("s", 106), ("s", 107)]
    if tok == "vcc_lo":
        return [("s", 106)]
    if tok == "vcc_hi":
        return [("s", 107)]
    if tok == "exec":
        return [("s", 126), ("s", 127)]
    if tok == "m0":
        return [("s", 124)]
    return []

class Ins:
    def __init__(self, text):
        self.text = text
        t = text.split(";")[0].strip()
        self.is_label = t.endswith(":")
        self.is_dir = t.startswith(".")
        self.op = ""
        self.ops = []
        self.mods = ""
        if not t or self.is_label or self.is_dir:
            return
        parts = t.split(None, 1)
        self.op = parts[0]
        rest = parts[1] if len(parts) > 1 else ""
        ops = []; cur = ""; depth = 0
        for ch in rest:
            if ch == "[": depth += 1
            if ch == "]": depth -= 1
            if ch == "," and depth == 0:
                ops.append(cur.strip()); cur = ""
            else:
                cur += ch
        if cur.strip(): ops.append(cur.strip())
        if ops:
            last = ops[-1].split(None, 1)
            ops[-1] = last[0]
            self.mods = last[1] if len(last) > 1 else ""
        self.ops = ops
        self.classify()
    def classify(self):
        op = self.op
        self.valu = op.startswith("v_")
        self.mfma = op.startswith("v_mfma")
        self.dot = op.startswith("v_dot")
        self.trans = any(op.startswith(x) for x in TRANS)
        self.dpp = ("_dpp" in op) or any(k in self.mods for k in ("row_", "quad_perm", "wave_"))
        self.permlane = op.startswith("v_permlane")
        self.readlane = op.startswith("v_readlane") or op.startswith("v_readfirstlane")
        self.salu = op.startswith("s_")
        self.ds = op.startswith("ds_")
        self.vmem = op.startswith("buffer_") or op.startswith("global_")
        W = []; R = []
        o = [parse_regs(x) for x in self.ops]
        if self.valu:
            if op.startswith("v_cmp"):
                W = o[0]; R = sum(o[1:], [])
            elif self.permlane:
                W = o[0] + o[1]; R = o[0] + o[1]
            elif op.startswith("v_add_co") or op.startswith("v_addc_co") or op.startswith("v_sub_co"):
                W = o[0] + o[1]; R = sum(o[2:], [])
            else:
                W = o[0]; R = sum(o[1:], [])
                if op.startswith("v_fmac") or op.startswith("v_dot2c") or op.startswith("v_writelane") or (self.dpp and ("bank_mask" in self.mods or "row_mask" in self.mods)):
                    R = R + o[0]
                if op.startswith("v_cndmask") and len(self.ops) == 3:
                    R = R + [("s", 106), ("s", 107)]
        elif self.ds:
            if op.startswith("ds_read") or op.startswith("ds_bpermute") or "rtn" in op:
                W = o[0]; R = sum(o[1:], [])
            else:
                R = sum(o, [])
        elif self.vmem:
            if "lds" in self.mods.split() or "_lds_" in op:
                R = sum(o, []) + [("s", 124)]
            elif "load" in op:
                W = o[0]; R = sum(o[1:], [])
            elif "atomic" in op and "sc0" in self.mods.split():
                W = o[0]; R = sum(o[1:], [])
            else:
                R = sum(o, [])
        elif self.salu:
            if op.startswith("s_cmp") or op.startswith("s_cbranch") or op in ("s_waitcnt", "s_nop", "s_barrier", "s_branch", "s_endpgm", "s_sleep", "s_setprio"):
                R = sum(o, [])
            else:
                W = o[0] if o else []; R = sum(o[1:], [])
        self.W = set(W); self.R = set(R)
    def states(self):
        if self.op == "s_nop":
            return int(self.ops[0]) + 1
        return 1

def mfma_passes(op):
    if "32x32" in op: return 8
    if "16x16" in op: return 4
    if "4x4" in op: return 2
    raise ValueError(op)

def required(prod, cons):
    need = 0
    pW = prod.W
    vW = {r for r in pW if r[0] in "va"}
    sW = {r for r in pW if r[0] == "s"}
    if prod.valu and not prod.mfma:
        if cons.valu and cons.dpp and (vW & cons.R): need = max(need, 2)
        if cons.permlane and (vW & cons.R): need = max(need, 2)
        if cons.readlane and (vW & cons.R): need = max(need, 1)
        if cons.mfma and (vW & cons.R): need = max(need, 2)
        if prod.trans and cons.valu and not cons.trans and (vW & cons.R): need = max(need, 1)
        if prod.trans and (cons.vmem or cons.ds) and (vW & cons.R): need = max(need, 1)
        if prod.dot and cons.valu:
            if cons.op == prod.op:
                ab = set(sum([parse_regs(x) for x in cons.ops[1:3]], []))
                if vW & ab: need = max(need, 3)
            elif vW & (cons.R | cons.W): need = max(need, 3)
        if prod.dot and (cons.vmem or cons.ds) and (vW & cons.R): need = max(need, 3)
        if sW:
            if cons.valu and (sW & cons.R):
                need = max(need, 4 if (cons.op.startswith("v_readlane") or cons.op.startswith("v_writelane")) else 2)
            if cons.vmem and (sW & cons.R): need = max(need, 5)
            if cons.salu and (sW & cons.R): need = max(need, 1)
        if "sdwa" in prod.op or "op_sel" in prod.mods:
            if cons.valu and (vW & cons.R): need = max(need, 1)
    if prod.mfma:
        p = mfma_passes(prod.op)
        tab_other = {2: 5, 4: 8, 8: 12}[p]
        D = prod.W
        if cons.mfma:
            ab = set(sum([parse_regs(x) for x in cons.ops[1:3]], []))
            c = set(parse_regs(cons.ops[3]))
            if D & ab: need = max(need, tab_other)
            if D & c:
                if c == D and mfma_passes(cons.op) == p: need = max(need, 2 if p == 2 else 0)
                else: need = max(need, {2: 4, 4: 6, 8: 10}[p])
            elif D & cons.W:
                need = max(need, tab_other)
        elif (cons.valu or cons.ds or cons.vmem) and (D & (cons.R | cons.W)):
            need = max(need, tab_other)
        c = set(parse_regs(prod.ops[3]))
        if cons.valu and not cons.mfma and (c & cons.W): need = max(need, {2: 1, 4: 3, 8: 7}[p])
    if prod.salu and ("s", 124) in pW and cons.vmem and ("s", 124) in cons.R:
        need = max(need, 1)
    if prod.vmem and "store" in prod.op and ("x4" in prod.op or "x3" in prod.op):
        data = set(sum([parse_regs(x) for x in prod.ops], []))
        if (cons.valu or cons.vmem or cons.ds) and ({r for r in data if r[0] == "v"} & cons.W): need = max(need, 2)
    return need

def auto_nop(lines, window=14):
    out = []
    for text in lines:
        for t in text.split("\n"):
            ins = Ins(t)
            if ins.op:
                dist = 0; pad = 0
                for prev in reversed(out):
                    if not prev.op:
                        continue
                    need = required(prev, ins)
                    if need > dist:
                        pad = max(pad, need - dist)
                    dist += prev.states()
                    if dist >= window: break
                while pad > 0:
                    k = min(pad, 16)
                    out.append(Ins("  s_nop %d" % (k - 1)))
                    pad -= k
            out.append(ins)
    return [i.text for i in out]
```

```python
import sys
from asmlib import auto_nop
NAME = "sequential_preLN__gqa_block_cached__glu_gated_swiglu__decode_kernel"

DEF = dict(X=133, W=1, burst=2, PW=0, stamps=0, wqflag="nt", wflag="", kvflag="nt", spin=400000, gtrig=3,
           psleep=1, codepf=1, err=0, forceslow=0)

EPOCH = 0; QG = 0x1000; ML = 0x8000; REG = 0xC000; R2 = 0x10000; R3 = 0x12000; R4 = 0x13000; P1 = 0x20000
SC = 131072; QL = SC + 8 * 2560; MLT = QL + 1024; FT = MLT + 256; FLAG = FT + 128; RED0 = 153088; LDS_TOTAL = RED0 + 1536
LOG2E = "0x3fb8aa3b"; SCALE = "0x3db504f3"; EPS = "0x3727c5ac"; INV512 = "0x3b000000"

vLane = 1; vL16 = 2; vKd = [3, 4, 5, 6]; vVd = 7; vKrd = 8; vVrd = 9; vSw = 10; vSr = 11; vXres = 12; vRedW = 13
T = list(range(14, 32))
F = 32
ACC = 48
U = list(range(80, 96))
W2 = 96; W3A = 160; W3B = 192; W4 = 224
sWave = 3; sG = 18; sI = 19; sTail = 20; sJ = 21; sN = 22; sCnt = 23; sOff = 24; sOff0 = 25; sSlotC = 26; sSlotI = 27
sWB = 28; sTag = 29; sT8 = 30; sSpin = 31; sDone = 40; sFast = 41; sTrig = 42; sXcc = 43
sSelLo = 37; sSelHi = 38

def v(i, n=1): return "v%d" % i if n == 1 else "v[%d:%d]" % (i, i + n - 1)
def s(i, n=1): return "s%d" % i if n == 1 else "s[%d:%d]" % (i, i + n - 1)

def gen(**kw):
    P = dict(DEF); P.update(kw)
    X = P["X"]; Y = 1024 - 7 * X; W = P["W"]; burst = P["burst"]
    assert 0 < Y <= X and (X + 7) // 8 <= 20 and Y >= 8 * 5
    L = []; A = L.append
    late = []
    def stamp(k):
        if P["stamps"]:
            A("  s_memrealtime %s" % s(60 + 2 * k, 2))
    def setexec(mask):
        if mask == -1:
            A("  s_mov_b64 exec, -1")
        else:
            lo = mask & 0xffffffff; hi = mask >> 32
            A("  s_mov_b32 exec_lo, 0x%x\n  s_mov_b32 exec_hi, 0x%x" % (lo, hi))
    def round_bf16(dst, src):
        A("  v_cvt_pk_bf16_f32 %s, %s, %s" % (v(dst), v(src), v(src)))
        A("  v_and_b32 %s, 0xffff0000, %s" % (v(dst), v(dst)))
    def unpack(lo, hi, src):
        A("  v_lshlrev_b32 %s, 16, %s" % (v(lo), v(src)))
        A("  v_and_b32 %s, 0xffff0000, %s" % (v(hi), v(src)))
    def dpp(op, d, a, b, ctrl, rm="0xf", bm="0xf"):
        A("  %s_dpp %s, %s, %s %s row_mask:%s bank_mask:%s" % (op, v(d), v(a), v(b), ctrl, rm, bm))
    def bfly_hi(op, x, t):
        A("  v_mov_b32 %s, %s" % (v(t), v(x)))
        A("  v_permlane16_swap_b32 %s, %s" % (v(x), v(t)))
        A("  %s %s, %s, %s" % (op, v(x), v(x), v(t)))
        A("  v_mov_b32 %s, %s" % (v(t), v(x)))
        A("  v_permlane32_swap_b32 %s, %s" % (v(x), v(t)))
        A("  %s %s, %s, %s" % (op, v(x), v(x), v(t)))
    def allred_b2345(op, x, t):
        dpp(op, x, x, x, "row_ror:4")
        dpp(op, x, x, x, "row_ror:8")
        bfly_hi(op, x, t)
    def red16(a):
        for e in range(4): A("  v_permlane32_swap_b32 %s, %s" % (v(a[e]), v(a[e + 4])))
        for e in range(4): A("  v_add_f32 %s, %s, %s" % (v(a[e]), v(a[e]), v(a[e + 4])))
        for e in range(2): A("  v_permlane16_swap_b32 %s, %s" % (v(a[e]), v(a[e + 2])))
        for e in range(2): A("  v_add_f32 %s, %s, %s" % (v(a[e]), v(a[e]), v(a[e + 2])))
        dpp("v_add_f32", a[2], a[0], a[0], "row_ror:8", bm="0x3")
        dpp("v_add_f32", a[2], a[1], a[1], "row_ror:8", bm="0xc")
        dpp("v_add_f32", a[0], a[2], a[2], "row_shl:4")
        dpp("v_add_f32", a[1], a[0], a[0], "quad_perm:[2,3,0,1]")
    def ln_stats(Xr, f, d, vMean, vSd, vR):
        for k in range(4): unpack(f[2 * k], f[2 * k + 1], Xr + k)
        A("  v_readfirstlane_b32 s36, %s" % v(f[0]))
        s1 = d[0]; s2 = d[1]; t = d[2]; t2 = d[3]
        A("  v_subrev_f32 %s, s36, %s" % (v(s1), v(f[1])))
        A("  v_subrev_f32 %s, s36, %s" % (v(t), v(f[0])))
        A("  v_mul_f32 %s, %s, %s" % (v(s2), v(s1), v(s1)))
        A("  v_add_f32 %s, %s, %s" % (v(s1), v(s1), v(t)))
        A("  v_fmac_f32 %s, %s, %s" % (v(s2), v(t), v(t)))
        for k in range(2, 8):
            tt = t if k % 2 else t2
            A("  v_subrev_f32 %s, s36, %s" % (v(tt), v(f[k])))
            A("  v_add_f32 %s, %s, %s" % (v(s1), v(s1), v(tt)))
            A("  v_fmac_f32 %s, %s, %s" % (v(s2), v(tt), v(tt)))
        for ctrl, rm in (("quad_perm:[1,0,3,2]", "0xf"), ("quad_perm:[2,3,0,1]", "0xf"), ("row_half_mirror", "0xf"),
                         ("row_mirror", "0xf"), ("row_bcast:15", "0xa"), ("row_bcast:31", "0xc")):
            dpp("v_add_f32", s1, s1, s1, ctrl, rm=rm)
            dpp("v_add_f32", s2, s2, s2, ctrl, rm=rm)
        A("  v_readlane_b32 s32, %s, 63" % v(s1))
        A("  v_readlane_b32 s33, %s, 63" % v(s2))
        A("  v_mov_b32 %s, %s" % (v(t), INV512))
        A("  v_mul_f32 %s, s32, %s" % (v(s1), v(t)))
        A("  v_mul_f32 %s, s33, %s" % (v(s2), v(t)))
        A("  v_add_f32 %s, s36, %s" % (v(vMean), v(s1)))
        A("  v_fma_f32 %s, -%s, %s, %s" % (v(s2), v(s1), v(s1), v(s2)))
        A("  v_max_f32 %s, 0, %s" % (v(s2), v(s2)))
        A("  v_cvt_pk_bf16_f32 %s, %s, %s" % (v(t), v(vMean), v(s2)))
        A("  v_lshlrev_b32 %s, 16, %s" % (v(vMean), v(t)))
        A("  v_and_b32 %s, 0xffff0000, %s" % (v(s2), v(t)))
        A("  v_add_f32 %s, %s, %s" % (v(s2), EPS, v(s2)))
        round_bf16(s2, s2)
        A("  v_sqrt_f32 %s, %s" % (v(s2), v(s2)))
        round_bf16(vSd, s2)
        A("  v_rcp_f32 %s, %s" % (v(vR), v(vSd)))
    def ln_apply(dst, flo, fhi, vMean, vSd, vR, t, newton):
        A("  v_sub_f32 %s, %s, %s" % (v(flo), v(flo), v(vMean)))
        A("  v_sub_f32 %s, %s, %s" % (v(fhi), v(fhi), v(vMean)))
        A("  v_cvt_pk_bf16_f32 %s, %s, %s" % (v(dst), v(flo), v(fhi)))
        unpack(flo, fhi, dst)
        if newton:
            A("  v_mul_f32 %s, %s, %s" % (v(t[0]), v(flo), v(vR)))
            A("  v_mul_f32 %s, %s, %s" % (v(t[1]), v(fhi), v(vR)))
            A("  v_fma_f32 %s, -%s, %s, %s" % (v(flo), v(t[0]), v(vSd), v(flo)))
            A("  v_fma_f32 %s, -%s, %s, %s" % (v(fhi), v(t[1]), v(vSd), v(fhi)))
            A("  v_fma_f32 %s, %s, %s, %s" % (v(flo), v(flo), v(vR), v(t[0])))
            A("  v_fma_f32 %s, %s, %s, %s" % (v(fhi), v(fhi), v(vR), v(t[1])))
        else:
            A("  v_mul_f32 %s, %s, %s" % (v(flo), v(flo), v(vR)))
            A("  v_mul_f32 %s, %s, %s" % (v(fhi), v(fhi), v(vR)))
        A("  v_cvt_pk_bf16_f32 %s, %s, %s" % (v(dst), v(flo), v(fhi)))
    def next_slot(r):
        A("  s_add_u32 %s, %s, 4096\n  s_and_b32 %s, %s, 0x3fff\n  s_or_b32 %s, %s, %s" % (s(r), s(r), s(r), s(r), s(r), s(r), s(sWB)))
    def issueK():
        A("  s_mov_b32 m0, %s" % s(sSlotI))
        for g in range(4):
            A("  buffer_load_dwordx4 %s, s[4:7], %s offen offset:%d %s lds" % (v(vKd[g]), s(sOff), g * 1024, P["kvflag"]))
        A("  s_add_u32 %s, %s, 32768" % (s(sOff), s(sOff)))
        next_slot(sSlotI)
    def issueV():
        A("  s_mov_b32 m0, %s" % s(sSlotI))
        for g in range(4):
            A("  buffer_load_dwordx4 %s, s[8:11], %s offen offset:%d %s lds" % (v(vVd), s(sOff), g * 1024, P["kvflag"]))
        A("  s_add_u32 %s, %s, 32768" % (s(sOff), s(sOff)))
        next_slot(sSlotI)
    def spin_check(label_retry, label_out=None):
        pass
    nslow = [0]
    def hstore(text):
        k = nslow[0]; nslow[0] += 1
        A("  s_cmp_eq_u32 %s, 1" % s(sFast))
        A("  s_cbranch_scc0 L_slow%d" % k)
        A("  " + text)
        A("L_slowret%d:" % k)
        late.append("L_slow%d:\n  %s sc1\n  s_branch L_slowret%d" % (k, text, k))
    def poll_end(label):
        A("  s_cbranch_scc1 %s_ok" % label)
        if P["psleep"]: A("  s_sleep %d" % P["psleep"])
        A("  s_sub_u32 %s, %s, 1" % (s(sSpin), s(sSpin)))
        A("  s_cmp_lg_u32 %s, 0" % s(sSpin))
        A("  s_cbranch_scc1 %s" % label)
        A("  s_mov_b32 %s, 1" % s(sSpin))
        A("%s_ok:" % label)

    hdr = open("cdna_kernels/%s.s.ref" % NAME.replace("_kernel", "")).read().split("\n")
    for h in hdr:
        if h.startswith(";") and "@launch" not in h and "Override" not in h and "grid=ceil" not in h: A(h)
    A("; @launch grid=(256,1,1) block=(512,1,1) lds=%d" % LDS_TOTAL)
    A('.amdgcn_target "amdgcn-amd-amdhsa--gfx950"')
    A(".text\n.globl %s\n.p2align 8\n.type %s,@function\n%s:" % (NAME, NAME, NAME))
    B = []; HEAD = L; L = B; A = L.append
    stamp(0)
    A("  s_cmp_ge_u32 s2, 256\n  s_cbranch_scc1 L_done")
    A("  s_load_dwordx8 s[44:51], s[0:1], 0")
    A("  s_load_dwordx2 s[12:13], s[0:1], 88")
    A("  v_and_b32 %s, 63, v0" % v(vLane))
    A("  v_lshrrev_b32 %s, 6, v0" % v(T[0]))
    A("  v_readfirstlane_b32 %s, %s" % (s(sWave), v(T[0])))
    A("  v_lshlrev_b32 %s, 4, %s" % (v(vL16), v(vLane)))
    A("  s_lshr_b32 %s, s2, 5\n  s_and_b32 %s, s2, 31\n  s_lshr_b32 %s, s2, 3" % (s(sG), s(sI), s(sJ)))
    A("  s_and_b32 s32, s2, 7\n  s_cmp_eq_u32 s32, 0\n  s_cselect_b32 %s, 1, 0" % s(sTail))
    A("  s_movk_i32 s33, %d\n  s_cselect_b32 s33, %d, s33" % (X, Y))
    A("  v_lshrrev_b32 %s, 1, %s" % (v(T[3]), v(vLane)))
    A("  v_and_b32 %s, 1, %s" % (v(T[4]), v(vLane)))
    A("  s_lshl_b32 s34, %s, 5" % s(sWave))
    A("  v_add_u32 %s, s34, %s" % (v(T[2]), v(T[3])))
    A("  v_lshlrev_b32 %s, 14, %s" % (v(T[1]), v(T[2])))
    A("  v_lshl_add_u32 %s, %s, 4, %s" % (v(T[1]), v(T[4]), v(T[1])))
    A("  v_lshlrev_b32 %s, 2, %s" % (v(T[2]), v(T[2])))
    A("  s_lshl_b32 s34, s32, 6\n  s_lshr_b32 s35, %s, 3\n  s_lshl_b32 s35, s35, 4\n  s_add_u32 s39, s34, s35" % s(sI))
    A("  s_lshl_b32 s34, %s, 9\n  s_add_u32 s34, s34, s39\n  s_lshl_b32 s34, s34, 1" % s(sG))
    A("  v_add_u32 %s, s34, %s" % (v(T[1]), v(T[1])))
    A("  v_add_u32 %s, 0x2000, %s" % (v(T[5]), v(T[1])))
    A("  v_lshrrev_b32 %s, 4, %s" % (v(T[6]), v(vLane)))
    A("  v_and_b32 %s, 15, %s" % (v(T[7]), v(vLane)))
    A("  v_xor_b32 %s, %s, %s" % (v(T[8]), v(T[6]), v(T[7])))
    A("  v_lshlrev_b32 %s, 4, %s" % (v(T[8]), v(T[8])))
    A("  v_lshl_add_u32 %s, %s, 8, %s" % (v(vKd[0]), v(T[6]), v(T[8])))
    for g in range(1, 4): A("  v_xor_b32 %s, %d, %s" % (v(vKd[g]), 64 * g, v(vKd[0])))
    A("  s_mul_i32 s34, %s, %d\n  s_add_u32 s35, %s, 7\n  s_lshr_b32 s35, s35, 3\n  s_mul_i32 s35, s35, %d\n  s_sub_u32 s34, s34, s35" % (s(sI), X, s(sI), X - Y))
    A("  s_add_u32 s34, s34, %s\n  s_lshl_b32 s34, s34, 12\n  s_lshl_b32 s35, %s, 24\n  s_add_u32 %s, s34, s35" % (s(sWave), s(sG), s(sOff0)))
    A("  s_sub_u32 s33, s33, %s\n  s_add_u32 s33, s33, 7\n  s_lshr_b32 %s, s33, 3" % (s(sWave), s(sN)))
    A("  s_lshl_b32 %s, %s, 14" % (s(sWB), s(sWave)))
    A("  s_mov_b32 %s, %s\n  s_mov_b32 %s, %s\n  s_mov_b32 %s, %s" % (s(sSlotC), s(sWB), s(sSlotI), s(sWB), s(sOff), s(sOff0)))
    A("  s_mov_b32 s6, 0x8000000\n  s_mov_b32 s7, 0x20000\n  s_mov_b32 s10, 0x8000000\n  s_mov_b32 s11, 0x20000")
    A("  s_waitcnt lgkmcnt(0)")
    A("  s_load_dword %s, s[12:13], %d" % (s(sTag), EPOCH))
    A("  s_cmp_eq_u32 %s, 7\n  s_cselect_b32 s34, %s, 0\n  s_cmp_eq_u32 s34, 1\n  s_cbranch_scc1 L_reset" % (s(sWave), s(sTail)))
    A("L_resetret:")
    late.append("\n".join([
        "L_reset:",
        "  v_mov_b32 %s, -1" % v(T[9]),
        "  v_lshlrev_b32 %s, 2, %s" % (v(T[10]), v(vLane)),
        "  s_lshl_b32 s34, %s, 8\n  s_add_u32 s34, s34, %d" % (s(sJ), R2),
        "  v_add_u32 %s, s34, %s" % (v(T[11]), v(T[10])),
        "  global_store_dword %s, %s, s[12:13] sc1" % (v(T[11]), v(T[9])),
        "  s_lshl_b32 s34, %s, 5\n  s_add_u32 s34, s34, %d" % (s(sJ), R3),
        "  v_add_u32 %s, s34, %s" % (v(T[12]), v(T[10])),
        "  s_mov_b64 exec, 0xff",
        "  global_store_dword %s, %s, s[12:13] sc1" % (v(T[12]), v(T[9])),
        "  s_mov_b64 exec, -1",
        "  s_mul_i32 s34, %s, 112\n  s_add_u32 s34, s34, %d" % (s(sJ), R4),
        "  v_add_u32 %s, s34, %s" % (v(T[13]), v(T[10])),
        "  s_mov_b64 exec, 0xfffffff",
        "  global_store_dword %s, %s, s[12:13] sc1" % (v(T[13]), v(T[9])),
        "  s_mov_b64 exec, -1",
        "  s_branch L_resetret"]))
    XD = U[0]
    XP = U[4]
    WA = F; WB_ = F + 4
    A("  global_load_dwordx4 %s, %s, s[44:45]" % (v(XD, 4), v(vL16)))
    A("  global_load_dword %s, %s, s[44:45]" % (v(XP), v(T[2])))
    A("  global_load_dwordx4 %s, %s, s[50:51] %s" % (v(WA, 4), v(T[1]), P["wqflag"]))
    A("  global_load_dwordx4 %s, %s, s[50:51] %s" % (v(WB_, 4), v(T[5]), P["wqflag"]))
    A("  s_mov_b32 s4, s46\n  s_and_b32 s5, s47, 0xffff\n  s_mov_b32 s8, s48\n  s_and_b32 s9, s49, 0xffff")
    A("  s_mov_b64 s[14:15], s[44:45]")
    for k in range(burst): issueK()
    A("  v_lshlrev_b32 %s, 8, %s" % (v(vKrd), v(T[7])))
    A("  v_add_u32 %s, %s, %s" % (v(vKrd), v(vKrd), v(T[8])))
    A("  v_lshlrev_b32 %s, 10, %s" % (v(vVrd), v(T[6])))
    A("  v_lshl_add_u32 %s, %s, 3, %s" % (v(vVrd), v(T[7]), v(vVrd)))
    A("  v_and_b32 %s, 3, %s" % (v(T[9]), v(T[3])))
    A("  v_lshlrev_b32 %s, 8, %s" % (v(vVd), v(T[9])))
    A("  v_lshrrev_b32 %s, 3, %s" % (v(T[9]), v(vLane)))
    A("  v_lshl_add_u32 %s, %s, 5, %s" % (v(vVd), v(T[9]), v(vVd)))
    A("  v_lshl_add_u32 %s, %s, 4, %s" % (v(vVd), v(T[4]), v(vVd)))
    A("  s_mul_i32 s34, %s, 2560\n  s_add_u32 s34, s34, %d" % (s(sWave), SC))
    A("  v_and_b32 %s, 3, %s" % (v(T[9]), v(vLane)))
    A("  v_lshl_add_u32 %s, %s, 2, %s" % (v(T[10]), v(T[6]), v(T[9])))
    A("  v_lshlrev_b32 %s, 3, %s" % (v(T[10]), v(T[10])))
    A("  v_add_u32 %s, s34, %s" % (v(vSw), v(T[10])))
    A("  v_bfe_u32 %s, %s, 2, 2" % (v(T[10]), v(vLane)))
    A("  v_lshl_add_u32 %s, %s, 7, %s" % (v(vSr), v(T[10]), v(vSw)))
    A("  v_mov_b32 %s, 0xff80ff80\n  v_mov_b32 %s, 0xff80ff80" % (v(T[10]), v(T[11])))
    for k in range(5): A("  ds_write_b64 %s, %s offset:%d" % (v(vSr), v(T[10], 2), k * 512))
    A("  v_lshlrev_b32 %s, 3, %s" % (v(vRedW), v(T[4])))
    A("  v_lshrrev_b32 %s, 5, %s" % (v(T[12]), v(vLane)))
    A("  v_lshl_add_u32 %s, %s, 2, %s" % (v(vRedW), v(T[12]), v(vRedW)))
    A("  v_bfe_u32 %s, %s, 4, 1" % (v(T[12]), v(vLane)))
    A("  v_lshl_add_u32 %s, %s, 1, %s" % (v(vRedW), v(T[12]), v(vRedW)))
    A("  v_bfe_u32 %s, %s, 3, 1" % (v(T[12]), v(vLane)))
    A("  v_add_u32 %s, %s, %s" % (v(vRedW), v(T[12]), v(vRedW)))
    A("  v_lshlrev_b32 %s, 5, %s" % (v(vRedW), v(vRedW)))
    A("  s_lshl_b32 s34, %s, 2\n  s_add_u32 s34, s34, %d" % (s(sWave), RED0))
    A("  v_add_u32 %s, s34, %s" % (v(vRedW), v(vRedW)))
    A("  s_mov_b32 %s, 0x05040100\n  s_mov_b32 %s, 0x07060302" % (s(sSelLo), s(sSelHi)))
    A("  s_mov_b32 %s, %d\n  s_mov_b32 %s, 0\n  s_mov_b32 %s, 0" % (s(sSpin), P["spin"], s(sDone), s(sFast)))
    A("  s_cmp_eq_u32 %s, 0\n  s_cselect_b32 %s, %d, -1" % (s(sWave), s(sTrig), P["gtrig"]))
    A("  s_getreg_b32 %s, hwreg(HW_REG_XCC_ID, 0, 4)" % s(sXcc))
    A("  s_waitcnt vmcnt(%d)" % (3 + 4 * burst))
    f = T[0:8]; d = T[8:12]; vMean = T[12]; vSd = T[13]; vR = T[14]
    ln_stats(XD, f, d, vMean, vSd, vR)
    A("  s_waitcnt vmcnt(%d)" % (2 + 4 * burst))
    unpack(f[0], f[1], XP)
    ln_apply(XP, f[0], f[1], vMean, vSd, vR, [f[2], f[3]], True)
    A("  s_waitcnt vmcnt(%d) lgkmcnt(0)" % (4 * burst))
    A("  s_add_u32 %s, %s, 1\n  s_and_b32 %s, %s, 0xff" % (s(sTag), s(sTag), s(sT8), s(sTag)))
    a = T[0:8]
    for c in range(4):
        A("  v_perm_b32 %s, %s, %s, %s" % (v(F + 8 + 2 * c), v(WB_ + c), v(WA + c), s(sSelLo)))
        A("  v_perm_b32 %s, %s, %s, %s" % (v(F + 9 + 2 * c), v(WB_ + c), v(WA + c), s(sSelHi)))
    for e in range(8):
        A("  v_dot2_f32_bf16 %s, %s, %s, 0" % (v(a[e]), v(F + 8 + e), v(XP)))
    red16(a)
    setexec(0x0303030303030303)
    A("  ds_write_b32 %s, %s" % (v(vRedW), v(a[1])))
    setexec(-1)
    A("  s_cmp_eq_u32 %s, 7\n  s_cselect_b32 s34, %s, 0\n  s_cmp_eq_u32 s34, 1\n  s_cbranch_scc1 L_reg" % (s(sWave), s(sTail)))
    A("L_regret:")
    late.append("\n".join([
        "L_reg:",
        "  s_lshl_b32 s34, %s, 3\n  s_add_u32 s34, s34, %d" % (s(sJ), REG),
        "  v_mov_b32 %s, s34\n  v_mov_b32 %s, %s\n  v_mov_b32 %s, %s" % (v(T[9]), v(T[10]), s(sXcc), v(T[11]), s(sTag)),
        "  s_mov_b64 exec, 1",
        "  global_store_dwordx2 %s, %s, s[12:13] sc1" % (v(T[9]), v(T[10], 2)),
        "  s_mov_b64 exec, -1",
        "  s_branch L_regret"]))
    A("  s_waitcnt lgkmcnt(0)\n  s_barrier")
    A("  s_cmp_lg_u32 %s, 0\n  s_cbranch_scc1 L_noq" % s(sWave))
    def final16(redoff, q8):
        A("  v_and_b32 %s, 15, %s" % (v(q8[8]), v(vLane)))
        A("  v_lshlrev_b32 %s, 5, %s" % (v(q8[8]), v(q8[8])))
        A("  v_add_u32 %s, %d, %s" % (v(q8[8]), RED0 + redoff, v(q8[8])))
        A("  ds_read_b128 %s, %s" % (v(q8[0], 4), v(q8[8])))
        A("  ds_read_b128 %s, %s offset:16" % (v(q8[4], 4), v(q8[8])))
        A("  s_waitcnt lgkmcnt(0)")
        A("  v_pk_add_f32 %s, %s, %s" % (v(q8[0], 2), v(q8[0], 2), v(q8[2], 2)))
        A("  v_pk_add_f32 %s, %s, %s" % (v(q8[4], 2), v(q8[4], 2), v(q8[6], 2)))
        A("  v_pk_add_f32 %s, %s, %s" % (v(q8[0], 2), v(q8[0], 2), v(q8[4], 2)))
        A("  v_add_f32 %s, %s, %s" % (v(q8[0]), v(q8[0]), v(q8[1])))
    q8 = U[0:9]
    final16(0, q8)
    A("  v_mov_b32_dpp %s, %s quad_perm:[1,1,3,3] row_mask:0xf bank_mask:0xf" % (v(q8[1]), v(q8[0])))
    A("  v_cvt_pk_bf16_f32 %s, %s, %s" % (v(q8[2]), v(q8[0]), v(q8[1])))
    A("  v_mov_b32 %s, %s" % (v(q8[3]), s(sTag)))
    A("  s_lshl_b32 s34, %s, 11\n  s_lshl_b32 s35, s39, 2\n  s_add_u32 s34, s34, s35\n  s_add_u32 s34, s34, %d" % (s(sG), QG))
    A("  v_lshl_add_u32 %s, %s, 2, s34" % (v(q8[4]), v(vLane)))
    A("  s_mov_b64 exec, 0x5555")
    A("  global_store_dwordx2 %s, %s, s[12:13] sc1" % (v(q8[4]), v(q8[2], 2)))
    A("  s_mov_b64 exec, -1")
    A("L_noq:")
    stamp(1)
    A("  s_cmp_eq_u32 %s, 1\n  s_cselect_b32 %s, 0, 1" % (s(sWave), s(sDone)))
    A("  s_lshl_b32 s34, %s, 11\n  s_add_u32 s34, s34, %d" % (s(sG), QG))
    A("  v_add_u32 %s, s34, %s" % (v(T[0]), v(vL16)))
    A("  v_lshlrev_b32 %s, 3, %s\n  v_add_u32 %s, %d, %s" % (v(T[1]), v(vLane), v(T[1]), QL, v(T[1])))
    G0 = U[0]; G1 = U[4]
    def qpoll_issue():
        A("  global_load_dwordx4 %s, %s, s[12:13] sc1" % (v(G0, 4), v(T[0])))
        A("  global_load_dwordx4 %s, %s, s[12:13] offset:1024 sc1" % (v(G1, 4), v(T[0])))
    def qpoll_check():
        A("  v_xor_b32 %s, %s, %s" % (v(T[2]), s(sTag), v(G0 + 1)))
        for r in (G0 + 3, G1 + 1, G1 + 3):
            A("  v_bitop3_b32 %s, %s, %s, %s bitop3:0xf6" % (v(T[2]), v(T[2]), v(r), s(sTag)))
        A("  v_cmp_eq_u32 vcc, 0, %s" % v(T[2]))
        A("  s_cmp_eq_u64 vcc, -1")
    def qwrite():
        A("  ds_write2_b32 %s, %s, %s offset0:0 offset1:1" % (v(T[1]), v(G0), v(G0 + 2)))
        A("  ds_write2_b32 %s, %s, %s offset0:128 offset1:129" % (v(T[1]), v(G1), v(G1 + 2)))
    for k in range(burst, 4):
        A("  s_cmp_eq_u32 %s, 1\n  s_cbranch_scc1 L_pp%da" % (s(sDone), k))
        qpoll_issue()
        A("L_pp%da:" % k)
        A("  s_waitcnt vmcnt(%d)" % P["PW"])
        issueK()
        A("  s_cmp_eq_u32 %s, 1\n  s_cbranch_scc1 L_pp%db" % (s(sDone), k))
        A("  s_waitcnt vmcnt(4)")
        qpoll_check()
        A("  s_cbranch_scc0 L_pp%db" % k)
        qwrite()
        A("  s_mov_b32 %s, 1" % s(sDone))
        A("L_pp%db:" % k)
    A("  s_cmp_eq_u32 %s, 1\n  s_cbranch_scc1 L_qdone" % s(sDone))
    A("L_qpoll:")
    qpoll_issue()
    A("  s_waitcnt vmcnt(0)")
    qpoll_check()
    poll_end("L_qpoll")
    qwrite()
    A("L_qdone:")
    A("  s_waitcnt lgkmcnt(0)\n  s_barrier")
    stamp(2)
    A("  v_and_b32 %s, 3, %s\n  v_lshlrev_b32 %s, 8, %s" % (v(T[0]), v(vLane), v(T[0]), v(T[0])))
    A("  v_lshrrev_b32 %s, 4, %s\n  v_lshl_add_u32 %s, %s, 4, %s" % (v(T[1]), v(vLane), v(T[0]), v(T[1]), v(T[0])))
    A("  v_add_u32 %s, %d, %s" % (v(T[0]), QL, v(T[0])))
    for t in range(4): A("  ds_read_b128 %s, %s offset:%d" % (v(ACC + 4 * t, 4), v(T[0]), 64 * t))
    S = T[4:8]
    assert S[0] % 2 == 0
    def kbody(wait, issue):
        A("  v_add_u32 %s, %s, %s" % (v(T[0]), s(sSlotC), v(vKrd)))
        for t in range(1, 4): A("  v_xor_b32 %s, %d, %s" % (v(T[t]), 64 * t, v(T[0])))
        A("  s_waitcnt vmcnt(%d)" % wait)
        for t in range(4): A("  ds_read_b128 %s, %s" % (v(F + 4 * t, 4), v(T[t])))
        if issue == "K": issueK()
        if issue == "V": issueV()
        next_slot(sSlotC)
        for t in range(4):
            A("  s_waitcnt lgkmcnt(%d)" % (3 - t))
            A("  v_mfma_f32_16x16x32_bf16 %s, %s, %s, %s" % (v(S[0], 4), v(F + 4 * t, 4), v(ACC + 4 * t, 4), "0" if t == 0 else v(S[0], 4)))
        A("  v_cvt_pk_bf16_f32 %s, %s, %s" % (v(T[8]), v(S[0]), v(S[1])))
        A("  v_cvt_pk_bf16_f32 %s, %s, %s" % (v(T[9]), v(S[2]), v(S[3])))
        unpack(T[10], T[11], T[8]); unpack(T[12], T[13], T[9])
        for k in range(4): A("  v_mul_f32 %s, %s, %s" % (v(T[10 + k]), SCALE, v(T[10 + k])))
        A("  v_cvt_pk_bf16_f32 %s, %s, %s" % (v(T[8]), v(T[10]), v(T[11])))
        A("  v_cvt_pk_bf16_f32 %s, %s, %s" % (v(T[9]), v(T[12]), v(T[13])))
        setexec(0x000F000F000F000F)
        A("  ds_write_b64 %s, %s" % (v(vSw), v(T[8], 2)))
        setexec(-1)
        A("  v_add_u32 %s, 128, %s" % (v(vSw), v(vSw)))
    assert T[8] % 2 == 0
    A("  s_waitcnt lgkmcnt(0)")
    for i in range(4 - W): kbody(4 * (3 - i), None)
    A("  s_sub_u32 %s, %s, 4" % (s(sCnt), s(sN)))
    A("L_kloop:")
    kbody(4 * (W - 1), "K")
    A("  s_sub_u32 %s, %s, 1\n  s_cmp_lg_u32 %s, 0\n  s_cbranch_scc1 L_kloop" % (s(sCnt), s(sCnt), s(sCnt)))
    A("  s_mov_b32 %s, %s" % (s(sOff), s(sOff0)))
    for i in range(W): kbody(4 * (W - 1), "V")
    stamp(3)
    PK = F
    FL = ACC
    for k in range(5): A("  ds_read_b64 %s, %s offset:%d" % (v(PK + 2 * k, 2), v(vSr), 512 * k))
    A("  s_lshl_b32 s34, %s, 7" % s(sN))
    A("  v_subrev_u32 %s, s34, %s" % (v(vSw), v(vSw)))
    for k in range(5):
        A("  s_waitcnt lgkmcnt(%d)" % (4 - k))
        unpack(FL + 4 * k, FL + 4 * k + 1, PK + 2 * k); unpack(FL + 4 * k + 2, FL + 4 * k + 3, PK + 2 * k + 1)
    vM = T[0]; vLs = T[1]
    A("  v_max3_f32 %s, %s, %s, %s" % (v(vM), v(FL), v(FL + 1), v(FL + 2)))
    A("  v_max3_f32 %s, %s, %s, %s" % (v(T[2]), v(FL + 3), v(FL + 4), v(FL + 5)))
    for k in range(6, 18, 4):
        A("  v_max3_f32 %s, %s, %s, %s" % (v(vM), v(vM), v(FL + k), v(FL + k + 1)))
        A("  v_max3_f32 %s, %s, %s, %s" % (v(T[2]), v(T[2]), v(FL + k + 2), v(FL + k + 3)))
    A("  v_max3_f32 %s, %s, %s, %s" % (v(vM), v(vM), v(FL + 18), v(FL + 19)))
    A("  v_max_f32 %s, %s, %s" % (v(vM), v(vM), v(T[2])))
    allred_b2345("v_max_f32", vM, T[2])
    A("  s_mov_b32 s34, %s" % LOG2E)
    A("  v_mul_f32 %s, s34, %s" % (v(T[3]), v(vM)))
    for k in range(20): A("  v_fma_f32 %s, %s, s34, -%s" % (v(FL + k), v(FL + k), v(T[3])))
    for k in range(20): A("  v_exp_f32 %s, %s" % (v(FL + k), v(FL + k)))
    for k in range(10): A("  v_cvt_pk_bf16_f32 %s, %s, %s" % (v(PK + k), v(FL + 2 * k), v(FL + 2 * k + 1)))
    for k in range(5): A("  ds_write_b64 %s, %s offset:%d" % (v(vSr), v(PK + 2 * k, 2), 512 * k))
    for step in (10,):
        for k in range(10): A("  v_add_f32 %s, %s, %s" % (v(FL + k), v(FL + k), v(FL + 10 + k)))
    for k in range(5): A("  v_add_f32 %s, %s, %s" % (v(FL + k), v(FL + k), v(FL + 5 + k)))
    A("  v_add_f32 %s, %s, %s" % (v(FL), v(FL), v(FL + 1)))
    A("  v_add_f32 %s, %s, %s" % (v(FL + 2), v(FL + 2), v(FL + 3)))
    A("  v_add_f32 %s, %s, %s" % (v(FL), v(FL), v(FL + 4)))
    A("  v_add_f32 %s, %s, %s" % (v(vLs), v(FL), v(FL + 2)))
    allred_b2345("v_add_f32", vLs, T[2])
    A("  s_lshl_b32 s34, %s, 5\n  s_add_u32 s34, s34, %d" % (s(sWave), MLT))
    A("  v_lshl_add_u32 %s, %s, 3, s34" % (v(T[2]), v(vLane)))
    A("  s_mov_b64 exec, 0xf")
    assert vM % 2 == 0 and vLs == vM + 1
    A("  ds_write_b64 %s, %s" % (v(T[2]), v(vM, 2)))
    A("  s_mov_b64 exec, -1")
    A("  s_waitcnt lgkmcnt(0)\n  s_barrier")
    A("  s_cmp_lg_u32 %s, 0\n  s_cbranch_scc1 L_noml" % s(sWave))
    A("  v_and_b32 %s, 31, %s\n  v_lshlrev_b32 %s, 3, %s\n  v_add_u32 %s, %d, %s" % (v(T[2]), v(vLane), v(T[2]), v(T[2]), v(T[2]), MLT, v(T[2])))
    A("  ds_read_b64 %s, %s" % (v(T[4], 2), v(T[2])))
    A("  s_waitcnt lgkmcnt(0)")
    A("  v_mov_b32 %s, %s" % (v(T[6]), v(T[4])))
    allred_b2345("v_max_f32", T[6], T[2])
    A("  v_sub_f32 %s, %s, %s" % (v(T[4]), v(T[4]), v(T[6])))
    A("  v_mul_f32 %s, %s, %s" % (v(T[4]), LOG2E, v(T[4])))
    A("  v_exp_f32 %s, %s" % (v(T[4]), v(T[4])))
    A("  v_mul_f32 %s, %s, %s" % (v(T[8]), v(T[4]), v(T[5])))
    dpp("v_add_f32", T[8], T[8], T[8], "row_ror:4")
    dpp("v_add_f32", T[8], T[8], T[8], "row_ror:8")
    A("  v_mov_b32 %s, %s" % (v(T[2]), v(T[8])))
    A("  v_permlane16_swap_b32 %s, %s" % (v(T[8]), v(T[2])))
    A("  v_add_f32 %s, %s, %s" % (v(T[8]), v(T[8]), v(T[2])))
    A("  v_mov_b32 %s, %s\n  v_mov_b32 %s, %s" % (v(T[7]), s(sTag), v(T[9]), s(sTag)))
    A("  s_lshl_b32 s34, %s, 11\n  s_lshl_b32 s35, %s, 6\n  s_add_u32 s34, s34, s35\n  s_add_u32 s34, s34, %d" % (s(sG), s(sI), ML))
    A("  v_add_u32 %s, s34, %s" % (v(T[2]), v(vL16)))
    A("  s_mov_b64 exec, 0xf")
    assert T[6] % 2 == 0
    A("  global_store_dwordx4 %s, %s, s[12:13] sc1" % (v(T[2]), v(T[6], 4)))
    A("  s_mov_b64 exec, -1")
    A("L_noml:")
    A("  s_cmp_eq_u32 %s, 0\n  s_cbranch_scc1 L_noweights" % s(sTail))
    A("  s_load_dwordx2 s[44:45], s[0:1], 32")
    A("  s_load_dwordx8 s[48:55], s[0:1], 48")
    A("  v_lshrrev_b32 %s, 1, %s\n  v_and_b32 %s, 1, %s" % (v(T[3]), v(vLane), v(T[4]), v(vLane)))
    A("  v_lshlrev_b32 %s, 4, %s" % (v(T[4]), v(T[4])))
    A("  v_lshl_add_u32 %s, %s, 14, %s" % (v(T[0]), v(T[3]), v(T[4])))
    A("  v_lshl_add_u32 %s, %s, 13, %s" % (v(T[1]), v(T[3]), v(T[4])))
    A("  s_movk_i32 s34, 28672\n  v_mul_lo_u32 %s, %s, s34" % (v(T[2]), v(vLane)))
    A("  s_lshl_b32 s34, %s, 5" % s(sJ))
    A("  v_and_b32 %s, 15, %s\n  v_lshl_add_u32 %s, %s, 1, s34" % (v(T[5]), v(vLane), v(T[5]), v(T[5])))
    A("  global_load_ushort %s, %s, s[14:15]" % (v(vXres), v(T[5])))
    A("  s_waitcnt lgkmcnt(0)")
    A("  s_lshl_b32 s35, %s, 19\n  s_add_u32 s35, s35, s34\n  s_add_u32 s44, s44, s35\n  s_addc_u32 s45, s45, 0" % s(sWave))
    A("  s_lshl_b32 s35, %s, 18\n  s_add_u32 s35, s35, s34\n  s_add_u32 s52, s52, s35\n  s_addc_u32 s53, s53, 0" % s(sWave))
    A("  s_mul_i32 s34, %s, 112\n  s_lshl_b32 s35, %s, 4\n  s_add_u32 s34, s34, s35" % (s(sJ), s(sWave)))
    A("  s_add_u32 s48, s48, s34\n  s_addc_u32 s49, s49, 0\n  s_add_u32 s50, s50, s34\n  s_addc_u32 s51, s51, 0")
    TB = [32, 48]
    groups = []
    for g in range(4): groups.append((44, T[0], [0, 1024, 2048, 3072], 4096, W2 + 16 * g))
    for g in range(2): groups.append((48, T[2], None, 0, W3A + 16 * g))
    for g in range(2): groups.append((50, T[2], None, 0, W3B + 16 * g))
    for g in range(2): groups.append((52, T[1], [0, 1024, 2048, 3072], 4096, W4 + 16 * g))
    def wissue(k):
        sb, vo, offs, adv, dst = groups[k]
        tb = TB[k % 2]
        if offs is not None:
            for r in range(4):
                A("  global_load_dwordx4 %s, %s, %s offset:%d %s" % (v(tb + 4 * r, 4), v(vo), s(sb, 2), offs[r], P["wflag"]))
            A("  s_add_u32 %s, %s, %d\n  s_addc_u32 %s, %s, 0" % (s(sb), s(sb), adv, s(sb + 1), s(sb + 1)))
        else:
            for h in range(2):
                A("  global_load_dwordx4 %s, %s, %s %s" % (v(tb + 8 * h, 4), v(vo), s(sb, 2), P["wflag"]))
                A("  global_load_dwordx4 %s, %s, %s offset:3584 %s" % (v(tb + 8 * h + 4, 4), v(vo), s(sb, 2), P["wflag"]))
                A("  s_add_u32 %s, %s, 7168\n  s_addc_u32 %s, %s, 0" % (s(sb), s(sb), s(sb + 1), s(sb + 1)))
    def wperm(k):
        sb, vo, offs, adv, dst = groups[k]
        tb = TB[k % 2]
        for h in range(2):
            for c in range(4):
                A("  v_perm_b32 %s, %s, %s, %s" % (v(dst + 8 * h + 2 * c), v(tb + 8 * h + 4 + c), v(tb + 8 * h + c), s(sSelLo)))
                A("  v_perm_b32 %s, %s, %s, %s" % (v(dst + 8 * h + 2 * c + 1), v(tb + 8 * h + 4 + c), v(tb + 8 * h + c), s(sSelHi)))
    wissue(0)
    for k in range(1, 4):
        wissue(k); A("  s_waitcnt vmcnt(4)"); wperm(k - 1)
    A("  s_cmp_eq_u32 %s, 7\n  s_cbranch_scc1 L_w7" % s(sWave))
    for k in range(4, 10):
        wissue(k); A("  s_waitcnt vmcnt(4)"); wperm(k - 1)
    A("  s_waitcnt vmcnt(0)"); wperm(9)
    A("  s_branch L_wdone")
    A("L_w7:")
    A("  s_waitcnt vmcnt(0)"); wperm(3)
    A("L_wdone:")
    A("  v_lshlrev_b32 %s, 16, %s" % (v(vXres), v(vXres)))
    A("L_noweights:")
    stamp(4)
    for k in range(32): A("  v_mov_b32 %s, 0" % v(ACC + k))
    PB = T[2]
    assert PB % 2 == 0
    def vbody(wait, issue):
        A("  v_add_u32 %s, %s, %s" % (v(T[0]), s(sSlotC), v(vVrd)))
        A("  ds_read_b64 %s, %s" % (v(PB, 2), v(vSw)))
        A("  v_add_u32 %s, 128, %s" % (v(vSw), v(vSw)))
        A("  s_waitcnt vmcnt(%d)" % wait)
        for b in range(8): A("  ds_read_b64_tr_b16 %s, %s offset:%d" % (v(F + 2 * b, 2), v(T[0]), 128 * b))
        if issue: issueV()
        next_slot(sSlotC)
        for b in range(8):
            A("  s_waitcnt lgkmcnt(%d)" % (7 - b))
            A("  v_mfma_f32_16x16x16_bf16 %s, %s, %s, %s" % (v(ACC + 4 * b, 4), v(F + 2 * b, 2), v(PB, 2), v(ACC + 4 * b, 4)))
    A("  s_sub_u32 %s, %s, %d" % (s(sCnt), s(sN), W))
    A("L_vloop:")
    vbody(4 * (W - 1), True)
    A("  s_cmp_eq_u32 %s, %s\n  s_cbranch_scc1 L_gather" % (s(sCnt), s(sTrig)))
    A("L_gatherret:")
    A("  s_sub_u32 %s, %s, 1\n  s_cmp_lg_u32 %s, 0\n  s_cbranch_scc1 L_vloop" % (s(sCnt), s(sCnt), s(sCnt)))
    for i in range(W): vbody(4 * (W - 1 - i), False)
    stamp(5)
    Lsave = L; L = []; A = L.append
    A("L_gather:")
    A("  s_lshl_b32 s34, %s, 11\n  s_add_u32 s34, s34, %d" % (s(sG), ML))
    A("  v_add_u32 %s, s34, %s" % (v(T[4]), v(vL16)))
    A("  v_and_b32 %s, 31, %s\n  v_lshlrev_b32 %s, 3, %s" % (v(T[5]), v(vLane), v(T[5]), v(T[5])))
    A("  v_add_u32 %s, %d, %s" % (v(T[6]), MLT, v(T[5])))
    A("  ds_read_b64 %s, %s" % (v(U[8], 2), v(T[6])))
    A("L_gpoll:")
    A("  global_load_dwordx4 %s, %s, s[12:13] sc1" % (v(G0, 4), v(T[4])))
    A("  global_load_dwordx4 %s, %s, s[12:13] offset:1024 sc1" % (v(G1, 4), v(T[4])))
    A("  s_waitcnt vmcnt(0)")
    A("  v_xor_b32 %s, %s, %s" % (v(T[7]), s(sTag), v(G0 + 1)))
    for r in (G0 + 3, G1 + 1, G1 + 3):
        A("  v_bitop3_b32 %s, %s, %s, %s bitop3:0xf6" % (v(T[7]), v(T[7]), v(r), s(sTag)))
    A("  v_cmp_eq_u32 vcc, 0, %s" % v(T[7]))
    A("  s_cmp_eq_u64 vcc, -1")
    poll_end("L_gpoll")
    A("  v_max_f32 %s, %s, %s" % (v(T[8]), v(G0), v(G1)))
    allred_b2345("v_max_f32", T[8], T[7])
    A("  v_sub_f32 %s, %s, %s\n  v_sub_f32 %s, %s, %s" % (v(G0), v(G0), v(T[8]), v(G1), v(G1), v(T[8])))
    A("  s_waitcnt lgkmcnt(0)")
    A("  v_sub_f32 %s, %s, %s" % (v(U[8]), v(U[8]), v(T[8])))
    for r in (G0, G1, U[8]): A("  v_mul_f32 %s, %s, %s" % (v(r), LOG2E, v(r)))
    for r in (G0, G1, U[8]): A("  v_exp_f32 %s, %s" % (v(r), v(r)))
    A("  v_mul_f32 %s, %s, %s" % (v(T[9]), v(G0), v(G0 + 2)))
    A("  v_fmac_f32 %s, %s, %s" % (v(T[9]), v(G1), v(G1 + 2)))
    allred_b2345("v_add_f32", T[9], T[7])
    A("  v_rcp_f32 %s, %s" % (v(T[9]), v(T[9])))
    A("  v_mul_f32 %s, %s, %s" % (v(U[8]), v(U[8]), v(T[9])))
    A("  v_and_b32 %s, 3, %s\n  v_bfe_u32 %s, %s, 2, 3" % (v(T[7]), v(vLane), v(T[8]), v(vLane)))
    A("  v_lshl_add_u32 %s, %s, 3, %s\n  v_lshlrev_b32 %s, 2, %s\n  v_add_u32 %s, %d, %s" % (v(T[7]), v(T[7]), v(T[8]), v(T[7]), v(T[7]), v(T[7]), FT, v(T[7])))
    A("  s_mov_b32 exec_hi, 0")
    A("  ds_write_b32 %s, %s" % (v(T[7]), v(U[8])))
    A("  s_mov_b64 exec, -1")
    A("  s_cmp_eq_u32 %s, 0\n  s_cbranch_scc1 L_gatherret" % s(sTail))
    A("  v_add_u32 %s, %d, %s" % (v(T[5]), REG, v(T[5])))
    A("L_rpoll:")
    A("  global_load_dwordx2 %s, %s, s[12:13] sc1" % (v(G0, 2), v(T[5])))
    A("  s_waitcnt vmcnt(0)")
    A("  v_cmp_eq_u32 vcc, %s, %s" % (s(sTag), v(G0 + 1)))
    A("  s_cmp_eq_u64 vcc, -1")
    poll_end("L_rpoll")
    A("  v_cmp_eq_u32 vcc, %s, %s" % (s(sXcc), v(G0)))
    A("  s_cmp_eq_u64 vcc, -1\n  s_cselect_b32 s34, %d, 0" % (0 if P["forceslow"] else 1))
    A("  v_mov_b32 %s, s34\n  v_mov_b32 %s, %d" % (v(T[7]), v(T[8]), FLAG))
    A("  s_mov_b64 exec, 1")
    A("  ds_write_b32 %s, %s" % (v(T[8]), v(T[7])))
    A("  s_mov_b64 exec, -1")
    A("  s_branch L_gatherret")
    late.append("\n".join(L)); L = Lsave; A = L.append
    A("L_final:")
    A("  v_and_b32 %s, 3, %s\n  s_movk_i32 s34, 576\n  v_mul_lo_u32 %s, %s, s34" % (v(T[0]), v(vLane), v(T[0]), v(T[0])))
    A("  v_lshrrev_b32 %s, 4, %s\n  v_lshl_add_u32 %s, %s, 4, %s\n  v_add_u32 %s, %s, %s" % (v(T[1]), v(vLane), v(T[0]), v(T[1]), v(T[0]), v(T[0]), s(sWB), v(T[0])))
    setexec(0x000F000F000F000F)
    for b in range(8): A("  ds_write_b128 %s, %s offset:%d" % (v(T[0]), v(ACC + 4 * b, 4), 64 * b))
    setexec(-1)
    A("  s_lshr_b32 s34, %s, 1\n  s_and_b32 s35, %s, 1\n  s_lshl_b32 s35, s35, 8" % (s(sWave), s(sWave)))
    A("  s_mul_i32 s36, s34, 576\n  s_add_u32 s36, s36, s35")
    A("  v_lshl_add_u32 %s, %s, 2, s36" % (v(T[0]), v(vLane)))
    A("  v_add_u32 %s, 0x10000, %s" % (v(T[1]), v(T[0])))
    A("  s_lshl_b32 s36, s34, 5\n  s_add_u32 s36, s36, %d\n  v_mov_b32 %s, s36" % (FT, v(T[2])))
    A("  s_lshl_b32 s36, %s, 2\n  s_add_u32 s36, s36, s34\n  s_lshl_b32 s36, s36, 14\n  s_add_u32 s36, s36, s35" % s(sG))
    A("  s_lshl_b32 s34, %s, 9\n  s_add_u32 s36, s36, s34\n  s_add_u32 s36, s36, %d" % (s(sI), P1))
    A("  v_lshl_add_u32 %s, %s, 2, s36" % (v(T[3]), v(vLane)))
    A("  v_mov_b32 %s, %s\n  s_movk_i32 s34, 0xff" % (v(T[4]), s(sT8)))
    A("  v_mov_b32 %s, %d" % (v(T[5]), FLAG))
    A("  s_waitcnt lgkmcnt(0)\n  s_barrier")
    O8 = F; F8 = F + 8
    A("  ds_read2st64_b32 %s, %s offset0:0 offset1:64" % (v(O8, 2), v(T[0])))
    A("  ds_read2st64_b32 %s, %s offset0:128 offset1:192" % (v(O8 + 2, 2), v(T[0])))
    A("  ds_read2st64_b32 %s, %s offset0:0 offset1:64" % (v(O8 + 4, 2), v(T[1])))
    A("  ds_read2st64_b32 %s, %s offset0:128 offset1:192" % (v(O8 + 6, 2), v(T[1])))
    A("  ds_read_b128 %s, %s" % (v(F8, 4), v(T[2])))
    A("  ds_read_b128 %s, %s offset:16" % (v(F8 + 4, 4), v(T[2])))
    A("  ds_read_b32 %s, %s" % (v(T[6]), v(T[5])))
    A("  s_waitcnt lgkmcnt(1)")
    A("  v_pk_mul_f32 %s, %s, %s" % (v(O8, 2), v(O8, 2), v(F8, 2)))
    A("  v_pk_mul_f32 %s, %s, %s" % (v(O8 + 4, 2), v(O8 + 4, 2), v(F8 + 4, 2)))
    A("  v_pk_fma_f32 %s, %s, %s, %s" % (v(O8, 2), v(O8 + 2, 2), v(F8 + 2, 2), v(O8, 2)))
    A("  v_pk_fma_f32 %s, %s, %s, %s" % (v(O8 + 4, 2), v(O8 + 6, 2), v(F8 + 6, 2), v(O8 + 4, 2)))
    A("  v_pk_add_f32 %s, %s, %s" % (v(O8, 2), v(O8, 2), v(O8 + 4, 2)))
    A("  v_add_f32 %s, %s, %s" % (v(O8), v(O8), v(O8 + 1)))
    A("  v_bfi_b32 %s, s34, %s, %s" % (v(O8), v(T[4]), v(O8)))
    A("  global_store_dword %s, %s, s[12:13] sc1" % (v(T[3]), v(O8)))
    stamp(6)
    if P["stamps"]:
        for k in range(7, 12): stamp(k)
    A("  s_cmp_eq_u32 %s, 0\n  s_cbranch_scc1 L_end" % s(sTail))
    A("  s_waitcnt lgkmcnt(0)")
    A("  v_readfirstlane_b32 %s, %s" % (s(sFast), v(T[6])))
    aP1 = T[0]; aR2 = T[1]; aR3 = T[2]; aR4 = T[3]
    A("  v_lshrrev_b32 %s, 1, %s\n  v_and_b32 %s, 1, %s" % (v(T[4]), v(vLane), v(T[5]), v(vLane)))
    A("  s_lshl_b32 s34, %s, 10\n  s_add_u32 s34, s34, %d\n  v_lshl_add_u32 %s, %s, 5, s34" % (s(sWave), R2, v(aR2), v(T[4])))
    A("  v_add_u32 %s, %d, %s" % (v(aR3), R3, v(vL16)))
    A("  s_min_u32 s35, %s, 6\n  s_lshl_b32 s34, s35, 9\n  s_add_u32 s34, s34, %d\n  v_lshl_add_u32 %s, %s, 4, s34" % (s(sWave), R4, v(aR4), v(T[4])))
    A("  global_load_dwordx4 %s, %s, s[12:13] sc1" % (v(U[0], 4), v(aR2)))
    A("  global_load_dwordx4 %s, %s, s[12:13] sc1" % (v(U[4], 4), v(aR3)))
    A("  global_load_dwordx4 %s, %s, s[12:13] sc1" % (v(U[8], 4), v(aR4)))
    A("  s_lshl_b32 s34, %s, 14\n  s_lshl_b32 s35, %s, 6\n  s_add_u32 s34, s34, s35\n  s_add_u32 s34, s34, %d" % (s(sJ), s(sWave), P1))
    A("  v_lshl_add_u32 %s, %s, 9, s34\n  v_lshl_add_u32 %s, %s, 5, %s" % (v(aP1), v(T[4]), v(aP1), v(T[5]), v(aP1)))
    A("  v_lshrrev_b32 %s, 4, %s\n  v_lshrrev_b32 %s, 5, %s\n  v_and_b32 %s, 1, %s" % (v(T[6]), v(vLane), v(T[7]), v(vLane), v(T[6]), v(T[6])))
    A("  v_lshl_add_u32 %s, %s, 1, %s\n  v_lshl_add_u32 %s, %s, 2, %s" % (v(T[6]), v(T[7]), v(T[6]), v(T[6]), v(T[5]), v(T[6])))
    A("  s_lshl_b32 s34, %s, 8\n  s_lshl_b32 s35, %s, 5\n  s_add_u32 s34, s34, s35\n  s_add_u32 s34, s34, %d" % (s(sJ), s(sWave), R2))
    A("  v_lshl_add_u32 %s, %s, 2, s34" % (v(T[6]), v(T[6])))
    A8 = [F + k for k in range(8)]
    A("L_h1:")
    A("  global_load_dwordx4 %s, %s, s[12:13] sc1" % (v(A8[0], 4), v(aP1)))
    A("  global_load_dwordx4 %s, %s, s[12:13] offset:16 sc1" % (v(A8[4], 4), v(aP1)))
    A("  s_waitcnt vmcnt(0)")
    A("  v_xor_b32 %s, %s, %s" % (v(T[7]), s(sT8), v(A8[0])))
    for k in range(1, 8): A("  v_bitop3_b32 %s, %s, %s, %s bitop3:0xf6" % (v(T[7]), v(T[7]), v(A8[k]), s(sT8)))
    A("  v_and_b32 %s, 0xff, %s" % (v(T[7]), v(T[7])))
    A("  v_cmp_eq_u32 vcc, 0, %s" % v(T[7]))
    A("  s_cmp_eq_u64 vcc, -1")
    poll_end("L_h1")
    stamp(7)
    red16(A8)
    A("  v_mov_b32_dpp %s, %s row_ror:8 row_mask:0xf bank_mask:0xf" % (v(A8[2]), v(A8[1])))
    A("  v_cvt_pk_bf16_f32 %s, %s, %s" % (v(A8[0]), v(A8[1]), v(A8[2])))
    A("  v_min_u32 %s, -2, %s" % (v(A8[0]), v(A8[0])))
    setexec(0x0003000300030003)
    hstore("global_store_dword %s, %s, s[12:13]" % (v(T[6]), v(A8[0])))
    setexec(-1)
    XO = U[0]
    def chk_sent(regs, t):
        if len(regs) == 8:
            A("  v_max3_u32 %s, %s, %s, %s" % (v(t), v(regs[0]), v(regs[1]), v(regs[2])))
            A("  v_max3_u32 %s, %s, %s, %s" % (v(t + 1), v(regs[3]), v(regs[4]), v(regs[5])))
            A("  v_max3_u32 %s, %s, %s, %s" % (v(t), v(t), v(regs[6]), v(regs[7])))
            A("  v_max_u32 %s, %s, %s" % (v(t), v(t), v(t + 1)))
        else:
            A("  v_max3_u32 %s, %s, %s, %s" % (v(t), v(regs[0]), v(regs[1]), v(regs[2])))
            A("  v_max_u32 %s, %s, %s" % (v(t), v(t), v(regs[3])))
        A("  v_cmp_ne_u32 vcc, -1, %s" % v(t))
        A("  s_cmp_eq_u64 vcc, -1")
    A("L_h2:")
    A("  global_load_dwordx4 %s, %s, s[12:13] sc1" % (v(XO, 4), v(aR2)))
    A("  global_load_dwordx4 %s, %s, s[12:13] offset:16 sc1" % (v(XO + 4, 4), v(aR2)))
    A("  s_waitcnt vmcnt(0)")
    chk_sent([XO + k for k in range(8)], T[8])
    poll_end("L_h2")
    stamp(8)
    for t in range(8):
        for e in range(8):
            if t == 0: A("  v_dot2_f32_bf16 %s, %s, %s, 0" % (v(A8[e]), v(W2 + e), v(XO)))
            else: A("  v_dot2c_f32_bf16 %s, %s, %s" % (v(A8[e]), v(W2 + 8 * t + e), v(XO + t)))
    red16(A8)
    setexec(0x0303030303030303)
    A("  ds_write_b32 %s, %s offset:512" % (v(vRedW), v(A8[1])))
    setexec(-1)
    A("  s_waitcnt lgkmcnt(0)\n  s_barrier")
    A("  s_cmp_lg_u32 %s, 0\n  s_cbranch_scc1 L_h3" % s(sWave))
    q8 = [F + k for k in range(9)]
    final16(512, q8)
    round_bf16(q8[0], q8[0])
    A("  v_add_f32 %s, %s, %s" % (v(vXres), v(vXres), v(q8[0])))
    A("  v_mov_b32_dpp %s, %s quad_perm:[1,1,3,3] row_mask:0xf bank_mask:0xf" % (v(q8[1]), v(vXres)))
    A("  v_cvt_pk_bf16_f32 %s, %s, %s" % (v(q8[2]), v(vXres), v(q8[1])))
    A("  v_min_u32 %s, -2, %s" % (v(q8[2]), v(q8[2])))
    A("  s_lshl_b32 s34, %s, 5\n  s_add_u32 s34, s34, %d" % (s(sJ), R3))
    A("  v_lshl_add_u32 %s, %s, 1, s34" % (v(q8[4]), v(vLane)))
    A("  s_mov_b64 exec, 0x5555")
    hstore("global_store_dword %s, %s, s[12:13]" % (v(q8[4]), v(q8[2])))
    A("  s_mov_b64 exec, -1")
    round_bf16(vXres, vXres)
    A("L_h3:")
    A("  s_cmp_eq_u32 %s, 7\n  s_cbranch_scc1 L_w7tail" % s(sWave))
    A("L_h3p:")
    A("  global_load_dwordx4 %s, %s, s[12:13] sc1" % (v(XO, 4), v(aR3)))
    A("  s_waitcnt vmcnt(0)")
    chk_sent([XO + k for k in range(4)], T[8])
    poll_end("L_h3p")
    stamp(9)
    f = [F + k for k in range(8)]; d = T[8:12]
    ln_stats(XO, f, d, T[12], T[13], T[14])
    for k in range(4): ln_apply(XO + k, f[2 * k], f[2 * k + 1], T[12], T[13], T[14], None, False)
    GA = [F + k for k in range(8)]; UA = [F + 8 + k for k in range(8)]
    for k in range(4):
        for e in range(8):
            for acc, wb in ((GA, W3A), (UA, W3B)):
                if k == 0: A("  v_dot2_f32_bf16 %s, %s, %s, 0" % (v(acc[e]), v(wb + e), v(XO)))
                else: A("  v_dot2c_f32_bf16 %s, %s, %s" % (v(acc[e]), v(wb + 8 * k + e), v(XO + k)))
    for e in range(8): A("  v_permlane32_swap_b32 %s, %s" % (v(GA[e]), v(UA[e])))
    for e in range(8): A("  v_add_f32 %s, %s, %s" % (v(GA[e]), v(GA[e]), v(UA[e])))
    for e in range(4): A("  v_permlane16_swap_b32 %s, %s" % (v(GA[e]), v(GA[e + 4])))
    for e in range(4): A("  v_add_f32 %s, %s, %s" % (v(GA[e]), v(GA[e]), v(GA[e + 4])))
    for e in range(2):
        dpp("v_add_f32", GA[4 + e], GA[e], GA[e], "row_ror:8", bm="0x3")
        dpp("v_add_f32", GA[4 + e], GA[e + 2], GA[e + 2], "row_ror:8", bm="0xc")
    dpp("v_add_f32", GA[0], GA[4], GA[4], "row_shl:4", bm="0x5")
    dpp("v_add_f32", GA[0], GA[5], GA[5], "row_shr:4", bm="0xa")
    dpp("v_add_f32", GA[0], GA[0], GA[0], "quad_perm:[1,0,3,2]")
    dpp("v_add_f32", GA[0], GA[0], GA[0], "quad_perm:[2,3,0,1]")
    round_bf16(GA[0], GA[0])
    A("  v_mov_b32 %s, %s" % (v(GA[1]), v(GA[0])))
    A("  v_permlane32_swap_b32 %s, %s" % (v(GA[0]), v(GA[1])))
    A("  v_mul_f32 %s, 0xbfb8aa3b, %s" % (v(GA[2]), v(GA[0])))
    A("  v_exp_f32 %s, %s" % (v(GA[2]), v(GA[2])))
    A("  v_add_f32 %s, 1.0, %s" % (v(GA[2]), v(GA[2])))
    A("  v_rcp_f32 %s, %s" % (v(GA[2]), v(GA[2])))
    A("  v_mul_f32 %s, %s, %s" % (v(GA[0]), v(GA[0]), v(GA[2])))
    round_bf16(GA[0], GA[0])
    A("  v_mul_f32 %s, %s, %s" % (v(GA[0]), v(GA[0]), v(GA[1])))
    A("  v_mov_b32_dpp %s, %s row_shl:4 row_mask:0xf bank_mask:0xf" % (v(GA[1]), v(GA[0])))
    A("  v_cvt_pk_bf16_f32 %s, %s, %s" % (v(GA[2]), v(GA[0]), v(GA[1])))
    A("  v_min_u32 %s, -2, %s" % (v(GA[2]), v(GA[2])))
    A("  s_mul_i32 s34, %s, 112\n  s_lshl_b32 s35, %s, 4\n  s_add_u32 s34, s34, s35\n  s_add_u32 s34, s34, %d" % (s(sJ), s(sWave), R4))
    A("  v_lshrrev_b32 %s, 1, %s\n  v_add_u32 %s, s34, %s" % (v(GA[3]), v(vLane), v(GA[3]), v(GA[3])))
    A("  s_mov_b64 exec, 0x01010101")
    hstore("global_store_dword %s, %s, s[12:13]" % (v(GA[3]), v(GA[2])))
    A("  s_mov_b64 exec, -1")
    A("L_h4:")
    A("  global_load_dwordx4 %s, %s, s[12:13] sc1" % (v(XO, 4), v(aR4)))
    A("  s_waitcnt vmcnt(0)")
    chk_sent([XO + k for k in range(4)], T[8])
    poll_end("L_h4")
    stamp(10)
    for t in range(4):
        for e in range(8):
            if t == 0: A("  v_dot2_f32_bf16 %s, %s, %s, 0" % (v(A8[e]), v(W4 + e), v(XO)))
            else: A("  v_dot2c_f32_bf16 %s, %s, %s" % (v(A8[e]), v(W4 + 8 * t + e), v(XO + t)))
    red16(A8)
    A("L_w7join:")
    setexec(0x0303030303030303)
    A("  ds_write_b32 %s, %s offset:1024" % (v(vRedW), v(A8[1])))
    setexec(-1)
    late.append("L_w7tail:\n  v_mov_b32 %s, 0\n  s_branch L_w7join" % v(A8[1]))
    A("  s_waitcnt lgkmcnt(0)\n  s_barrier")
    A("  s_cmp_lg_u32 %s, 0\n  s_cbranch_scc1 L_end" % s(sWave))
    final16(1024, q8)
    round_bf16(q8[0], q8[0])
    A("  v_add_f32 %s, %s, %s" % (v(q8[0]), v(vXres), v(q8[0])))
    if P["err"]:
        import struct
        A("  v_mul_f32 %s, 0x%08x, %s" % (v(q8[0]), struct.unpack("<I", struct.pack("<f", 1.0 + P["err"] / 1000.0))[0], v(q8[0])))
    A("  v_mov_b32_dpp %s, %s quad_perm:[1,1,3,3] row_mask:0xf bank_mask:0xf" % (v(q8[1]), v(q8[0])))
    A("  v_cvt_pk_bf16_f32 %s, %s, %s" % (v(q8[2]), v(q8[0]), v(q8[1])))
    A("  s_lshl_b32 s34, %s, 5" % s(sJ))
    A("  v_lshl_add_u32 %s, %s, 1, s34" % (v(q8[4]), v(vLane)))
    A("  s_mov_b64 exec, 0x5555")
    A("  global_store_dword %s, %s, s[54:55]" % (v(q8[4]), v(q8[2])))
    A("  s_mov_b64 exec, 1")
    A("  s_cmp_lg_u32 %s, 0\n  s_cbranch_scc1 L_noepoch" % s(sJ))
    A("  v_mov_b32 %s, %d\n  v_mov_b32 %s, %s" % (v(q8[5]), EPOCH, v(q8[6]), s(sTag)))
    A("  global_store_dword %s, %s, s[12:13]" % (v(q8[5]), v(q8[6])))
    A("L_noepoch:")
    A("  s_mov_b64 exec, -1")
    stamp(11)
    A("L_end:")
    if P["stamps"]:
        A("  s_cmp_lg_u32 %s, 0\n  s_cbranch_scc1 L_done" % s(sWave))
        A("  s_waitcnt vmcnt(0)")
        stamp(12)
        A("  s_waitcnt lgkmcnt(0)")
        A("  s_add_u32 s12, s12, 0x10000000\n  s_addc_u32 s13, s13, 0")
        A("  s_mul_i32 s34, s2, 112\n  v_mov_b32 v14, s34")
        A("  s_getreg_b32 s86, hwreg(HW_REG_XCC_ID)\n  s_getreg_b32 s87, hwreg(HW_REG_HW_ID)")
        A("  s_mov_b64 exec, 1")
        for k in range(14):
            A("  v_mov_b32 v16, s%d\n  v_mov_b32 v17, s%d" % (60 + 2 * k, 61 + 2 * k))
            A("  global_store_dwordx2 v14, v[16:17], s[12:13] offset:%d" % (8 * k))
        A("  s_waitcnt vmcnt(0)")
    A("L_done:\n  s_endpgm")
    for blk in late: A(blk)
    body = auto_nop(L)
    out = HEAD + body
    out.append('.section .rodata,"a"\n.p2align 6\n.amdhsa_kernel %s' % NAME)
    out.append("  .amdhsa_next_free_vgpr 256\n  .amdhsa_next_free_sgpr 96\n  .amdhsa_accum_offset 256")
    out.append("  .amdhsa_group_segment_fixed_size 0\n  .amdhsa_kernarg_size 96\n  .amdhsa_user_sgpr_count 2\n  .amdhsa_user_sgpr_kernarg_segment_ptr 1\n  .amdhsa_system_sgpr_workgroup_id_x 1")
    out.append("  .amdhsa_float_denorm_mode_32 3\n.end_amdhsa_kernel")
    return "\n".join(out) + "\n"

if __name__ == "__main__":
    kw = {}
    for kv in sys.argv[2:]:
        k, val = kv.split("=")
        if val.lstrip("-").isdigit(): val = int(val)
        else: val = val.replace("+", " ").replace("none", "")
        kw[k] = val
    open(sys.argv[1], "w").write(gen(**kw))
```

```python
import sys, struct
from asmlib import auto_nop
NAME = "sequential_preLN__gqa_block_cached__glu_gated_swiglu__decode_kernel"

DEF = dict(X=133, W=2, PW=4, stamps="", wqflag="nt", wflag="nt", kvflag="nt", spin=400000, gtrig=3,
           psleep=1, codepf=1, err=0, forceslow=0, sw=0, ordbar=1, k1early=1)

EPOCH = 0; QG = 0x10000; ML = 0x8000; REG = 0xC000; R3 = 0xD000; P1 = 0x20000; PA = 0xA0000; PB = 0xB0000
SC = 131072; QL = SC + 8 * 2560; MLT = QL + 1024; FT = MLT + 256; FLAG = FT + 128; RED0 = 153088; LDS_TOTAL = RED0 + 2048
LOG2E = "0x3fb8aa3b"; SCALE = "0x3db504f3"; EPS = "0x3727c5ac"; INV512 = "0x3b000000"

vLane = 1; vL16 = 2; vKd = [3, 4, 5, 6]; vVd = 7; vKrd = 8; vVrd = 9; vSw = 10; vSr = 11; vXres = 12; vT8 = 13
T = list(range(14, 32))
F = 32
ACC = 48
U = list(range(80, 96))
W2 = 96; W3A = 160; W3B = 192; W4 = 224
sWave = 3; sG = 18; sI = 19; sTail = 20; sJ = 21; sN = 22; sCnt = 23; sOff = 24; sOff0 = 25; sSlotC = 26; sSlotI = 27
sWB = 28; sTag = 29; sT8 = 30; sSpin = 31; sDone = 40; sFast = 41; sTrig = 42; sXcc = 43
sSelLo = 37; sSelHi = 38; sFF = 39

def v(i, n=1): return "v%d" % i if n == 1 else "v[%d:%d]" % (i, i + n - 1)
def s(i, n=1): return "s%d" % i if n == 1 else "s[%d:%d]" % (i, i + n - 1)

def gen(**kw):
    P = dict(DEF); P.update(kw)
    X = P["X"]; Y = 1024 - 7 * X; W = P["W"]
    assert 0 < Y <= X and (X + 7) // 8 <= 20 and Y >= 8 * 5
    L = []; A = L.append
    late = []
    SLIST = P["stamps"].split(",") if P["stamps"] else []
    def stamp(k):
        k = str(k)
        if k in SLIST:
            A("  s_memrealtime %s" % s(68 + 2 * SLIST.index(k), 2))
    def setexec(mask):
        if mask == -1:
            A("  s_mov_b64 exec, -1")
        else:
            lo = mask & 0xffffffff; hi = mask >> 32
            A("  s_mov_b32 exec_lo, 0x%x\n  s_mov_b32 exec_hi, 0x%x" % (lo, hi))
    def round_bf16(dst, src):
        A("  v_cvt_pk_bf16_f32 %s, %s, %s" % (v(dst), v(src), v(src)))
        A("  v_and_b32 %s, 0xffff0000, %s" % (v(dst), v(dst)))
    def unpack(lo, hi, src):
        A("  v_lshlrev_b32 %s, 16, %s" % (v(lo), v(src)))
        A("  v_and_b32 %s, 0xffff0000, %s" % (v(hi), v(src)))
    def dpp(op, d, a, b, ctrl, rm="0xf", bm="0xf"):
        A("  %s_dpp %s, %s, %s %s row_mask:%s bank_mask:%s" % (op, v(d), v(a), v(b), ctrl, rm, bm))
    def bfly_hi(op, x, t):
        A("  v_mov_b32 %s, %s" % (v(t), v(x)))
        A("  v_permlane16_swap_b32 %s, %s" % (v(x), v(t)))
        A("  %s %s, %s, %s" % (op, v(x), v(x), v(t)))
        A("  v_mov_b32 %s, %s" % (v(t), v(x)))
        A("  v_permlane32_swap_b32 %s, %s" % (v(x), v(t)))
        A("  %s %s, %s, %s" % (op, v(x), v(x), v(t)))
    def allred_b2345(op, x, t):
        dpp(op, x, x, x, "row_ror:4")
        dpp(op, x, x, x, "row_ror:8")
        bfly_hi(op, x, t)
    def red345(a):
        for e in range(4): A("  v_permlane32_swap_b32 %s, %s" % (v(a[e]), v(a[e + 4])))
        for e in range(4): A("  v_add_f32 %s, %s, %s" % (v(a[e]), v(a[e]), v(a[e + 4])))
        for e in range(2): A("  v_permlane16_swap_b32 %s, %s" % (v(a[e]), v(a[e + 2])))
        for e in range(2): A("  v_add_f32 %s, %s, %s" % (v(a[e]), v(a[e]), v(a[e + 2])))
        dpp("v_add_f32", a[2], a[0], a[0], "row_ror:8", bm="0x3")
        dpp("v_add_f32", a[2], a[1], a[1], "row_ror:8", bm="0xc")
    def red16(a):
        red345(a)
        dpp("v_add_f32", a[0], a[2], a[2], "row_shl:4")
        dpp("v_add_f32", a[1], a[0], a[0], "quad_perm:[2,3,0,1]")
    def sum8(q):
        A("  v_pk_add_f32 %s, %s, %s" % (v(q, 2), v(q, 2), v(q + 2, 2)))
        A("  v_pk_add_f32 %s, %s, %s" % (v(q + 4, 2), v(q + 4, 2), v(q + 6, 2)))
        A("  v_pk_add_f32 %s, %s, %s" % (v(q, 2), v(q, 2), v(q + 4, 2)))
        A("  v_add_f32 %s, %s, %s" % (v(q), v(q), v(q + 1)))
    def ln_stats(f, d, vMean, vSd, vR):
        A("  v_readfirstlane_b32 s36, %s" % v(f[0]))
        s1 = d[0]; s2 = d[1]; t = d[2]; t2 = d[3]
        A("  v_subrev_f32 %s, s36, %s" % (v(s1), v(f[1])))
        A("  v_subrev_f32 %s, s36, %s" % (v(t), v(f[0])))
        A("  v_mul_f32 %s, %s, %s" % (v(s2), v(s1), v(s1)))
        A("  v_add_f32 %s, %s, %s" % (v(s1), v(s1), v(t)))
        A("  v_fmac_f32 %s, %s, %s" % (v(s2), v(t), v(t)))
        for k in range(2, 8):
            tt = t if k % 2 else t2
            A("  v_subrev_f32 %s, s36, %s" % (v(tt), v(f[k])))
            A("  v_add_f32 %s, %s, %s" % (v(s1), v(s1), v(tt)))
            A("  v_fmac_f32 %s, %s, %s" % (v(s2), v(tt), v(tt)))
        for ctrl, rm in (("quad_perm:[1,0,3,2]", "0xf"), ("quad_perm:[2,3,0,1]", "0xf"), ("row_half_mirror", "0xf"),
                         ("row_mirror", "0xf"), ("row_bcast:15", "0xa"), ("row_bcast:31", "0xc")):
            dpp("v_add_f32", s1, s1, s1, ctrl, rm=rm)
            dpp("v_add_f32", s2, s2, s2, ctrl, rm=rm)
        A("  v_readlane_b32 s32, %s, 63" % v(s1))
        A("  v_readlane_b32 s33, %s, 63" % v(s2))
        A("  v_mov_b32 %s, %s" % (v(t), INV512))
        A("  v_mul_f32 %s, s32, %s" % (v(s1), v(t)))
        A("  v_mul_f32 %s, s33, %s" % (v(s2), v(t)))
        A("  v_add_f32 %s, s36, %s" % (v(vMean), v(s1)))
        A("  v_fma_f32 %s, -%s, %s, %s" % (v(s2), v(s1), v(s1), v(s2)))
        A("  v_max_f32 %s, 0, %s" % (v(s2), v(s2)))
        A("  v_cvt_pk_bf16_f32 %s, %s, %s" % (v(t), v(vMean), v(s2)))
        A("  v_lshlrev_b32 %s, 16, %s" % (v(vMean), v(t)))
        A("  v_and_b32 %s, 0xffff0000, %s" % (v(s2), v(t)))
        A("  v_add_f32 %s, %s, %s" % (v(s2), EPS, v(s2)))
        round_bf16(s2, s2)
        A("  v_sqrt_f32 %s, %s" % (v(s2), v(s2)))
        round_bf16(vSd, s2)
        A("  v_rcp_f32 %s, %s" % (v(vR), v(vSd)))
    def ln_apply(dst, flo, fhi, vMean, vSd, vR, t, newton):
        A("  v_sub_f32 %s, %s, %s" % (v(flo), v(flo), v(vMean)))
        A("  v_sub_f32 %s, %s, %s" % (v(fhi), v(fhi), v(vMean)))
        A("  v_cvt_pk_bf16_f32 %s, %s, %s" % (v(dst), v(flo), v(fhi)))
        unpack(flo, fhi, dst)
        if newton:
            A("  v_mul_f32 %s, %s, %s" % (v(t[0]), v(flo), v(vR)))
            A("  v_mul_f32 %s, %s, %s" % (v(t[1]), v(fhi), v(vR)))
            A("  v_fma_f32 %s, -%s, %s, %s" % (v(flo), v(t[0]), v(vSd), v(flo)))
            A("  v_fma_f32 %s, -%s, %s, %s" % (v(fhi), v(t[1]), v(vSd), v(fhi)))
            A("  v_fma_f32 %s, %s, %s, %s" % (v(flo), v(flo), v(vR), v(t[0])))
            A("  v_fma_f32 %s, %s, %s, %s" % (v(fhi), v(fhi), v(vR), v(t[1])))
        else:
            A("  v_mul_f32 %s, %s, %s" % (v(flo), v(flo), v(vR)))
            A("  v_mul_f32 %s, %s, %s" % (v(fhi), v(fhi), v(vR)))
        A("  v_cvt_pk_bf16_f32 %s, %s, %s" % (v(dst), v(flo), v(fhi)))
    def next_slot(r):
        A("  s_add_u32 %s, %s, 4096\n  s_and_b32 %s, %s, 0x3fff\n  s_or_b32 %s, %s, %s" % (s(r), s(r), s(r), s(r), s(r), s(r), s(sWB)))
    def issueK():
        A("  s_mov_b32 m0, %s" % s(sSlotI))
        for g in range(4):
            A("  buffer_load_dwordx4 %s, s[4:7], %s offen offset:%d %s lds" % (v(vKd[g]), s(sOff), g * 1024, P["kvflag"]))
        A("  s_add_u32 %s, %s, 32768" % (s(sOff), s(sOff)))
        next_slot(sSlotI)
    def issueV():
        A("  s_mov_b32 m0, %s" % s(sSlotI))
        for g in range(4):
            A("  buffer_load_dwordx4 %s, s[8:11], %s offen offset:%d %s lds" % (v(vVd), s(sOff), g * 1024, P["kvflag"]))
        A("  s_add_u32 %s, %s, 32768" % (s(sOff), s(sOff)))
        next_slot(sSlotI)
    nslow = [0]
    def hstore(text):
        k = nslow[0]; nslow[0] += 1
        A("  s_cmp_eq_u32 %s, 1" % s(sFast))
        A("  s_cbranch_scc0 L_slow%d" % k)
        A("  " + text)
        A("L_slowret%d:" % k)
        late.append("L_slow%d:\n  %s sc1\n  s_branch L_slowret%d" % (k, text, k))
    def poll_end(label):
        A("  s_cbranch_scc1 %s_ok" % label)
        if P["psleep"]: A("  s_sleep %d" % P["psleep"])
        A("  s_sub_u32 %s, %s, 1" % (s(sSpin), s(sSpin)))
        A("  s_cmp_lg_u32 %s, 0" % s(sSpin))
        A("  s_cbranch_scc1 %s" % label)
        A("  s_mov_b32 %s, 1" % s(sSpin))
        A("%s_ok:" % label)
    def chk_tag(regs, t, stag, mask=None):
        A("  v_xor_b32 %s, %s, %s" % (v(t), s(stag), v(regs[0])))
        for r in regs[1:]: A("  v_bitop3_b32 %s, %s, %s, %s bitop3:0xf6" % (v(t), v(t), v(r), s(stag)))
        if mask: A("  v_and_b32 %s, %s, %s" % (v(t), mask, v(t)))
        A("  v_cmp_eq_u32 vcc, 0, %s" % v(t))
        A("  s_cmp_eq_u64 vcc, -1")
    def wperm(dst, tb, n=2):
        for h in range(n):
            for c in range(4):
                A("  v_perm_b32 %s, %s, %s, %s" % (v(dst + 8 * h + 2 * c), v(tb + 8 * h + 4 + c), v(tb + 8 * h + c), s(sSelLo)))
                A("  v_perm_b32 %s, %s, %s, %s" % (v(dst + 8 * h + 2 * c + 1), v(tb + 8 * h + 4 + c), v(tb + 8 * h + c), s(sSelHi)))

    hdr = open("cdna_kernels/%s.s.ref" % NAME.replace("_kernel", "")).read().split("\n")
    for h in hdr:
        if h.startswith(";") and "@launch" not in h and "Override" not in h and "grid=ceil" not in h: A(h)
    A("; @launch grid=(256,1,1) block=(512,1,1) lds=%d" % LDS_TOTAL)
    A('.amdgcn_target "amdgcn-amd-amdhsa--gfx950"')
    A(".text\n.globl %s\n.p2align 8\n.type %s,@function\n%s:" % (NAME, NAME, NAME))
    HEAD = L; L = []; A = L.append
    stamp(0)
    A("  s_cmp_ge_u32 s2, 256\n  s_cbranch_scc1 L_done")
    A("  s_load_dwordx8 s[44:51], s[0:1], 0")
    A("  s_load_dwordx2 s[12:13], s[0:1], 88")
    A("  s_load_dwordx2 s[52:53], s[0:1], 32")
    A("  s_load_dwordx8 s[56:63], s[0:1], 48")
    if P["codepf"]:
        A("  s_getpc_b64 s[16:17]")
        A("L_pc:")
        A("  s_sub_u32 s16, s16, L_pc-%s\n  s_subb_u32 s17, s17, 0" % NAME)
        A("  v_lshlrev_b32 %s, 4, v0" % v(T[9]))
        A("  global_load_dwordx4 %s, %s, s[16:17]" % (v(U[8], 4), v(T[9])))
        A("  v_add_u32 %s, 0x2000, %s" % (v(T[9]), v(T[9])))
        A("  v_min_u32 %s, L_codeend-%s-16, %s" % (v(T[9]), NAME, v(T[9])))
        A("  global_load_dwordx4 %s, %s, s[16:17]" % (v(U[12], 4), v(T[9])))
    A("  v_and_b32 %s, 63, v0" % v(vLane))
    A("  v_lshrrev_b32 %s, 6, v0" % v(T[0]))
    A("  v_readfirstlane_b32 %s, %s" % (s(sWave), v(T[0])))
    A("  v_lshlrev_b32 %s, 4, %s" % (v(vL16), v(vLane)))
    A("  s_lshr_b32 %s, s2, 5\n  s_and_b32 %s, s2, 31\n  s_lshr_b32 %s, s2, 3" % (s(sG), s(sI), s(sJ)))
    A("  s_and_b32 s32, s2, 7\n  s_cmp_eq_u32 s32, 0\n  s_cselect_b32 %s, 1, 0" % s(sTail))
    A("  s_movk_i32 s33, %d\n  s_cselect_b32 s33, %d, s33" % (X, Y))
    A("  v_lshrrev_b32 %s, 3, %s" % (v(T[3]), v(vLane)))
    A("  v_and_b32 %s, 7, %s" % (v(T[4]), v(vLane)))
    A("  s_lshr_b32 s35, %s, 3\n  s_lshl_b32 s34, s35, 6\n  s_lshl_b32 s36, %s, 3\n  s_add_u32 s34, s34, s36" % (s(sI), s(sWave)))
    A("  v_add_u32 %s, s34, %s" % (v(T[2]), v(T[3])))
    A("  v_lshlrev_b32 %s, 14, %s" % (v(T[1]), v(T[2])))
    A("  v_lshl_add_u32 %s, %s, 4, %s" % (v(T[1]), v(T[4]), v(T[1])))
    A("  v_lshlrev_b32 %s, 2, %s" % (v(T[2]), v(T[2])))
    A("  s_lshl_b32 s34, %s, 10\n  s_lshl_b32 s36, s32, 7\n  s_add_u32 s34, s34, s36" % s(sG))
    A("  v_add_u32 %s, s34, %s" % (v(T[1]), v(T[1])))
    A("  v_add_u32 %s, 0x2000, %s" % (v(T[5]), v(T[1])))
    A("  s_lshl_b32 s54, %s, 13\n  s_lshl_b32 s35, s35, 11\n  s_add_u32 s54, s54, s35\n  s_lshl_b32 s35, s32, 8\n  s_add_u32 s54, s54, s35\n  s_add_u32 s54, s54, %d" % (s(sG), QG))
    A("  v_lshrrev_b32 %s, 4, %s" % (v(T[6]), v(vLane)))
    A("  v_and_b32 %s, 15, %s" % (v(T[7]), v(vLane)))
    A("  v_xor_b32 %s, %s, %s" % (v(T[8]), v(T[6]), v(T[7])))
    A("  v_lshlrev_b32 %s, 4, %s" % (v(T[8]), v(T[8])))
    A("  v_lshl_add_u32 %s, %s, 8, %s" % (v(vKd[0]), v(T[6]), v(T[8])))
    for g in range(1, 4): A("  v_xor_b32 %s, %d, %s" % (v(vKd[g]), 64 * g, v(vKd[0])))
    A("  s_mul_i32 s34, %s, %d\n  s_add_u32 s35, %s, 7\n  s_lshr_b32 s35, s35, 3\n  s_mul_i32 s35, s35, %d\n  s_sub_u32 s34, s34, s35" % (s(sI), X, s(sI), X - Y))
    A("  s_add_u32 s34, s34, %s\n  s_lshl_b32 s34, s34, 12\n  s_lshl_b32 s35, %s, 24\n  s_add_u32 %s, s34, s35" % (s(sWave), s(sG), s(sOff0)))
    A("  s_sub_u32 s33, s33, %s\n  s_add_u32 s33, s33, 7\n  s_lshr_b32 %s, s33, 3" % (s(sWave), s(sN)))
    A("  s_lshl_b32 %s, %s, 14" % (s(sWB), s(sWave)))
    A("  s_mov_b32 %s, %s\n  s_mov_b32 %s, %s\n  s_mov_b32 %s, %s" % (s(sSlotC), s(sWB), s(sSlotI), s(sWB), s(sOff), s(sOff0)))
    A("  s_mov_b32 s6, 0x8000000\n  s_mov_b32 s7, 0x20000\n  s_mov_b32 s10, 0x8000000\n  s_mov_b32 s11, 0x20000")
    A("  s_waitcnt lgkmcnt(0)")
    stamp("a")
    XD = U[0]; XP = U[4]; WA = F; WB_ = F + 4
    A("  global_load_dwordx4 %s, %s, s[44:45]" % (v(XD, 4), v(vL16)))
    A("  global_load_dword %s, %s, s[44:45]" % (v(XP), v(T[2])))
    A("  global_load_dwordx4 %s, %s, s[50:51] %s" % (v(WA, 4), v(T[1]), P["wqflag"]))
    A("  global_load_dwordx4 %s, %s, s[50:51] %s" % (v(WB_, 4), v(T[5]), P["wqflag"]))
    A("  s_load_dword %s, s[12:13], %d" % (s(sTag), EPOCH))
    A("  s_mov_b32 s4, s46\n  s_and_b32 s5, s47, 0xffff\n  s_mov_b32 s8, s48\n  s_and_b32 s9, s49, 0xffff")
    A("  s_mov_b64 s[14:15], s[44:45]")
    def s3prep():
        A("  s_movk_i32 s34, 3584\n  v_mul_lo_u32 %s, %s, s34" % (v(U[5]), v(T[3])))
        A("  v_lshlrev_b32 %s, 4, %s" % (v(U[6]), v(T[4])))
        A("  s_cmp_lt_u32 %s, 28\n  s_cselect_b32 s66, 1835008, 0\n  s_mov_b32 s67, 0x20000" % s(sJ))
    def s3dma(mat, k0, k1):
        A("  s_mov_b32 s64, s%d\n  s_and_b32 s65, s%d, 0xffff" % (56 + 2 * mat, 57 + 2 * mat))
        A("  s_mul_i32 s34, %s, %d\n  s_lshl_b32 s35, %s, 7\n  s_add_u32 s34, s34, s35\n  s_add_u32 s34, s34, %d" % (s(sWave), 64 * 3584, s(sJ), k0 * 8 * 3584))
        A("  s_lshl_b32 s35, %s, 13\n  s_add_u32 s35, s35, %d" % (s(sWave), mat * 65536 + k0 * 1024))
        for k in range(k0, k1):
            A("  v_xor_b32 %s, %d, %s\n  v_add_u32 %s, %s, %s" % (v(U[7]), 16 * k, v(U[6]), v(U[7]), v(U[5]), v(U[7])))
            A("  s_mov_b32 m0, s35")
            A("  buffer_load_dwordx4 %s, s[64:67], s34 offen %s lds" % (v(U[7]), P["wflag"]))
            A("  s_add_u32 s34, s34, %d\n  s_add_u32 s35, s35, 1024" % (8 * 3584))
    if P["ordbar"]: A("  s_barrier")
    A("  s_cmp_eq_u32 %s, 1\n  s_cbranch_scc1 L_tburst" % s(sTail))
    issueK()
    A("L_tburstret:")
    Lsave = L; L = []; A = L.append
    A("L_tburst:")
    s3prep(); s3dma(0, 0, 4)
    A("  s_branch L_tburstret")
    late.append("\n".join(L)); L = Lsave; A = L.append
    A("  v_lshlrev_b32 %s, 8, %s" % (v(vKrd), v(T[7])))
    A("  v_add_u32 %s, %s, %s" % (v(vKrd), v(vKrd), v(T[8])))
    A("  v_lshlrev_b32 %s, 10, %s" % (v(vVrd), v(T[6])))
    A("  v_lshl_add_u32 %s, %s, 3, %s" % (v(vVrd), v(T[7]), v(vVrd)))
    A("  v_bfe_u32 %s, %s, 1, 2" % (v(T[9]), v(vLane)))
    A("  v_lshlrev_b32 %s, 8, %s" % (v(vVd), v(T[9])))
    A("  v_lshl_add_u32 %s, %s, 5, %s" % (v(vVd), v(T[3]), v(vVd)))
    A("  v_and_b32 %s, 1, %s" % (v(T[9]), v(vLane)))
    A("  v_lshl_add_u32 %s, %s, 4, %s" % (v(vVd), v(T[9]), v(vVd)))
    A("  s_mul_i32 s34, %s, 2560\n  s_add_u32 s34, s34, %d" % (s(sWave), SC))
    A("  v_and_b32 %s, 3, %s" % (v(T[9]), v(vLane)))
    A("  v_lshl_add_u32 %s, %s, 2, %s" % (v(T[10]), v(T[6]), v(T[9])))
    A("  v_lshlrev_b32 %s, 3, %s" % (v(T[10]), v(T[10])))
    A("  v_add_u32 %s, s34, %s" % (v(vSw), v(T[10])))
    A("  v_bfe_u32 %s, %s, 2, 2" % (v(T[10]), v(vLane)))
    A("  v_lshl_add_u32 %s, %s, 7, %s" % (v(vSr), v(T[10]), v(vSw)))
    A("  v_mov_b32 %s, 0xff80ff80\n  v_mov_b32 %s, 0xff80ff80" % (v(T[10]), v(T[11])))
    for k in range(5): A("  ds_write_b64 %s, %s offset:%d" % (v(vSr), v(T[10], 2), k * 512))
    A("  v_lshrrev_b32 %s, 5, %s" % (v(T[12]), v(vLane)))
    A("  v_lshlrev_b32 %s, 3, %s" % (v(T[15]), v(T[4])))
    A("  v_lshl_add_u32 %s, %s, 2, %s" % (v(T[15]), v(T[12]), v(T[15])))
    A("  v_bfe_u32 %s, %s, 4, 1" % (v(T[12]), v(vLane)))
    A("  v_lshl_add_u32 %s, %s, 1, %s" % (v(T[15]), v(T[12]), v(T[15])))
    A("  v_bfe_u32 %s, %s, 3, 1" % (v(T[12]), v(vLane)))
    A("  v_add_u32 %s, %s, %s" % (v(T[15]), v(T[12]), v(T[15])))
    A("  s_lshl_b32 s34, %s, 2\n  s_add_u32 s34, s34, %d" % (s(sWave), RED0))
    A("  v_lshl_add_u32 %s, %s, 5, s34" % (v(T[15]), v(T[15])))
    A("  s_mov_b32 %s, 0x05040100\n  s_mov_b32 %s, 0x07060302\n  s_movk_i32 %s, 0xff" % (s(sSelLo), s(sSelHi), s(sFF)))
    A("  s_mov_b32 %s, %d\n  s_mov_b32 %s, 0\n  s_mov_b32 %s, 0" % (s(sSpin), P["spin"], s(sDone), s(sFast)))
    A("  s_cmp_eq_u32 %s, 0\n  s_cselect_b32 %s, %d, -1" % (s(sWave), s(sTrig), P["gtrig"]))
    A("  s_getreg_b32 %s, hwreg(HW_REG_XCC_ID, 0, 4)" % s(sXcc))
    stamp("b")
    A("  s_waitcnt vmcnt(7)")
    f = T[0:8]; d = T[8:12]; vMean = T[12]; vSd = T[13]; vR = T[14]
    for k in range(4): unpack(f[2 * k], f[2 * k + 1], XD + k)
    ln_stats(f, d, vMean, vSd, vR)
    A("  s_waitcnt vmcnt(6)")
    unpack(f[0], f[1], XP)
    ln_apply(XP, f[0], f[1], vMean, vSd, vR, [f[2], f[3]], True)
    A("  s_waitcnt vmcnt(4) lgkmcnt(0)")
    stamp("e")
    A("  s_add_u32 %s, %s, 1\n  s_and_b32 %s, %s, 0xff" % (s(sTag), s(sTag), s(sT8), s(sTag)))
    A("  v_mov_b32 %s, %s" % (v(vT8), s(sT8)))
    a = T[0:8]
    wperm(F + 8, F, 1)
    for e in range(8):
        A("  v_dot2_f32_bf16 %s, %s, %s, 0" % (v(a[e]), v(F + 8 + e), v(XP)))
    red345(a)
    A("  ds_write_b32 %s, %s" % (v(T[15]), v(a[2])))
    A("  s_cmp_eq_u32 %s, 1\n  s_cbranch_scc1 L_tb2" % s(sTail))
    if P["k1early"]: issueK()
    A("L_tb2ret:")
    Lsave = L; L = []; A = L.append
    A("L_tb2:")
    s3dma(0, 4, 8)
    A("  s_cmp_lg_u32 %s, 7\n  s_cbranch_scc1 L_tb2ret" % s(sWave))
    A("  s_lshl_b32 s34, %s, 3\n  s_add_u32 s34, s34, %d" % (s(sJ), REG))
    A("  v_mov_b32 %s, s34\n  v_mov_b32 %s, %s\n  v_mov_b32 %s, %s" % (v(T[9]), v(T[10]), s(sXcc), v(T[11]), s(sTag)))
    A("  s_mov_b64 exec, 1")
    A("  global_store_dwordx2 %s, %s, s[12:13] sc1" % (v(T[9]), v(T[10], 2)))
    A("  s_mov_b64 exec, -1")
    A("  s_branch L_tb2ret")
    late.append("\n".join(L)); L = Lsave; A = L.append
    stamp("f")
    A("  s_waitcnt lgkmcnt(0)\n  s_barrier")
    stamp("g")
    A("  s_cmp_lg_u32 %s, 0\n  s_cbranch_scc1 L_noq" % s(sWave))
    A("  v_lshlrev_b32 %s, 5, %s\n  v_add_u32 %s, %d, %s" % (v(T[0]), v(vLane), v(T[0]), RED0, v(T[0])))
    A("  ds_read_b128 %s, %s" % (v(F, 4), v(T[0])))
    A("  ds_read_b128 %s, %s offset:16" % (v(F + 4, 4), v(T[0])))
    A("  v_lshl_add_u32 %s, %s, 2, s54" % (v(T[1]), v(vLane)))
    A("  s_waitcnt lgkmcnt(0)")
    sum8(F)
    A("  v_bfi_b32 %s, %s, %s, %s" % (v(F), s(sFF), v(vT8), v(F)))
    A("  global_store_dword %s, %s, s[12:13] sc1" % (v(T[1]), v(F)))
    A("L_noq:")
    stamp(1)
    A("  s_lshl_b32 s34, %s, 13\n  s_lshl_b32 s35, %s, 8\n  s_add_u32 s34, s34, s35\n  s_add_u32 s34, s34, %d" % (s(sG), s(sWave), QG))
    A("  v_lshrrev_b32 %s, 4, %s\n  v_and_b32 %s, 15, %s" % (v(T[2]), v(vLane), v(T[3]), v(vLane)))
    A("  v_lshl_add_u32 %s, %s, 11, s34\n  v_lshl_add_u32 %s, %s, 4, %s" % (v(T[0]), v(T[2]), v(T[0]), v(T[3]), v(T[0])))
    A("  s_lshl_b32 s34, %s, 7\n  s_add_u32 s34, s34, %d" % (s(sWave), QL))
    A("  v_lshl_add_u32 %s, %s, 3, s34" % (v(T[1]), v(T[3])))
    A("  v_lshrrev_b32 %s, 1, %s\n  v_and_b32 %s, 1, %s" % (v(T[3]), v(T[2]), v(T[2]), v(T[2])))
    A("  v_lshl_add_u32 %s, %s, 2, %s\n  v_lshl_add_u32 %s, %s, 1, %s" % (v(T[1]), v(T[3]), v(T[1]), v(T[1]), v(T[2]), v(T[1])))
    G0 = U[0]; G1 = U[4]
    def qpoll_issue():
        A("  global_load_dwordx4 %s, %s, s[12:13] sc1" % (v(G0, 4), v(T[0])))
    def qpoll_check():
        chk_tag([G0 + k for k in range(4)], T[2], sT8, "0xff")
    def qwrite():
        for e in range(2): A("  v_permlane32_swap_b32 %s, %s" % (v(G0 + e), v(G0 + e + 2)))
        for e in range(2): A("  v_add_f32 %s, %s, %s" % (v(G0 + e), v(G0 + e), v(G0 + e + 2)))
        A("  v_permlane16_swap_b32 %s, %s" % (v(G0), v(G0 + 1)))
        A("  v_add_f32 %s, %s, %s" % (v(G0), v(G0), v(G0 + 1)))
        A("  v_cvt_pk_bf16_f32 %s, %s, %s" % (v(G0), v(G0), v(G0)))
        A("  ds_write_b16 %s, %s" % (v(T[1]), v(G0)))
    Lsave = L; L = []; A = L.append
    A("L_tailpro:")
    s3dma(1, 0, 8)
    A("  s_lshl_b32 s34, %s, 5" % s(sJ))
    A("  v_and_b32 %s, 1, %s\n  v_lshrrev_b32 %s, 5, %s\n  v_lshlrev_b32 %s, 3, %s" % (v(T[5]), v(vLane), v(T[6]), v(vLane), v(T[5]), v(T[5])))
    A("  v_lshl_add_u32 %s, %s, 2, %s\n  v_bfe_u32 %s, %s, 4, 1" % (v(T[5]), v(T[6]), v(T[5]), v(T[6]), v(vLane)))
    A("  v_lshl_add_u32 %s, %s, 1, %s\n  v_bfe_u32 %s, %s, 3, 1" % (v(T[5]), v(T[6]), v(T[5]), v(T[6]), v(vLane)))
    A("  v_add_u32 %s, %s, %s\n  v_lshl_add_u32 %s, %s, 1, s34" % (v(T[5]), v(T[6]), v(T[5]), v(T[5]), v(T[5])))
    A("  global_load_ushort %s, %s, s[14:15]" % (v(vXres), v(T[5])))
    A("  s_lshl_b32 s34, %s, 17\n  s_lshl_b32 s35, %s, 14\n  s_add_u32 s34, s34, s35\n  s_add_u32 s52, s52, s34\n  s_addc_u32 s53, s53, 0" % (s(sJ), s(sWave)))
    A("  s_lshl_b32 s34, %s, 16\n  s_lshl_b32 s35, %s, 13\n  s_add_u32 s34, s34, s35\n  s_add_u32 s60, s60, s34\n  s_addc_u32 s61, s61, 0" % (s(sJ), s(sWave)))
    TB = [32, 48]
    groups = []
    for g in range(4): groups.append((52, W2 + 16 * g))
    for g in range(2): groups.append((60, W4 + 16 * g))
    def wissue(k):
        sb, dst = groups[k]
        tb = TB[k % 2]
        for r in range(4):
            A("  global_load_dwordx4 %s, %s, %s offset:%d %s" % (v(tb + 4 * r, 4), v(vL16), s(sb, 2), 1024 * r, P["wflag"]))
        A("  s_add_u32 %s, %s, 4096\n  s_addc_u32 %s, %s, 0" % (s(sb), s(sb), s(sb + 1), s(sb + 1)))
    A("  s_waitcnt vmcnt(9)")
    wissue(0)
    A("  s_waitcnt vmcnt(8)")
    for k in range(1, 4):
        wissue(k); A("  s_waitcnt vmcnt(4)"); wperm(groups[k - 1][1], TB[(k - 1) % 2])
    A("  s_cmp_ge_u32 %s, 28\n  s_cbranch_scc1 L_w7" % s(sJ))
    for k in range(4, 6):
        wissue(k); A("  s_waitcnt vmcnt(4)"); wperm(groups[k - 1][1], TB[(k - 1) % 2])
    A("  s_waitcnt vmcnt(0)"); wperm(groups[5][1], TB[1])
    A("  s_branch L_wdone")
    A("L_w7:")
    A("  s_waitcnt vmcnt(0)"); wperm(groups[3][1], TB[1])
    A("L_wdone:")
    A("  v_lshlrev_b32 %s, 16, %s" % (v(vXres), v(vXres)))
    A("L_tqpoll:")
    qpoll_issue()
    A("  s_waitcnt vmcnt(0)")
    qpoll_check()
    poll_end("L_tqpoll")
    qwrite()
    A("  s_waitcnt lgkmcnt(0)\n  s_barrier")
    A("  v_and_b32 %s, 7, %s\n  v_xor_b32 %s, %s, %s\n  v_lshlrev_b32 %s, 4, %s" % (v(T[3]), v(vLane), v(T[3]), s(sWave), v(T[3]), v(T[3]), v(T[3])))
    A("  v_lshl_add_u32 %s, %s, 10, %s\n  v_add_u32 %s, 0x10000, %s" % (v(T[3]), v(vLane), v(T[3]), v(T[4]), v(T[3])))
    for mat in range(2):
        for r in range(8):
            A("  ds_read_b128 %s, %s offset:%d" % (v(32 + 32 * mat + 4 * r, 4), v(T[3 + mat]), 128 * r))
        for q in range(2):
            A("  s_waitcnt lgkmcnt(%d)" % (4 - 4 * q))
            wperm(W3A + 32 * mat + 16 * q, 32 + 32 * mat + 16 * q)
    A("  s_barrier")
    for k in range(4): issueK()
    A("  s_branch L_qops")
    late.append("\n".join(L)); L = Lsave; A = L.append

    A("  s_cmp_eq_u32 %s, 1\n  s_cbranch_scc1 L_tailpro" % s(sTail))
    for k in range(2 if P["k1early"] else 1, 4):
        A("  s_cmp_eq_u32 %s, 1\n  s_cbranch_scc1 L_pp%da" % (s(sDone), k))
        qpoll_issue()
        A("L_pp%da:" % k)
        A("  s_waitcnt vmcnt(%d)" % P["PW"])
        issueK()
        A("  s_cmp_eq_u32 %s, 1\n  s_cbranch_scc1 L_pp%db" % (s(sDone), k))
        A("  s_waitcnt vmcnt(4)")
        qpoll_check()
        A("  s_cbranch_scc0 L_pp%db" % k)
        qwrite()
        A("  s_mov_b32 %s, 1" % s(sDone))
        A("L_pp%db:" % k)
    A("  s_cmp_eq_u32 %s, 1\n  s_cbranch_scc1 L_qdone" % s(sDone))
    A("L_qpoll:")
    qpoll_issue()
    A("  s_waitcnt vmcnt(0)")
    qpoll_check()
    poll_end("L_qpoll")
    qwrite()
    A("L_qdone:")
    A("  s_waitcnt lgkmcnt(0)\n  s_barrier")
    A("L_qops:")
    stamp(2)
    A("  v_and_b32 %s, 3, %s\n  v_lshlrev_b32 %s, 8, %s" % (v(T[0]), v(vLane), v(T[0]), v(T[0])))
    A("  v_lshrrev_b32 %s, 4, %s\n  v_lshl_add_u32 %s, %s, 4, %s" % (v(T[1]), v(vLane), v(T[0]), v(T[1]), v(T[0])))
    A("  v_add_u32 %s, %d, %s" % (v(T[0]), QL, v(T[0])))
    for t in range(4): A("  ds_read_b128 %s, %s offset:%d" % (v(ACC + 4 * t, 4), v(T[0]), 64 * t))
    S = T[4:8]
    assert S[0] % 2 == 0
    def kbody(wait, issue):
        A("  v_add_u32 %s, %s, %s" % (v(T[0]), s(sSlotC), v(vKrd)))
        for t in range(1, 4): A("  v_xor_b32 %s, %d, %s" % (v(T[t]), 64 * t, v(T[0])))
        A("  s_waitcnt vmcnt(%d)" % wait)
        for t in range(4): A("  ds_read_b128 %s, %s" % (v(F + 4 * t, 4), v(T[t])))
        if issue == "K": issueK()
        if issue == "V": issueV()
        next_slot(sSlotC)
        for t in range(4):
            A("  s_waitcnt lgkmcnt(%d)" % (3 - t))
            A("  v_mfma_f32_16x16x32_bf16 %s, %s, %s, %s" % (v(S[0], 4), v(F + 4 * t, 4), v(ACC + 4 * t, 4), "0" if t == 0 else v(S[0], 4)))
        A("  v_cvt_pk_bf16_f32 %s, %s, %s" % (v(T[8]), v(S[0]), v(S[1])))
        A("  v_cvt_pk_bf16_f32 %s, %s, %s" % (v(T[9]), v(S[2]), v(S[3])))
        unpack(T[10], T[11], T[8]); unpack(T[12], T[13], T[9])
        for k in range(4): A("  v_mul_f32 %s, %s, %s" % (v(T[10 + k]), SCALE, v(T[10 + k])))
        A("  v_cvt_pk_bf16_f32 %s, %s, %s" % (v(T[8]), v(T[10]), v(T[11])))
        A("  v_cvt_pk_bf16_f32 %s, %s, %s" % (v(T[9]), v(T[12]), v(T[13])))
        setexec(0x000F000F000F000F)
        A("  ds_write_b64 %s, %s" % (v(vSw), v(T[8], 2)))
        setexec(-1)
        A("  v_add_u32 %s, 128, %s" % (v(vSw), v(vSw)))
    assert T[8] % 2 == 0
    A("  s_waitcnt lgkmcnt(0)")
    for i in range(4 - W): kbody(4 * (3 - i), None)
    A("  s_sub_u32 %s, %s, 4" % (s(sCnt), s(sN)))
    A("L_kloop:")
    kbody(4 * (W - 1), "K")
    A("  s_sub_u32 %s, %s, 1\n  s_cmp_lg_u32 %s, 0\n  s_cbranch_scc1 L_kloop" % (s(sCnt), s(sCnt), s(sCnt)))
    A("  s_mov_b32 %s, %s" % (s(sOff), s(sOff0)))
    for i in range(W): kbody(4 * (W - 1), "V")
    stamp(3)
    PK = F
    FL = ACC
    for k in range(5): A("  ds_read_b64 %s, %s offset:%d" % (v(PK + 2 * k, 2), v(vSr), 512 * k))
    A("  s_lshl_b32 s34, %s, 7" % s(sN))
    A("  v_subrev_u32 %s, s34, %s" % (v(vSw), v(vSw)))
    for k in range(5):
        A("  s_waitcnt lgkmcnt(%d)" % (4 - k))
        unpack(FL + 4 * k, FL + 4 * k + 1, PK + 2 * k); unpack(FL + 4 * k + 2, FL + 4 * k + 3, PK + 2 * k + 1)
    vM = T[0]; vLs = T[1]
    A("  v_max3_f32 %s, %s, %s, %s" % (v(vM), v(FL), v(FL + 1), v(FL + 2)))
    A("  v_max3_f32 %s, %s, %s, %s" % (v(T[2]), v(FL + 3), v(FL + 4), v(FL + 5)))
    for k in range(6, 18, 4):
        A("  v_max3_f32 %s, %s, %s, %s" % (v(vM), v(vM), v(FL + k), v(FL + k + 1)))
        A("  v_max3_f32 %s, %s, %s, %s" % (v(T[2]), v(T[2]), v(FL + k + 2), v(FL + k + 3)))
    A("  v_max3_f32 %s, %s, %s, %s" % (v(vM), v(vM), v(FL + 18), v(FL + 19)))
    A("  v_max_f32 %s, %s, %s" % (v(vM), v(vM), v(T[2])))
    allred_b2345("v_max_f32", vM, T[2])
    A("  s_mov_b32 s34, %s" % LOG2E)
    A("  v_mul_f32 %s, s34, %s" % (v(T[3]), v(vM)))
    for k in range(20): A("  v_fma_f32 %s, %s, s34, -%s" % (v(FL + k), v(FL + k), v(T[3])))
    for k in range(20): A("  v_exp_f32 %s, %s" % (v(FL + k), v(FL + k)))
    for k in range(10): A("  v_cvt_pk_bf16_f32 %s, %s, %s" % (v(PK + k), v(FL + 2 * k), v(FL + 2 * k + 1)))
    for k in range(5): A("  ds_write_b64 %s, %s offset:%d" % (v(vSr), v(PK + 2 * k, 2), 512 * k))
    for k in range(10): A("  v_add_f32 %s, %s, %s" % (v(FL + k), v(FL + k), v(FL + 10 + k)))
    for k in range(5): A("  v_add_f32 %s, %s, %s" % (v(FL + k), v(FL + k), v(FL + 5 + k)))
    A("  v_add_f32 %s, %s, %s" % (v(FL), v(FL), v(FL + 1)))
    A("  v_add_f32 %s, %s, %s" % (v(FL + 2), v(FL + 2), v(FL + 3)))
    A("  v_add_f32 %s, %s, %s" % (v(FL), v(FL), v(FL + 4)))
    A("  v_add_f32 %s, %s, %s" % (v(vLs), v(FL), v(FL + 2)))
    allred_b2345("v_add_f32", vLs, T[2])
    A("  s_lshl_b32 s34, %s, 5\n  s_add_u32 s34, s34, %d" % (s(sWave), MLT))
    A("  v_lshl_add_u32 %s, %s, 3, s34" % (v(T[2]), v(vLane)))
    A("  s_mov_b64 exec, 0xf")
    assert vM % 2 == 0 and vLs == vM + 1
    A("  ds_write_b64 %s, %s" % (v(T[2]), v(vM, 2)))
    A("  s_mov_b64 exec, -1")
    for k in range(32): A("  v_mov_b32 %s, 0" % v(ACC + k))
    A("  s_waitcnt lgkmcnt(0)\n  s_barrier")
    A("  s_cmp_lg_u32 %s, 0\n  s_cbranch_scc1 L_noml" % s(sWave))
    A("  v_and_b32 %s, 31, %s\n  v_lshlrev_b32 %s, 3, %s\n  v_add_u32 %s, %d, %s" % (v(T[2]), v(vLane), v(T[2]), v(T[2]), v(T[2]), MLT, v(T[2])))
    A("  ds_read_b64 %s, %s" % (v(T[4], 2), v(T[2])))
    A("  s_waitcnt lgkmcnt(0)")
    A("  v_mov_b32 %s, %s" % (v(T[6]), v(T[4])))
    allred_b2345("v_max_f32", T[6], T[2])
    A("  v_sub_f32 %s, %s, %s" % (v(T[4]), v(T[4]), v(T[6])))
    A("  v_mul_f32 %s, %s, %s" % (v(T[4]), LOG2E, v(T[4])))
    A("  v_exp_f32 %s, %s" % (v(T[4]), v(T[4])))
    A("  v_mul_f32 %s, %s, %s" % (v(T[8]), v(T[4]), v(T[5])))
    dpp("v_add_f32", T[8], T[8], T[8], "row_ror:4")
    dpp("v_add_f32", T[8], T[8], T[8], "row_ror:8")
    A("  v_mov_b32 %s, %s" % (v(T[2]), v(T[8])))
    A("  v_permlane16_swap_b32 %s, %s" % (v(T[8]), v(T[2])))
    A("  v_add_f32 %s, %s, %s" % (v(T[8]), v(T[8]), v(T[2])))
    A("  v_mov_b32 %s, %s\n  v_mov_b32 %s, %s" % (v(T[7]), s(sTag), v(T[9]), s(sTag)))
    A("  s_lshl_b32 s34, %s, 11\n  s_lshl_b32 s35, %s, 6\n  s_add_u32 s34, s34, s35\n  s_add_u32 s34, s34, %d" % (s(sG), s(sI), ML))
    A("  v_add_u32 %s, s34, %s" % (v(T[2]), v(vL16)))
    A("  s_mov_b64 exec, 0xf")
    assert T[6] % 2 == 0
    A("  global_store_dwordx4 %s, %s, s[12:13] sc1" % (v(T[2]), v(T[6], 4)))
    A("  s_mov_b64 exec, -1")
    A("L_noml:")
    stamp(4)
    PB_ = T[2]
    assert PB_ % 2 == 0
    def vbody(wait, issue):
        A("  v_add_u32 %s, %s, %s" % (v(T[0]), s(sSlotC), v(vVrd)))
        A("  ds_read_b64 %s, %s" % (v(PB_, 2), v(vSw)))
        A("  v_add_u32 %s, 128, %s" % (v(vSw), v(vSw)))
        A("  s_waitcnt vmcnt(%d)" % wait)
        for b in range(8): A("  ds_read_b64_tr_b16 %s, %s offset:%d" % (v(F + 2 * b, 2), v(T[0]), 128 * b))
        if issue: issueV()
        next_slot(sSlotC)
        for b in range(8):
            A("  s_waitcnt lgkmcnt(%d)" % (7 - b))
            A("  v_mfma_f32_16x16x16_bf16 %s, %s, %s, %s" % (v(ACC + 4 * b, 4), v(F + 2 * b, 2), v(PB_, 2), v(ACC + 4 * b, 4)))
    A("  s_sub_u32 %s, %s, %d" % (s(sCnt), s(sN), W))
    A("L_vloop:")
    vbody(4 * (W - 1), True)
    A("  s_cmp_eq_u32 %s, %s\n  s_cbranch_scc1 L_gather" % (s(sCnt), s(sTrig)))
    A("L_gatherret:")
    A("  s_sub_u32 %s, %s, 1\n  s_cmp_lg_u32 %s, 0\n  s_cbranch_scc1 L_vloop" % (s(sCnt), s(sCnt), s(sCnt)))
    aW = U[0]; aRd = U[1]; aRd2 = U[2]; aFt = U[3]; aSt = U[4]; aFl = U[5]
    A("  v_and_b32 %s, 3, %s\n  s_movk_i32 s34, 576\n  v_mul_lo_u32 %s, %s, s34" % (v(aW), v(vLane), v(aW), v(aW)))
    A("  v_lshrrev_b32 %s, 4, %s\n  v_lshl_add_u32 %s, %s, 4, %s\n  v_add_u32 %s, %s, %s" % (v(aRd), v(vLane), v(aW), v(aRd), v(aW), v(aW), s(sWB), v(aW)))
    A("  s_lshr_b32 s34, %s, 1\n  s_and_b32 s35, %s, 1\n  s_lshl_b32 s35, s35, 8" % (s(sWave), s(sWave)))
    A("  s_mul_i32 s36, s34, 576\n  s_add_u32 s36, s36, s35")
    A("  v_lshl_add_u32 %s, %s, 2, s36" % (v(aRd), v(vLane)))
    A("  v_add_u32 %s, 0x10000, %s" % (v(aRd2), v(aRd)))
    A("  s_lshl_b32 s36, s34, 5\n  s_add_u32 s36, s36, %d\n  v_mov_b32 %s, s36" % (FT, v(aFt)))
    A("  s_lshl_b32 s36, %s, 2\n  s_add_u32 s36, s36, s34\n  s_lshl_b32 s36, s36, 14\n  s_add_u32 s36, s36, s35" % s(sG))
    A("  s_lshl_b32 s34, %s, 9\n  s_add_u32 s36, s36, s34\n  s_add_u32 s36, s36, %d" % (s(sI), P1))
    A("  v_lshl_add_u32 %s, %s, 2, s36" % (v(aSt), v(vLane)))
    A("  v_mov_b32 %s, %d" % (v(aFl), FLAG))
    for i in range(W): vbody(4 * (W - 1 - i), False)
    stamp(5)
    Lsave = L; L = []; A = L.append
    A("L_gather:")
    A("  s_lshl_b32 s34, %s, 11\n  s_add_u32 s34, s34, %d" % (s(sG), ML))
    A("  v_add_u32 %s, s34, %s" % (v(T[4]), v(vL16)))
    A("  v_and_b32 %s, 31, %s\n  v_lshlrev_b32 %s, 3, %s" % (v(T[5]), v(vLane), v(T[5]), v(T[5])))
    A("  v_add_u32 %s, %d, %s" % (v(T[6]), MLT, v(T[5])))
    A("  ds_read_b64 %s, %s" % (v(U[8], 2), v(T[6])))
    A("L_gpoll:")
    A("  global_load_dwordx4 %s, %s, s[12:13] sc1" % (v(G0, 4), v(T[4])))
    A("  global_load_dwordx4 %s, %s, s[12:13] offset:1024 sc1" % (v(G1, 4), v(T[4])))
    A("  s_waitcnt vmcnt(0)")
    chk_tag([G0 + 1, G0 + 3, G1 + 1, G1 + 3], T[7], sTag)
    poll_end("L_gpoll")
    A("  v_max_f32 %s, %s, %s" % (v(T[8]), v(G0), v(G1)))
    allred_b2345("v_max_f32", T[8], T[7])
    A("  v_sub_f32 %s, %s, %s\n  v_sub_f32 %s, %s, %s" % (v(G0), v(G0), v(T[8]), v(G1), v(G1), v(T[8])))
    A("  s_waitcnt lgkmcnt(0)")
    A("  v_sub_f32 %s, %s, %s" % (v(U[8]), v(U[8]), v(T[8])))
    for r in (G0, G1, U[8]): A("  v_mul_f32 %s, %s, %s" % (v(r), LOG2E, v(r)))
    for r in (G0, G1, U[8]): A("  v_exp_f32 %s, %s" % (v(r), v(r)))
    A("  v_mul_f32 %s, %s, %s" % (v(T[9]), v(G0), v(G0 + 2)))
    A("  v_fmac_f32 %s, %s, %s" % (v(T[9]), v(G1), v(G1 + 2)))
    allred_b2345("v_add_f32", T[9], T[7])
    A("  v_rcp_f32 %s, %s" % (v(T[9]), v(T[9])))
    A("  v_mul_f32 %s, %s, %s" % (v(U[8]), v(U[8]), v(T[9])))
    A("  v_and_b32 %s, 3, %s\n  v_bfe_u32 %s, %s, 2, 3" % (v(T[7]), v(vLane), v(T[8]), v(vLane)))
    A("  v_lshl_add_u32 %s, %s, 3, %s\n  v_lshlrev_b32 %s, 2, %s\n  v_add_u32 %s, %d, %s" % (v(T[7]), v(T[7]), v(T[8]), v(T[7]), v(T[7]), v(T[7]), FT, v(T[7])))
    A("  s_mov_b32 exec_hi, 0")
    A("  ds_write_b32 %s, %s" % (v(T[7]), v(U[8])))
    A("  s_mov_b64 exec, -1")
    A("  s_cmp_eq_u32 %s, 0\n  s_cbranch_scc1 L_gatherret" % s(sTail))
    A("  v_add_u32 %s, %d, %s" % (v(T[5]), REG, v(T[5])))
    A("L_rpoll:")
    A("  global_load_dwordx2 %s, %s, s[12:13] sc1" % (v(G0, 2), v(T[5])))
    A("  s_waitcnt vmcnt(0)")
    A("  v_cmp_eq_u32 vcc, %s, %s" % (s(sTag), v(G0 + 1)))
    A("  s_cmp_eq_u64 vcc, -1")
    poll_end("L_rpoll")
    A("  v_cmp_eq_u32 vcc, %s, %s" % (s(sXcc), v(G0)))
    A("  s_cmp_eq_u64 vcc, -1\n  s_cselect_b32 s34, %d, 0" % (0 if P["forceslow"] else 1))
    A("  v_mov_b32 %s, s34\n  v_mov_b32 %s, %d" % (v(T[7]), v(T[8]), FLAG))
    A("  s_mov_b64 exec, 1")
    A("  ds_write_b32 %s, %s" % (v(T[8]), v(T[7])))
    A("  s_mov_b64 exec, -1")
    A("  s_branch L_gatherret")
    late.append("\n".join(L)); L = Lsave; A = L.append
    setexec(0x000F000F000F000F)
    for b in range(8): A("  ds_write_b128 %s, %s offset:%d" % (v(aW), v(ACC + 4 * b, 4), 64 * b))
    setexec(-1)
    A("  s_waitcnt lgkmcnt(0)\n  s_barrier")
    O8 = F; F8 = F + 8
    def read8(dst, a0, a1, st):
        A("  ds_read2st64_b32 %s, %s offset0:%d offset1:%d" % (v(dst, 2), v(a0), st, st + 64))
        A("  ds_read2st64_b32 %s, %s offset0:%d offset1:%d" % (v(dst + 2, 2), v(a0), st + 128, st + 192))
        A("  ds_read2st64_b32 %s, %s offset0:%d offset1:%d" % (v(dst + 4, 2), v(a1), st, st + 64))
        A("  ds_read2st64_b32 %s, %s offset0:%d offset1:%d" % (v(dst + 6, 2), v(a1), st + 128, st + 192))
    read8(O8, aRd, aRd2, 0)
    A("  ds_read_b128 %s, %s" % (v(F8, 4), v(aFt)))
    A("  ds_read_b128 %s, %s offset:16" % (v(F8 + 4, 4), v(aFt)))
    A("  ds_read_b32 %s, %s" % (v(T[6]), v(aFl)))
    A("  s_waitcnt lgkmcnt(1)")
    A("  v_pk_mul_f32 %s, %s, %s" % (v(O8, 2), v(O8, 2), v(F8, 2)))
    A("  v_pk_mul_f32 %s, %s, %s" % (v(O8 + 4, 2), v(O8 + 4, 2), v(F8 + 4, 2)))
    A("  v_pk_fma_f32 %s, %s, %s, %s" % (v(O8, 2), v(O8 + 2, 2), v(F8 + 2, 2), v(O8, 2)))
    A("  v_pk_fma_f32 %s, %s, %s, %s" % (v(O8 + 4, 2), v(O8 + 6, 2), v(F8 + 6, 2), v(O8 + 4, 2)))
    A("  v_pk_add_f32 %s, %s, %s" % (v(O8, 2), v(O8, 2), v(O8 + 4, 2)))
    A("  v_add_f32 %s, %s, %s" % (v(O8), v(O8), v(O8 + 1)))
    A("  v_bfi_b32 %s, %s, %s, %s" % (v(O8), s(sFF), v(vT8), v(O8)))
    A("  global_store_dword %s, %s, s[12:13] sc1" % (v(aSt), v(O8)))
    stamp(6)
    for k in range(7, 12): stamp(k)
    A("  s_cmp_eq_u32 %s, 0\n  s_cbranch_scc1 L_end" % s(sTail))
    A("  s_waitcnt lgkmcnt(0)")
    A("  v_readfirstlane_b32 %s, %s" % (s(sFast), v(T[6])))
    aP1 = T[0]; aPA = T[1]; aR3 = T[2]; aLw = T[3]; aLr = T[4]; aLr2 = T[5]; aSP = T[6]; aH = T[7]
    A("  v_lshrrev_b32 %s, 1, %s\n  v_and_b32 %s, 1, %s" % (v(T[8]), v(vLane), v(T[9]), v(vLane)))
    A("  s_lshl_b32 s34, %s, 14\n  s_lshl_b32 s35, %s, 6\n  s_add_u32 s34, s34, s35\n  s_add_u32 s34, s34, %d" % (s(sJ), s(sWave), P1))
    A("  v_lshl_add_u32 %s, %s, 9, s34\n  v_lshl_add_u32 %s, %s, 5, %s" % (v(aP1), v(T[8]), v(aP1), v(T[9]), v(aP1)))
    A8 = [F + k for k in range(8)]
    A("  global_load_dwordx4 %s, %s, s[12:13] sc1" % (v(A8[0], 4), v(aP1)))
    A("  global_load_dwordx4 %s, %s, s[12:13] offset:16 sc1" % (v(A8[4], 4), v(aP1)))
    A("  s_lshl_b32 s34, %s, 6\n  s_add_u32 s34, s34, %d" % (s(sJ), PA))
    A("  v_lshl_add_u32 %s, %s, 11, s34\n  v_lshl_add_u32 %s, %s, 5, %s" % (v(aPA), v(T[8]), v(aPA), v(T[9]), v(aPA)))
    A("  v_lshlrev_b32 %s, 5, %s\n  v_add_u32 %s, %s, %s\n  v_add_u32 %s, %d, %s" % (v(aR3), v(vLane), v(aLw), s(sWB), v(aR3), v(aR3), R3, v(aR3)))
    A("  global_load_dwordx4 %s, %s, s[12:13] sc1" % (v(U[0], 4), v(aPA)))
    A("  global_load_dwordx4 %s, %s, s[12:13] sc1" % (v(U[4], 4), v(aR3)))
    A("  v_add_u32 %s, %d, %s" % (v(T[10]), PB - PA, v(aPA)))
    A("  global_load_dwordx4 %s, %s, s[12:13] sc1" % (v(U[8], 4), v(T[10])))
    A("  s_lshl_b32 s34, %s, 8\n  v_lshl_add_u32 %s, %s, 2, s34\n  v_add_u32 %s, 0x10000, %s" % (s(sWave), v(aLr), v(vLane), v(aLr2), v(aLr)))
    A("  s_lshl_b32 s34, %s, 11\n  s_add_u32 s34, s34, %d\n  v_add_u32 %s, s34, %s" % (s(sJ), PA, v(aSP), v(aLr)))
    A("  v_lshrrev_b32 %s, 5, %s\n  v_lshlrev_b32 %s, 3, %s\n  v_lshl_add_u32 %s, %s, 2, %s" % (v(T[10]), v(vLane), v(aH), v(T[9]), v(aH), v(T[10]), v(aH)))
    A("  v_bfe_u32 %s, %s, 4, 1\n  v_lshl_add_u32 %s, %s, 1, %s" % (v(T[10]), v(vLane), v(aH), v(T[10]), v(aH)))
    A("  v_bfe_u32 %s, %s, 3, 1\n  v_add_u32 %s, %s, %s" % (v(T[10]), v(vLane), v(aH), v(T[10]), v(aH)))
    A("  s_lshl_b32 s34, %s, 4\n  v_add_u32 %s, s34, %s" % (s(sJ), v(aH), v(aH)))
    A("  v_lshlrev_b32 %s, 1, %s" % (v(T[17]), v(aH)))
    A("  v_lshlrev_b32 %s, 2, %s\n  v_add_u32 %s, %d, %s" % (v(aH), v(aH), v(aH), R3, v(aH)))
    A("  s_and_b32 s55, %s, 0xffff\n  v_mov_b32 %s, s55\n  s_mov_b32 s54, 0xffff" % (s(sTag), v(T[16])))
    A("  s_waitcnt vmcnt(3)")
    A("  s_branch L_h1c")
    A("L_h1:")
    A("  global_load_dwordx4 %s, %s, s[12:13] sc1" % (v(A8[0], 4), v(aP1)))
    A("  global_load_dwordx4 %s, %s, s[12:13] offset:16 sc1" % (v(A8[4], 4), v(aP1)))
    A("  s_waitcnt vmcnt(0)")
    A("L_h1c:")
    chk_tag(A8, T[8], sT8, "0xff")
    poll_end("L_h1")
    stamp(7)
    red16(A8)
    A("  v_mov_b32_dpp %s, %s row_ror:8 row_mask:0xf bank_mask:0xf" % (v(A8[2]), v(A8[1])))
    A("  v_cvt_pk_bf16_f32 %s, %s, %s" % (v(A8[0]), v(A8[1]), v(A8[2])))
    for t, ln in enumerate((0, 16, 32, 48, 1, 17, 33, 49)):
        A("  v_readlane_b32 s%d, %s, %d" % (44 + t, v(A8[0]), ln))
    B8 = [F + 8 + k for k in range(8)]
    for t in range(8):
        for e in range(8):
            if t == 0: A("  v_dot2_f32_bf16 %s, s44, %s, 0" % (v(B8[e]), v(W2 + e)))
            else: A("  v_dot2c_f32_bf16 %s, s%d, %s" % (v(B8[e]), 44 + t, v(W2 + 8 * t + e)))
    A("  ds_write_b128 %s, %s offset:4096" % (v(aLw), v(B8[0], 4)))
    A("  ds_write_b128 %s, %s offset:4112" % (v(aLw), v(B8[4], 4)))
    A("  s_waitcnt lgkmcnt(0)\n  s_barrier")
    read8(O8, aLr, aLr2, 16)
    A("  s_waitcnt lgkmcnt(0)")
    sum8(O8)
    A("  v_bfi_b32 %s, %s, %s, %s" % (v(O8), s(sFF), v(vT8), v(O8)))
    hstore("global_store_dword %s, %s, s[12:13]" % (v(aSP), v(O8)))
    A("  s_cmp_lg_u32 %s, 0\n  s_cbranch_scc1 L_h3" % s(sWave))
    A("L_hA:")
    A("  global_load_dwordx4 %s, %s, s[12:13] sc1" % (v(A8[0], 4), v(aPA)))
    A("  global_load_dwordx4 %s, %s, s[12:13] offset:16 sc1" % (v(A8[4], 4), v(aPA)))
    A("  s_waitcnt vmcnt(0)")
    chk_tag(A8, T[8], sT8, "0xff")
    poll_end("L_hA")
    stamp(8)
    red16(A8)
    round_bf16(A8[1], A8[1])
    A("  v_add_f32 %s, %s, %s" % (v(vXres), v(vXres), v(A8[1])))
    A("  v_cvt_pk_bf16_f32 %s, %s, %s" % (v(vXres), v(vXres), v(vXres)))
    A("  v_bfi_b32 %s, s54, %s, %s" % (v(A8[2]), v(T[16]), v(vXres)))
    setexec(0x0303030303030303)
    hstore("global_store_dword %s, %s, s[12:13]" % (v(aH), v(A8[2])))
    setexec(-1)
    A("  v_and_b32 %s, 0xffff0000, %s" % (v(vXres), v(vXres)))
    A("L_h3:")
    A("  s_cmp_ge_u32 %s, 28\n  s_cbranch_scc1 L_hB0" % s(sJ))
    f = [F + k for k in range(8)]; d = T[8:12]
    A("L_h3p:")
    A("  global_load_dwordx4 %s, %s, s[12:13] sc1" % (v(f[0], 4), v(aR3)))
    A("  global_load_dwordx4 %s, %s, s[12:13] offset:16 sc1" % (v(f[4], 4), v(aR3)))
    A("  s_waitcnt vmcnt(0)")
    chk_tag(f, T[8], 55, "s54")
    poll_end("L_h3p")
    stamp(9)
    for k in range(8): A("  v_and_b32 %s, 0xffff0000, %s" % (v(f[k]), v(f[k])))
    ln_stats(f, d, T[12], T[13], T[14])
    XO = U[0]
    for k in range(4): ln_apply(XO + k, f[2 * k], f[2 * k + 1], T[12], T[13], T[14], None, False)
    GA = [F + k for k in range(8)]; UA = [F + 8 + k for k in range(8)]
    for k in range(4):
        for e in range(8):
            for acc, wb in ((GA, W3A), (UA, W3B)):
                if k == 0: A("  v_dot2_f32_bf16 %s, %s, %s, 0" % (v(acc[e]), v(wb + e), v(XO)))
                else: A("  v_dot2c_f32_bf16 %s, %s, %s" % (v(acc[e]), v(wb + 8 * k + e), v(XO + k)))
    for e in range(8): A("  v_permlane32_swap_b32 %s, %s" % (v(GA[e]), v(UA[e])))
    for e in range(8): A("  v_add_f32 %s, %s, %s" % (v(GA[e]), v(GA[e]), v(UA[e])))
    for e in range(4): A("  v_permlane16_swap_b32 %s, %s" % (v(GA[e]), v(GA[e + 4])))
    for e in range(4): A("  v_add_f32 %s, %s, %s" % (v(GA[e]), v(GA[e]), v(GA[e + 4])))
    for e in range(2):
        dpp("v_add_f32", GA[4 + e], GA[e], GA[e], "row_ror:8", bm="0x3")
        dpp("v_add_f32", GA[4 + e], GA[e + 2], GA[e + 2], "row_ror:8", bm="0xc")
    dpp("v_add_f32", GA[0], GA[4], GA[4], "row_shl:4", bm="0x5")
    dpp("v_add_f32", GA[0], GA[5], GA[5], "row_shr:4", bm="0xa")
    dpp("v_add_f32", GA[0], GA[0], GA[0], "quad_perm:[1,0,3,2]")
    dpp("v_add_f32", GA[0], GA[0], GA[0], "quad_perm:[2,3,0,1]")
    round_bf16(GA[0], GA[0])
    A("  v_mov_b32 %s, %s" % (v(GA[1]), v(GA[0])))
    A("  v_permlane32_swap_b32 %s, %s" % (v(GA[0]), v(GA[1])))
    A("  v_mul_f32 %s, 0xbfb8aa3b, %s" % (v(GA[2]), v(GA[0])))
    A("  v_exp_f32 %s, %s" % (v(GA[2]), v(GA[2])))
    A("  v_add_f32 %s, 1.0, %s" % (v(GA[2]), v(GA[2])))
    A("  v_rcp_f32 %s, %s" % (v(GA[2]), v(GA[2])))
    A("  v_mul_f32 %s, %s, %s" % (v(GA[0]), v(GA[0]), v(GA[2])))
    round_bf16(GA[0], GA[0])
    A("  v_mul_f32 %s, %s, %s" % (v(GA[0]), v(GA[0]), v(GA[1])))
    A("  v_mov_b32_dpp %s, %s row_shl:4 row_mask:0xf bank_mask:0xf" % (v(GA[1]), v(GA[0])))
    A("  v_cvt_pk_bf16_f32 %s, %s, %s" % (v(GA[2]), v(GA[0]), v(GA[1])))
    for t in range(4): A("  v_readlane_b32 s%d, %s, %d" % (44 + t, v(GA[2]), 8 * t))
    for t in range(4):
        for e in range(8):
            if t == 0: A("  v_dot2_f32_bf16 %s, s44, %s, 0" % (v(B8[e]), v(W4 + e)))
            else: A("  v_dot2c_f32_bf16 %s, s%d, %s" % (v(B8[e]), 44 + t, v(W4 + 8 * t + e)))
    A("  ds_write_b128 %s, %s offset:8192" % (v(aLw), v(B8[0], 4)))
    A("  ds_write_b128 %s, %s offset:8208" % (v(aLw), v(B8[4], 4)))
    A("  v_add_u32 %s, %d, %s" % (v(aSP), PB - PA, v(aSP)))
    A("  s_waitcnt lgkmcnt(0)\n  s_barrier")
    read8(O8, aLr, aLr2, 32)
    A("  s_waitcnt lgkmcnt(0)")
    sum8(O8)
    A("  v_bfi_b32 %s, %s, %s, %s" % (v(O8), s(sFF), v(vT8), v(O8)))
    hstore("global_store_dword %s, %s, s[12:13]" % (v(aSP), v(O8)))
    A("L_hB0:")
    A("  s_cmp_lg_u32 %s, 0\n  s_cbranch_scc1 L_end" % s(sWave))
    A("  v_add_u32 %s, %d, %s" % (v(aPA), PB - PA, v(aPA)))
    for k in range(8): A("  v_mov_b32 %s, %s" % (v(A8[k]), v(vT8)))
    A("L_hB:")
    A("  s_mov_b32 exec_hi, 0xffffff")
    A("  global_load_dwordx4 %s, %s, s[12:13] sc1" % (v(A8[0], 4), v(aPA)))
    A("  global_load_dwordx4 %s, %s, s[12:13] offset:16 sc1" % (v(A8[4], 4), v(aPA)))
    A("  s_mov_b64 exec, -1")
    A("  s_waitcnt vmcnt(0)")
    chk_tag(A8, T[8], sT8, "0xff")
    poll_end("L_hB")
    stamp(10)
    red16(A8)
    round_bf16(A8[1], A8[1])
    A("  v_add_f32 %s, %s, %s" % (v(A8[1]), v(vXres), v(A8[1])))
    if P["err"]:
        A("  v_mul_f32 %s, 0x%08x, %s" % (v(A8[1]), struct.unpack("<I", struct.pack("<f", 1.0 + P["err"] / 1000.0))[0], v(A8[1])))
    A("  v_mov_b32_dpp %s, %s row_ror:8 row_mask:0xf bank_mask:0xf" % (v(A8[2]), v(A8[1])))
    A("  v_cvt_pk_bf16_f32 %s, %s, %s" % (v(A8[0]), v(A8[1]), v(A8[2])))
    setexec(0x0003000300030003)
    A("  global_store_dword %s, %s, s[62:63]" % (v(T[17]), v(A8[0])))
    A("  s_mov_b64 exec, 1")
    A("  s_cmp_lg_u32 %s, 0\n  s_cbranch_scc1 L_noepoch" % s(sJ))
    A("  v_mov_b32 %s, %d\n  v_mov_b32 %s, %s" % (v(A8[5]), EPOCH, v(A8[6]), s(sTag)))
    A("  global_store_dword %s, %s, s[12:13]" % (v(A8[5]), v(A8[6])))
    A("L_noepoch:")
    A("  s_mov_b64 exec, -1")
    stamp(11)
    A("L_end:")
    if SLIST:
        A("  s_cmp_lg_u32 %s, %d\n  s_cbranch_scc1 L_done" % (s(sWave), P["sw"]))
        A("  s_waitcnt vmcnt(0)")
        stamp(12)
        A("  s_waitcnt lgkmcnt(0)")
        A("  s_add_u32 s12, s12, 0x10000000\n  s_addc_u32 s13, s13, 0")
        ns = len(SLIST)
        A("  s_mul_i32 s34, s2, %d\n  v_mov_b32 v14, s34" % (8 * (ns + 1)))
        A("  s_getreg_b32 s%d, hwreg(HW_REG_XCC_ID)\n  s_getreg_b32 s%d, hwreg(HW_REG_HW_ID)" % (68 + 2 * ns, 69 + 2 * ns))
        A("  s_mov_b64 exec, 1")
        for k in range(ns + 1):
            A("  v_mov_b32 v16, s%d\n  v_mov_b32 v17, s%d" % (68 + 2 * k, 69 + 2 * k))
            A("  global_store_dwordx2 v14, v[16:17], s[12:13] offset:%d" % (8 * k))
        A("  s_waitcnt vmcnt(0)")
    A("L_done:\n  s_endpgm")
    for blk in late: A(blk)
    A("L_codeend:")
    body = auto_nop(L)
    out = HEAD + body
    out.append('.section .rodata,"a"\n.p2align 6\n.amdhsa_kernel %s' % NAME)
    out.append("  .amdhsa_next_free_vgpr 256\n  .amdhsa_next_free_sgpr 102\n  .amdhsa_accum_offset 256")
    out.append("  .amdhsa_group_segment_fixed_size 0\n  .amdhsa_kernarg_size 96\n  .amdhsa_user_sgpr_count 2\n  .amdhsa_user_sgpr_kernarg_segment_ptr 1\n  .amdhsa_system_sgpr_workgroup_id_x 1")
    out.append("  .amdhsa_float_denorm_mode_32 3\n.end_amdhsa_kernel")
    return "\n".join(out) + "\n"

if __name__ == "__main__":
    kw = {}
    for kv in sys.argv[2:]:
        k, val = kv.split("=")
        if k == "stamps": pass
        elif val.lstrip("-").isdigit(): val = int(val)
        else: val = val.replace("+", " ").replace("none", "")
        kw[k] = val
    open(sys.argv[1], "w").write(gen(**kw))
```

```python
import sys, struct
from asmlib import auto_nop
NAME = "sequential_preLN__gqa_block_cached__glu_gated_swiglu__decode_kernel"

DEF = dict(X=133, W=2, PW=4, stamps="", wqflag="nt", wflag="nt", kvflag="nt", spin=400000, gtrig=3,
           psleep=1, codepf=1, err=0, forceslow=0, sw=0, ordbar=1, k1early=1, dbgwg=-1)

EPOCH = 0; QG = 0x10000; ML = 0x8000; REG = 0xC000; R3 = 0xD000; P1 = 0x20000; PA = 0xA0000; PB = 0xB0000
SC = 131072; QL = SC + 8 * 2560; MLT = QL + 1024; FT = MLT + 256; FLAG = FT + 128; RED0 = 153088; LDS_TOTAL = RED0 + 2048
LOG2E = "0x3fb8aa3b"; SCALE = "0x3db504f3"; EPS = "0x3727c5ac"; INV512 = "0x3b000000"

vLane = 1; vL16 = 2; vKd = [3, 4, 5, 6]; vVd = 7; vKrd = 8; vVrd = 9; vSw = 10; vSr = 11; vXres = 12; vT8 = 13
T = list(range(14, 32))
F = 32
ACC = 48
U = list(range(80, 96))
W2 = 96; W3A = 160; W3B = 192; W4 = 224
sWave = 3; sG = 18; sI = 19; sTail = 20; sJ = 21; sN = 22; sCnt = 23; sOff = 24; sOff0 = 25; sSlotC = 26; sSlotI = 27
sWB = 28; sTag = 29; sT8 = 30; sSpin = 31; sDone = 40; sFast = 41; sTrig = 42; sXcc = 43
sSelLo = 37; sSelHi = 38; sFF = 39

def v(i, n=1): return "v%d" % i if n == 1 else "v[%d:%d]" % (i, i + n - 1)
def s(i, n=1): return "s%d" % i if n == 1 else "s[%d:%d]" % (i, i + n - 1)

def gen(**kw):
    P = dict(DEF); P.update(kw)
    X = P["X"]; Y = 1024 - 7 * X; W = P["W"]
    assert 0 < Y <= X and (X + 7) // 8 <= 20 and Y >= 8 * 5
    L = []; A = L.append
    late = []
    SLIST = P["stamps"].split(",") if P["stamps"] else []
    def stamp(k):
        k = str(k)
        if k in SLIST:
            A("  s_memrealtime %s" % s(68 + 2 * SLIST.index(k), 2))
    def setexec(mask):
        if mask == -1:
            A("  s_mov_b64 exec, -1")
        else:
            lo = mask & 0xffffffff; hi = mask >> 32
            A("  s_mov_b32 exec_lo, 0x%x\n  s_mov_b32 exec_hi, 0x%x" % (lo, hi))
    def round_bf16(dst, src):
        A("  v_cvt_pk_bf16_f32 %s, %s, %s" % (v(dst), v(src), v(src)))
        A("  v_and_b32 %s, 0xffff0000, %s" % (v(dst), v(dst)))
    def unpack(lo, hi, src):
        A("  v_lshlrev_b32 %s, 16, %s" % (v(lo), v(src)))
        A("  v_and_b32 %s, 0xffff0000, %s" % (v(hi), v(src)))
    def dpp(op, d, a, b, ctrl, rm="0xf", bm="0xf"):
        A("  %s_dpp %s, %s, %s %s row_mask:%s bank_mask:%s" % (op, v(d), v(a), v(b), ctrl, rm, bm))
    def bfly_hi(op, x, t):
        A("  v_mov_b32 %s, %s" % (v(t), v(x)))
        A("  v_permlane16_swap_b32 %s, %s" % (v(x), v(t)))
        A("  %s %s, %s, %s" % (op, v(x), v(x), v(t)))
        A("  v_mov_b32 %s, %s" % (v(t), v(x)))
        A("  v_permlane32_swap_b32 %s, %s" % (v(x), v(t)))
        A("  %s %s, %s, %s" % (op, v(x), v(x), v(t)))
    def allred_b2345(op, x, t):
        dpp(op, x, x, x, "row_ror:4")
        dpp(op, x, x, x, "row_ror:8")
        bfly_hi(op, x, t)
    def red345(a):
        for e in range(4): A("  v_permlane32_swap_b32 %s, %s" % (v(a[e]), v(a[e + 4])))
        for e in range(4): A("  v_add_f32 %s, %s, %s" % (v(a[e]), v(a[e]), v(a[e + 4])))
        for e in range(2): A("  v_permlane16_swap_b32 %s, %s" % (v(a[e]), v(a[e + 2])))
        for e in range(2): A("  v_add_f32 %s, %s, %s" % (v(a[e]), v(a[e]), v(a[e + 2])))
        dpp("v_add_f32", a[2], a[0], a[0], "row_ror:8", bm="0x3")
        dpp("v_add_f32", a[2], a[1], a[1], "row_ror:8", bm="0xc")
    def red16(a):
        red345(a)
        dpp("v_add_f32", a[0], a[2], a[2], "row_shl:4")
        dpp("v_add_f32", a[1], a[0], a[0], "quad_perm:[2,3,0,1]")
    def sum8(q):
        A("  v_pk_add_f32 %s, %s, %s" % (v(q, 2), v(q, 2), v(q + 2, 2)))
        A("  v_pk_add_f32 %s, %s, %s" % (v(q + 4, 2), v(q + 4, 2), v(q + 6, 2)))
        A("  v_pk_add_f32 %s, %s, %s" % (v(q, 2), v(q, 2), v(q + 4, 2)))
        A("  v_add_f32 %s, %s, %s" % (v(q), v(q), v(q + 1)))
    def ln_stats(f, d, vMean, vSd, vR):
        A("  v_readfirstlane_b32 s36, %s" % v(f[0]))
        s1 = d[0]; s2 = d[1]; t = d[2]; t2 = d[3]
        A("  v_subrev_f32 %s, s36, %s" % (v(s1), v(f[1])))
        A("  v_subrev_f32 %s, s36, %s" % (v(t), v(f[0])))
        A("  v_mul_f32 %s, %s, %s" % (v(s2), v(s1), v(s1)))
        A("  v_add_f32 %s, %s, %s" % (v(s1), v(s1), v(t)))
        A("  v_fmac_f32 %s, %s, %s" % (v(s2), v(t), v(t)))
        for k in range(2, 8):
            tt = t if k % 2 else t2
            A("  v_subrev_f32 %s, s36, %s" % (v(tt), v(f[k])))
            A("  v_add_f32 %s, %s, %s" % (v(s1), v(s1), v(tt)))
            A("  v_fmac_f32 %s, %s, %s" % (v(s2), v(tt), v(tt)))
        for ctrl, rm in (("quad_perm:[1,0,3,2]", "0xf"), ("quad_perm:[2,3,0,1]", "0xf"), ("row_half_mirror", "0xf"),
                         ("row_mirror", "0xf"), ("row_bcast:15", "0xa"), ("row_bcast:31", "0xc")):
            dpp("v_add_f32", s1, s1, s1, ctrl, rm=rm)
            dpp("v_add_f32", s2, s2, s2, ctrl, rm=rm)
        A("  v_readlane_b32 s32, %s, 63" % v(s1))
        A("  v_readlane_b32 s33, %s, 63" % v(s2))
        A("  v_mov_b32 %s, %s" % (v(t), INV512))
        A("  v_mul_f32 %s, s32, %s" % (v(s1), v(t)))
        A("  v_mul_f32 %s, s33, %s" % (v(s2), v(t)))
        A("  v_add_f32 %s, s36, %s" % (v(vMean), v(s1)))
        A("  v_fma_f32 %s, -%s, %s, %s" % (v(s2), v(s1), v(s1), v(s2)))
        A("  v_max_f32 %s, 0, %s" % (v(s2), v(s2)))
        A("  v_cvt_pk_bf16_f32 %s, %s, %s" % (v(t), v(vMean), v(s2)))
        A("  v_lshlrev_b32 %s, 16, %s" % (v(vMean), v(t)))
        A("  v_and_b32 %s, 0xffff0000, %s" % (v(s2), v(t)))
        A("  v_add_f32 %s, %s, %s" % (v(s2), EPS, v(s2)))
        round_bf16(s2, s2)
        A("  v_sqrt_f32 %s, %s" % (v(s2), v(s2)))
        round_bf16(vSd, s2)
        A("  v_rcp_f32 %s, %s" % (v(vR), v(vSd)))
    def ln_apply(dst, flo, fhi, vMean, vSd, vR, t, newton):
        A("  v_sub_f32 %s, %s, %s" % (v(flo), v(flo), v(vMean)))
        A("  v_sub_f32 %s, %s, %s" % (v(fhi), v(fhi), v(vMean)))
        A("  v_cvt_pk_bf16_f32 %s, %s, %s" % (v(dst), v(flo), v(fhi)))
        unpack(flo, fhi, dst)
        if newton:
            A("  v_mul_f32 %s, %s, %s" % (v(t[0]), v(flo), v(vR)))
            A("  v_mul_f32 %s, %s, %s" % (v(t[1]), v(fhi), v(vR)))
            A("  v_fma_f32 %s, -%s, %s, %s" % (v(flo), v(t[0]), v(vSd), v(flo)))
            A("  v_fma_f32 %s, -%s, %s, %s" % (v(fhi), v(t[1]), v(vSd), v(fhi)))
            A("  v_fma_f32 %s, %s, %s, %s" % (v(flo), v(flo), v(vR), v(t[0])))
            A("  v_fma_f32 %s, %s, %s, %s" % (v(fhi), v(fhi), v(vR), v(t[1])))
        else:
            A("  v_mul_f32 %s, %s, %s" % (v(flo), v(flo), v(vR)))
            A("  v_mul_f32 %s, %s, %s" % (v(fhi), v(fhi), v(vR)))
        A("  v_cvt_pk_bf16_f32 %s, %s, %s" % (v(dst), v(flo), v(fhi)))
    def next_slot(r):
        A("  s_add_u32 %s, %s, 4096\n  s_and_b32 %s, %s, 0x3fff\n  s_or_b32 %s, %s, %s" % (s(r), s(r), s(r), s(r), s(r), s(r), s(sWB)))
    def issueK():
        A("  s_mov_b32 m0, %s" % s(sSlotI))
        for g in range(4):
            A("  buffer_load_dwordx4 %s, s[4:7], %s offen offset:%d %s lds" % (v(vKd[g]), s(sOff), g * 1024, P["kvflag"]))
        A("  s_add_u32 %s, %s, 32768" % (s(sOff), s(sOff)))
        next_slot(sSlotI)
    def issueV():
        A("  s_mov_b32 m0, %s" % s(sSlotI))
        for g in range(4):
            A("  buffer_load_dwordx4 %s, s[8:11], %s offen offset:%d %s lds" % (v(vVd), s(sOff), g * 1024, P["kvflag"]))
        A("  s_add_u32 %s, %s, 32768" % (s(sOff), s(sOff)))
        next_slot(sSlotI)
    nslow = [0]
    def hstore(text):
        k = nslow[0]; nslow[0] += 1
        A("  s_cmp_eq_u32 %s, 1" % s(sFast))
        A("  s_cbranch_scc0 L_slow%d" % k)
        A("  " + text)
        A("L_slowret%d:" % k)
        late.append("L_slow%d:\n  %s sc1\n  s_branch L_slowret%d" % (k, text, k))
    def poll_end(label):
        A("  s_cbranch_scc1 %s_ok" % label)
        if P["psleep"]: A("  s_sleep %d" % P["psleep"])
        A("  s_sub_u32 %s, %s, 1" % (s(sSpin), s(sSpin)))
        A("  s_cmp_lg_u32 %s, 0" % s(sSpin))
        A("  s_cbranch_scc1 %s" % label)
        A("  s_mov_b32 %s, 1" % s(sSpin))
        A("%s_ok:" % label)
    def chk_tag(regs, t, stag, mask=None):
        A("  v_xor_b32 %s, %s, %s" % (v(t), s(stag), v(regs[0])))
        for r in regs[1:]: A("  v_bitop3_b32 %s, %s, %s, %s bitop3:0xf6" % (v(t), v(t), v(r), s(stag)))
        if mask: A("  v_and_b32 %s, %s, %s" % (v(t), mask, v(t)))
        A("  v_cmp_eq_u32 vcc, 0, %s" % v(t))
        A("  s_cmp_eq_u64 vcc, -1")
    def wperm(dst, tb, n=2):
        for h in range(n):
            for c in range(4):
                A("  v_perm_b32 %s, %s, %s, %s" % (v(dst + 8 * h + 2 * c), v(tb + 8 * h + 4 + c), v(tb + 8 * h + c), s(sSelLo)))
                A("  v_perm_b32 %s, %s, %s, %s" % (v(dst + 8 * h + 2 * c + 1), v(tb + 8 * h + 4 + c), v(tb + 8 * h + c), s(sSelHi)))

    hdr = open("cdna_kernels/%s.s.ref" % NAME.replace("_kernel", "")).read().split("\n")
    for h in hdr:
        if h.startswith(";") and "@launch" not in h and "Override" not in h and "grid=ceil" not in h: A(h)
    A("; @launch grid=(256,1,1) block=(512,1,1) lds=%d" % LDS_TOTAL)
    A('.amdgcn_target "amdgcn-amd-amdhsa--gfx950"')
    A(".text\n.globl %s\n.p2align 8\n.type %s,@function\n%s:" % (NAME, NAME, NAME))
    HEAD = L; L = []; A = L.append
    stamp(0)
    A("  s_cmp_ge_u32 s2, 256\n  s_cbranch_scc1 L_done")
    A("  s_load_dwordx8 s[44:51], s[0:1], 0")
    A("  s_load_dwordx2 s[12:13], s[0:1], 88")
    A("  s_load_dwordx2 s[52:53], s[0:1], 32")
    A("  s_load_dwordx8 s[56:63], s[0:1], 48")
    if P["codepf"]:
        A("  s_getpc_b64 s[16:17]")
        A("L_pc:")
        A("  s_sub_u32 s16, s16, L_pc-%s\n  s_subb_u32 s17, s17, 0" % NAME)
        A("  v_lshlrev_b32 %s, 4, v0" % v(T[9]))
        A("  global_load_dwordx4 %s, %s, s[16:17]" % (v(U[8], 4), v(T[9])))
        A("  v_add_u32 %s, 0x2000, %s" % (v(T[9]), v(T[9])))
        A("  v_min_u32 %s, L_codeend-%s-16, %s" % (v(T[9]), NAME, v(T[9])))
        A("  global_load_dwordx4 %s, %s, s[16:17]" % (v(U[12], 4), v(T[9])))
    A("  v_and_b32 %s, 63, v0" % v(vLane))
    A("  v_lshrrev_b32 %s, 6, v0" % v(T[0]))
    A("  v_readfirstlane_b32 %s, %s" % (s(sWave), v(T[0])))
    A("  v_lshlrev_b32 %s, 4, %s" % (v(vL16), v(vLane)))
    A("  s_lshr_b32 %s, s2, 5\n  s_and_b32 %s, s2, 31\n  s_lshr_b32 %s, s2, 3" % (s(sG), s(sI), s(sJ)))
    A("  s_and_b32 s32, s2, 7\n  s_cmp_eq_u32 s32, 0\n  s_cselect_b32 %s, 1, 0" % s(sTail))
    A("  s_movk_i32 s33, %d\n  s_cselect_b32 s33, %d, s33" % (X, Y))
    A("  v_lshrrev_b32 %s, 3, %s" % (v(T[3]), v(vLane)))
    A("  v_and_b32 %s, 7, %s" % (v(T[4]), v(vLane)))
    A("  s_lshr_b32 s35, %s, 3\n  s_lshl_b32 s34, s35, 6\n  s_lshl_b32 s36, %s, 3\n  s_add_u32 s34, s34, s36" % (s(sI), s(sWave)))
    A("  v_add_u32 %s, s34, %s" % (v(T[2]), v(T[3])))
    A("  v_lshlrev_b32 %s, 14, %s" % (v(T[1]), v(T[2])))
    A("  v_lshl_add_u32 %s, %s, 4, %s" % (v(T[1]), v(T[4]), v(T[1])))
    A("  v_lshlrev_b32 %s, 2, %s" % (v(T[2]), v(T[2])))
    A("  s_lshl_b32 s34, %s, 10\n  s_lshl_b32 s36, s32, 7\n  s_add_u32 s34, s34, s36" % s(sG))
    A("  v_add_u32 %s, s34, %s" % (v(T[1]), v(T[1])))
    A("  v_add_u32 %s, 0x2000, %s" % (v(T[5]), v(T[1])))
    A("  s_lshl_b32 s54, %s, 13\n  s_lshl_b32 s35, s35, 11\n  s_add_u32 s54, s54, s35\n  s_lshl_b32 s35, s32, 8\n  s_add_u32 s54, s54, s35\n  s_add_u32 s54, s54, %d" % (s(sG), QG))
    A("  v_lshrrev_b32 %s, 4, %s" % (v(T[6]), v(vLane)))
    A("  v_and_b32 %s, 15, %s" % (v(T[7]), v(vLane)))
    A("  v_xor_b32 %s, %s, %s" % (v(T[8]), v(T[6]), v(T[7])))
    A("  v_lshlrev_b32 %s, 4, %s" % (v(T[8]), v(T[8])))
    A("  v_lshl_add_u32 %s, %s, 8, %s" % (v(vKd[0]), v(T[6]), v(T[8])))
    for g in range(1, 4): A("  v_xor_b32 %s, %d, %s" % (v(vKd[g]), 64 * g, v(vKd[0])))
    A("  s_mul_i32 s34, %s, %d\n  s_add_u32 s35, %s, 7\n  s_lshr_b32 s35, s35, 3\n  s_mul_i32 s35, s35, %d\n  s_sub_u32 s34, s34, s35" % (s(sI), X, s(sI), X - Y))
    A("  s_add_u32 s34, s34, %s\n  s_lshl_b32 s34, s34, 12\n  s_lshl_b32 s35, %s, 24\n  s_add_u32 %s, s34, s35" % (s(sWave), s(sG), s(sOff0)))
    A("  s_sub_u32 s33, s33, %s\n  s_add_u32 s33, s33, 7\n  s_lshr_b32 %s, s33, 3" % (s(sWave), s(sN)))
    A("  s_lshl_b32 %s, %s, 14" % (s(sWB), s(sWave)))
    A("  s_mov_b32 %s, %s\n  s_mov_b32 %s, %s\n  s_mov_b32 %s, %s" % (s(sSlotC), s(sWB), s(sSlotI), s(sWB), s(sOff), s(sOff0)))
    A("  s_mov_b32 s6, 0x8000000\n  s_mov_b32 s7, 0x20000\n  s_mov_b32 s10, 0x8000000\n  s_mov_b32 s11, 0x20000")
    A("  s_waitcnt lgkmcnt(0)")
    stamp("a")
    XD = U[0]; XP = U[4]; WA = F; WB_ = F + 4
    A("  global_load_dwordx4 %s, %s, s[44:45]" % (v(XD, 4), v(vL16)))
    A("  global_load_dword %s, %s, s[44:45]" % (v(XP), v(T[2])))
    A("  global_load_dwordx4 %s, %s, s[50:51] %s" % (v(WA, 4), v(T[1]), P["wqflag"]))
    A("  global_load_dwordx4 %s, %s, s[50:51] %s" % (v(WB_, 4), v(T[5]), P["wqflag"]))
    A("  s_load_dword %s, s[12:13], %d" % (s(sTag), EPOCH))
    A("  s_mov_b32 s4, s46\n  s_and_b32 s5, s47, 0xffff\n  s_mov_b32 s8, s48\n  s_and_b32 s9, s49, 0xffff")
    A("  s_mov_b64 s[14:15], s[44:45]")
    def s3prep():
        A("  s_movk_i32 s34, 3584\n  v_mul_lo_u32 %s, %s, s34" % (v(U[5]), v(T[3])))
        A("  v_lshlrev_b32 %s, 4, %s" % (v(U[6]), v(T[4])))
        A("  s_cmp_lt_u32 %s, 28\n  s_cselect_b32 s66, 1835008, 0\n  s_mov_b32 s67, 0x20000" % s(sJ))
    def s3dma(mat, k0, k1):
        A("  s_mov_b32 s64, s%d\n  s_and_b32 s65, s%d, 0xffff" % (56 + 2 * mat, 57 + 2 * mat))
        A("  s_mul_i32 s34, %s, %d\n  s_lshl_b32 s35, %s, 7\n  s_add_u32 s34, s34, s35\n  s_add_u32 s34, s34, %d" % (s(sWave), 64 * 3584, s(sJ), k0 * 8 * 3584))
        A("  s_lshl_b32 s35, %s, 13\n  s_add_u32 s35, s35, %d" % (s(sWave), mat * 65536 + k0 * 1024))
        for k in range(k0, k1):
            A("  v_xor_b32 %s, %d, %s\n  v_add_u32 %s, %s, %s" % (v(U[7]), 16 * k, v(U[6]), v(U[7]), v(U[5]), v(U[7])))
            A("  s_mov_b32 m0, s35")
            A("  buffer_load_dwordx4 %s, s[64:67], s34 offen %s lds" % (v(U[7]), P["wflag"]))
            A("  s_add_u32 s34, s34, %d\n  s_add_u32 s35, s35, 1024" % (8 * 3584))
    if P["ordbar"]: A("  s_barrier")
    A("  s_cmp_eq_u32 %s, 1\n  s_cbranch_scc1 L_tburst" % s(sTail))
    issueK()
    A("L_tburstret:")
    Lsave = L; L = []; A = L.append
    A("L_tburst:")
    s3prep(); s3dma(0, 0, 4)
    A("  s_branch L_tburstret")
    late.append("\n".join(L)); L = Lsave; A = L.append
    A("  v_lshlrev_b32 %s, 8, %s" % (v(vKrd), v(T[7])))
    A("  v_add_u32 %s, %s, %s" % (v(vKrd), v(vKrd), v(T[8])))
    A("  v_lshlrev_b32 %s, 10, %s" % (v(vVrd), v(T[6])))
    A("  v_lshl_add_u32 %s, %s, 3, %s" % (v(vVrd), v(T[7]), v(vVrd)))
    A("  v_bfe_u32 %s, %s, 1, 2" % (v(T[9]), v(vLane)))
    A("  v_lshlrev_b32 %s, 8, %s" % (v(vVd), v(T[9])))
    A("  v_lshl_add_u32 %s, %s, 5, %s" % (v(vVd), v(T[3]), v(vVd)))
    A("  v_and_b32 %s, 1, %s" % (v(T[9]), v(vLane)))
    A("  v_lshl_add_u32 %s, %s, 4, %s" % (v(vVd), v(T[9]), v(vVd)))
    A("  s_mul_i32 s34, %s, 2560\n  s_add_u32 s34, s34, %d" % (s(sWave), SC))
    A("  v_and_b32 %s, 3, %s" % (v(T[9]), v(vLane)))
    A("  v_lshl_add_u32 %s, %s, 2, %s" % (v(T[10]), v(T[6]), v(T[9])))
    A("  v_lshlrev_b32 %s, 3, %s" % (v(T[10]), v(T[10])))
    A("  v_add_u32 %s, s34, %s" % (v(vSw), v(T[10])))
    A("  v_bfe_u32 %s, %s, 2, 2" % (v(T[10]), v(vLane)))
    A("  v_lshl_add_u32 %s, %s, 7, %s" % (v(vSr), v(T[10]), v(vSw)))
    A("  v_mov_b32 %s, 0xff80ff80\n  v_mov_b32 %s, 0xff80ff80" % (v(T[10]), v(T[11])))
    for k in range(5): A("  ds_write_b64 %s, %s offset:%d" % (v(vSr), v(T[10], 2), k * 512))
    A("  v_lshrrev_b32 %s, 5, %s" % (v(T[12]), v(vLane)))
    A("  v_lshlrev_b32 %s, 3, %s" % (v(T[15]), v(T[4])))
    A("  v_lshl_add_u32 %s, %s, 2, %s" % (v(T[15]), v(T[12]), v(T[15])))
    A("  v_bfe_u32 %s, %s, 4, 1" % (v(T[12]), v(vLane)))
    A("  v_lshl_add_u32 %s, %s, 1, %s" % (v(T[15]), v(T[12]), v(T[15])))
    A("  v_bfe_u32 %s, %s, 3, 1" % (v(T[12]), v(vLane)))
    A("  v_add_u32 %s, %s, %s" % (v(T[15]), v(T[12]), v(T[15])))
    A("  s_lshl_b32 s34, %s, 2\n  s_add_u32 s34, s34, %d" % (s(sWave), RED0))
    A("  v_lshl_add_u32 %s, %s, 5, s34" % (v(T[15]), v(T[15])))
    A("  s_mov_b32 %s, 0x05040100\n  s_mov_b32 %s, 0x07060302\n  s_movk_i32 %s, 0xff" % (s(sSelLo), s(sSelHi), s(sFF)))
    A("  s_mov_b32 %s, %d\n  s_mov_b32 %s, 0\n  s_mov_b32 %s, 0" % (s(sSpin), P["spin"], s(sDone), s(sFast)))
    A("  s_cmp_eq_u32 %s, 0\n  s_cselect_b32 %s, %d, -1" % (s(sWave), s(sTrig), P["gtrig"]))
    A("  s_getreg_b32 %s, hwreg(HW_REG_XCC_ID, 0, 4)" % s(sXcc))
    stamp("b")
    A("  s_waitcnt vmcnt(7)")
    f = T[0:8]; d = T[8:12]; vMean = T[12]; vSd = T[13]; vR = T[14]
    for k in range(4): unpack(f[2 * k], f[2 * k + 1], XD + k)
    ln_stats(f, d, vMean, vSd, vR)
    A("  s_waitcnt vmcnt(6)")
    unpack(f[0], f[1], XP)
    ln_apply(XP, f[0], f[1], vMean, vSd, vR, [f[2], f[3]], True)
    A("  s_waitcnt vmcnt(4) lgkmcnt(0)")
    stamp("e")
    A("  s_add_u32 %s, %s, 1\n  s_and_b32 %s, %s, 0xff" % (s(sTag), s(sTag), s(sT8), s(sTag)))
    A("  v_mov_b32 %s, %s" % (v(vT8), s(sT8)))
    a = T[0:8]
    wperm(F + 8, F, 1)
    for e in range(8):
        A("  v_dot2_f32_bf16 %s, %s, %s, 0" % (v(a[e]), v(F + 8 + e), v(XP)))
    red345(a)
    A("  ds_write_b32 %s, %s" % (v(T[15]), v(a[2])))
    A("  s_cmp_eq_u32 %s, 1\n  s_cbranch_scc1 L_tb2" % s(sTail))
    if P["k1early"]: issueK()
    A("L_tb2ret:")
    Lsave = L; L = []; A = L.append
    A("L_tb2:")
    s3dma(0, 4, 8)
    A("  s_cmp_lg_u32 %s, 7\n  s_cbranch_scc1 L_tb2ret" % s(sWave))
    A("  s_lshl_b32 s34, %s, 3\n  s_add_u32 s34, s34, %d" % (s(sJ), REG))
    A("  v_mov_b32 %s, s34\n  v_mov_b32 %s, %s\n  v_mov_b32 %s, %s" % (v(T[9]), v(T[10]), s(sXcc), v(T[11]), s(sTag)))
    A("  s_mov_b64 exec, 1")
    A("  global_store_dwordx2 %s, %s, s[12:13] sc1" % (v(T[9]), v(T[10], 2)))
    A("  s_mov_b64 exec, -1")
    A("  s_branch L_tb2ret")
    late.append("\n".join(L)); L = Lsave; A = L.append
    stamp("f")
    A("  s_waitcnt lgkmcnt(0)\n  s_barrier")
    stamp("g")
    A("  s_cmp_lg_u32 %s, 0\n  s_cbranch_scc1 L_noq" % s(sWave))
    A("  v_lshlrev_b32 %s, 5, %s\n  v_add_u32 %s, %d, %s" % (v(T[0]), v(vLane), v(T[0]), RED0, v(T[0])))
    A("  ds_read_b128 %s, %s" % (v(F, 4), v(T[0])))
    A("  ds_read_b128 %s, %s offset:16" % (v(F + 4, 4), v(T[0])))
    A("  v_lshl_add_u32 %s, %s, 2, s54" % (v(T[1]), v(vLane)))
    A("  s_waitcnt lgkmcnt(0)")
    sum8(F)
    A("  v_bfi_b32 %s, %s, %s, %s" % (v(F), s(sFF), v(vT8), v(F)))
    A("  global_store_dword %s, %s, s[12:13] sc1" % (v(T[1]), v(F)))
    A("L_noq:")
    stamp(1)
    A("  s_lshl_b32 s34, %s, 13\n  s_lshl_b32 s35, %s, 8\n  s_add_u32 s34, s34, s35\n  s_add_u32 s34, s34, %d" % (s(sG), s(sWave), QG))
    A("  v_lshrrev_b32 %s, 4, %s\n  v_and_b32 %s, 15, %s" % (v(T[2]), v(vLane), v(T[3]), v(vLane)))
    A("  v_lshl_add_u32 %s, %s, 11, s34\n  v_lshl_add_u32 %s, %s, 4, %s" % (v(T[0]), v(T[2]), v(T[0]), v(T[3]), v(T[0])))
    A("  s_lshl_b32 s34, %s, 7\n  s_add_u32 s34, s34, %d" % (s(sWave), QL))
    A("  v_lshl_add_u32 %s, %s, 3, s34" % (v(T[1]), v(T[3])))
    A("  v_lshrrev_b32 %s, 1, %s\n  v_and_b32 %s, 1, %s" % (v(T[3]), v(T[2]), v(T[2]), v(T[2])))
    A("  v_lshl_add_u32 %s, %s, 2, %s\n  v_lshl_add_u32 %s, %s, 1, %s" % (v(T[1]), v(T[3]), v(T[1]), v(T[1]), v(T[2]), v(T[1])))
    G0 = U[0]; G1 = U[4]
    def qpoll_issue():
        A("  global_load_dwordx4 %s, %s, s[12:13] sc1" % (v(G0, 4), v(T[0])))
    def qpoll_check():
        chk_tag([G0 + k for k in range(4)], T[2], sT8, "0xff")
    def qwrite():
        for e in range(2): A("  v_permlane32_swap_b32 %s, %s" % (v(G0 + e), v(G0 + e + 2)))
        for e in range(2): A("  v_add_f32 %s, %s, %s" % (v(G0 + e), v(G0 + e), v(G0 + e + 2)))
        A("  v_permlane16_swap_b32 %s, %s" % (v(G0), v(G0 + 1)))
        A("  v_add_f32 %s, %s, %s" % (v(G0), v(G0), v(G0 + 1)))
        A("  v_cvt_pk_bf16_f32 %s, %s, %s" % (v(G0), v(G0), v(G0)))
        A("  ds_write_b16 %s, %s" % (v(T[1]), v(G0)))
    Lsave = L; L = []; A = L.append
    A("L_tailpro:")
    s3dma(1, 0, 8)
    A("  s_lshl_b32 s34, %s, 5" % s(sJ))
    A("  v_and_b32 %s, 1, %s\n  v_lshrrev_b32 %s, 5, %s\n  v_lshlrev_b32 %s, 3, %s" % (v(T[5]), v(vLane), v(T[6]), v(vLane), v(T[5]), v(T[5])))
    A("  v_lshl_add_u32 %s, %s, 2, %s\n  v_bfe_u32 %s, %s, 4, 1" % (v(T[5]), v(T[6]), v(T[5]), v(T[6]), v(vLane)))
    A("  v_lshl_add_u32 %s, %s, 1, %s\n  v_bfe_u32 %s, %s, 3, 1" % (v(T[5]), v(T[6]), v(T[5]), v(T[6]), v(vLane)))
    A("  v_add_u32 %s, %s, %s\n  v_lshl_add_u32 %s, %s, 1, s34" % (v(T[5]), v(T[6]), v(T[5]), v(T[5]), v(T[5])))
    A("  global_load_ushort %s, %s, s[14:15]" % (v(vXres), v(T[5])))
    A("  s_lshl_b32 s34, %s, 17\n  s_lshl_b32 s35, %s, 14\n  s_add_u32 s34, s34, s35\n  s_add_u32 s52, s52, s34\n  s_addc_u32 s53, s53, 0" % (s(sJ), s(sWave)))
    A("  s_lshl_b32 s34, %s, 16\n  s_lshl_b32 s35, %s, 13\n  s_add_u32 s34, s34, s35\n  s_add_u32 s60, s60, s34\n  s_addc_u32 s61, s61, 0" % (s(sJ), s(sWave)))
    TB = [32, 48]
    groups = []
    for g in range(4): groups.append((52, W2 + 16 * g))
    for g in range(2): groups.append((60, W4 + 16 * g))
    def wissue(k):
        sb, dst = groups[k]
        tb = TB[k % 2]
        for r in range(4):
            A("  global_load_dwordx4 %s, %s, %s offset:%d %s" % (v(tb + 4 * r, 4), v(vL16), s(sb, 2), 1024 * r, P["wflag"]))
        A("  s_add_u32 %s, %s, 4096\n  s_addc_u32 %s, %s, 0" % (s(sb), s(sb), s(sb + 1), s(sb + 1)))
    A("  s_waitcnt vmcnt(9)")
    wissue(0)
    A("  s_waitcnt vmcnt(8)")
    for k in range(1, 4):
        wissue(k); A("  s_waitcnt vmcnt(4)"); wperm(groups[k - 1][1], TB[(k - 1) % 2])
    A("  s_cmp_ge_u32 %s, 28\n  s_cbranch_scc1 L_w7" % s(sJ))
    for k in range(4, 6):
        wissue(k); A("  s_waitcnt vmcnt(4)"); wperm(groups[k - 1][1], TB[(k - 1) % 2])
    A("  s_waitcnt vmcnt(0)"); wperm(groups[5][1], TB[1])
    A("  s_branch L_wdone")
    A("L_w7:")
    A("  s_waitcnt vmcnt(0)"); wperm(groups[3][1], TB[1])
    A("L_wdone:")
    A("  v_lshlrev_b32 %s, 16, %s" % (v(vXres), v(vXres)))
    A("L_tqpoll:")
    qpoll_issue()
    A("  s_waitcnt vmcnt(0)")
    qpoll_check()
    poll_end("L_tqpoll")
    qwrite()
    A("  s_waitcnt lgkmcnt(0)\n  s_barrier")
    A("  v_and_b32 %s, 7, %s\n  v_xor_b32 %s, %s, %s\n  v_lshlrev_b32 %s, 4, %s" % (v(T[3]), v(vLane), v(T[3]), s(sWave), v(T[3]), v(T[3]), v(T[3])))
    A("  v_lshl_add_u32 %s, %s, 10, %s\n  v_add_u32 %s, 0x10000, %s" % (v(T[3]), v(vLane), v(T[3]), v(T[4]), v(T[3])))
    for mat in range(2):
        for r in range(8):
            A("  ds_read_b128 %s, %s offset:%d" % (v(32 + 32 * mat + 4 * r, 4), v(T[3 + mat]), 128 * r))
        for q in range(2):
            A("  s_waitcnt lgkmcnt(%d)" % (4 - 4 * q))
            wperm(W3A + 32 * mat + 16 * q, 32 + 32 * mat + 16 * q)
    A("  s_barrier")
    for k in range(4): issueK()
    A("  s_branch L_qops")
    late.append("\n".join(L)); L = Lsave; A = L.append

    A("  s_cmp_eq_u32 %s, 1\n  s_cbranch_scc1 L_tailpro" % s(sTail))
    for k in range(2 if P["k1early"] else 1, 4):
        A("  s_cmp_eq_u32 %s, 1\n  s_cbranch_scc1 L_pp%da" % (s(sDone), k))
        qpoll_issue()
        A("L_pp%da:" % k)
        A("  s_waitcnt vmcnt(%d)" % P["PW"])
        issueK()
        A("  s_cmp_eq_u32 %s, 1\n  s_cbranch_scc1 L_pp%db" % (s(sDone), k))
        A("  s_waitcnt vmcnt(4)")
        qpoll_check()
        A("  s_cbranch_scc0 L_pp%db" % k)
        qwrite()
        A("  s_mov_b32 %s, 1" % s(sDone))
        A("L_pp%db:" % k)
    A("  s_cmp_eq_u32 %s, 1\n  s_cbranch_scc1 L_qdone" % s(sDone))
    A("L_qpoll:")
    qpoll_issue()
    A("  s_waitcnt vmcnt(0)")
    qpoll_check()
    poll_end("L_qpoll")
    qwrite()
    A("L_qdone:")
    A("  s_waitcnt lgkmcnt(0)\n  s_barrier")
    A("L_qops:")
    stamp(2)
    A("  v_and_b32 %s, 3, %s\n  v_lshlrev_b32 %s, 8, %s" % (v(T[0]), v(vLane), v(T[0]), v(T[0])))
    A("  v_lshrrev_b32 %s, 4, %s\n  v_lshl_add_u32 %s, %s, 4, %s" % (v(T[1]), v(vLane), v(T[0]), v(T[1]), v(T[0])))
    A("  v_add_u32 %s, %d, %s" % (v(T[0]), QL, v(T[0])))
    for t in range(4): A("  ds_read_b128 %s, %s offset:%d" % (v(ACC + 4 * t, 4), v(T[0]), 64 * t))
    S = T[4:8]
    assert S[0] % 2 == 0
    def kbody(wait, issue):
        A("  v_add_u32 %s, %s, %s" % (v(T[0]), s(sSlotC), v(vKrd)))
        for t in range(1, 4): A("  v_xor_b32 %s, %d, %s" % (v(T[t]), 64 * t, v(T[0])))
        A("  s_waitcnt vmcnt(%d)" % wait)
        for t in range(4): A("  ds_read_b128 %s, %s" % (v(F + 4 * t, 4), v(T[t])))
        if issue == "K": issueK()
        if issue == "V": issueV()
        next_slot(sSlotC)
        for t in range(4):
            A("  s_waitcnt lgkmcnt(%d)" % (3 - t))
            A("  v_mfma_f32_16x16x32_bf16 %s, %s, %s, %s" % (v(S[0], 4), v(F + 4 * t, 4), v(ACC + 4 * t, 4), "0" if t == 0 else v(S[0], 4)))
        A("  v_cvt_pk_bf16_f32 %s, %s, %s" % (v(T[8]), v(S[0]), v(S[1])))
        A("  v_cvt_pk_bf16_f32 %s, %s, %s" % (v(T[9]), v(S[2]), v(S[3])))
        unpack(T[10], T[11], T[8]); unpack(T[12], T[13], T[9])
        for k in range(4): A("  v_mul_f32 %s, %s, %s" % (v(T[10 + k]), SCALE, v(T[10 + k])))
        A("  v_cvt_pk_bf16_f32 %s, %s, %s" % (v(T[8]), v(T[10]), v(T[11])))
        A("  v_cvt_pk_bf16_f32 %s, %s, %s" % (v(T[9]), v(T[12]), v(T[13])))
        setexec(0x000F000F000F000F)
        A("  ds_write_b64 %s, %s" % (v(vSw), v(T[8], 2)))
        setexec(-1)
        A("  v_add_u32 %s, 128, %s" % (v(vSw), v(vSw)))
    assert T[8] % 2 == 0
    A("  s_waitcnt lgkmcnt(0)")
    for i in range(4 - W): kbody(4 * (3 - i), None)
    A("  s_sub_u32 %s, %s, 4" % (s(sCnt), s(sN)))
    A("L_kloop:")
    kbody(4 * (W - 1), "K")
    A("  s_sub_u32 %s, %s, 1\n  s_cmp_lg_u32 %s, 0\n  s_cbranch_scc1 L_kloop" % (s(sCnt), s(sCnt), s(sCnt)))
    A("  s_mov_b32 %s, %s" % (s(sOff), s(sOff0)))
    for i in range(W): kbody(4 * (W - 1), "V")
    stamp(3)
    PK = F
    FL = ACC
    for k in range(5): A("  ds_read_b64 %s, %s offset:%d" % (v(PK + 2 * k, 2), v(vSr), 512 * k))
    A("  s_lshl_b32 s34, %s, 7" % s(sN))
    A("  v_subrev_u32 %s, s34, %s" % (v(vSw), v(vSw)))
    for k in range(5):
        A("  s_waitcnt lgkmcnt(%d)" % (4 - k))
        unpack(FL + 4 * k, FL + 4 * k + 1, PK + 2 * k); unpack(FL + 4 * k + 2, FL + 4 * k + 3, PK + 2 * k + 1)
    vM = T[0]; vLs = T[1]
    A("  v_max3_f32 %s, %s, %s, %s" % (v(vM), v(FL), v(FL + 1), v(FL + 2)))
    A("  v_max3_f32 %s, %s, %s, %s" % (v(T[2]), v(FL + 3), v(FL + 4), v(FL + 5)))
    for k in range(6, 18, 4):
        A("  v_max3_f32 %s, %s, %s, %s" % (v(vM), v(vM), v(FL + k), v(FL + k + 1)))
        A("  v_max3_f32 %s, %s, %s, %s" % (v(T[2]), v(T[2]), v(FL + k + 2), v(FL + k + 3)))
    A("  v_max3_f32 %s, %s, %s, %s" % (v(vM), v(vM), v(FL + 18), v(FL + 19)))
    A("  v_max_f32 %s, %s, %s" % (v(vM), v(vM), v(T[2])))
    allred_b2345("v_max_f32", vM, T[2])
    A("  s_mov_b32 s34, %s" % LOG2E)
    A("  v_mul_f32 %s, s34, %s" % (v(T[3]), v(vM)))
    for k in range(20): A("  v_fma_f32 %s, %s, s34, -%s" % (v(FL + k), v(FL + k), v(T[3])))
    for k in range(20): A("  v_exp_f32 %s, %s" % (v(FL + k), v(FL + k)))
    for k in range(10): A("  v_cvt_pk_bf16_f32 %s, %s, %s" % (v(PK + k), v(FL + 2 * k), v(FL + 2 * k + 1)))
    for k in range(5): A("  ds_write_b64 %s, %s offset:%d" % (v(vSr), v(PK + 2 * k, 2), 512 * k))
    for k in range(10): A("  v_add_f32 %s, %s, %s" % (v(FL + k), v(FL + k), v(FL + 10 + k)))
    for k in range(5): A("  v_add_f32 %s, %s, %s" % (v(FL + k), v(FL + k), v(FL + 5 + k)))
    A("  v_add_f32 %s, %s, %s" % (v(FL), v(FL), v(FL + 1)))
    A("  v_add_f32 %s, %s, %s" % (v(FL + 2), v(FL + 2), v(FL + 3)))
    A("  v_add_f32 %s, %s, %s" % (v(FL), v(FL), v(FL + 4)))
    A("  v_add_f32 %s, %s, %s" % (v(vLs), v(FL), v(FL + 2)))
    allred_b2345("v_add_f32", vLs, T[2])
    A("  s_lshl_b32 s34, %s, 5\n  s_add_u32 s34, s34, %d" % (s(sWave), MLT))
    A("  v_lshl_add_u32 %s, %s, 3, s34" % (v(T[2]), v(vLane)))
    A("  s_mov_b64 exec, 0xf")
    assert vM % 2 == 0 and vLs == vM + 1
    A("  ds_write_b64 %s, %s" % (v(T[2]), v(vM, 2)))
    A("  s_mov_b64 exec, -1")
    for k in range(32): A("  v_mov_b32 %s, 0" % v(ACC + k))
    A("  s_waitcnt lgkmcnt(0)\n  s_barrier")
    A("  s_cmp_lg_u32 %s, 0\n  s_cbranch_scc1 L_noml" % s(sWave))
    A("  v_and_b32 %s, 31, %s\n  v_lshlrev_b32 %s, 3, %s\n  v_add_u32 %s, %d, %s" % (v(T[2]), v(vLane), v(T[2]), v(T[2]), v(T[2]), MLT, v(T[2])))
    A("  ds_read_b64 %s, %s" % (v(T[4], 2), v(T[2])))
    A("  s_waitcnt lgkmcnt(0)")
    A("  v_mov_b32 %s, %s" % (v(T[6]), v(T[4])))
    allred_b2345("v_max_f32", T[6], T[2])
    A("  v_sub_f32 %s, %s, %s" % (v(T[4]), v(T[4]), v(T[6])))
    A("  v_mul_f32 %s, %s, %s" % (v(T[4]), LOG2E, v(T[4])))
    A("  v_exp_f32 %s, %s" % (v(T[4]), v(T[4])))
    A("  v_mul_f32 %s, %s, %s" % (v(T[8]), v(T[4]), v(T[5])))
    dpp("v_add_f32", T[8], T[8], T[8], "row_ror:4")
    dpp("v_add_f32", T[8], T[8], T[8], "row_ror:8")
    A("  v_mov_b32 %s, %s" % (v(T[2]), v(T[8])))
    A("  v_permlane16_swap_b32 %s, %s" % (v(T[8]), v(T[2])))
    A("  v_add_f32 %s, %s, %s" % (v(T[8]), v(T[8]), v(T[2])))
    A("  v_mov_b32 %s, %s\n  v_mov_b32 %s, %s" % (v(T[7]), s(sTag), v(T[9]), s(sTag)))
    A("  s_lshl_b32 s34, %s, 11\n  s_lshl_b32 s35, %s, 6\n  s_add_u32 s34, s34, s35\n  s_add_u32 s34, s34, %d" % (s(sG), s(sI), ML))
    A("  v_add_u32 %s, s34, %s" % (v(T[2]), v(vL16)))
    A("  s_mov_b64 exec, 0xf")
    assert T[6] % 2 == 0
    A("  global_store_dwordx4 %s, %s, s[12:13] sc1" % (v(T[2]), v(T[6], 4)))
    A("  s_mov_b64 exec, -1")
    A("L_noml:")
    stamp(4)
    PB_ = T[2]
    assert PB_ % 2 == 0
    def vbody(wait, issue):
        A("  v_add_u32 %s, %s, %s" % (v(T[0]), s(sSlotC), v(vVrd)))
        A("  ds_read_b64 %s, %s" % (v(PB_, 2), v(vSw)))
        A("  v_add_u32 %s, 128, %s" % (v(vSw), v(vSw)))
        A("  s_waitcnt vmcnt(%d)" % wait)
        for b in range(8): A("  ds_read_b64_tr_b16 %s, %s offset:%d" % (v(F + 2 * b, 2), v(T[0]), 128 * b))
        if issue: issueV()
        next_slot(sSlotC)
        for b in range(8):
            A("  s_waitcnt lgkmcnt(%d)" % (7 - b))
            A("  v_mfma_f32_16x16x16_bf16 %s, %s, %s, %s" % (v(ACC + 4 * b, 4), v(F + 2 * b, 2), v(PB_, 2), v(ACC + 4 * b, 4)))
    A("  s_sub_u32 %s, %s, %d" % (s(sCnt), s(sN), W))
    A("L_vloop:")
    vbody(4 * (W - 1), True)
    A("  s_cmp_eq_u32 %s, %s\n  s_cbranch_scc1 L_gather" % (s(sCnt), s(sTrig)))
    A("L_gatherret:")
    A("  s_sub_u32 %s, %s, 1\n  s_cmp_lg_u32 %s, 0\n  s_cbranch_scc1 L_vloop" % (s(sCnt), s(sCnt), s(sCnt)))
    aW = U[0]; aRd = U[1]; aRd2 = U[2]; aFt = U[3]; aSt = U[4]; aFl = U[5]
    A("  v_and_b32 %s, 3, %s\n  s_movk_i32 s34, 576\n  v_mul_lo_u32 %s, %s, s34" % (v(aW), v(vLane), v(aW), v(aW)))
    A("  v_lshrrev_b32 %s, 4, %s\n  v_lshl_add_u32 %s, %s, 4, %s\n  v_add_u32 %s, %s, %s" % (v(aRd), v(vLane), v(aW), v(aRd), v(aW), v(aW), s(sWB), v(aW)))
    A("  s_lshr_b32 s34, %s, 1\n  s_and_b32 s35, %s, 1\n  s_lshl_b32 s35, s35, 8" % (s(sWave), s(sWave)))
    A("  s_mul_i32 s36, s34, 576\n  s_add_u32 s36, s36, s35")
    A("  v_lshl_add_u32 %s, %s, 2, s36" % (v(aRd), v(vLane)))
    A("  v_add_u32 %s, 0x10000, %s" % (v(aRd2), v(aRd)))
    A("  s_lshl_b32 s36, s34, 5\n  s_add_u32 s36, s36, %d\n  v_mov_b32 %s, s36" % (FT, v(aFt)))
    A("  s_lshl_b32 s36, %s, 2\n  s_add_u32 s36, s36, s34\n  s_lshl_b32 s36, s36, 14\n  s_add_u32 s36, s36, s35" % s(sG))
    A("  s_lshl_b32 s34, %s, 9\n  s_add_u32 s36, s36, s34\n  s_add_u32 s36, s36, %d" % (s(sI), P1))
    A("  v_lshl_add_u32 %s, %s, 2, s36" % (v(aSt), v(vLane)))
    A("  v_mov_b32 %s, %d" % (v(aFl), FLAG))
    for i in range(W): vbody(4 * (W - 1 - i), False)
    stamp(5)
    Lsave = L; L = []; A = L.append
    A("L_gather:")
    A("  s_lshl_b32 s34, %s, 11\n  s_add_u32 s34, s34, %d" % (s(sG), ML))
    A("  v_add_u32 %s, s34, %s" % (v(T[4]), v(vL16)))
    A("  v_and_b32 %s, 31, %s\n  v_lshlrev_b32 %s, 3, %s" % (v(T[5]), v(vLane), v(T[5]), v(T[5])))
    A("  v_add_u32 %s, %d, %s" % (v(T[6]), MLT, v(T[5])))
    A("  ds_read_b64 %s, %s" % (v(U[8], 2), v(T[6])))
    A("L_gpoll:")
    A("  global_load_dwordx4 %s, %s, s[12:13] sc1" % (v(G0, 4), v(T[4])))
    A("  global_load_dwordx4 %s, %s, s[12:13] offset:1024 sc1" % (v(G1, 4), v(T[4])))
    A("  s_waitcnt vmcnt(0)")
    chk_tag([G0 + 1, G0 + 3, G1 + 1, G1 + 3], T[7], sTag)
    poll_end("L_gpoll")
    A("  v_max_f32 %s, %s, %s" % (v(T[8]), v(G0), v(G1)))
    allred_b2345("v_max_f32", T[8], T[7])
    A("  v_sub_f32 %s, %s, %s\n  v_sub_f32 %s, %s, %s" % (v(G0), v(G0), v(T[8]), v(G1), v(G1), v(T[8])))
    A("  s_waitcnt lgkmcnt(0)")
    A("  v_sub_f32 %s, %s, %s" % (v(U[8]), v(U[8]), v(T[8])))
    for r in (G0, G1, U[8]): A("  v_mul_f32 %s, %s, %s" % (v(r), LOG2E, v(r)))
    for r in (G0, G1, U[8]): A("  v_exp_f32 %s, %s" % (v(r), v(r)))
    A("  v_mul_f32 %s, %s, %s" % (v(T[9]), v(G0), v(G0 + 2)))
    A("  v_fmac_f32 %s, %s, %s" % (v(T[9]), v(G1), v(G1 + 2)))
    allred_b2345("v_add_f32", T[9], T[7])
    A("  v_rcp_f32 %s, %s" % (v(T[9]), v(T[9])))
    A("  v_mul_f32 %s, %s, %s" % (v(U[8]), v(U[8]), v(T[9])))
    A("  v_and_b32 %s, 3, %s\n  v_bfe_u32 %s, %s, 2, 3" % (v(T[7]), v(vLane), v(T[8]), v(vLane)))
    A("  v_lshl_add_u32 %s, %s, 3, %s\n  v_lshlrev_b32 %s, 2, %s\n  v_add_u32 %s, %d, %s" % (v(T[7]), v(T[7]), v(T[8]), v(T[7]), v(T[7]), v(T[7]), FT, v(T[7])))
    A("  s_mov_b32 exec_hi, 0")
    A("  ds_write_b32 %s, %s" % (v(T[7]), v(U[8])))
    A("  s_mov_b64 exec, -1")
    A("  s_cmp_eq_u32 %s, 0\n  s_cbranch_scc1 L_gatherret" % s(sTail))
    A("  v_add_u32 %s, %d, %s" % (v(T[5]), REG, v(T[5])))
    A("L_rpoll:")
    A("  global_load_dwordx2 %s, %s, s[12:13] sc1" % (v(G0, 2), v(T[5])))
    A("  s_waitcnt vmcnt(0)")
    A("  v_cmp_eq_u32 vcc, %s, %s" % (s(sTag), v(G0 + 1)))
    A("  s_cmp_eq_u64 vcc, -1")
    poll_end("L_rpoll")
    A("  v_cmp_eq_u32 vcc, %s, %s" % (s(sXcc), v(G0)))
    A("  s_cmp_eq_u64 vcc, -1\n  s_cselect_b32 s34, %d, 0" % (0 if P["forceslow"] else 1))
    A("  v_mov_b32 %s, s34\n  v_mov_b32 %s, %d" % (v(T[7]), v(T[8]), FLAG))
    A("  s_mov_b64 exec, 1")
    A("  ds_write_b32 %s, %s" % (v(T[8]), v(T[7])))
    A("  s_mov_b64 exec, -1")
    A("  s_branch L_gatherret")
    late.append("\n".join(L)); L = Lsave; A = L.append
    setexec(0x000F000F000F000F)
    for b in range(8): A("  ds_write_b128 %s, %s offset:%d" % (v(aW), v(ACC + 4 * b, 4), 64 * b))
    setexec(-1)
    A("  s_waitcnt lgkmcnt(0)\n  s_barrier")
    O8 = F; F8 = F + 8
    def read8(dst, a0, a1, st):
        A("  ds_read2st64_b32 %s, %s offset0:%d offset1:%d" % (v(dst, 2), v(a0), st, st + 64))
        A("  ds_read2st64_b32 %s, %s offset0:%d offset1:%d" % (v(dst + 2, 2), v(a0), st + 128, st + 192))
        A("  ds_read2st64_b32 %s, %s offset0:%d offset1:%d" % (v(dst + 4, 2), v(a1), st, st + 64))
        A("  ds_read2st64_b32 %s, %s offset0:%d offset1:%d" % (v(dst + 6, 2), v(a1), st + 128, st + 192))
    read8(O8, aRd, aRd2, 0)
    A("  ds_read_b128 %s, %s" % (v(F8, 4), v(aFt)))
    A("  ds_read_b128 %s, %s offset:16" % (v(F8 + 4, 4), v(aFt)))
    A("  ds_read_b32 %s, %s" % (v(T[6]), v(aFl)))
    A("  s_waitcnt lgkmcnt(1)")
    A("  v_pk_mul_f32 %s, %s, %s" % (v(O8, 2), v(O8, 2), v(F8, 2)))
    A("  v_pk_mul_f32 %s, %s, %s" % (v(O8 + 4, 2), v(O8 + 4, 2), v(F8 + 4, 2)))
    A("  v_pk_fma_f32 %s, %s, %s, %s" % (v(O8, 2), v(O8 + 2, 2), v(F8 + 2, 2), v(O8, 2)))
    A("  v_pk_fma_f32 %s, %s, %s, %s" % (v(O8 + 4, 2), v(O8 + 6, 2), v(F8 + 6, 2), v(O8 + 4, 2)))
    A("  v_pk_add_f32 %s, %s, %s" % (v(O8, 2), v(O8, 2), v(O8 + 4, 2)))
    A("  v_add_f32 %s, %s, %s" % (v(O8), v(O8), v(O8 + 1)))
    A("  v_bfi_b32 %s, %s, %s, %s" % (v(O8), s(sFF), v(vT8), v(O8)))
    A("  global_store_dword %s, %s, s[12:13] sc1" % (v(aSt), v(O8)))
    stamp(6)
    for k in range(7, 12): stamp(k)
    A("  s_cmp_eq_u32 %s, 0\n  s_cbranch_scc1 L_end" % s(sTail))
    A("  s_waitcnt lgkmcnt(0)")
    A("  v_readfirstlane_b32 %s, %s" % (s(sFast), v(T[6])))
    aP1 = T[0]; aPA = T[1]; aR3 = T[2]; aLw = T[3]; aLr = T[4]; aLr2 = T[5]; aSP = T[6]; aH = T[7]
    A("  v_lshrrev_b32 %s, 1, %s\n  v_and_b32 %s, 1, %s" % (v(T[8]), v(vLane), v(T[9]), v(vLane)))
    A("  s_lshl_b32 s34, %s, 14\n  s_lshl_b32 s35, %s, 6\n  s_add_u32 s34, s34, s35\n  s_add_u32 s34, s34, %d" % (s(sJ), s(sWave), P1))
    A("  v_lshl_add_u32 %s, %s, 9, s34\n  v_lshl_add_u32 %s, %s, 5, %s" % (v(aP1), v(T[8]), v(aP1), v(T[9]), v(aP1)))
    A8 = [F + k for k in range(8)]
    A("  global_load_dwordx4 %s, %s, s[12:13] sc1" % (v(A8[0], 4), v(aP1)))
    A("  global_load_dwordx4 %s, %s, s[12:13] offset:16 sc1" % (v(A8[4], 4), v(aP1)))
    A("  s_lshl_b32 s34, %s, 6\n  s_add_u32 s34, s34, %d" % (s(sJ), PA))
    A("  v_lshl_add_u32 %s, %s, 11, s34\n  v_lshl_add_u32 %s, %s, 5, %s" % (v(aPA), v(T[8]), v(aPA), v(T[9]), v(aPA)))
    A("  v_lshlrev_b32 %s, 5, %s\n  v_add_u32 %s, %s, %s\n  v_add_u32 %s, %d, %s" % (v(aR3), v(vLane), v(aLw), s(sWB), v(aR3), v(aR3), R3, v(aR3)))
    A("  global_load_dwordx4 %s, %s, s[12:13] sc1" % (v(U[0], 4), v(aPA)))
    A("  global_load_dwordx4 %s, %s, s[12:13] sc1" % (v(U[4], 4), v(aR3)))
    A("  v_add_u32 %s, %d, %s" % (v(T[10]), PB - PA, v(aPA)))
    A("  global_load_dwordx4 %s, %s, s[12:13] sc1" % (v(U[8], 4), v(T[10])))
    A("  s_lshl_b32 s34, %s, 8\n  v_lshl_add_u32 %s, %s, 2, s34\n  v_add_u32 %s, 0x10000, %s" % (s(sWave), v(aLr), v(vLane), v(aLr2), v(aLr)))
    A("  s_lshl_b32 s34, %s, 11\n  s_add_u32 s34, s34, %d\n  v_add_u32 %s, s34, %s" % (s(sJ), PA, v(aSP), v(aLr)))
    A("  v_lshrrev_b32 %s, 5, %s\n  v_lshlrev_b32 %s, 3, %s\n  v_lshl_add_u32 %s, %s, 2, %s" % (v(T[10]), v(vLane), v(aH), v(T[9]), v(aH), v(T[10]), v(aH)))
    A("  v_bfe_u32 %s, %s, 4, 1\n  v_lshl_add_u32 %s, %s, 1, %s" % (v(T[10]), v(vLane), v(aH), v(T[10]), v(aH)))
    A("  v_bfe_u32 %s, %s, 3, 1\n  v_add_u32 %s, %s, %s" % (v(T[10]), v(vLane), v(aH), v(T[10]), v(aH)))
    A("  s_lshl_b32 s34, %s, 4\n  v_add_u32 %s, s34, %s" % (s(sJ), v(aH), v(aH)))
    A("  v_lshlrev_b32 %s, 1, %s" % (v(T[17]), v(aH)))
    A("  v_lshlrev_b32 %s, 2, %s\n  v_add_u32 %s, %d, %s" % (v(aH), v(aH), v(aH), R3, v(aH)))
    A("  s_and_b32 s55, %s, 0xffff\n  v_mov_b32 %s, s55\n  s_mov_b32 s54, 0xffff" % (s(sTag), v(T[16])))
    A("  s_waitcnt vmcnt(3)")
    A("  s_branch L_h1c")
    A("L_h1:")
    A("  global_load_dwordx4 %s, %s, s[12:13] sc1" % (v(A8[0], 4), v(aP1)))
    A("  global_load_dwordx4 %s, %s, s[12:13] offset:16 sc1" % (v(A8[4], 4), v(aP1)))
    A("  s_waitcnt vmcnt(0)")
    A("L_h1c:")
    chk_tag(A8, T[8], sT8, "0xff")
    poll_end("L_h1")
    stamp(7)
    red16(A8)
    A("  v_mov_b32_dpp %s, %s row_ror:8 row_mask:0xf bank_mask:0xf" % (v(A8[2]), v(A8[1])))
    A("  v_cvt_pk_bf16_f32 %s, %s, %s" % (v(A8[0]), v(A8[1]), v(A8[2])))
    for t, ln in enumerate((0, 16, 32, 48, 1, 17, 33, 49)):
        A("  v_readlane_b32 s%d, %s, %d" % (44 + t, v(A8[0]), ln))
    B8 = [F + 8 + k for k in range(8)]
    for t in range(8):
        for e in range(8):
            if t == 0: A("  v_dot2_f32_bf16 %s, s44, %s, 0" % (v(B8[e]), v(W2 + e)))
            else: A("  v_dot2c_f32_bf16 %s, s%d, %s" % (v(B8[e]), 44 + t, v(W2 + 8 * t + e)))
    A("  ds_write_b128 %s, %s offset:4096" % (v(aLw), v(B8[0], 4)))
    A("  ds_write_b128 %s, %s offset:4112" % (v(aLw), v(B8[4], 4)))
    A("  s_waitcnt lgkmcnt(0)\n  s_barrier")
    read8(O8, aLr, aLr2, 16)
    A("  s_waitcnt lgkmcnt(0)")
    sum8(O8)
    A("  v_bfi_b32 %s, %s, %s, %s" % (v(O8), s(sFF), v(vT8), v(O8)))
    hstore("global_store_dword %s, %s, s[12:13]" % (v(aSP), v(O8)))
    A("  s_cmp_lg_u32 %s, 0\n  s_cbranch_scc1 L_h3" % s(sWave))
    A("L_hA:")
    A("  global_load_dwordx4 %s, %s, s[12:13] sc1" % (v(A8[0], 4), v(aPA)))
    A("  global_load_dwordx4 %s, %s, s[12:13] offset:16 sc1" % (v(A8[4], 4), v(aPA)))
    A("  s_waitcnt vmcnt(0)")
    chk_tag(A8, T[8], sT8, "0xff")
    poll_end("L_hA")
    stamp(8)
    red16(A8)
    round_bf16(A8[1], A8[1])
    A("  v_add_f32 %s, %s, %s" % (v(vXres), v(vXres), v(A8[1])))
    A("  v_cvt_pk_bf16_f32 %s, %s, %s" % (v(vXres), v(vXres), v(vXres)))
    A("  v_bfi_b32 %s, s54, %s, %s" % (v(A8[2]), v(T[16]), v(vXres)))
    setexec(0x0303030303030303)
    hstore("global_store_dword %s, %s, s[12:13]" % (v(aH), v(A8[2])))
    setexec(-1)
    A("  v_and_b32 %s, 0xffff0000, %s" % (v(vXres), v(vXres)))
    A("L_h3:")
    A("  s_cmp_ge_u32 %s, 28\n  s_cbranch_scc1 L_hB0" % s(sJ))
    f = [F + k for k in range(8)]; d = T[8:12]
    A("L_h3p:")
    A("  global_load_dwordx4 %s, %s, s[12:13] sc1" % (v(f[0], 4), v(aR3)))
    A("  global_load_dwordx4 %s, %s, s[12:13] offset:16 sc1" % (v(f[4], 4), v(aR3)))
    A("  s_waitcnt vmcnt(0)")
    chk_tag(f, T[8], 55, "s54")
    poll_end("L_h3p")
    stamp(9)
    for k in range(8): A("  v_and_b32 %s, 0xffff0000, %s" % (v(f[k]), v(f[k])))
    ln_stats(f, d, T[12], T[13], T[14])
    XO = U[0]
    for k in range(4): ln_apply(XO + k, f[2 * k], f[2 * k + 1], T[12], T[13], T[14], None, False)
    GA = [F + k for k in range(8)]; UA = [F + 8 + k for k in range(8)]
    for k in range(4):
        for e in range(8):
            for acc, wb in ((GA, W3A), (UA, W3B)):
                if k == 0: A("  v_dot2_f32_bf16 %s, %s, %s, 0" % (v(acc[e]), v(wb + e), v(XO)))
                else: A("  v_dot2c_f32_bf16 %s, %s, %s" % (v(acc[e]), v(wb + 8 * k + e), v(XO + k)))
    for e in range(8): A("  v_permlane32_swap_b32 %s, %s" % (v(GA[e]), v(UA[e])))
    for e in range(8): A("  v_add_f32 %s, %s, %s" % (v(GA[e]), v(GA[e]), v(UA[e])))
    for e in range(4): A("  v_permlane16_swap_b32 %s, %s" % (v(GA[e]), v(GA[e + 4])))
    for e in range(4): A("  v_add_f32 %s, %s, %s" % (v(GA[e]), v(GA[e]), v(GA[e + 4])))
    for e in range(2):
        dpp("v_add_f32", GA[4 + e], GA[e], GA[e], "row_ror:8", bm="0x3")
        dpp("v_add_f32", GA[4 + e], GA[e + 2], GA[e + 2], "row_ror:8", bm="0xc")
    dpp("v_add_f32", GA[0], GA[4], GA[4], "row_shl:4", bm="0x5")
    dpp("v_add_f32", GA[0], GA[5], GA[5], "row_shr:4", bm="0xa")
    dpp("v_add_f32", GA[0], GA[0], GA[0], "quad_perm:[1,0,3,2]")
    dpp("v_add_f32", GA[0], GA[0], GA[0], "quad_perm:[2,3,0,1]")
    round_bf16(GA[0], GA[0])
    A("  v_mov_b32 %s, %s" % (v(GA[1]), v(GA[0])))
    A("  v_permlane32_swap_b32 %s, %s" % (v(GA[0]), v(GA[1])))
    A("  v_mul_f32 %s, 0xbfb8aa3b, %s" % (v(GA[2]), v(GA[0])))
    A("  v_exp_f32 %s, %s" % (v(GA[2]), v(GA[2])))
    A("  v_add_f32 %s, 1.0, %s" % (v(GA[2]), v(GA[2])))
    A("  v_rcp_f32 %s, %s" % (v(GA[2]), v(GA[2])))
    A("  v_mul_f32 %s, %s, %s" % (v(GA[0]), v(GA[0]), v(GA[2])))
    round_bf16(GA[0], GA[0])
    A("  v_mul_f32 %s, %s, %s" % (v(GA[0]), v(GA[0]), v(GA[1])))
    A("  v_mov_b32_dpp %s, %s row_shl:4 row_mask:0xf bank_mask:0xf" % (v(GA[1]), v(GA[0])))
    A("  v_cvt_pk_bf16_f32 %s, %s, %s" % (v(GA[2]), v(GA[0]), v(GA[1])))
    for t in range(4): A("  v_readlane_b32 s%d, %s, %d" % (44 + t, v(GA[2]), 8 * t))
    for t in range(4):
        for e in range(8):
            if t == 0: A("  v_dot2_f32_bf16 %s, s44, %s, 0" % (v(B8[e]), v(W4 + e)))
            else: A("  v_dot2c_f32_bf16 %s, s%d, %s" % (v(B8[e]), 44 + t, v(W4 + 8 * t + e)))
    A("  ds_write_b128 %s, %s offset:8192" % (v(aLw), v(B8[0], 4)))
    A("  ds_write_b128 %s, %s offset:8208" % (v(aLw), v(B8[4], 4)))
    A("  v_add_u32 %s, %d, %s" % (v(aSP), PB - PA, v(aSP)))
    A("  s_waitcnt lgkmcnt(0)\n  s_barrier")
    read8(O8, aLr, aLr2, 32)
    A("  s_waitcnt lgkmcnt(0)")
    sum8(O8)
    A("  v_bfi_b32 %s, %s, %s, %s" % (v(O8), s(sFF), v(vT8), v(O8)))
    hstore("global_store_dword %s, %s, s[12:13]" % (v(aSP), v(O8)))
    A("L_hB0:")
    A("  s_cmp_lg_u32 %s, 0\n  s_cbranch_scc1 L_end" % s(sWave))
    A("  v_add_u32 %s, %d, %s" % (v(aPA), PB - PA, v(aPA)))
    for k in range(8): A("  v_mov_b32 %s, %s" % (v(A8[k]), v(vT8)))
    A("L_hB:")
    A("  s_mov_b32 exec_hi, 0xffffff")
    A("  global_load_dwordx4 %s, %s, s[12:13] sc1" % (v(A8[0], 4), v(aPA)))
    A("  global_load_dwordx4 %s, %s, s[12:13] offset:16 sc1" % (v(A8[4], 4), v(aPA)))
    A("  s_mov_b64 exec, -1")
    A("  s_waitcnt vmcnt(0)")
    chk_tag(A8, T[8], sT8, "0xff")
    poll_end("L_hB")
    stamp(10)
    red16(A8)
    round_bf16(A8[1], A8[1])
    A("  v_add_f32 %s, %s, %s" % (v(A8[1]), v(vXres), v(A8[1])))
    if P["err"]:
        A("  v_mul_f32 %s, 0x%08x, %s" % (v(A8[1]), struct.unpack("<I", struct.pack("<f", 1.0 + P["err"] / 1000.0))[0], v(A8[1])))
    A("  v_mov_b32_dpp %s, %s row_ror:8 row_mask:0xf bank_mask:0xf" % (v(A8[2]), v(A8[1])))
    A("  v_cvt_pk_bf16_f32 %s, %s, %s" % (v(A8[0]), v(A8[1]), v(A8[2])))
    setexec(0x0003000300030003)
    A("  global_store_dword %s, %s, s[62:63]" % (v(T[17]), v(A8[0])))
    A("  s_mov_b64 exec, 1")
    A("  s_cmp_lg_u32 %s, 0\n  s_cbranch_scc1 L_noepoch" % s(sJ))
    A("  v_mov_b32 %s, %d\n  v_mov_b32 %s, %s" % (v(A8[5]), EPOCH, v(A8[6]), s(sTag)))
    A("  global_store_dword %s, %s, s[12:13]" % (v(A8[5]), v(A8[6])))
    A("L_noepoch:")
    A("  s_mov_b64 exec, -1")
    stamp(11)
    A("L_end:")
    if SLIST:
        A("  s_cmp_lg_u32 %s, %d\n  s_cbranch_scc1 L_done" % (s(sWave), P["sw"]))
        A("  s_waitcnt vmcnt(0)")
        stamp(12)
        A("  s_waitcnt lgkmcnt(0)")
        ns = len(SLIST)
        if P["dbgwg"] >= 0:
            A("  s_cmp_lg_u32 s2, %d\n  s_cbranch_scc1 L_done" % P["dbgwg"])
            A("  s_load_dwordx2 s[12:13], s[0:1], 80\n  s_waitcnt lgkmcnt(0)")
            A("  v_mov_b32 v14, 0\n  s_mov_b64 exec, 1")
            for k in range(ns):
                A("  s_sub_u32 s34, s%d, s68\n  v_mov_b32 v16, s34" % (68 + 2 * k))
                A("  global_store_dword v14, v16, s[12:13] offset:%d" % (4 * k))
            A("  s_waitcnt vmcnt(0)\n  s_branch L_done")
        A("  s_add_u32 s12, s12, 0x10000000\n  s_addc_u32 s13, s13, 0")
        A("  s_mul_i32 s34, s2, %d\n  v_mov_b32 v14, s34" % (8 * (ns + 1)))
        A("  s_getreg_b32 s%d, hwreg(HW_REG_XCC_ID)\n  s_getreg_b32 s%d, hwreg(HW_REG_HW_ID)" % (68 + 2 * ns, 69 + 2 * ns))
        A("  s_mov_b64 exec, 1")
        for k in range(ns + 1):
            A("  v_mov_b32 v16, s%d\n  v_mov_b32 v17, s%d" % (68 + 2 * k, 69 + 2 * k))
            A("  global_store_dwordx2 v14, v[16:17], s[12:13] offset:%d" % (8 * k))
        A("  s_waitcnt vmcnt(0)")
    A("L_done:\n  s_endpgm")
    for blk in late: A(blk)
    A("L_codeend:")
    body = auto_nop(L)
    out = HEAD + body
    out.append('.section .rodata,"a"\n.p2align 6\n.amdhsa_kernel %s' % NAME)
    out.append("  .amdhsa_next_free_vgpr 256\n  .amdhsa_next_free_sgpr 102\n  .amdhsa_accum_offset 256")
    out.append("  .amdhsa_group_segment_fixed_size 0\n  .amdhsa_kernarg_size 96\n  .amdhsa_user_sgpr_count 2\n  .amdhsa_user_sgpr_kernarg_segment_ptr 1\n  .amdhsa_system_sgpr_workgroup_id_x 1")
    out.append("  .amdhsa_float_denorm_mode_32 3\n.end_amdhsa_kernel")
    return "\n".join(out) + "\n"

if __name__ == "__main__":
    kw = {}
    for kv in sys.argv[2:]:
        k, val = kv.split("=")
        if k == "stamps": pass
        elif val.lstrip("-").isdigit(): val = int(val)
        else: val = val.replace("+", " ").replace("none", "")
        kw[k] = val
    open(sys.argv[1], "w").write(gen(**kw))
```

```python
import sys, struct
from asmlib import auto_nop
NAME = "sequential_preLN__gqa_block_cached__glu_gated_swiglu__decode_kernel"

DEF = dict(X=133, W=1, early=0, PW=4, stamps="", wqflag="nt", wflag="nt", kvflag="nt", spin=400000, gtrig=3,
           psleep=1, codepf=1, err=0, forceslow=0, sw=0, ordbar=1, k1early=1, dbgwg=-1, pf2=5, gthr=24, smemq=1, extraV=0, deepV=0, nA=1, NR=2)

EPOCH = 0; QG = 0x10000; ML = 0x8000; REG = 0xC000; R3 = 0xD000; P1 = 0x20000; PA = 0xA0000; PB = 0xB0000
SC = 131072; QL = SC + 8 * 2560; MLT = QL + 1024; FT = MLT + 256; FLAG = FT + 128; TK = FLAG + 16; RED0 = 153088; LDS_TOTAL = RED0 + 2048
LOG2E = "0x3fb8aa3b"; SCALE = "0x3db504f3"; EPS = "0x3727c5ac"; INV512 = "0x3b000000"

vLane = 1; vL16 = 2; vKd = [3, 4, 5, 6]; vVd = 7; vKrd = 8; vVrd = 9; vSb = 10; vSr = 11; vXres = 12; vT8 = 13
T = list(range(14, 32))
F = 32
ACC = 48
U = list(range(80, 96))
W2 = 96; W3A = 160; W3B = 192; W4 = 224
sWave = 3; sG = 18; sI = 19; sTail = 20; sJ = 21; sCnt1 = 22; sCnt2 = 23; sOff = 24; sOff0 = 25; sSlotC = 26; sSlotI = 27
sWB = 28; sTag = 29; sT8 = 30; sSpin = 31; sDone = 40; sFast = 41; sTrig = 42; sXcc = 43
sSelLo = 37; sSelHi = 38; sFF = 39; sF = [16, 17, 55, 54]; sTk = 33; sOffX = 40; sThr = 15
vTkA = 30; vTk = 31; vOne = 95; vMx = 29

def v(i, n=1): return "v%d" % i if n == 1 else "v[%d:%d]" % (i, i + n - 1)
def s(i, n=1): return "s%d" % i if n == 1 else "s[%d:%d]" % (i, i + n - 1)

def gen(**kw):
    P = dict(DEF); P.update(kw)
    X = P["X"]; Y = 1024 - 7 * X; W = P["W"]
    assert 0 < Y <= X and (X + 7) // 8 <= 20 and Y >= 8 * 5
    L = []; A = L.append
    late = []
    SLIST = P["stamps"].split(",") if P["stamps"] else []
    def stamp(k):
        k = str(k)
        if k in SLIST:
            A("  s_memrealtime %s" % s(68 + 2 * SLIST.index(k), 2))
    def setexec(mask):
        if mask == -1:
            A("  s_mov_b64 exec, -1")
        else:
            lo = mask & 0xffffffff; hi = mask >> 32
            A("  s_mov_b32 exec_lo, 0x%x\n  s_mov_b32 exec_hi, 0x%x" % (lo, hi))
    def round_bf16(dst, src):
        A("  v_cvt_pk_bf16_f32 %s, %s, %s" % (v(dst), v(src), v(src)))
        A("  v_and_b32 %s, 0xffff0000, %s" % (v(dst), v(dst)))
    def unpack(lo, hi, src):
        A("  v_lshlrev_b32 %s, 16, %s" % (v(lo), v(src)))
        A("  v_and_b32 %s, 0xffff0000, %s" % (v(hi), v(src)))
    def dpp(op, d, a, b, ctrl, rm="0xf", bm="0xf"):
        A("  %s_dpp %s, %s, %s %s row_mask:%s bank_mask:%s" % (op, v(d), v(a), v(b), ctrl, rm, bm))
    def bfly_hi(op, x, t):
        A("  v_mov_b32 %s, %s" % (v(t), v(x)))
        A("  v_permlane16_swap_b32 %s, %s" % (v(x), v(t)))
        A("  %s %s, %s, %s" % (op, v(x), v(x), v(t)))
        A("  v_mov_b32 %s, %s" % (v(t), v(x)))
        A("  v_permlane32_swap_b32 %s, %s" % (v(x), v(t)))
        A("  %s %s, %s, %s" % (op, v(x), v(x), v(t)))
    def allred_b2345(op, x, t):
        dpp(op, x, x, x, "row_ror:4")
        dpp(op, x, x, x, "row_ror:8")
        bfly_hi(op, x, t)
    def red345(a):
        for e in range(4): A("  v_permlane32_swap_b32 %s, %s" % (v(a[e]), v(a[e + 4])))
        for e in range(4): A("  v_add_f32 %s, %s, %s" % (v(a[e]), v(a[e]), v(a[e + 4])))
        for e in range(2): A("  v_permlane16_swap_b32 %s, %s" % (v(a[e]), v(a[e + 2])))
        for e in range(2): A("  v_add_f32 %s, %s, %s" % (v(a[e]), v(a[e]), v(a[e + 2])))
        dpp("v_add_f32", a[2], a[0], a[0], "row_ror:8", bm="0x3")
        dpp("v_add_f32", a[2], a[1], a[1], "row_ror:8", bm="0xc")
    def red16(a):
        red345(a)
        dpp("v_add_f32", a[0], a[2], a[2], "row_shl:4")
        dpp("v_add_f32", a[1], a[0], a[0], "quad_perm:[2,3,0,1]")
    def sum8(q):
        A("  v_pk_add_f32 %s, %s, %s" % (v(q, 2), v(q, 2), v(q + 2, 2)))
        A("  v_pk_add_f32 %s, %s, %s" % (v(q + 4, 2), v(q + 4, 2), v(q + 6, 2)))
        A("  v_pk_add_f32 %s, %s, %s" % (v(q, 2), v(q, 2), v(q + 4, 2)))
        A("  v_add_f32 %s, %s, %s" % (v(q), v(q), v(q + 1)))
    def ln_stats(f, d, vMean, vSd, vR):
        A("  v_readfirstlane_b32 s36, %s" % v(f[0]))
        s1 = d[0]; s2 = d[1]; t = d[2]; t2 = d[3]
        A("  v_subrev_f32 %s, s36, %s" % (v(s1), v(f[1])))
        A("  v_subrev_f32 %s, s36, %s" % (v(t), v(f[0])))
        A("  v_mul_f32 %s, %s, %s" % (v(s2), v(s1), v(s1)))
        A("  v_add_f32 %s, %s, %s" % (v(s1), v(s1), v(t)))
        A("  v_fmac_f32 %s, %s, %s" % (v(s2), v(t), v(t)))
        for k in range(2, 8):
            tt = t if k % 2 else t2
            A("  v_subrev_f32 %s, s36, %s" % (v(tt), v(f[k])))
            A("  v_add_f32 %s, %s, %s" % (v(s1), v(s1), v(tt)))
            A("  v_fmac_f32 %s, %s, %s" % (v(s2), v(tt), v(tt)))
        for ctrl, rm in (("quad_perm:[1,0,3,2]", "0xf"), ("quad_perm:[2,3,0,1]", "0xf"), ("row_half_mirror", "0xf"),
                         ("row_mirror", "0xf"), ("row_bcast:15", "0xa"), ("row_bcast:31", "0xc")):
            dpp("v_add_f32", s1, s1, s1, ctrl, rm=rm)
            dpp("v_add_f32", s2, s2, s2, ctrl, rm=rm)
        A("  v_readlane_b32 s32, %s, 63" % v(s1))
        A("  v_readlane_b32 s33, %s, 63" % v(s2))
        A("  v_mov_b32 %s, %s" % (v(t), INV512))
        A("  v_mul_f32 %s, s32, %s" % (v(s1), v(t)))
        A("  v_mul_f32 %s, s33, %s" % (v(s2), v(t)))
        A("  v_add_f32 %s, s36, %s" % (v(vMean), v(s1)))
        A("  v_fma_f32 %s, -%s, %s, %s" % (v(s2), v(s1), v(s1), v(s2)))
        A("  v_max_f32 %s, 0, %s" % (v(s2), v(s2)))
        A("  v_cvt_pk_bf16_f32 %s, %s, %s" % (v(t), v(vMean), v(s2)))
        A("  v_lshlrev_b32 %s, 16, %s" % (v(vMean), v(t)))
        A("  v_and_b32 %s, 0xffff0000, %s" % (v(s2), v(t)))
        A("  v_add_f32 %s, %s, %s" % (v(s2), EPS, v(s2)))
        round_bf16(s2, s2)
        A("  v_sqrt_f32 %s, %s" % (v(s2), v(s2)))
        round_bf16(vSd, s2)
        A("  v_rcp_f32 %s, %s" % (v(vR), v(vSd)))
    def ln_apply(dst, flo, fhi, vMean, vSd, vR, t, newton):
        A("  v_sub_f32 %s, %s, %s" % (v(flo), v(flo), v(vMean)))
        A("  v_sub_f32 %s, %s, %s" % (v(fhi), v(fhi), v(vMean)))
        A("  v_cvt_pk_bf16_f32 %s, %s, %s" % (v(dst), v(flo), v(fhi)))
        unpack(flo, fhi, dst)
        if newton:
            A("  v_mul_f32 %s, %s, %s" % (v(t[0]), v(flo), v(vR)))
            A("  v_mul_f32 %s, %s, %s" % (v(t[1]), v(fhi), v(vR)))
            A("  v_fma_f32 %s, -%s, %s, %s" % (v(flo), v(t[0]), v(vSd), v(flo)))
            A("  v_fma_f32 %s, -%s, %s, %s" % (v(fhi), v(t[1]), v(vSd), v(fhi)))
            A("  v_fma_f32 %s, %s, %s, %s" % (v(flo), v(flo), v(vR), v(t[0])))
            A("  v_fma_f32 %s, %s, %s, %s" % (v(fhi), v(fhi), v(vR), v(t[1])))
        else:
            A("  v_mul_f32 %s, %s, %s" % (v(flo), v(flo), v(vR)))
            A("  v_mul_f32 %s, %s, %s" % (v(fhi), v(fhi), v(vR)))
        A("  v_cvt_pk_bf16_f32 %s, %s, %s" % (v(dst), v(flo), v(fhi)))
    def next_slot(r):
        A("  s_add_u32 %s, %s, 4096\n  s_and_b32 %s, %s, 0x3fff\n  s_or_b32 %s, %s, %s" % (s(r), s(r), s(r), s(r), s(r), s(r), s(sWB)))
    def issueK():
        A("  s_mov_b32 m0, %s" % s(sSlotI))
        for g in range(4):
            A("  buffer_load_dwordx4 %s, s[4:7], %s offen offset:%d %s lds" % (v(vKd[g]), s(sOff), g * 1024, P["kvflag"]))
        A("  s_add_u32 %s, %s, 32768" % (s(sOff), s(sOff)))
        next_slot(sSlotI)
    def issueV():
        A("  s_mov_b32 m0, %s" % s(sSlotI))
        for g in range(4):
            A("  buffer_load_dwordx4 %s, s[8:11], %s offen offset:%d %s lds" % (v(vVd), s(sOff), g * 1024, P["kvflag"]))
        A("  s_add_u32 %s, %s, 32768" % (s(sOff), s(sOff)))
        next_slot(sSlotI)
    RT = 112
    NR = P["NR"]
    def issueR(r):
        for g in range(4):
            A("  buffer_load_dwordx4 %s, %s, s[4:7], %s offen offset:%d %s" % (v(RT + 16 * r + 4 * g, 4), v(vKd[g]), s(sOff), g * 1024, P["kvflag"]))
        A("  s_add_u32 %s, %s, 32768" % (s(sOff), s(sOff)))
    nslow = [0]
    def hstore(text):
        k = nslow[0]; nslow[0] += 1
        A("  s_cmp_eq_u32 %s, 1" % s(sFast))
        A("  s_cbranch_scc0 L_slow%d" % k)
        A("  " + text)
        A("L_slowret%d:" % k)
        late.append("L_slow%d:\n  %s sc1\n  s_branch L_slowret%d" % (k, text, k))
    def poll_end(label):
        A("  s_cbranch_scc1 %s_ok" % label)
        if P["psleep"]: A("  s_sleep %d" % P["psleep"])
        A("  s_sub_u32 %s, %s, 1" % (s(sSpin), s(sSpin)))
        A("  s_cmp_lg_u32 %s, 0" % s(sSpin))
        A("  s_cbranch_scc1 %s" % label)
        A("  s_mov_b32 %s, 1" % s(sSpin))
        A("%s_ok:" % label)
    def chk_tag(regs, t, stag, mask=None):
        A("  v_xor_b32 %s, %s, %s" % (v(t), s(stag), v(regs[0])))
        for r in regs[1:]: A("  v_bitop3_b32 %s, %s, %s, %s bitop3:0xf6" % (v(t), v(t), v(r), s(stag)))
        if mask: A("  v_and_b32 %s, %s, %s" % (v(t), mask, v(t)))
        A("  v_cmp_eq_u32 vcc, 0, %s" % v(t))
        A("  s_cmp_eq_u64 vcc, -1")
    def chk_clean(regs, t, stag, mask):
        for r in regs: A("  v_xor_b32 %s, %s, %s" % (v(r), s(stag), v(r)))
        if len(regs) == 8:
            A("  v_or3_b32 %s, %s, %s, %s" % (v(t), v(regs[0]), v(regs[1]), v(regs[2])))
            A("  v_or3_b32 %s, %s, %s, %s" % (v(t + 1), v(regs[3]), v(regs[4]), v(regs[5])))
            A("  v_or3_b32 %s, %s, %s, %s" % (v(t), v(t), v(regs[6]), v(regs[7])))
            A("  v_bitop3_b32 %s, %s, %s, %s bitop3:0xa8" % (v(t), v(t), v(t + 1), mask))
        else:
            A("  v_or3_b32 %s, %s, %s, %s" % (v(t), v(regs[0]), v(regs[1]), v(regs[2])))
            A("  v_bitop3_b32 %s, %s, %s, %s bitop3:0xa8" % (v(t), v(t), v(regs[3]), mask))
        A("  v_cmp_eq_u32 vcc, 0, %s" % v(t))
        A("  s_cmp_eq_u64 vcc, -1")
    def wperm(dst, tb, n=2):
        for h in range(n):
            for c in range(4):
                A("  v_perm_b32 %s, %s, %s, %s" % (v(dst + 8 * h + 2 * c), v(tb + 8 * h + 4 + c), v(tb + 8 * h + c), s(sSelLo)))
                A("  v_perm_b32 %s, %s, %s, %s" % (v(dst + 8 * h + 2 * c + 1), v(tb + 8 * h + 4 + c), v(tb + 8 * h + c), s(sSelHi)))

    hdr = open("cdna_kernels/%s.s.ref" % NAME.replace("_kernel", "")).read().split("\n")
    for h in hdr:
        if h.startswith(";") and "@launch" not in h and "Override" not in h and "grid=ceil" not in h: A(h)
    A("; @launch grid=(256,1,1) block=(512,1,1) lds=%d" % LDS_TOTAL)
    A('.amdgcn_target "amdgcn-amd-amdhsa--gfx950"')
    A(".text\n.globl %s\n.p2align 8\n.type %s,@function\n%s:" % (NAME, NAME, NAME))
    HEAD = L; L = []; A = L.append
    stamp(0)
    A("  s_cmp_ge_u32 s2, 256\n  s_cbranch_scc1 L_done")
    A("  s_load_dwordx8 s[44:51], s[0:1], 0")
    A("  s_load_dwordx2 s[12:13], s[0:1], 88")
    A("  s_load_dwordx2 s[52:53], s[0:1], 32")
    A("  s_load_dwordx8 s[56:63], s[0:1], 48")
    if P["codepf"]:
        A("  s_getpc_b64 s[16:17]")
        A("L_pc:")
        A("  s_sub_u32 s16, s16, L_pc-%s\n  s_subb_u32 s17, s17, 0" % NAME)
        A("  v_lshlrev_b32 %s, 4, v0" % v(T[9]))
        A("  global_load_dwordx4 %s, %s, s[16:17]" % (v(U[8], 4), v(T[9])))
        A("  v_add_u32 %s, 0x2000, %s" % (v(T[9]), v(T[9])))
        A("  v_min_u32 %s, L_codeend-%s-16, %s" % (v(T[9]), NAME, v(T[9])))
        A("  global_load_dwordx4 %s, %s, s[16:17]" % (v(U[12], 4), v(T[9])))
    A("  v_and_b32 %s, 63, v0" % v(vLane))
    A("  v_lshrrev_b32 %s, 6, v0" % v(T[0]))
    A("  v_readfirstlane_b32 %s, %s" % (s(sWave), v(T[0])))
    A("  v_lshlrev_b32 %s, 4, %s" % (v(vL16), v(vLane)))
    A("  s_lshr_b32 %s, s2, 5\n  s_and_b32 %s, s2, 31\n  s_lshr_b32 %s, s2, 3" % (s(sG), s(sI), s(sJ)))
    A("  s_and_b32 s32, s2, 7\n  s_cmp_eq_u32 s32, 0\n  s_cselect_b32 %s, 1, 0" % s(sTail))
    A("  s_movk_i32 s33, %d\n  s_cselect_b32 s33, %d, s33" % (X, Y))
    A("  v_lshrrev_b32 %s, 3, %s" % (v(T[3]), v(vLane)))
    A("  v_and_b32 %s, 7, %s" % (v(T[4]), v(vLane)))
    A("  s_lshr_b32 s35, %s, 3\n  s_lshl_b32 s34, s35, 6\n  s_lshl_b32 s36, %s, 3\n  s_add_u32 s34, s34, s36" % (s(sI), s(sWave)))
    A("  v_add_u32 %s, s34, %s" % (v(T[2]), v(T[3])))
    A("  v_lshlrev_b32 %s, 14, %s" % (v(T[1]), v(T[2])))
    A("  v_lshl_add_u32 %s, %s, 4, %s" % (v(T[1]), v(T[4]), v(T[1])))
    A("  v_lshlrev_b32 %s, 2, %s" % (v(T[2]), v(T[2])))
    A("  s_lshl_b32 s34, %s, 10\n  s_lshl_b32 s36, s32, 7\n  s_add_u32 s34, s34, s36" % s(sG))
    A("  v_add_u32 %s, s34, %s" % (v(T[1]), v(T[1])))
    A("  v_add_u32 %s, 0x2000, %s" % (v(T[5]), v(T[1])))
    A("  s_lshl_b32 s54, %s, 13\n  s_lshl_b32 s35, s35, 11\n  s_add_u32 s54, s54, s35\n  s_lshl_b32 s35, s32, 8\n  s_add_u32 s54, s54, s35\n  s_add_u32 s54, s54, %d" % (s(sG), QG))
    A("  v_lshrrev_b32 %s, 4, %s" % (v(T[6]), v(vLane)))
    A("  v_and_b32 %s, 15, %s" % (v(T[7]), v(vLane)))
    A("  v_xor_b32 %s, %s, %s" % (v(T[8]), v(T[6]), v(T[7])))
    A("  v_lshlrev_b32 %s, 4, %s" % (v(T[8]), v(T[8])))
    A("  v_lshl_add_u32 %s, %s, 8, %s" % (v(vKd[0]), v(T[6]), v(T[8])))
    for g in range(1, 4): A("  v_xor_b32 %s, %d, %s" % (v(vKd[g]), 64 * g, v(vKd[0])))
    E = X - 128
    assert Y == 128 - 7 * E
    A("  s_lshl_b32 s34, s2, 19\n  s_cmp_eq_u32 %s, 1\n  s_cselect_b32 %s, 0, %d" % (s(sTail), s(sThr), E))
    A("  s_mov_b32 s35, %d\n  s_cselect_b32 s35, %d, s35\n  s_add_u32 %s, s34, s35" % ((-E * 4096) & 0xffffffff, (128 - Y) * 4096, s(sOff0)))
    A("  s_andn2_b32 s34, s2, 7\n  s_lshl_b32 s34, s34, 19\n  s_mul_i32 s35, s32, %d\n  s_add_u32 s34, s34, s35\n  s_add_u32 %s, s34, %d" % (E * 4096, s(sOffX), (-E * 4096) & 0xffffffff))
    A("  s_mov_b32 %s, s33\n  s_lshl_b32 %s, s33, 1" % (s(sCnt1), s(sCnt2)))
    A("  s_lshl_b32 s34, %s, 12" % s(sWave))
    A("  s_lshl_b32 %s, %s, 14" % (s(sWB), s(sWave)))
    assert E <= 8
    A("  s_cmp_lt_u32 %s, %s\n  s_cselect_b32 s35, %s, %s" % (s(sWave), s(sThr), s(sOffX), s(sOff0)))
    A("  s_mov_b32 %s, %s\n  s_mov_b32 %s, %s\n  s_add_u32 %s, s35, s34" % (s(sSlotC), s(sWB), s(sSlotI), s(sWB), s(sOff)))
    A("  s_add_u32 s55, %s, s34\n  s_add_u32 s55, s55, 32768" % s(sOff0))
    A("  s_mov_b32 s6, 0x8000000\n  s_mov_b32 s7, 0x20000\n  s_mov_b32 s10, 0x8000000\n  s_mov_b32 s11, 0x20000")
    A("  s_waitcnt lgkmcnt(0)")
    stamp("a")
    XD = U[0]; XP = U[4]; WA = F; WB_ = F + 4
    A("  global_load_dwordx4 %s, %s, s[44:45]" % (v(XD, 4), v(vL16)))
    A("  global_load_dword %s, %s, s[44:45]" % (v(XP), v(T[2])))
    A("  global_load_dwordx4 %s, %s, s[50:51] %s" % (v(WA, 4), v(T[1]), P["wqflag"]))
    A("  global_load_dwordx4 %s, %s, s[50:51] %s" % (v(WB_, 4), v(T[5]), P["wqflag"]))
    A("  s_load_dword %s, s[12:13], %d" % (s(sTag), EPOCH))
    A("  s_mov_b32 s4, s46\n  s_and_b32 s5, s47, 0xffff\n  s_mov_b32 s8, s48\n  s_and_b32 s9, s49, 0xffff")
    A("  s_mov_b64 s[50:51], s[44:45]")
    def s3prep():
        A("  s_movk_i32 s34, 3584\n  v_mul_lo_u32 %s, %s, s34" % (v(U[5]), v(T[3])))
        A("  v_lshlrev_b32 %s, 4, %s" % (v(U[6]), v(T[4])))
        A("  s_cmp_lt_u32 %s, 28\n  s_cselect_b32 s66, 1835008, 0\n  s_mov_b32 s67, 0x20000" % s(sJ))
    def s3dma(mat, k0, k1):
        A("  s_mov_b32 s64, s%d\n  s_and_b32 s65, s%d, 0xffff" % (56 + 2 * mat, 57 + 2 * mat))
        A("  s_mul_i32 s34, %s, %d\n  s_lshl_b32 s35, %s, 7\n  s_add_u32 s34, s34, s35\n  s_add_u32 s34, s34, %d" % (s(sWave), 64 * 3584, s(sJ), k0 * 8 * 3584))
        A("  s_lshl_b32 s35, %s, 13\n  s_add_u32 s35, s35, %d" % (s(sWave), mat * 65536 + k0 * 1024))
        for k in range(k0, k1):
            A("  v_xor_b32 %s, %d, %s\n  v_add_u32 %s, %s, %s" % (v(U[7]), 16 * k, v(U[6]), v(U[7]), v(U[5]), v(U[7])))
            A("  s_mov_b32 m0, s35")
            A("  buffer_load_dwordx4 %s, s[64:67], s34 offen %s lds" % (v(U[7]), P["wflag"]))
            A("  s_add_u32 s34, s34, %d\n  s_add_u32 s35, s35, 1024" % (8 * 3584))
    if P["ordbar"]: A("  s_barrier")
    A("  s_cmp_eq_u32 %s, 1\n  s_cbranch_scc1 L_tburst" % s(sTail))
    issueK()
    A("  s_mov_b32 %s, s55" % s(sOff))
    A("L_tburstret:")
    Lsave = L; L = []; A = L.append
    A("L_tburst:")
    s3prep(); s3dma(0, 0, 4)
    A("  s_branch L_tburstret")
    late.append("\n".join(L)); L = Lsave; A = L.append
    A("  v_lshlrev_b32 %s, 8, %s" % (v(vKrd), v(T[7])))
    A("  v_add_u32 %s, %s, %s" % (v(vKrd), v(vKrd), v(T[8])))
    A("  v_lshlrev_b32 %s, 10, %s" % (v(vVrd), v(T[6])))
    A("  v_lshl_add_u32 %s, %s, 3, %s" % (v(vVrd), v(T[7]), v(vVrd)))
    A("  v_bfe_u32 %s, %s, 1, 2" % (v(T[9]), v(vLane)))
    A("  v_lshlrev_b32 %s, 8, %s" % (v(vVd), v(T[9])))
    A("  v_lshl_add_u32 %s, %s, 5, %s" % (v(vVd), v(T[3]), v(vVd)))
    A("  v_and_b32 %s, 1, %s" % (v(T[9]), v(vLane)))
    A("  v_lshl_add_u32 %s, %s, 4, %s" % (v(vVd), v(T[9]), v(vVd)))
    A("  s_mul_i32 s34, %s, 2560\n  s_add_u32 s34, s34, %d" % (s(sWave), SC))
    A("  v_and_b32 %s, 3, %s" % (v(T[9]), v(vLane)))
    A("  v_lshl_add_u32 %s, %s, 2, %s" % (v(T[10]), v(T[6]), v(T[9])))
    A("  v_lshlrev_b32 %s, 3, %s" % (v(T[10]), v(T[10])))
    A("  v_add_u32 %s, %d, %s" % (v(vSb), SC, v(T[10])))
    A("  v_add_u32 %s, s34, %s" % (v(vSr), v(T[10])))
    A("  v_bfe_u32 %s, %s, 2, 2" % (v(T[10]), v(vLane)))
    A("  v_lshl_add_u32 %s, %s, 7, %s" % (v(vSr), v(T[10]), v(vSr)))
    A("  v_mov_b32 %s, %d\n  v_mov_b32 %s, %d" % (v(vTkA), TK, v(vTk), 32 + 8 * NR))
    A("  ds_write_b32 %s, %s" % (v(vTkA), v(vTk)))
    A("  v_mov_b32 %s, 0xff80ff80\n  v_mov_b32 %s, 0xff80ff80" % (v(T[10]), v(T[11])))
    for k in range(5): A("  ds_write_b64 %s, %s offset:%d" % (v(vSr), v(T[10], 2), k * 512))
    A("  v_lshrrev_b32 %s, 5, %s" % (v(T[12]), v(vLane)))
    A("  v_lshlrev_b32 %s, 3, %s" % (v(T[15]), v(T[4])))
    A("  v_lshl_add_u32 %s, %s, 2, %s" % (v(T[15]), v(T[12]), v(T[15])))
    A("  v_bfe_u32 %s, %s, 4, 1" % (v(T[12]), v(vLane)))
    A("  v_lshl_add_u32 %s, %s, 1, %s" % (v(T[15]), v(T[12]), v(T[15])))
    A("  v_bfe_u32 %s, %s, 3, 1" % (v(T[12]), v(vLane)))
    A("  v_add_u32 %s, %s, %s" % (v(T[15]), v(T[12]), v(T[15])))
    A("  s_lshl_b32 s34, %s, 2\n  s_add_u32 s34, s34, %d" % (s(sWave), RED0))
    A("  v_lshl_add_u32 %s, %s, 5, s34" % (v(T[15]), v(T[15])))
    A("  s_mov_b32 %s, 0x05040100\n  s_mov_b32 %s, 0x07060302\n  s_movk_i32 %s, 0xff" % (s(sSelLo), s(sSelHi), s(sFF)))
    A("  s_mov_b32 %s, %d\n  s_mov_b32 %s, 0" % (s(sSpin), P["spin"], s(sFast)))
    A("  s_sub_u32 s34, %s, %d\n  s_cmp_eq_u32 %s, 0\n  s_cselect_b32 %s, s34, -1" % (s(sCnt2), max(P["gthr"], P["deepV"]), s(sWave), s(sTrig)))
    A("  s_getreg_b32 %s, hwreg(HW_REG_XCC_ID, 0, 4)" % s(sXcc))
    stamp("b")
    A("  s_waitcnt vmcnt(7)")
    f = T[0:8]; d = T[8:12]; vMean = T[12]; vSd = T[13]; vR = T[14]
    for k in range(4): unpack(f[2 * k], f[2 * k + 1], XD + k)
    ln_stats(f, d, vMean, vSd, vR)
    A("  s_waitcnt vmcnt(6)")
    unpack(f[0], f[1], XP)
    ln_apply(XP, f[0], f[1], vMean, vSd, vR, [f[2], f[3]], True)
    A("  s_waitcnt vmcnt(4) lgkmcnt(0)")
    stamp("e")
    A("  s_add_u32 %s, %s, 1\n  s_and_b32 %s, %s, 0xff" % (s(sTag), s(sTag), s(sT8), s(sTag)))
    A("  v_mov_b32 %s, %s" % (v(vT8), s(sT8)))
    a = T[0:8]
    wperm(F + 8, F, 1)
    for e in range(8):
        A("  v_dot2_f32_bf16 %s, %s, %s, 0" % (v(a[e]), v(F + 8 + e), v(XP)))
    red345(a)
    A("  ds_write_b32 %s, %s" % (v(T[15]), v(a[2])))
    stamp("f")
    A("  s_waitcnt lgkmcnt(0)\n  s_barrier")
    stamp("g")
    A("  s_cmp_lg_u32 %s, 0\n  s_cbranch_scc1 L_noq" % s(sWave))
    A("  v_lshlrev_b32 %s, 5, %s\n  v_add_u32 %s, %d, %s" % (v(T[0]), v(vLane), v(T[0]), RED0, v(T[0])))
    A("  ds_read_b128 %s, %s" % (v(F, 4), v(T[0])))
    A("  ds_read_b128 %s, %s offset:16" % (v(F + 4, 4), v(T[0])))
    A("  v_lshl_add_u32 %s, %s, 2, s54" % (v(T[1]), v(vLane)))
    A("  s_waitcnt lgkmcnt(0)")
    sum8(F)
    A("  v_bfi_b32 %s, %s, %s, %s" % (v(F), s(sFF), v(vT8), v(F)))
    A("  global_store_dword %s, %s, s[12:13] sc1" % (v(T[1]), v(F)))
    A("L_noq:")
    A("  s_barrier")
    stamp(1)
    A("  s_lshl_b32 s34, %s, 13\n  s_lshl_b32 s35, %s, 8\n  s_add_u32 s34, s34, s35\n  s_add_u32 s34, s34, %d" % (s(sG), s(sWave), QG))
    A("  v_lshrrev_b32 %s, 4, %s\n  v_and_b32 %s, 15, %s" % (v(T[2]), v(vLane), v(T[3]), v(vLane)))
    A("  v_lshl_add_u32 %s, %s, 11, s34\n  v_lshl_add_u32 %s, %s, 4, %s" % (v(T[0]), v(T[2]), v(T[0]), v(T[3]), v(T[0])))
    A("  s_lshl_b32 s34, %s, 7\n  s_add_u32 s34, s34, %d" % (s(sWave), QL))
    A("  v_lshl_add_u32 %s, %s, 3, s34" % (v(T[1]), v(T[3])))
    A("  v_lshrrev_b32 %s, 1, %s\n  v_and_b32 %s, 1, %s" % (v(T[3]), v(T[2]), v(T[2]), v(T[2])))
    A("  v_lshl_add_u32 %s, %s, 2, %s\n  v_lshl_add_u32 %s, %s, 1, %s" % (v(T[1]), v(T[3]), v(T[1]), v(T[1]), v(T[2]), v(T[1])))
    G0 = U[0]; G1 = U[4]
    def qpoll_issue():
        A("  global_load_dwordx4 %s, %s, s[12:13] sc1" % (v(G0, 4), v(T[0])))
    def qpoll_check():
        chk_clean([G0 + k for k in range(4)], T[2], sT8, s(sFF))
    def qwrite():
        for e in range(2): A("  v_permlane32_swap_b32 %s, %s" % (v(G0 + e), v(G0 + e + 2)))
        for e in range(2): A("  v_add_f32 %s, %s, %s" % (v(G0 + e), v(G0 + e), v(G0 + e + 2)))
        A("  v_permlane16_swap_b32 %s, %s" % (v(G0), v(G0 + 1)))
        A("  v_add_f32 %s, %s, %s" % (v(G0), v(G0), v(G0 + 1)))
        A("  v_cvt_pk_bf16_f32 %s, %s, %s" % (v(G0), v(G0), v(G0)))
        A("  ds_write_b16 %s, %s" % (v(T[1]), v(G0)))
    Lsave = L; L = []; A = L.append
    A("L_tailpro:")
    A("  s_cmp_lg_u32 %s, 7\n  s_cbranch_scc1 L_noreg" % s(sWave))
    A("  s_lshl_b32 s34, %s, 3\n  s_add_u32 s34, s34, %d" % (s(sJ), REG))
    A("  v_mov_b32 %s, s34\n  v_mov_b32 %s, %s\n  v_mov_b32 %s, %s" % (v(T[9]), v(T[10]), s(sXcc), v(T[11]), s(sTag)))
    A("  s_mov_b64 exec, 1")
    A("  global_store_dwordx2 %s, %s, s[12:13] sc1" % (v(T[9]), v(T[10], 2)))
    A("  s_mov_b64 exec, -1")
    A("L_noreg:")
    s3dma(0, 4, 8)
    A("  s_waitcnt vmcnt(4)")
    s3dma(1, 0, 8)
    A("  s_lshl_b32 s34, %s, 5" % s(sJ))
    A("  v_and_b32 %s, 1, %s\n  v_lshrrev_b32 %s, 5, %s\n  v_lshlrev_b32 %s, 3, %s" % (v(T[5]), v(vLane), v(T[6]), v(vLane), v(T[5]), v(T[5])))
    A("  v_lshl_add_u32 %s, %s, 2, %s\n  v_bfe_u32 %s, %s, 4, 1" % (v(T[5]), v(T[6]), v(T[5]), v(T[6]), v(vLane)))
    A("  v_lshl_add_u32 %s, %s, 1, %s\n  v_bfe_u32 %s, %s, 3, 1" % (v(T[5]), v(T[6]), v(T[5]), v(T[6]), v(vLane)))
    A("  v_add_u32 %s, %s, %s\n  v_lshl_add_u32 %s, %s, 1, s34" % (v(T[5]), v(T[6]), v(T[5]), v(T[5]), v(T[5])))
    A("  global_load_ushort %s, %s, s[50:51]" % (v(vXres), v(T[5])))
    A("  s_lshl_b32 s34, %s, 17\n  s_lshl_b32 s35, %s, 14\n  s_add_u32 s34, s34, s35\n  s_add_u32 s52, s52, s34\n  s_addc_u32 s53, s53, 0" % (s(sJ), s(sWave)))
    A("  s_lshl_b32 s34, %s, 16\n  s_lshl_b32 s35, %s, 13\n  s_add_u32 s34, s34, s35\n  s_add_u32 s60, s60, s34\n  s_addc_u32 s61, s61, 0" % (s(sJ), s(sWave)))
    TB = [32, 48]
    groups = []
    for g in range(4): groups.append((52, W2 + 16 * g))
    for g in range(2): groups.append((60, W4 + 16 * g))
    def wissue(k):
        sb, dst = groups[k]
        tb = TB[k % 2]
        for r in range(4):
            A("  global_load_dwordx4 %s, %s, %s offset:%d %s" % (v(tb + 4 * r, 4), v(vL16), s(sb, 2), 1024 * r, P["wflag"]))
        A("  s_add_u32 %s, %s, 4096\n  s_addc_u32 %s, %s, 0" % (s(sb), s(sb), s(sb + 1), s(sb + 1)))
    nA = P["nA"]
    def wrun(k0, k1, lab):
        ks = list(range(k0, k1))
        for n, k in enumerate(ks):
            if k == 4:
                A("  s_cmp_ge_u32 %s, 28\n  s_cbranch_scc1 %s_a" % (s(sJ), lab))
            wissue(k)
            if n > 0:
                A("  s_waitcnt vmcnt(4)"); wperm(groups[ks[n - 1]][1], TB[ks[n - 1] % 2])
        A("  s_waitcnt vmcnt(0)"); wperm(groups[ks[-1]][1], TB[ks[-1] % 2])
        if 4 in ks:
            A("  s_branch %s_b" % lab)
            A("%s_a:" % lab)
            if k0 < 4:
                A("  s_waitcnt vmcnt(0)"); wperm(groups[3][1], TB[1])
            A("%s_b:" % lab)
    A("  s_waitcnt vmcnt(9)")
    if nA: wrun(0, nA, "L_wA")
    else: A("  s_waitcnt vmcnt(0)")
    A("  v_lshlrev_b32 %s, 16, %s" % (v(vXres), v(vXres)))
    A("L_tqpoll:")
    qpoll_issue()
    A("  s_waitcnt vmcnt(0)")
    qpoll_check()
    poll_end("L_tqpoll")
    qwrite()
    A("  s_waitcnt lgkmcnt(0)\n  s_barrier")
    A("  v_and_b32 %s, 7, %s\n  v_xor_b32 %s, %s, %s\n  v_lshlrev_b32 %s, 4, %s" % (v(T[3]), v(vLane), v(T[3]), s(sWave), v(T[3]), v(T[3]), v(T[3])))
    A("  v_lshl_add_u32 %s, %s, 10, %s\n  v_add_u32 %s, 0x10000, %s" % (v(T[3]), v(vLane), v(T[3]), v(T[4]), v(T[3])))
    for mat in range(2):
        for r in range(8):
            A("  ds_read_b128 %s, %s offset:%d" % (v(32 + 32 * mat + 4 * r, 4), v(T[3 + mat]), 128 * r))
        for q in range(2):
            A("  s_waitcnt lgkmcnt(%d)" % (4 - 4 * q))
            wperm(W3A + 32 * mat + 16 * q, 32 + 32 * mat + 16 * q)
    A("  s_barrier")
    for k in range(4): issueK()
    for r in range(NR):
        A("  s_waitcnt vmcnt(8)")
        issueR(r)
    A("  s_branch L_qops")
    late.append("\n".join(L)); L = Lsave; A = L.append

    A("  s_cmp_eq_u32 %s, 1\n  s_cbranch_scc1 L_tailpro" % s(sTail))
    issueK()
    A("  s_waitcnt vmcnt(4)")
    issueK()
    if P["smemq"]:
        A("  s_lshl_b32 s34, %s, 13\n  s_lshl_b32 s35, %s, 8\n  s_add_u32 s34, s34, s35\n  s_add_u32 s34, s34, %d" % (s(sG), s(sWave), QG))
        A("  s_add_u32 s44, s12, s34\n  s_addc_u32 s45, s13, 0")
        A("L_sq:")
        for k in range(4): A("  s_load_dword s%d, s[44:45], %d glc" % (46 + k, 2048 * k + 252))
        A("  s_waitcnt lgkmcnt(0)")
        for k in range(4): A("  s_xor_b32 s%d, s%d, %s" % (46 + k, 46 + k, s(sT8)))
        A("  s_or_b32 s46, s46, s47\n  s_or_b32 s48, s48, s49\n  s_or_b32 s46, s46, s48\n  s_and_b32 s46, s46, 0xff\n  s_cmp_eq_u32 s46, 0")
        poll_end("L_sq")
    stamp("h")
    qpoll_issue()
    issueK()
    if NR >= 1:
        A("  s_waitcnt vmcnt(9)")
        issueR(0)
    A("  s_waitcnt vmcnt(%d)" % (8 if NR >= 1 else 4))
    for r in range(1, NR): issueR(r)
    qpoll_check()
    A("  s_cbranch_scc1 L_qpoll_ok")
    A("L_qpoll:")
    qpoll_issue()
    A("  s_waitcnt vmcnt(0)")
    qpoll_check()
    poll_end("L_qpoll")
    qwrite()
    A("L_qdone:")
    A("  s_waitcnt lgkmcnt(0)\n  s_barrier")
    A("L_qops:")
    stamp(2)
    A("  v_and_b32 %s, 3, %s\n  v_lshlrev_b32 %s, 8, %s" % (v(T[0]), v(vLane), v(T[0]), v(T[0])))
    A("  v_lshrrev_b32 %s, 4, %s\n  v_lshl_add_u32 %s, %s, 4, %s" % (v(T[1]), v(vLane), v(T[0]), v(T[1]), v(T[0])))
    A("  v_add_u32 %s, %d, %s" % (v(T[0]), QL, v(T[0])))
    for t in range(4): A("  ds_read_b128 %s, %s offset:%d" % (v(ACC + 4 * t, 4), v(T[0]), 64 * t))
    S = T[4:8]
    assert S[0] % 2 == 0
    nis = [0]
    def ticket_req():
        A("  s_mov_b64 exec, 1")
        A("  ds_add_rtn_u32 %s, %s, %s" % (v(vTk), v(vTkA), v(vOne)))
        A("  s_mov_b64 exec, -1")
    def issue_dyn(nyoung, kpossible, depth=None, push=False):
        k = nis[0]; nis[0] += 1
        A("  s_waitcnt lgkmcnt(%d)" % nyoung)
        A("  v_readfirstlane_b32 %s, %s" % (s(sTk), v(vTk)))
        ticket_req()
        if kpossible:
            A("  s_cmp_lt_u32 %s, %s\n  s_cbranch_scc0 L_isV%d" % (s(sTk), s(sCnt1), k))
            A("  s_cmp_lt_u32 %s, %s\n  s_cselect_b32 s35, %s, %s" % (s(sTk), s(sThr), s(sOffX), s(sOff0)))
            A("  s_lshl_b32 s34, %s, 12\n  s_add_u32 s34, s34, s35\n  s_mov_b32 m0, %s" % (s(sTk), s(sSlotI)))
            for g in range(4):
                A("  buffer_load_dwordx4 %s, s[4:7], s34 offen offset:%d %s lds" % (v(vKd[g]), g * 1024, P["kvflag"]))
            A("L_isret%d:" % k)
            blk = ["L_isV%d:" % k]; B = blk.append
        else:
            B = A
        B("  s_sub_u32 s34, %s, %s\n  s_cmp_lt_u32 s34, %s\n  s_cselect_b32 s35, %s, %s" % (s(sTk), s(sCnt1), s(sThr), s(sOffX), s(sOff0)))
        B("  s_lshl_b32 s34, s34, 12\n  s_add_u32 s34, s34, s35")
        B("  s_cmp_lt_u32 %s, %s\n  s_cselect_b32 s34, s34, 0x10000000\n  s_cselect_b32 m0, %s, 0x30000" % (s(sTk), s(sCnt2), s(sSlotI)))
        for g in range(4):
            B("  buffer_load_dwordx4 %s, s[8:11], s34 offen offset:%d %s lds" % (v(vVd), g * 1024, P["kvflag"]))
        if kpossible:
            B("  s_branch L_isret%d" % k)
            late.append("\n".join(blk))
        next_slot(sSlotI)
        if push:
            A("  s_mov_b32 %s, %s" % (s(sF[depth]), s(sTk)))
        else:
            WW = depth or W
            for i in range(WW - 1): A("  s_mov_b32 %s, %s" % (s(sF[i]), s(sF[i + 1])))
            A("  s_mov_b32 %s, %s" % (s(sF[WW - 1]), s(sTk)))
    def kbody(wait, issue, sid):
        A("  s_lshl_b32 s34, %s, 7" % s(sid))
        A("  v_add_u32 %s, s34, %s" % (v(T[14]), v(vSb)))
        A("  v_add_u32 %s, %s, %s" % (v(T[0]), s(sSlotC), v(vKrd)))
        for t in range(1, 4): A("  v_xor_b32 %s, %d, %s" % (v(T[t]), 64 * t, v(T[0])))
        if issue:
            A("  s_waitcnt vmcnt(%d)" % (wait + P["early"]))
            issue_dyn(0, True)
            A("  s_waitcnt vmcnt(%d)" % (wait + 4))
        else:
            A("  s_waitcnt vmcnt(%d)" % wait)
        for t in range(4): A("  ds_read_b128 %s, %s" % (v(F + 4 * t, 4), v(T[t])))
        next_slot(sSlotC)
        for t in range(4):
            A("  s_waitcnt lgkmcnt(%d)" % (3 - t))
            A("  v_mfma_f32_16x16x32_bf16 %s, %s, %s, %s" % (v(S[0], 4), v(F + 4 * t, 4), v(ACC + 4 * t, 4), "0" if t == 0 else v(S[0], 4)))
        A("  v_cvt_pk_bf16_f32 %s, %s, %s" % (v(T[8]), v(S[0]), v(S[1])))
        A("  v_cvt_pk_bf16_f32 %s, %s, %s" % (v(T[9]), v(S[2]), v(S[3])))
        unpack(T[10], T[11], T[8]); unpack(T[12], T[13], T[9])
        for k in range(4): A("  v_mul_f32 %s, %s, %s" % (v(T[10 + k]), SCALE, v(T[10 + k])))
        A("  v_cvt_pk_bf16_f32 %s, %s, %s" % (v(T[8]), v(T[10]), v(T[11])))
        A("  v_cvt_pk_bf16_f32 %s, %s, %s" % (v(T[9]), v(T[12]), v(T[13])))
        setexec(0x000F000F000F000F)
        A("  ds_write_b64 %s, %s" % (v(T[14]), v(T[8], 2)))
        setexec(-1)
        A("  v_max3_f32 %s, %s, %s, %s" % (v(vMx), v(vMx), v(T[10]), v(T[11])))
        A("  v_max3_f32 %s, %s, %s, %s" % (v(vMx), v(vMx), v(T[12]), v(T[13])))
    assert T[8] % 2 == 0
    A("  v_mov_b32 %s, 0xff800000\n  v_mov_b32 %s, 1" % (v(vMx), v(vOne)))
    ticket_req()
    A("  s_mov_b32 %s, %s" % (s(sF[0]), s(sWave)))
    A("  s_waitcnt lgkmcnt(1)")
    if NR:
        assert W == 1
        for i in range(4):
            kbody(4 * (3 - i + NR), False, sF[0])
            A("  s_add_u32 %s, %s, 8" % (s(sF[0]), s(sF[0])))
        A("  v_add_u32 %s, %s, %s" % (v(T[14]), s(sWB), v(vL16)))
        for r in range(NR):
            A("  s_waitcnt vmcnt(%d)" % (4 * (NR - 1 - r)))
            for g in range(4):
                A("  ds_write_b128 %s, %s offset:%d" % (v(T[14]), v(RT + 16 * r + 4 * g, 4), 4096 * r + 1024 * g))
            next_slot(sSlotI)
            if r < NR - 1:
                kbody(4 * (NR - 1 - r), False, sF[0])
                A("  s_add_u32 %s, %s, 8" % (s(sF[0]), s(sF[0])))
                A("  v_add_u32 %s, %s, %s" % (v(T[14]), s(sWB), v(vL16)))
    else:
      for i in range(4 - W):
        kbody(4 * (3 - i), False, sF[0])
        A("  s_add_u32 %s, %s, 8" % (s(sF[0]), s(sF[0])))
    for i in range(1, W): A("  s_add_u32 %s, %s, %d" % (s(sF[i]), s(sF[0]), 8 * i))
    A("L_kloop:")
    A("  s_mov_b32 s36, %s" % s(sF[0]))
    kbody(4 * (W - 1), True, 36)
    A("  s_cmp_lt_u32 %s, %s\n  s_cbranch_scc1 L_kloop" % (s(sF[0]), s(sCnt1)))
    stamp(3)
    PK = F
    FL = ACC
    vM = T[0]; vLs = T[1]
    XV = P["extraV"]
    assert W + XV <= 4
    for i in range(XV): issue_dyn(0, False, depth=W + i, push=True)
    bfly_hi("v_max_f32", vMx, T[2])
    round_bf16(vMx, vMx)
    A("  s_lshl_b32 s34, %s, 2\n  s_add_u32 s34, s34, %d" % (s(sWave), MLT))
    A("  v_and_b32 %s, 3, %s\n  v_lshlrev_b32 %s, 5, %s" % (v(T[3]), v(vLane), v(T[3]), v(T[3])))
    A("  v_add_u32 %s, s34, %s\n  v_add_u32 %s, %d, %s" % (v(T[2]), v(T[3]), v(T[3]), MLT, v(T[3])))
    A("  s_mov_b64 exec, 0xf")
    A("  ds_write_b32 %s, %s" % (v(T[2]), v(vMx)))
    A("  s_mov_b64 exec, -1")
    A("  s_waitcnt lgkmcnt(0)\n  s_barrier")
    A("  ds_read_b128 %s, %s" % (v(U[0], 4), v(T[3])))
    A("  ds_read_b128 %s, %s offset:16" % (v(U[4], 4), v(T[3])))
    for k in range(5): A("  ds_read_b64 %s, %s offset:%d" % (v(PK + 2 * k, 2), v(vSr), 512 * k))
    A("  s_waitcnt lgkmcnt(5)")
    A("  v_max3_f32 %s, %s, %s, %s" % (v(vM), v(U[0]), v(U[1]), v(U[2])))
    A("  v_max3_f32 %s, %s, %s, %s" % (v(U[3]), v(U[3]), v(U[4]), v(U[5])))
    A("  v_max3_f32 %s, %s, %s, %s" % (v(vM), v(vM), v(U[6]), v(U[7])))
    A("  v_max_f32 %s, %s, %s" % (v(vM), v(vM), v(U[3])))
    A("  s_mov_b32 s34, %s" % LOG2E)
    A("  v_mul_f32 %s, s34, %s" % (v(T[4]), v(vM)))
    for k in range(5):
        A("  s_waitcnt lgkmcnt(%d)" % (4 - k))
        unpack(FL + 4 * k, FL + 4 * k + 1, PK + 2 * k); unpack(FL + 4 * k + 2, FL + 4 * k + 3, PK + 2 * k + 1)
    for k in range(20): A("  v_fma_f32 %s, %s, s34, -%s" % (v(FL + k), v(FL + k), v(T[4])))
    for k in range(20): A("  v_exp_f32 %s, %s" % (v(FL + k), v(FL + k)))
    for k in range(10): A("  v_cvt_pk_bf16_f32 %s, %s, %s" % (v(PK + k), v(FL + 2 * k), v(FL + 2 * k + 1)))
    for k in range(5): A("  ds_write_b64 %s, %s offset:%d" % (v(vSr), v(PK + 2 * k, 2), 512 * k))
    for k in range(10): A("  v_add_f32 %s, %s, %s" % (v(FL + k), v(FL + k), v(FL + 10 + k)))
    for k in range(5): A("  v_add_f32 %s, %s, %s" % (v(FL + k), v(FL + k), v(FL + 5 + k)))
    A("  v_add_f32 %s, %s, %s" % (v(FL), v(FL), v(FL + 1)))
    A("  v_add_f32 %s, %s, %s" % (v(FL + 2), v(FL + 2), v(FL + 3)))
    A("  v_add_f32 %s, %s, %s" % (v(FL), v(FL), v(FL + 4)))
    A("  v_add_f32 %s, %s, %s" % (v(vLs), v(FL), v(FL + 2)))
    allred_b2345("v_add_f32", vLs, T[5])
    A("  s_mov_b64 exec, 0xf")
    A("  ds_write_b32 %s, %s offset:128" % (v(T[2]), v(vLs)))
    A("  s_mov_b64 exec, -1")
    A("  v_mov_b32 %s, %s" % (v(vMx), v(vM)))
    aW = T[10]; aRd = T[11]; aRd2 = T[12]; aFt = T[13]; aSt = T[14]
    A("  v_and_b32 %s, 3, %s\n  s_movk_i32 s34, 576\n  v_mul_lo_u32 %s, %s, s34" % (v(aW), v(vLane), v(aW), v(aW)))
    A("  v_lshrrev_b32 %s, 4, %s\n  v_lshl_add_u32 %s, %s, 4, %s\n  v_add_u32 %s, %s, %s" % (v(aRd), v(vLane), v(aW), v(aRd), v(aW), v(aW), s(sWB), v(aW)))
    A("  s_lshr_b32 s34, %s, 1\n  s_and_b32 s35, %s, 1\n  s_lshl_b32 s35, s35, 8" % (s(sWave), s(sWave)))
    A("  s_mul_i32 s36, s34, 576\n  s_add_u32 s36, s36, s35")
    A("  v_lshl_add_u32 %s, %s, 2, s36" % (v(aRd), v(vLane)))
    A("  v_add_u32 %s, 0x10000, %s" % (v(aRd2), v(aRd)))
    A("  s_lshl_b32 s36, s34, 3\n  s_add_u32 s36, s36, %d\n  v_mov_b32 %s, s36" % (FT, v(aFt)))
    A("  s_lshl_b32 s36, %s, 2\n  s_add_u32 s36, s36, s34\n  s_lshl_b32 s36, s36, 14\n  s_add_u32 s36, s36, s35" % s(sG))
    A("  s_lshl_b32 s34, %s, 9\n  s_add_u32 s36, s36, s34\n  s_add_u32 s36, s36, %d" % (s(sI), P1))
    A("  v_lshl_add_u32 %s, %s, 2, s36" % (v(aSt), v(vLane)))
    A("  s_waitcnt lgkmcnt(0)\n  s_barrier")
    A("  s_cmp_lg_u32 %s, 0\n  s_cbranch_scc1 L_noml" % s(sWave))
    A("  ds_read_b128 %s, %s offset:128" % (v(U[0], 4), v(T[3])))
    A("  ds_read_b128 %s, %s offset:144" % (v(U[4], 4), v(T[3])))
    A("  s_lshl_b32 s34, %s, 11\n  s_lshl_b32 s35, %s, 6\n  s_add_u32 s34, s34, s35\n  s_add_u32 s34, s34, %d" % (s(sG), s(sI), ML))
    A("  v_add_u32 %s, s34, %s" % (v(T[2]), v(vL16)))
    A("  v_mov_b32 %s, %s\n  v_mov_b32 %s, %s\n  v_mov_b32 %s, %s" % (v(T[6]), v(vMx), v(T[7]), s(sTag), v(T[9]), s(sTag)))
    A("  s_waitcnt lgkmcnt(0)")
    sum8(U[0])
    A("  v_mov_b32 %s, %s" % (v(T[8]), v(U[0])))
    A("  s_mov_b64 exec, 0xf")
    assert T[6] % 2 == 0
    A("  global_store_dwordx4 %s, %s, s[12:13] sc1" % (v(T[2]), v(T[6], 4)))
    A("  s_mov_b64 exec, -1")
    A("L_noml:")
    if nA < 6:
        A("  s_cmp_eq_u32 %s, 1\n  s_cbranch_scc1 L_wB" % s(sTail))
        A("L_wBret:")
        Lsave = L; L = []; A = L.append
        A("L_wB:")
        wrun(nA, 6, "L_wBx")
        A("  s_branch L_wBret")
        late.append("\n".join(L)); L = Lsave; A = L.append
    for k in range(32): A("  v_mov_b32 %s, 0" % v(ACC + k))
    stamp(4)
    PB_ = T[2]
    assert PB_ % 2 == 0
    A("  s_lshl_b32 s34, %s, 7\n  v_subrev_u32 %s, s34, %s" % (s(sCnt1), v(vSb), v(vSb)))
    def vbody(wait, issue, depth=None):
        A("  s_lshl_b32 s34, %s, 7" % s(sF[0]))
        A("  v_add_u32 %s, s34, %s" % (v(T[1]), v(vSb)))
        A("  v_add_u32 %s, %s, %s" % (v(T[0]), s(sSlotC), v(vVrd)))
        if issue:
            A("  s_waitcnt vmcnt(%d)" % (wait + P["early"]))
            issue_dyn(0, False, depth=depth)
        A("  ds_read_b64 %s, %s" % (v(PB_, 2), v(T[1])))
        A("  s_waitcnt vmcnt(%d)" % (wait + (4 if issue else 0)))
        for b in range(8): A("  ds_read_b64_tr_b16 %s, %s offset:%d" % (v(F + 2 * b, 2), v(T[0]), 128 * b))
        next_slot(sSlotC)
        for b in range(8):
            A("  s_waitcnt lgkmcnt(%d)" % (7 - b))
            A("  v_mfma_f32_16x16x16_bf16 %s, %s, %s, %s" % (v(ACC + 4 * b, 4), v(F + 2 * b, 2), v(PB_, 2), v(ACC + 4 * b, 4)))
    for i in range(XV):
        vbody(4 * (W + XV - 1 - i), False)
        for k in range(W + XV - 1 - i): A("  s_mov_b32 %s, %s" % (s(sF[k]), s(sF[k + 1])))
    A("  s_branch L_vtest")
    A("L_vloop:")
    vbody(4 * (W - 1), True)
    A("L_vtest:")
    A("  s_cmp_ge_u32 %s, %s\n  s_cbranch_scc1 L_gather" % (s(sF[0]), s(sTrig)))
    A("L_gatherret:")
    if P["deepV"]:
        A("  s_sub_u32 s36, %s, %d" % (s(sCnt2), P["deepV"]))
        A("  s_cmp_lt_u32 %s, s36\n  s_cbranch_scc1 L_vloop" % s(sF[0]))
        issue_dyn(0, False, depth=W, push=True)
        A("  s_branch L_vtest2")
        A("L_vloop2:")
        vbody(4 * W, True, depth=W + 1)
        A("L_vtest2:")
        A("  s_cmp_lt_u32 %s, %s\n  s_cbranch_scc1 L_vloop2" % (s(sF[0]), s(sCnt2)))
    else:
        A("  s_cmp_lt_u32 %s, %s\n  s_cbranch_scc1 L_vloop" % (s(sF[0]), s(sCnt2)))
    stamp(5)
    Lsave = L; L = []; A = L.append
    A("L_gather:")
    A("  s_mov_b32 %s, -1" % s(sTrig))
    A("  s_lshl_b32 s34, %s, 11\n  s_add_u32 s34, s34, %d" % (s(sG), ML))
    A("  v_add_u32 %s, s34, %s" % (v(T[4]), v(vL16)))
    if P["pf2"]:
        A("  s_getpc_b64 s[44:45]")
        A("L_pc2:")
        A("  s_sub_u32 s44, s44, L_pc2-L_vloop\n  s_subb_u32 s45, s45, 0")
        A("  v_mov_b32 %s, %s" % (v(T[7]), v(vL16)))
        for k in range(P["pf2"]):
            A("  global_load_dwordx4 %s, %s, s[44:45]" % (v(U[8], 4), v(T[7])))
            A("  v_add_u32 %s, 1024, %s" % (v(T[7]), v(T[7])))
    A("L_gpoll:")
    A("  global_load_dwordx4 %s, %s, s[12:13] sc1" % (v(G0, 4), v(T[4])))
    A("  global_load_dwordx4 %s, %s, s[12:13] offset:1024 sc1" % (v(G1, 4), v(T[4])))
    A("  s_waitcnt vmcnt(0)")
    chk_tag([G0 + 1, G0 + 3, G1 + 1, G1 + 3], T[7], sTag)
    poll_end("L_gpoll")
    A("  v_max_f32 %s, %s, %s" % (v(T[8]), v(G0), v(G1)))
    allred_b2345("v_max_f32", T[8], T[7])
    A("  v_sub_f32 %s, %s, %s\n  v_sub_f32 %s, %s, %s" % (v(G0), v(G0), v(T[8]), v(G1), v(G1), v(T[8])))
    A("  v_sub_f32 %s, %s, %s" % (v(U[8]), v(vMx), v(T[8])))
    for r in (G0, G1, U[8]): A("  v_mul_f32 %s, %s, %s" % (v(r), LOG2E, v(r)))
    for r in (G0, G1, U[8]): A("  v_exp_f32 %s, %s" % (v(r), v(r)))
    A("  v_mul_f32 %s, %s, %s" % (v(T[9]), v(G0), v(G0 + 2)))
    A("  v_fmac_f32 %s, %s, %s" % (v(T[9]), v(G1), v(G1 + 2)))
    allred_b2345("v_add_f32", T[9], T[7])
    A("  v_rcp_f32 %s, %s" % (v(T[9]), v(T[9])))
    A("  v_mul_f32 %s, %s, %s" % (v(U[8]), v(U[8]), v(T[9])))
    A("  v_mov_b32 %s, 0" % v(U[9]))
    A("  s_cmp_eq_u32 %s, 0\n  s_cbranch_scc1 L_gfin" % s(sTail))
    A("  v_and_b32 %s, 31, %s\n  v_lshlrev_b32 %s, 3, %s\n  v_add_u32 %s, %d, %s" % (v(T[5]), v(vLane), v(T[5]), v(T[5]), v(T[5]), REG, v(T[5])))
    A("L_rpoll:")
    A("  global_load_dwordx2 %s, %s, s[12:13] sc1" % (v(G0, 2), v(T[5])))
    A("  s_waitcnt vmcnt(0)")
    A("  v_cmp_eq_u32 vcc, %s, %s" % (s(sTag), v(G0 + 1)))
    A("  s_cmp_eq_u64 vcc, -1")
    poll_end("L_rpoll")
    A("  v_cmp_eq_u32 vcc, %s, %s" % (s(sXcc), v(G0)))
    A("  s_cmp_eq_u64 vcc, -1\n  s_cselect_b32 s34, %d, 0" % (0 if P["forceslow"] else 1))
    A("  v_mov_b32 %s, s34" % v(U[9]))
    A("L_gfin:")
    A("  v_lshlrev_b32 %s, 3, %s\n  v_add_u32 %s, %d, %s" % (v(T[7]), v(vLane), v(T[7]), FT, v(T[7])))
    A("  s_mov_b64 exec, 0xf")
    A("  ds_write_b64 %s, %s" % (v(T[7]), v(U[8], 2)))
    A("  s_mov_b64 exec, -1")
    A("  s_branch L_gatherret")
    late.append("\n".join(L)); L = Lsave; A = L.append
    setexec(0x000F000F000F000F)
    for b in range(8): A("  ds_write_b128 %s, %s offset:%d" % (v(aW), v(ACC + 4 * b, 4), 64 * b))
    setexec(-1)
    A("  s_waitcnt lgkmcnt(0)\n  s_barrier")
    O8 = F; F8 = F + 8
    def read8(dst, a0, a1, st):
        A("  ds_read2st64_b32 %s, %s offset0:%d offset1:%d" % (v(dst, 2), v(a0), st, st + 64))
        A("  ds_read2st64_b32 %s, %s offset0:%d offset1:%d" % (v(dst + 2, 2), v(a0), st + 128, st + 192))
        A("  ds_read2st64_b32 %s, %s offset0:%d offset1:%d" % (v(dst + 4, 2), v(a1), st, st + 64))
        A("  ds_read2st64_b32 %s, %s offset0:%d offset1:%d" % (v(dst + 6, 2), v(a1), st + 128, st + 192))
    read8(O8, aRd, aRd2, 0)
    A("  ds_read_b64 %s, %s" % (v(F8, 2), v(aFt)))
    A("  s_waitcnt lgkmcnt(0)")
    sum8(O8)
    A("  v_mul_f32 %s, %s, %s" % (v(O8), v(O8), v(F8)))
    A("  v_bfi_b32 %s, %s, %s, %s" % (v(O8), s(sFF), v(vT8), v(O8)))
    A("  global_store_dword %s, %s, s[12:13] sc1" % (v(aSt), v(O8)))
    stamp(6)
    for k in [7, "p", "q", 8, "r", 9, "s", "t", "u", 10, 11]: stamp(k)
    A("  s_cmp_eq_u32 %s, 0\n  s_cbranch_scc1 L_end" % s(sTail))
    A("  v_readfirstlane_b32 %s, %s" % (s(sFast), v(F8 + 1)))
    aP1 = T[0]; aPA = T[1]; aR3 = T[2]; aLw = T[3]; aLr = T[4]; aLr2 = T[5]; aSP = T[6]; aH = T[7]
    A("  v_lshrrev_b32 %s, 1, %s\n  v_and_b32 %s, 1, %s" % (v(T[8]), v(vLane), v(T[9]), v(vLane)))
    A("  s_lshl_b32 s34, %s, 14\n  s_lshl_b32 s35, %s, 6\n  s_add_u32 s34, s34, s35\n  s_add_u32 s34, s34, %d" % (s(sJ), s(sWave), P1))
    A("  v_lshl_add_u32 %s, %s, 9, s34\n  v_lshl_add_u32 %s, %s, 5, %s" % (v(aP1), v(T[8]), v(aP1), v(T[9]), v(aP1)))
    A8 = [F + k for k in range(8)]
    A("  global_load_dwordx4 %s, %s, s[12:13] sc1" % (v(A8[0], 4), v(aP1)))
    A("  global_load_dwordx4 %s, %s, s[12:13] offset:16 sc1" % (v(A8[4], 4), v(aP1)))
    A("  s_lshl_b32 s34, %s, 6\n  s_add_u32 s34, s34, %d" % (s(sJ), PA))
    A("  v_lshl_add_u32 %s, %s, 11, s34\n  v_lshl_add_u32 %s, %s, 5, %s" % (v(aPA), v(T[8]), v(aPA), v(T[9]), v(aPA)))
    A("  v_lshlrev_b32 %s, 5, %s\n  v_add_u32 %s, %s, %s\n  v_add_u32 %s, %d, %s" % (v(aR3), v(vLane), v(aLw), s(sWB), v(aR3), v(aR3), R3, v(aR3)))
    A("  global_load_dwordx4 %s, %s, s[12:13] sc1" % (v(U[0], 4), v(aPA)))
    A("  global_load_dwordx4 %s, %s, s[12:13] sc1" % (v(U[4], 4), v(aR3)))
    A("  v_add_u32 %s, %d, %s" % (v(T[10]), PB - PA, v(aPA)))
    A("  global_load_dwordx4 %s, %s, s[12:13] sc1" % (v(U[8], 4), v(T[10])))
    A("  s_lshl_b32 s34, %s, 8\n  v_lshl_add_u32 %s, %s, 2, s34\n  v_add_u32 %s, 0x10000, %s" % (s(sWave), v(aLr), v(vLane), v(aLr2), v(aLr)))
    A("  s_lshl_b32 s34, %s, 11\n  s_add_u32 s34, s34, %d\n  v_add_u32 %s, s34, %s" % (s(sJ), PA, v(aSP), v(aLr)))
    A("  v_lshrrev_b32 %s, 5, %s\n  v_lshlrev_b32 %s, 3, %s\n  v_lshl_add_u32 %s, %s, 2, %s" % (v(T[10]), v(vLane), v(aH), v(T[9]), v(aH), v(T[10]), v(aH)))
    A("  v_bfe_u32 %s, %s, 4, 1\n  v_lshl_add_u32 %s, %s, 1, %s" % (v(T[10]), v(vLane), v(aH), v(T[10]), v(aH)))
    A("  v_bfe_u32 %s, %s, 3, 1\n  v_add_u32 %s, %s, %s" % (v(T[10]), v(vLane), v(aH), v(T[10]), v(aH)))
    A("  s_lshl_b32 s34, %s, 4\n  v_add_u32 %s, s34, %s" % (s(sJ), v(aH), v(aH)))
    A("  v_lshlrev_b32 %s, 1, %s" % (v(T[17]), v(aH)))
    A("  v_lshlrev_b32 %s, 2, %s\n  v_add_u32 %s, %d, %s" % (v(aH), v(aH), v(aH), R3, v(aH)))
    A("  s_and_b32 s55, %s, 0xffff\n  v_mov_b32 %s, s55\n  s_mov_b32 s54, 0xffff" % (s(sTag), v(T[16])))
    A("  s_waitcnt vmcnt(3)")
    A("  s_branch L_h1c")
    A("L_h1:")
    A("  global_load_dwordx4 %s, %s, s[12:13] sc1" % (v(A8[0], 4), v(aP1)))
    A("  global_load_dwordx4 %s, %s, s[12:13] offset:16 sc1" % (v(A8[4], 4), v(aP1)))
    A("  s_waitcnt vmcnt(0)")
    A("L_h1c:")
    chk_clean(A8, T[8], sT8, s(sFF))
    poll_end("L_h1")
    stamp(7)
    red16(A8)
    A("  v_mov_b32_dpp %s, %s row_ror:8 row_mask:0xf bank_mask:0xf" % (v(A8[2]), v(A8[1])))
    A("  v_cvt_pk_bf16_f32 %s, %s, %s" % (v(A8[0]), v(A8[1]), v(A8[2])))
    for t, ln in enumerate((0, 16, 32, 48, 1, 17, 33, 49)):
        A("  v_readlane_b32 s%d, %s, %d" % (44 + t, v(A8[0]), ln))
    B8 = [F + 8 + k for k in range(8)]
    for t in range(8):
        for e in range(8):
            if t == 0: A("  v_dot2_f32_bf16 %s, s44, %s, 0" % (v(B8[e]), v(W2 + e)))
            else: A("  v_dot2c_f32_bf16 %s, s%d, %s" % (v(B8[e]), 44 + t, v(W2 + 8 * t + e)))
    stamp("p")
    A("  ds_write_b128 %s, %s offset:4096" % (v(aLw), v(B8[0], 4)))
    A("  ds_write_b128 %s, %s offset:4112" % (v(aLw), v(B8[4], 4)))
    A("  s_waitcnt lgkmcnt(0)\n  s_barrier")
    read8(O8, aLr, aLr2, 16)
    A("  s_waitcnt lgkmcnt(0)")
    sum8(O8)
    A("  v_bfi_b32 %s, %s, %s, %s" % (v(O8), s(sFF), v(vT8), v(O8)))
    hstore("global_store_dword %s, %s, s[12:13]" % (v(aSP), v(O8)))
    stamp("q")
    A("  v_add_u32 %s, %d, %s" % (v(T[15]), QL, v(vL16)))
    A("  s_cmp_lg_u32 %s, 0\n  s_cbranch_scc1 L_h3w" % s(sWave))
    late.append("L_h3w:\n  s_cmp_ge_u32 %s, 28\n  s_cbranch_scc1 L_end\n  s_branch L_h3j" % s(sJ))
    A("L_hA:")
    A("  global_load_dwordx4 %s, %s, s[12:13] sc1" % (v(A8[0], 4), v(aPA)))
    A("  global_load_dwordx4 %s, %s, s[12:13] offset:16 sc1" % (v(A8[4], 4), v(aPA)))
    A("  s_waitcnt vmcnt(0)")
    chk_clean(A8, T[8], sT8, s(sFF))
    poll_end("L_hA")
    stamp(8)
    red16(A8)
    round_bf16(A8[1], A8[1])
    A("  v_add_f32 %s, %s, %s" % (v(vXres), v(vXres), v(A8[1])))
    A("  v_cvt_pk_bf16_f32 %s, %s, %s" % (v(vXres), v(vXres), v(vXres)))
    A("  v_bfi_b32 %s, s54, %s, %s" % (v(A8[2]), v(T[16]), v(vXres)))
    setexec(0x0303030303030303)
    hstore("global_store_dword %s, %s, s[12:13]" % (v(aH), v(A8[2])))
    setexec(-1)
    A("  v_and_b32 %s, 0xffff0000, %s" % (v(vXres), v(vXres)))
    stamp("r")
    A("L_h3:")
    A("  s_cmp_ge_u32 %s, 28\n  s_cbranch_scc1 L_hB0" % s(sJ))
    f = [F + k for k in range(8)]; d = T[8:12]
    A("L_h3p:")
    A("  global_load_dwordx4 %s, %s, s[12:13] sc1" % (v(f[0], 4), v(aR3)))
    A("  global_load_dwordx4 %s, %s, s[12:13] offset:16 sc1" % (v(f[4], 4), v(aR3)))
    A("  s_waitcnt vmcnt(0)")
    chk_clean(f, T[8], 55, "s54")
    poll_end("L_h3p")
    stamp(9)
    ln_stats(f, d, T[12], T[13], T[14])
    XO = U[0]
    for k in range(4): ln_apply(XO + k, f[2 * k], f[2 * k + 1], T[12], T[13], T[14], None, False)
    A("  ds_write_b128 %s, %s" % (v(T[15]), v(XO, 4)))
    A("  s_waitcnt lgkmcnt(0)")
    A("L_h3j:")
    A("  s_barrier")
    A("  ds_read_b128 %s, %s" % (v(XO, 4), v(T[15])))
    A("  s_waitcnt lgkmcnt(0)")
    GA = [F + k for k in range(8)]; UA = [F + 8 + k for k in range(8)]
    stamp("s")
    for k in range(4):
        for e in range(8):
            for acc, wb in ((GA, W3A), (UA, W3B)):
                if k == 0: A("  v_dot2_f32_bf16 %s, %s, %s, 0" % (v(acc[e]), v(wb + e), v(XO)))
                else: A("  v_dot2c_f32_bf16 %s, %s, %s" % (v(acc[e]), v(wb + 8 * k + e), v(XO + k)))
    for e in range(8): A("  v_permlane32_swap_b32 %s, %s" % (v(GA[e]), v(UA[e])))
    for e in range(8): A("  v_add_f32 %s, %s, %s" % (v(GA[e]), v(GA[e]), v(UA[e])))
    for e in range(4): A("  v_permlane16_swap_b32 %s, %s" % (v(GA[e]), v(GA[e + 4])))
    for e in range(4): A("  v_add_f32 %s, %s, %s" % (v(GA[e]), v(GA[e]), v(GA[e + 4])))
    for e in range(2):
        dpp("v_add_f32", GA[4 + e], GA[e], GA[e], "row_ror:8", bm="0x3")
        dpp("v_add_f32", GA[4 + e], GA[e + 2], GA[e + 2], "row_ror:8", bm="0xc")
    dpp("v_add_f32", GA[0], GA[4], GA[4], "row_shl:4", bm="0x5")
    dpp("v_add_f32", GA[0], GA[5], GA[5], "row_shr:4", bm="0xa")
    dpp("v_add_f32", GA[0], GA[0], GA[0], "quad_perm:[1,0,3,2]")
    dpp("v_add_f32", GA[0], GA[0], GA[0], "quad_perm:[2,3,0,1]")
    round_bf16(GA[0], GA[0])
    A("  v_mov_b32 %s, %s" % (v(GA[1]), v(GA[0])))
    A("  v_permlane32_swap_b32 %s, %s" % (v(GA[0]), v(GA[1])))
    A("  v_mul_f32 %s, 0xbfb8aa3b, %s" % (v(GA[2]), v(GA[0])))
    A("  v_exp_f32 %s, %s" % (v(GA[2]), v(GA[2])))
    A("  v_add_f32 %s, 1.0, %s" % (v(GA[2]), v(GA[2])))
    A("  v_rcp_f32 %s, %s" % (v(GA[2]), v(GA[2])))
    A("  v_mul_f32 %s, %s, %s" % (v(GA[0]), v(GA[0]), v(GA[2])))
    round_bf16(GA[0], GA[0])
    A("  v_mul_f32 %s, %s, %s" % (v(GA[0]), v(GA[0]), v(GA[1])))
    A("  v_mov_b32_dpp %s, %s row_shl:4 row_mask:0xf bank_mask:0xf" % (v(GA[1]), v(GA[0])))
    A("  v_cvt_pk_bf16_f32 %s, %s, %s" % (v(GA[2]), v(GA[0]), v(GA[1])))
    for t in range(4): A("  v_readlane_b32 s%d, %s, %d" % (44 + t, v(GA[2]), 8 * t))
    for t in range(4):
        for e in range(8):
            if t == 0: A("  v_dot2_f32_bf16 %s, s44, %s, 0" % (v(B8[e]), v(W4 + e)))
            else: A("  v_dot2c_f32_bf16 %s, s%d, %s" % (v(B8[e]), 44 + t, v(W4 + 8 * t + e)))
    stamp("t")
    A("  ds_write_b128 %s, %s offset:8192" % (v(aLw), v(B8[0], 4)))
    A("  ds_write_b128 %s, %s offset:8208" % (v(aLw), v(B8[4], 4)))
    A("  v_add_u32 %s, %d, %s" % (v(aSP), PB - PA, v(aSP)))
    A("  s_waitcnt lgkmcnt(0)\n  s_barrier")
    read8(O8, aLr, aLr2, 32)
    A("  s_waitcnt lgkmcnt(0)")
    sum8(O8)
    A("  v_bfi_b32 %s, %s, %s, %s" % (v(O8), s(sFF), v(vT8), v(O8)))
    hstore("global_store_dword %s, %s, s[12:13]" % (v(aSP), v(O8)))
    stamp("u")
    A("L_hB0:")
    A("  s_cmp_lg_u32 %s, 0\n  s_cbranch_scc1 L_end" % s(sWave))
    A("  v_add_u32 %s, %d, %s" % (v(aPA), PB - PA, v(aPA)))
    A("L_hB:")
    for k in range(8): A("  v_mov_b32 %s, %s" % (v(A8[k]), v(vT8)))
    A("  s_mov_b32 exec_hi, 0xffffff")
    A("  global_load_dwordx4 %s, %s, s[12:13] sc1" % (v(A8[0], 4), v(aPA)))
    A("  global_load_dwordx4 %s, %s, s[12:13] offset:16 sc1" % (v(A8[4], 4), v(aPA)))
    A("  s_mov_b64 exec, -1")
    A("  s_waitcnt vmcnt(0)")
    chk_clean(A8, T[8], sT8, s(sFF))
    poll_end("L_hB")
    stamp(10)
    red16(A8)
    round_bf16(A8[1], A8[1])
    A("  v_add_f32 %s, %s, %s" % (v(A8[1]), v(vXres), v(A8[1])))
    if P["err"]:
        A("  v_mul_f32 %s, 0x%08x, %s" % (v(A8[1]), struct.unpack("<I", struct.pack("<f", 1.0 + P["err"] / 1000.0))[0], v(A8[1])))
    A("  v_mov_b32_dpp %s, %s row_ror:8 row_mask:0xf bank_mask:0xf" % (v(A8[2]), v(A8[1])))
    A("  v_cvt_pk_bf16_f32 %s, %s, %s" % (v(A8[0]), v(A8[1]), v(A8[2])))
    setexec(0x0003000300030003)
    A("  global_store_dword %s, %s, s[62:63]" % (v(T[17]), v(A8[0])))
    A("  s_mov_b64 exec, 1")
    A("  s_cmp_lg_u32 %s, 0\n  s_cbranch_scc1 L_noepoch" % s(sJ))
    A("  v_mov_b32 %s, %d\n  v_mov_b32 %s, %s" % (v(A8[5]), EPOCH, v(A8[6]), s(sTag)))
    A("  global_store_dword %s, %s, s[12:13]" % (v(A8[5]), v(A8[6])))
    A("L_noepoch:")
    A("  s_mov_b64 exec, -1")
    stamp(11)
    A("L_end:")
    if SLIST:
        A("  s_cmp_lg_u32 %s, %d\n  s_cbranch_scc1 L_done" % (s(sWave), P["sw"]))
        A("  s_waitcnt vmcnt(0)")
        stamp(12)
        A("  s_waitcnt lgkmcnt(0)")
        ns = len(SLIST)
        if P["dbgwg"] >= 0:
            A("  s_cmp_lg_u32 s2, %d\n  s_cbranch_scc1 L_done" % P["dbgwg"])
            A("  s_load_dwordx2 s[12:13], s[0:1], 80\n  s_waitcnt lgkmcnt(0)")
            A("  v_mov_b32 v14, 0\n  s_mov_b64 exec, 1")
            for k in range(ns):
                A("  s_sub_u32 s34, s%d, s68\n  v_mov_b32 v16, s34" % (68 + 2 * k))
                A("  global_store_dword v14, v16, s[12:13] offset:%d" % (4 * k))
            A("  s_waitcnt vmcnt(0)\n  s_branch L_done")
        A("  s_add_u32 s12, s12, 0x10000000\n  s_addc_u32 s13, s13, 0")
        A("  s_mul_i32 s34, s2, %d\n  v_mov_b32 v14, s34" % (8 * (ns + 1)))
        A("  s_getreg_b32 s%d, hwreg(HW_REG_XCC_ID)\n  s_getreg_b32 s%d, hwreg(HW_REG_HW_ID)" % (68 + 2 * ns, 69 + 2 * ns))
        A("  s_mov_b64 exec, 1")
        for k in range(ns + 1):
            A("  v_mov_b32 v16, s%d\n  v_mov_b32 v17, s%d" % (68 + 2 * k, 69 + 2 * k))
            A("  global_store_dwordx2 v14, v[16:17], s[12:13] offset:%d" % (8 * k))
        A("  s_waitcnt vmcnt(0)")
    A("L_done:\n  s_endpgm")
    for blk in late: A(blk)
    A("L_codeend:")
    body = auto_nop(L)
    out = HEAD + body
    out.append('.section .rodata,"a"\n.p2align 6\n.amdhsa_kernel %s' % NAME)
    out.append("  .amdhsa_next_free_vgpr 256\n  .amdhsa_next_free_sgpr 102\n  .amdhsa_accum_offset 256")
    out.append("  .amdhsa_group_segment_fixed_size 0\n  .amdhsa_kernarg_size 96\n  .amdhsa_user_sgpr_count 2\n  .amdhsa_user_sgpr_kernarg_segment_ptr 1\n  .amdhsa_system_sgpr_workgroup_id_x 1")
    out.append("  .amdhsa_float_denorm_mode_32 3\n.end_amdhsa_kernel")
    return "\n".join(out) + "\n"

if __name__ == "__main__":
    kw = {}
    for kv in sys.argv[2:]:
        k, val = kv.split("=")
        if k == "stamps": pass
        elif val.lstrip("-").isdigit(): val = int(val)
        else: val = val.replace("+", " ").replace("none", "")
        kw[k] = val
    open(sys.argv[1], "w").write(gen(**kw))
```

```python
import re

TRANS = ("v_exp_f32", "v_log_f32", "v_rcp_f32", "v_rsq_f32", "v_sqrt_f32", "v_sin_f32", "v_cos_f32")

def parse_regs(tok):
    tok = tok.strip()
    tok = tok.lstrip("-")
    if tok.startswith("abs(") or tok.startswith("|"):
        tok = tok.replace("abs(", "").replace(")", "").replace("|", "")
    m = re.fullmatch(r"([vsa])(\d+)", tok)
    if m:
        return [(m.group(1), int(m.group(2)))]
    m = re.fullmatch(r"([vsa])\[(\d+):(\d+)\]", tok)
    if m:
        return [(m.group(1), i) for i in range(int(m.group(2)), int(m.group(3)) + 1)]
    if tok == "vcc":
        return [("s", 106), ("s", 107)]
    if tok == "vcc_lo":
        return [("s", 106)]
    if tok == "vcc_hi":
        return [("s", 107)]
    if tok == "exec":
        return [("s", 126), ("s", 127)]
    if tok == "m0":
        return [("s", 124)]
    return []

class Ins:
    def __init__(self, text):
        self.text = text
        t = text.split(";")[0].strip()
        self.is_label = t.endswith(":")
        self.is_dir = t.startswith(".")
        self.op = ""
        self.ops = []
        self.mods = ""
        if not t or self.is_label or self.is_dir:
            return
        parts = t.split(None, 1)
        self.op = parts[0]
        rest = parts[1] if len(parts) > 1 else ""
        ops = []; cur = ""; depth = 0
        for ch in rest:
            if ch == "[": depth += 1
            if ch == "]": depth -= 1
            if ch == "," and depth == 0:
                ops.append(cur.strip()); cur = ""
            else:
                cur += ch
        if cur.strip(): ops.append(cur.strip())
        if ops:
            last = ops[-1].split(None, 1)
            ops[-1] = last[0]
            self.mods = last[1] if len(last) > 1 else ""
        self.ops = ops
        self.classify()
    def classify(self):
        op = self.op
        self.valu = op.startswith("v_")
        self.mfma = op.startswith("v_mfma") or op.startswith("v_smfmac")
        self.smf = op.startswith("v_smfmac")
        self.dot = op.startswith("v_dot")
        self.trans = any(op.startswith(x) for x in TRANS)
        self.dpp = ("_dpp" in op) or any(k in self.mods for k in ("row_", "quad_perm", "wave_"))
        self.permlane = op.startswith("v_permlane")
        self.readlane = op.startswith("v_readlane") or op.startswith("v_readfirstlane")
        self.salu = op.startswith("s_")
        self.ds = op.startswith("ds_")
        self.vmem = op.startswith("buffer_") or op.startswith("global_")
        W = []; R = []
        o = [parse_regs(x) for x in self.ops]
        if self.valu:
            if op.startswith("v_cmp"):
                W = o[0]; R = sum(o[1:], [])
            elif self.permlane:
                W = o[0] + o[1]; R = o[0] + o[1]
            elif op.startswith("v_add_co") or op.startswith("v_addc_co") or op.startswith("v_sub_co"):
                W = o[0] + o[1]; R = sum(o[2:], [])
            else:
                W = o[0]; R = sum(o[1:], [])
                if self.smf or op.startswith("v_fmac") or op.startswith("v_dot2c") or op.startswith("v_writelane") or (self.dpp and ("bank_mask" in self.mods or "row_mask" in self.mods)):
                    R = R + o[0]
                if op.startswith("v_cndmask") and len(self.ops) == 3:
                    R = R + [("s", 106), ("s", 107)]
        elif self.ds:
            if op.startswith("ds_read") or op.startswith("ds_bpermute") or "rtn" in op:
                W = o[0]; R = sum(o[1:], [])
            else:
                R = sum(o, [])
        elif self.vmem:
            if "lds" in self.mods.split() or "_lds_" in op:
                R = sum(o, []) + [("s", 124)]
            elif "load" in op:
                W = o[0]; R = sum(o[1:], [])
            elif "atomic" in op and "sc0" in self.mods.split():
                W = o[0]; R = sum(o[1:], [])
            else:
                R = sum(o, [])
        elif self.salu:
            if op.startswith("s_cmp") or op.startswith("s_cbranch") or op in ("s_waitcnt", "s_nop", "s_barrier", "s_branch", "s_endpgm", "s_sleep", "s_setprio"):
                R = sum(o, [])
            else:
                W = o[0] if o else []; R = sum(o[1:], [])
        self.W = set(W); self.R = set(R)
    def states(self):
        if self.op == "s_nop":
            return int(self.ops[0]) + 1
        return 1

def mfma_passes(op):
    if "32x32" in op: return 8
    if "16x16" in op: return 4
    if "4x4" in op: return 2
    raise ValueError(op)

def required(prod, cons):
    need = 0
    pW = prod.W
    vW = {r for r in pW if r[0] in "va"}
    sW = {r for r in pW if r[0] == "s"}
    if prod.valu and not prod.mfma:
        if cons.valu and cons.dpp and (vW & cons.R): need = max(need, 2)
        if cons.permlane and (vW & cons.R): need = max(need, 2)
        if cons.readlane and (vW & cons.R): need = max(need, 1)
        if cons.mfma and (vW & cons.R): need = max(need, 2)
        if prod.trans and cons.valu and not cons.trans and (vW & cons.R): need = max(need, 1)
        if prod.trans and (cons.vmem or cons.ds) and (vW & cons.R): need = max(need, 1)
        if prod.dot and cons.valu:
            if cons.op == prod.op:
                ab = set(sum([parse_regs(x) for x in cons.ops[1:3]], []))
                if vW & ab: need = max(need, 3)
            elif vW & (cons.R | cons.W): need = max(need, 3)
        if prod.dot and (cons.vmem or cons.ds) and (vW & cons.R): need = max(need, 3)
        if sW:
            if cons.valu and (sW & cons.R):
                need = max(need, 4 if (cons.op.startswith("v_readlane") or cons.op.startswith("v_writelane")) else 2)
            if cons.vmem and (sW & cons.R): need = max(need, 5)
            if cons.salu and (sW & cons.R): need = max(need, 1)
        if "sdwa" in prod.op or "op_sel" in prod.mods:
            if cons.valu and (vW & cons.R): need = max(need, 1)
    if prod.mfma:
        p = mfma_passes(prod.op)
        tab_other = {2: 5, 4: 8, 8: 12}[p]
        D = prod.W
        if cons.mfma:
            ab = set(sum([parse_regs(x) for x in (cons.ops[1:4] if cons.smf else cons.ops[1:3])], []))
            c = set(parse_regs(cons.ops[0 if cons.smf else 3]))
            if D & ab: need = max(need, tab_other)
            if D & c:
                if c == D and mfma_passes(cons.op) == p: need = max(need, 2 if p == 2 else 0)
                else: need = max(need, {2: 4, 4: 6, 8: 10}[p])
            elif D & cons.W:
                need = max(need, tab_other)
        elif (cons.valu or cons.ds or cons.vmem) and (D & (cons.R | cons.W)):
            need = max(need, tab_other)
        c = set(parse_regs(prod.ops[0 if prod.smf else 3]))
        if cons.valu and not cons.mfma and (c & cons.W): need = max(need, {2: 1, 4: 3, 8: 7}[p])
    if prod.salu and ("s", 124) in pW and cons.vmem and ("s", 124) in cons.R:
        need = max(need, 1)
    if prod.vmem and "store" in prod.op and ("x4" in prod.op or "x3" in prod.op):
        data = set(sum([parse_regs(x) for x in prod.ops], []))
        if (cons.valu or cons.vmem or cons.ds) and ({r for r in data if r[0] == "v"} & cons.W): need = max(need, 2)
    return need

def auto_nop(lines, window=14):
    out = []
    for text in lines:
        for t in text.split("\n"):
            ins = Ins(t)
            if ins.op:
                dist = 0; pad = 0
                for prev in reversed(out):
                    if not prev.op:
                        continue
                    need = required(prev, ins)
                    if need > dist:
                        pad = max(pad, need - dist)
                    dist += prev.states()
                    if dist >= window: break
                while pad > 0:
                    k = min(pad, 16)
                    out.append(Ins("  s_nop %d" % (k - 1)))
                    pad -= k
            out.append(ins)
    return [i.text for i in out]
```

```python
import sys, struct
from asmlib import auto_nop
NAME = "sequential_preLN__gqa_block_cached__glu_gated_swiglu__decode_kernel"

DEF = dict(X=133, W=1, early=0, PW=4, stamps="", wqflag="nt", wflag="nt", kvflag="nt", spin=400000, gtrig=3,
           psleep=1, codepf=1, err=0, forceslow=0, sw=0, ordbar=1, k1early=1, dbgwg=-1, pf2=5, gthr=24, smemq=1, extraV=0, deepV=0, nA=1, NR=0, S=24, p1bf=1, npoll=1, npoll1=1, scflag="sc1 nt", diag=0, noq=0, notrans=0, h1sleep=3, paced=1, pw=3, palay=1, red2=1)

EPOCH = 0; QG = 0x100000; ML = 0x8000; REG = 0xC000; R3 = 0xD000; P1 = 0x20000; PA = 0xA0000; PB = 0xB0000; PC = 0xE000; SG = 0x200000
SC = 131072; QL = SC + 8 * 2560; MLT = QL + 1024; FT = MLT + 256; FLAG = FT + 128; TK = FLAG + 16; OL = RED0_ = 153088; HL = OL + 256; RED0 = 153088; LDS_TOTAL = RED0 + 2048
LOG2E = "0x3fb8aa3b"; SCALE = "0x3db504f3"; EPS = "0x3727c5ac"; INV512 = "0x3b000000"

vLane = 1; vL16 = 2; vKd = [3, 4, 5, 6]; vVd = 7; vKrd = 8; vVrd = 9; vSb = 10; vSr = 11; vXres = 12; vT8 = 13
T = list(range(14, 32))
F = 32
ACC = 48
U = list(range(80, 96))
W2 = 96; W3A = 160; W3B = 192; W4 = 224
sWave = 3; sG = 18; sI = 19; sTail = 20; sJ = 21; sCnt1 = 22; sCnt2 = 23; sOff = 24; sOff0 = 25; sSlotC = 26; sSlotI = 27
sWB = 28; sTag = 29; sT8 = 30; sSpin = 31; sDone = 40; sFast = 41; sTrig = 42; sXcc = 43
sSelLo = 37; sSelHi = 38; sFF = 39; sF = [16, 17, 55, 54]; sTk = 33; sOffX = 40; sThr = 15; sPT = 46; sPH = 47
vTkA = 30; vTk = 31; vOne = 95; vMx = 29

def v(i, n=1): return "v%d" % i if n == 1 else "v[%d:%d]" % (i, i + n - 1)
def s(i, n=1): return "s%d" % i if n == 1 else "s[%d:%d]" % (i, i + n - 1)

def gen(**kw):
    P = dict(DEF); P.update(kw)
    X = P["X"]; Y = 1024 - 7 * X; W = P["W"]
    assert 0 < Y <= X and (X + 7) // 8 <= 20 and Y >= 8 * 5
    L = []; A = L.append
    late = []
    SLIST = P["stamps"].split(",") if P["stamps"] else []
    def stamp(k):
        k = str(k)
        if k in SLIST:
            A("  s_memrealtime %s" % s(68 + 2 * SLIST.index(k), 2))
        if k + "c" in SLIST:
            A("  s_memtime %s" % s(68 + 2 * SLIST.index(k + "c"), 2))
    def setexec(mask):
        if mask == -1:
            A("  s_mov_b64 exec, -1")
        else:
            lo = mask & 0xffffffff; hi = mask >> 32
            A("  s_mov_b32 exec_lo, 0x%x\n  s_mov_b32 exec_hi, 0x%x" % (lo, hi))
    def round_bf16(dst, src):
        A("  v_cvt_pk_bf16_f32 %s, %s, %s" % (v(dst), v(src), v(src)))
        A("  v_and_b32 %s, 0xffff0000, %s" % (v(dst), v(dst)))
    def unpack(lo, hi, src):
        A("  v_lshlrev_b32 %s, 16, %s" % (v(lo), v(src)))
        A("  v_and_b32 %s, 0xffff0000, %s" % (v(hi), v(src)))
    def dpp(op, d, a, b, ctrl, rm="0xf", bm="0xf"):
        A("  %s_dpp %s, %s, %s %s row_mask:%s bank_mask:%s" % (op, v(d), v(a), v(b), ctrl, rm, bm))
    def bfly_hi(op, x, t):
        A("  v_mov_b32 %s, %s" % (v(t), v(x)))
        A("  v_permlane16_swap_b32 %s, %s" % (v(x), v(t)))
        A("  %s %s, %s, %s" % (op, v(x), v(x), v(t)))
        A("  v_mov_b32 %s, %s" % (v(t), v(x)))
        A("  v_permlane32_swap_b32 %s, %s" % (v(x), v(t)))
        A("  %s %s, %s, %s" % (op, v(x), v(x), v(t)))
    def allred_b2345(op, x, t):
        dpp(op, x, x, x, "row_ror:4")
        dpp(op, x, x, x, "row_ror:8")
        bfly_hi(op, x, t)
    def red345(a):
        for e in range(4): A("  v_permlane32_swap_b32 %s, %s" % (v(a[e]), v(a[e + 4])))
        for e in range(4): A("  v_add_f32 %s, %s, %s" % (v(a[e]), v(a[e]), v(a[e + 4])))
        for e in range(2): A("  v_permlane16_swap_b32 %s, %s" % (v(a[e]), v(a[e + 2])))
        for e in range(2): A("  v_add_f32 %s, %s, %s" % (v(a[e]), v(a[e]), v(a[e + 2])))
        dpp("v_add_f32", a[2], a[0], a[0], "row_ror:8", bm="0x3")
        dpp("v_add_f32", a[2], a[1], a[1], "row_ror:8", bm="0xc")
    def red16(a):
        red345(a)
        dpp("v_add_f32", a[0], a[2], a[2], "row_shl:4")
        dpp("v_add_f32", a[1], a[0], a[0], "quad_perm:[2,3,0,1]")
    def red16p(a, dst):
        for e in range(4): A("  v_permlane32_swap_b32 %s, %s" % (v(a[e]), v(a[e + 4])))
        for e in range(4): A("  v_add_f32 %s, %s, %s" % (v(a[e]), v(a[e]), v(a[e + 4])))
        for e in range(2): A("  v_permlane16_swap_b32 %s, %s" % (v(a[e]), v(a[e + 2])))
        for e in range(2): A("  v_add_f32 %s, %s, %s" % (v(a[e]), v(a[e]), v(a[e + 2])))
        for ctrl in ("row_ror:8", "row_shl:4", "quad_perm:[2,3,0,1]"):
            for e in range(2): dpp("v_add_f32", a[e], a[e], a[e], ctrl)
        A("  v_cvt_pk_bf16_f32 %s, %s, %s" % (v(dst), v(a[0]), v(a[1])))
    def sum8(q):
        A("  v_pk_add_f32 %s, %s, %s" % (v(q, 2), v(q, 2), v(q + 2, 2)))
        A("  v_pk_add_f32 %s, %s, %s" % (v(q + 4, 2), v(q + 4, 2), v(q + 6, 2)))
        A("  v_pk_add_f32 %s, %s, %s" % (v(q, 2), v(q, 2), v(q + 4, 2)))
        A("  v_add_f32 %s, %s, %s" % (v(q), v(q), v(q + 1)))
    def ln_stats(f, d, vMean, vSd, vR):
        A("  v_readfirstlane_b32 s36, %s" % v(f[0]))
        s1 = d[0]; s2 = d[1]; t = d[2]; t2 = d[3]
        A("  v_subrev_f32 %s, s36, %s" % (v(s1), v(f[1])))
        A("  v_subrev_f32 %s, s36, %s" % (v(t), v(f[0])))
        A("  v_mul_f32 %s, %s, %s" % (v(s2), v(s1), v(s1)))
        A("  v_add_f32 %s, %s, %s" % (v(s1), v(s1), v(t)))
        A("  v_fmac_f32 %s, %s, %s" % (v(s2), v(t), v(t)))
        for k in range(2, 8):
            tt = t if k % 2 else t2
            A("  v_subrev_f32 %s, s36, %s" % (v(tt), v(f[k])))
            A("  v_add_f32 %s, %s, %s" % (v(s1), v(s1), v(tt)))
            A("  v_fmac_f32 %s, %s, %s" % (v(s2), v(tt), v(tt)))
        for ctrl, rm in (("quad_perm:[1,0,3,2]", "0xf"), ("quad_perm:[2,3,0,1]", "0xf"), ("row_half_mirror", "0xf"),
                         ("row_mirror", "0xf"), ("row_bcast:15", "0xa"), ("row_bcast:31", "0xc")):
            dpp("v_add_f32", s1, s1, s1, ctrl, rm=rm)
            dpp("v_add_f32", s2, s2, s2, ctrl, rm=rm)
        A("  v_readlane_b32 s32, %s, 63" % v(s1))
        A("  v_readlane_b32 s33, %s, 63" % v(s2))
        A("  v_mov_b32 %s, %s" % (v(t), INV512))
        A("  v_mul_f32 %s, s32, %s" % (v(s1), v(t)))
        A("  v_mul_f32 %s, s33, %s" % (v(s2), v(t)))
        A("  v_add_f32 %s, s36, %s" % (v(vMean), v(s1)))
        A("  v_fma_f32 %s, -%s, %s, %s" % (v(s2), v(s1), v(s1), v(s2)))
        A("  v_max_f32 %s, 0, %s" % (v(s2), v(s2)))
        A("  v_cvt_pk_bf16_f32 %s, %s, %s" % (v(t), v(vMean), v(s2)))
        A("  v_lshlrev_b32 %s, 16, %s" % (v(vMean), v(t)))
        A("  v_and_b32 %s, 0xffff0000, %s" % (v(s2), v(t)))
        A("  v_add_f32 %s, %s, %s" % (v(s2), EPS, v(s2)))
        round_bf16(s2, s2)
        A("  v_sqrt_f32 %s, %s" % (v(s2), v(s2)))
        round_bf16(vSd, s2)
        A("  v_rcp_f32 %s, %s" % (v(vR), v(vSd)))
    def ln_apply(dst, flo, fhi, vMean, vSd, vR, t, newton):
        A("  v_sub_f32 %s, %s, %s" % (v(flo), v(flo), v(vMean)))
        A("  v_sub_f32 %s, %s, %s" % (v(fhi), v(fhi), v(vMean)))
        A("  v_cvt_pk_bf16_f32 %s, %s, %s" % (v(dst), v(flo), v(fhi)))
        unpack(flo, fhi, dst)
        if newton:
            A("  v_mul_f32 %s, %s, %s" % (v(t[0]), v(flo), v(vR)))
            A("  v_mul_f32 %s, %s, %s" % (v(t[1]), v(fhi), v(vR)))
            A("  v_fma_f32 %s, -%s, %s, %s" % (v(flo), v(t[0]), v(vSd), v(flo)))
            A("  v_fma_f32 %s, -%s, %s, %s" % (v(fhi), v(t[1]), v(vSd), v(fhi)))
            A("  v_fma_f32 %s, %s, %s, %s" % (v(flo), v(flo), v(vR), v(t[0])))
            A("  v_fma_f32 %s, %s, %s, %s" % (v(fhi), v(fhi), v(vR), v(t[1])))
        else:
            A("  v_mul_f32 %s, %s, %s" % (v(flo), v(flo), v(vR)))
            A("  v_mul_f32 %s, %s, %s" % (v(fhi), v(fhi), v(vR)))
        A("  v_cvt_pk_bf16_f32 %s, %s, %s" % (v(dst), v(flo), v(fhi)))
    def next_slot(r):
        A("  s_add_u32 %s, %s, 4096\n  s_and_b32 %s, %s, 0x3fff\n  s_or_b32 %s, %s, %s" % (s(r), s(r), s(r), s(r), s(r), s(r), s(sWB)))
    def issueK():
        A("  s_mov_b32 m0, %s" % s(sSlotI))
        for g in range(4):
            A("  buffer_load_dwordx4 %s, s[4:7], %s offen offset:%d %s lds" % (v(vKd[g]), s(sOff), g * 1024, P["kvflag"]))
        A("  s_add_u32 %s, %s, 32768" % (s(sOff), s(sOff)))
        next_slot(sSlotI)
    def issueV():
        A("  s_mov_b32 m0, %s" % s(sSlotI))
        for g in range(4):
            A("  buffer_load_dwordx4 %s, s[8:11], %s offen offset:%d %s lds" % (v(vVd), s(sOff), g * 1024, P["kvflag"]))
        A("  s_add_u32 %s, %s, 32768" % (s(sOff), s(sOff)))
        next_slot(sSlotI)
    RT = 112
    NR = P["NR"]
    def issueR(r):
        for g in range(4):
            A("  buffer_load_dwordx4 %s, %s, s[4:7], %s offen offset:%d %s" % (v(RT + 16 * r + 4 * g, 4), v(vKd[g]), s(sOff), g * 1024, P["kvflag"]))
        A("  s_add_u32 %s, %s, 32768" % (s(sOff), s(sOff)))
    nslow = [0]
    def hstore(text):
        k = nslow[0]; nslow[0] += 1
        A("  s_cmp_eq_u32 %s, 1" % s(sFast))
        A("  s_cbranch_scc0 L_slow%d" % k)
        A("  " + text)
        A("L_slowret%d:" % k)
        late.append("L_slow%d:\n  %s sc1\n  s_branch L_slowret%d" % (k, text, k))
    def poll_end(label):
        A("  s_cbranch_scc1 %s_ok" % label)
        if P["psleep"]: A("  s_sleep %d" % P["psleep"])
        A("  s_sub_u32 %s, %s, 1" % (s(sSpin), s(sSpin)))
        A("  s_cmp_lg_u32 %s, 0" % s(sSpin))
        A("  s_cbranch_scc1 %s" % label)
        A("  s_mov_b32 %s, 1" % s(sSpin))
        A("%s_ok:" % label)
    def chk_tag(regs, t, stag, mask=None):
        A("  v_xor_b32 %s, %s, %s" % (v(t), s(stag), v(regs[0])))
        for r in regs[1:]: A("  v_bitop3_b32 %s, %s, %s, %s bitop3:0xf6" % (v(t), v(t), v(r), s(stag)))
        if mask: A("  v_and_b32 %s, %s, %s" % (v(t), mask, v(t)))
        A("  v_cmp_eq_u32 vcc, 0, %s" % v(t))
        A("  s_cmp_eq_u64 vcc, -1")
    def chk_clean(regs, t, stag, mask):
        for r in regs: A("  v_xor_b32 %s, %s, %s" % (v(r), s(stag), v(r)))
        if len(regs) == 8:
            A("  v_or3_b32 %s, %s, %s, %s" % (v(t), v(regs[0]), v(regs[1]), v(regs[2])))
            A("  v_or3_b32 %s, %s, %s, %s" % (v(t + 1), v(regs[3]), v(regs[4]), v(regs[5])))
            A("  v_or3_b32 %s, %s, %s, %s" % (v(t), v(t), v(regs[6]), v(regs[7])))
            A("  v_bitop3_b32 %s, %s, %s, %s bitop3:0xa8" % (v(t), v(t), v(t + 1), mask))
        else:
            A("  v_or3_b32 %s, %s, %s, %s" % (v(t), v(regs[0]), v(regs[1]), v(regs[2])))
            A("  v_bitop3_b32 %s, %s, %s, %s bitop3:0xa8" % (v(t), v(t), v(regs[3]), mask))
        A("  v_cmp_eq_u32 vcc, 0, %s" % v(t))
        A("  s_cmp_eq_u64 vcc, -1")
    def chk_clean2(dst, src, t, stag, mask):
        for d_, r in zip(dst, src): A("  v_xor_b32 %s, %s, %s" % (v(d_), s(stag), v(r)))
        A("  v_or3_b32 %s, %s, %s, %s" % (v(t), v(dst[0]), v(dst[1]), v(dst[2])))
        A("  v_or3_b32 %s, %s, %s, %s" % (v(t + 1), v(dst[3]), v(dst[4]), v(dst[5])))
        A("  v_or3_b32 %s, %s, %s, %s" % (v(t), v(t), v(dst[6]), v(dst[7])))
        A("  v_bitop3_b32 %s, %s, %s, %s bitop3:0xa8" % (v(t), v(t), v(t + 1), mask))
        A("  v_cmp_eq_u32 vcc, 0, %s" % v(t))
        A("  s_cmp_eq_u64 vcc, -1")
    def poll_pipe(label, nsets, nld, load, check, preissued=0, sleep=0):
        for k in range(preissued, nsets): load(k)
        A("%s:" % label)
        for k in range(nsets):
            A("  s_waitcnt vmcnt(%d)" % (nld * (nsets - 1)))
            check(k)
            A("  s_cbranch_scc1 %s_ok" % label)
            if sleep: A("  s_sleep %d" % sleep)
            load(k)
        A("  s_sub_u32 %s, %s, 1" % (s(sSpin), s(sSpin)))
        A("  s_cmp_lg_u32 %s, 0" % s(sSpin))
        A("  s_cbranch_scc1 %s" % label)
        A("  s_mov_b32 %s, 1" % s(sSpin))
        A("%s_ok:" % label)
    def wperm(dst, tb, n=2):
        for h in range(n):
            for c in range(4):
                A("  v_perm_b32 %s, %s, %s, %s" % (v(dst + 8 * h + 2 * c), v(tb + 8 * h + 4 + c), v(tb + 8 * h + c), s(sSelLo)))
                A("  v_perm_b32 %s, %s, %s, %s" % (v(dst + 8 * h + 2 * c + 1), v(tb + 8 * h + 4 + c), v(tb + 8 * h + c), s(sSelHi)))

    hdr = open("cdna_kernels/%s.s.ref" % NAME.replace("_kernel", "")).read().split("\n")
    for h in hdr:
        if h.startswith(";") and "@launch" not in h and "Override" not in h and "grid=ceil" not in h: A(h)
    A("; @launch grid=(256,1,1) block=(512,1,1) lds=%d" % LDS_TOTAL)
    A('.amdgcn_target "amdgcn-amd-amdhsa--gfx950"')
    A(".text\n.globl %s\n.p2align 8\n.type %s,@function\n%s:" % (NAME, NAME, NAME))
    HEAD = L; L = []; A = L.append
    stamp(0)
    A("  s_cmp_ge_u32 s2, 256\n  s_cbranch_scc1 L_done")
    A("  s_load_dwordx8 s[44:51], s[0:1], 0")
    A("  s_load_dwordx2 s[12:13], s[0:1], 88")
    A("  s_load_dwordx2 s[52:53], s[0:1], 32")
    A("  s_load_dwordx8 s[56:63], s[0:1], 48")
    if P["codepf"]:
        A("  s_getpc_b64 s[16:17]")
        A("L_pc:")
        A("  s_sub_u32 s16, s16, L_pc-%s\n  s_subb_u32 s17, s17, 0" % NAME)
        A("  v_lshlrev_b32 %s, 4, v0" % v(T[9]))
        A("  global_load_dwordx4 %s, %s, s[16:17]" % (v(U[8], 4), v(T[9])))
        A("  v_add_u32 %s, 0x2000, %s" % (v(T[9]), v(T[9])))
        A("  v_min_u32 %s, L_codeend-%s-16, %s" % (v(T[9]), NAME, v(T[9])))
        A("  global_load_dwordx4 %s, %s, s[16:17]" % (v(U[12], 4), v(T[9])))
    A("  v_and_b32 %s, 63, v0" % v(vLane))
    A("  v_lshrrev_b32 %s, 6, v0" % v(T[0]))
    A("  v_readfirstlane_b32 %s, %s" % (s(sWave), v(T[0])))
    A("  v_lshlrev_b32 %s, 4, %s" % (v(vL16), v(vLane)))
    A("  s_lshr_b32 %s, s2, 5\n  s_and_b32 %s, s2, 31\n  s_lshr_b32 %s, s2, 3" % (s(sG), s(sI), s(sJ)))
    A("  s_and_b32 s32, s2, 7\n  s_cmp_eq_u32 s32, 0\n  s_cselect_b32 %s, 1, 0" % s(sTail))
    A("  s_movk_i32 s33, %d\n  s_cselect_b32 s33, %d, s33" % (X, Y))
    A("  v_lshrrev_b32 %s, 3, %s" % (v(T[3]), v(vLane)))
    A("  v_and_b32 %s, 7, %s" % (v(T[4]), v(vLane)))
    A("  s_lshr_b32 s35, %s, 3\n  s_lshl_b32 s34, s35, 6\n  s_lshl_b32 s36, %s, 3\n  s_add_u32 s34, s34, s36" % (s(sI), s(sWave)))
    A("  v_add_u32 %s, s34, %s" % (v(T[2]), v(T[3])))
    A("  v_lshlrev_b32 %s, 14, %s" % (v(T[1]), v(T[2])))
    A("  v_lshl_add_u32 %s, %s, 4, %s" % (v(T[1]), v(T[4]), v(T[1])))
    A("  v_lshlrev_b32 %s, 2, %s" % (v(T[2]), v(T[2])))
    A("  s_lshl_b32 s34, %s, 10\n  s_lshl_b32 s36, s32, 7\n  s_add_u32 s34, s34, s36" % s(sG))
    A("  v_add_u32 %s, s34, %s" % (v(T[1]), v(T[1])))
    A("  v_add_u32 %s, 0x2000, %s" % (v(T[5]), v(T[1])))
    A("  s_lshl_b32 s54, %s, 14\n  s_lshl_b32 s35, s35, 12\n  s_add_u32 s54, s54, s35\n  s_lshl_b32 s35, s32, 9\n  s_add_u32 s54, s54, s35\n  s_add_u32 s54, s54, %d" % (s(sG), QG))
    A("  v_lshrrev_b32 %s, 4, %s" % (v(T[6]), v(vLane)))
    A("  v_and_b32 %s, 15, %s" % (v(T[7]), v(vLane)))
    A("  v_xor_b32 %s, %s, %s" % (v(T[8]), v(T[6]), v(T[7])))
    A("  v_lshlrev_b32 %s, 4, %s" % (v(T[8]), v(T[8])))
    A("  v_lshl_add_u32 %s, %s, 8, %s" % (v(vKd[0]), v(T[6]), v(T[8])))
    for g in range(1, 4): A("  v_xor_b32 %s, %d, %s" % (v(vKd[g]), 64 * g, v(vKd[0])))
    E = X - 128
    assert Y == 128 - 7 * E
    A("  s_lshl_b32 s34, s2, 19\n  s_cmp_eq_u32 %s, 1\n  s_cselect_b32 %s, 0, %d" % (s(sTail), s(sThr), E))
    A("  s_mov_b32 s35, %d\n  s_cselect_b32 s35, %d, s35\n  s_add_u32 %s, s34, s35" % ((-E * 4096) & 0xffffffff, (128 - Y) * 4096, s(sOff0)))
    A("  s_andn2_b32 s34, s2, 7\n  s_lshl_b32 s34, s34, 19\n  s_mul_i32 s35, s32, %d\n  s_add_u32 s34, s34, s35\n  s_add_u32 %s, s34, %d" % (E * 4096, s(sOffX), (-E * 4096) & 0xffffffff))
    A("  s_mov_b32 %s, s33\n  s_lshl_b32 %s, s33, 1" % (s(sCnt1), s(sCnt2)))
    A("  s_lshl_b32 s34, %s, 12" % s(sWave))
    A("  s_lshl_b32 %s, %s, 14" % (s(sWB), s(sWave)))
    assert E <= 8
    A("  s_cmp_lt_u32 %s, %s\n  s_cselect_b32 s35, %s, %s" % (s(sWave), s(sThr), s(sOffX), s(sOff0)))
    A("  s_mov_b32 %s, %s\n  s_mov_b32 %s, %s\n  s_add_u32 %s, s35, s34" % (s(sSlotC), s(sWB), s(sSlotI), s(sWB), s(sOff)))
    A("  s_add_u32 s55, %s, s34\n  s_add_u32 s55, s55, 32768" % s(sOff0))
    A("  s_mov_b32 s6, 0x8000000\n  s_mov_b32 s7, 0x20000\n  s_mov_b32 s10, 0x8000000\n  s_mov_b32 s11, 0x20000")
    A("  s_waitcnt lgkmcnt(0)")
    stamp("a")
    XD = U[0]; XP = U[4]; WA = F; WB_ = F + 4
    A("  global_load_dwordx4 %s, %s, s[44:45]" % (v(XD, 4), v(vL16)))
    A("  global_load_dword %s, %s, s[44:45]" % (v(XP), v(T[2])))
    A("  global_load_dwordx4 %s, %s, s[50:51] %s" % (v(WA, 4), v(T[1]), P["wqflag"]))
    A("  global_load_dwordx4 %s, %s, s[50:51] %s" % (v(WB_, 4), v(T[5]), P["wqflag"]))
    A("  s_load_dword %s, s[12:13], %d" % (s(sTag), EPOCH))
    A("  s_mov_b32 s4, s46\n  s_and_b32 s5, s47, 0xffff\n  s_mov_b32 s8, s48\n  s_and_b32 s9, s49, 0xffff")
    A("  s_mov_b64 s[50:51], s[44:45]")
    def s3prep():
        A("  s_movk_i32 s34, 3584\n  v_mul_lo_u32 %s, %s, s34" % (v(U[5]), v(T[3])))
        A("  v_lshlrev_b32 %s, 4, %s" % (v(U[6]), v(T[4])))
        A("  s_cmp_lt_u32 %s, 28\n  s_cselect_b32 s66, 1835008, 0\n  s_mov_b32 s67, 0x20000" % s(sJ))
    def s3dma(mat, k0, k1):
        A("  s_mov_b32 s64, s%d\n  s_and_b32 s65, s%d, 0xffff" % (56 + 2 * mat, 57 + 2 * mat))
        A("  s_mul_i32 s34, %s, %d\n  s_lshl_b32 s35, %s, 7\n  s_add_u32 s34, s34, s35\n  s_add_u32 s34, s34, %d" % (s(sWave), 64 * 3584, s(sJ), k0 * 8 * 3584))
        A("  s_lshl_b32 s35, %s, 13\n  s_add_u32 s35, s35, %d" % (s(sWave), mat * 65536 + k0 * 1024))
        for k in range(k0, k1):
            A("  v_xor_b32 %s, %d, %s\n  v_add_u32 %s, %s, %s" % (v(U[7]), 16 * k, v(U[6]), v(U[7]), v(U[5]), v(U[7])))
            A("  s_mov_b32 m0, s35")
            A("  buffer_load_dwordx4 %s, s[64:67], s34 offen %s lds" % (v(U[7]), P["wflag"]))
            A("  s_add_u32 s34, s34, %d\n  s_add_u32 s35, s35, 1024" % (8 * 3584))
    if P["ordbar"]: A("  s_barrier")
    A("  s_cmp_eq_u32 %s, 1\n  s_cbranch_scc1 L_tburst" % s(sTail))
    issueK()
    A("  s_mov_b32 %s, s55" % s(sOff))
    A("L_tburstret:")
    Lsave = L; L = []; A = L.append
    A("L_tburst:")
    s3prep(); s3dma(0, 0, 4)
    A("  s_branch L_tburstret")
    late.append("\n".join(L)); L = Lsave; A = L.append
    A("  v_lshlrev_b32 %s, 8, %s" % (v(vKrd), v(T[7])))
    A("  v_add_u32 %s, %s, %s" % (v(vKrd), v(vKrd), v(T[8])))
    A("  v_lshlrev_b32 %s, 10, %s" % (v(vVrd), v(T[6])))
    A("  v_lshl_add_u32 %s, %s, 3, %s" % (v(vVrd), v(T[7]), v(vVrd)))
    A("  v_bfe_u32 %s, %s, 1, 2" % (v(T[9]), v(vLane)))
    A("  v_lshlrev_b32 %s, 8, %s" % (v(vVd), v(T[9])))
    A("  v_lshl_add_u32 %s, %s, 5, %s" % (v(vVd), v(T[3]), v(vVd)))
    A("  v_and_b32 %s, 1, %s" % (v(T[9]), v(vLane)))
    A("  v_lshl_add_u32 %s, %s, 4, %s" % (v(vVd), v(T[9]), v(vVd)))
    A("  s_mul_i32 s34, %s, 2560\n  s_add_u32 s34, s34, %d" % (s(sWave), SC))
    A("  v_and_b32 %s, 3, %s" % (v(T[9]), v(vLane)))
    A("  v_lshl_add_u32 %s, %s, 2, %s" % (v(T[10]), v(T[6]), v(T[9])))
    A("  v_lshlrev_b32 %s, 3, %s" % (v(T[10]), v(T[10])))
    A("  v_add_u32 %s, %d, %s" % (v(vSb), SC, v(T[10])))
    A("  v_add_u32 %s, s34, %s" % (v(vSr), v(T[10])))
    A("  v_bfe_u32 %s, %s, 2, 2" % (v(T[10]), v(vLane)))
    A("  v_lshl_add_u32 %s, %s, 7, %s" % (v(vSr), v(T[10]), v(vSr)))
    A("  v_mov_b32 %s, %d\n  v_mov_b32 %s, %d" % (v(vTkA), TK, v(vTk), 32 + 8 * NR))
    A("  ds_write_b32 %s, %s" % (v(vTkA), v(vTk)))
    A("  v_mov_b32 %s, 0xff80ff80\n  v_mov_b32 %s, 0xff80ff80" % (v(T[10]), v(T[11])))
    for k in range(5): A("  ds_write_b64 %s, %s offset:%d" % (v(vSr), v(T[10], 2), k * 512))
    A("  v_lshrrev_b32 %s, 5, %s" % (v(T[12]), v(vLane)))
    A("  v_lshlrev_b32 %s, 3, %s" % (v(T[15]), v(T[4])))
    A("  v_lshl_add_u32 %s, %s, 2, %s" % (v(T[15]), v(T[12]), v(T[15])))
    A("  v_bfe_u32 %s, %s, 4, 1" % (v(T[12]), v(vLane)))
    A("  v_lshl_add_u32 %s, %s, 1, %s" % (v(T[15]), v(T[12]), v(T[15])))
    A("  v_bfe_u32 %s, %s, 3, 1" % (v(T[12]), v(vLane)))
    A("  v_add_u32 %s, %s, %s" % (v(T[15]), v(T[12]), v(T[15])))
    A("  s_lshl_b32 s34, %s, 2\n  s_add_u32 s34, s34, %d" % (s(sWave), RED0))
    A("  v_lshl_add_u32 %s, %s, 5, s34" % (v(T[15]), v(T[15])))
    A("  s_mov_b32 %s, 0x05040100\n  s_mov_b32 %s, 0x07060302\n  s_movk_i32 %s, 0xff" % (s(sSelLo), s(sSelHi), s(sFF)))
    A("  s_mov_b32 %s, %d\n  s_mov_b32 %s, 0" % (s(sSpin), P["spin"], s(sFast)))
    A("  s_sub_u32 s34, %s, %d\n  s_cmp_eq_u32 %s, 0\n  s_cselect_b32 %s, s34, -1" % (s(sCnt2), max(P["gthr"], P["deepV"]), s(sWave), s(sTrig)))
    A("  s_getreg_b32 %s, hwreg(HW_REG_XCC_ID, 0, 4)" % s(sXcc))
    stamp("b")
    A("  s_waitcnt vmcnt(7)")
    f = T[0:8]; d = T[8:12]; vMean = T[12]; vSd = T[13]; vR = T[14]
    for k in range(4): unpack(f[2 * k], f[2 * k + 1], XD + k)
    ln_stats(f, d, vMean, vSd, vR)
    A("  s_waitcnt vmcnt(6)")
    unpack(f[0], f[1], XP)
    ln_apply(XP, f[0], f[1], vMean, vSd, vR, [f[2], f[3]], True)
    A("  s_waitcnt vmcnt(4) lgkmcnt(0)")
    stamp("e")
    A("  s_add_u32 %s, %s, 1\n  s_and_b32 %s, %s, 0xff" % (s(sTag), s(sTag), s(sT8), s(sTag)))
    A("  v_mov_b32 %s, %s" % (v(vT8), s(sT8)))
    a = T[0:8]
    wperm(F + 8, F, 1)
    for e in range(8):
        A("  v_dot2_f32_bf16 %s, %s, %s, 0" % (v(a[e]), v(F + 8 + e), v(XP)))
    red345(a)
    A("  ds_write_b32 %s, %s" % (v(T[15]), v(a[2])))
    stamp("f")
    A("  s_waitcnt lgkmcnt(0)\n  s_barrier")
    stamp("g")
    A("  s_cmp_lg_u32 %s, 0\n  s_cbranch_scc1 L_noq" % s(sWave))
    A("  v_lshlrev_b32 %s, 5, %s\n  v_add_u32 %s, %d, %s" % (v(T[0]), v(vLane), v(T[0]), RED0, v(T[0])))
    A("  ds_read_b128 %s, %s" % (v(F, 4), v(T[0])))
    A("  ds_read_b128 %s, %s offset:16" % (v(F + 4, 4), v(T[0])))
    A("  v_lshl_add_u32 %s, %s, 3, s54" % (v(T[1]), v(vLane)))
    A("  s_waitcnt lgkmcnt(0)")
    sum8(F)
    A("  v_mov_b32 %s, %s" % (v(F + 1), s(sTag)))
    A("  global_store_dwordx2 %s, %s, s[12:13] sc1" % (v(T[1]), v(F, 2)))
    if P["p1bf"]:
        A("  v_lshrrev_b32 %s, 4, %s\n  v_and_b32 %s, 15, %s" % (v(T[2]), v(vLane), v(T[3]), v(vLane)))
        A("  s_lshl_b32 s34, %s, 15\n  s_lshl_b32 s35, %s, 8\n  s_add_u32 s34, s34, s35\n  s_add_u32 s34, s34, %d" % (s(sG), s(sI), P1))
        A("  v_lshl_add_u32 %s, %s, 13, s34\n  v_lshl_add_u32 %s, %s, 4, %s" % (v(T[2]), v(T[2]), v(T[2]), v(T[3]), v(T[2])))
        for k in range(4): A("  v_mov_b32 %s, -1" % v(F + 4 + k))
        A("  global_store_dwordx4 %s, %s, s[12:13] sc1" % (v(T[2]), v(F + 4, 4)))
    A("L_noq:")
    A("  s_barrier")
    stamp(1)
    A("  s_lshl_b32 s34, %s, 14\n  s_lshl_b32 s35, %s, 9\n  s_add_u32 s34, s34, s35\n  s_add_u32 s34, s34, %d" % (s(sG), s(sWave), QG))
    A("  v_lshrrev_b32 %s, 4, %s\n  v_and_b32 %s, 15, %s" % (v(T[2]), v(vLane), v(T[3]), v(vLane)))
    A("  v_lshl_add_u32 %s, %s, 12, s34\n  v_lshl_add_u32 %s, %s, 5, %s" % (v(T[0]), v(T[2]), v(T[0]), v(T[3]), v(T[0])))
    A("  s_lshl_b32 s34, %s, 7\n  s_add_u32 s34, s34, %d" % (s(sWave), QL))
    A("  v_lshl_add_u32 %s, %s, 3, s34" % (v(T[1]), v(T[3])))
    A("  v_lshrrev_b32 %s, 1, %s\n  v_and_b32 %s, 1, %s" % (v(T[3]), v(T[2]), v(T[2]), v(T[2])))
    A("  v_lshl_add_u32 %s, %s, 2, %s\n  v_lshl_add_u32 %s, %s, 1, %s" % (v(T[1]), v(T[3]), v(T[1]), v(T[1]), v(T[2]), v(T[1])))
    G0 = U[0]; G1 = U[4]
    GQ = F + 8
    def qpoll_issue():
        A("  global_load_dwordx4 %s, %s, s[12:13] sc1" % (v(GQ, 4), v(T[0])))
        A("  global_load_dwordx4 %s, %s, s[12:13] offset:16 sc1" % (v(GQ + 4, 4), v(T[0])))
    def qpoll_check():
        chk_tag([GQ + 1, GQ + 3, GQ + 5, GQ + 7], T[2], sTag)
    def qwrite():
        G0 = GQ
        for e in range(2): A("  v_permlane32_swap_b32 %s, %s" % (v(G0 + 2 * e), v(G0 + 2 * e + 4)))
        for e in range(2): A("  v_add_f32 %s, %s, %s" % (v(G0 + 2 * e), v(G0 + 2 * e), v(G0 + 2 * e + 4)))
        A("  v_permlane16_swap_b32 %s, %s" % (v(G0), v(G0 + 2)))
        A("  v_add_f32 %s, %s, %s" % (v(G0), v(G0), v(G0 + 2)))
        A("  v_cvt_pk_bf16_f32 %s, %s, %s" % (v(G0), v(G0), v(G0)))
        A("  ds_write_b16 %s, %s" % (v(T[1]), v(G0)))
    Lsave = L; L = []; A = L.append
    A("L_tailpro:")
    A("  s_cmp_lg_u32 %s, 7\n  s_cbranch_scc1 L_noreg" % s(sWave))
    A("  s_lshl_b32 s34, %s, 3\n  s_add_u32 s34, s34, %d" % (s(sJ), REG))
    A("  v_mov_b32 %s, s34\n  v_mov_b32 %s, %s\n  v_mov_b32 %s, %s" % (v(T[9]), v(T[10]), s(sXcc), v(T[11]), s(sTag)))
    A("  s_mov_b64 exec, 1")
    A("  global_store_dwordx2 %s, %s, s[12:13] sc1" % (v(T[9]), v(T[10], 2)))
    A("  s_mov_b64 exec, -1")
    A("L_noreg:")
    s3dma(0, 4, 8)
    A("  s_waitcnt vmcnt(4)")
    s3dma(1, 0, 8)
    A("  s_lshl_b32 s34, %s, 5" % s(sJ))
    A("  v_and_b32 %s, 1, %s\n  v_lshrrev_b32 %s, 5, %s\n  v_lshlrev_b32 %s, 3, %s" % (v(T[5]), v(vLane), v(T[6]), v(vLane), v(T[5]), v(T[5])))
    A("  v_lshl_add_u32 %s, %s, 2, %s\n  v_bfe_u32 %s, %s, 4, 1" % (v(T[5]), v(T[6]), v(T[5]), v(T[6]), v(vLane)))
    A("  v_lshl_add_u32 %s, %s, 1, %s\n  v_bfe_u32 %s, %s, 3, 1" % (v(T[5]), v(T[6]), v(T[5]), v(T[6]), v(vLane)))
    A("  v_add_u32 %s, %s, %s\n  v_lshl_add_u32 %s, %s, 1, s34" % (v(T[5]), v(T[6]), v(T[5]), v(T[5]), v(T[5])))
    A("  global_load_ushort %s, %s, s[50:51]" % (v(vXres), v(T[5])))
    nA = P["nA"]
    vWd = U[13]; vWr = U[14]
    def wprep():
        A("  v_lshrrev_b32 %s, 3, %s\n  v_and_b32 %s, 7, %s" % (v(vWd), v(vLane), v(T[5]), v(vLane)))
        A("  v_lshlrev_b32 %s, 10, %s\n  v_lshl_add_u32 %s, %s, 4, %s" % (v(vWd), v(vWd), v(vWd), v(T[5]), v(vWd)))
        A("  v_bfe_u32 %s, %s, 5, 1\n  v_lshlrev_b32 %s, 4, %s" % (v(T[5]), v(vLane), v(vWr), v(T[5])))
        A("  v_bfe_u32 %s, %s, 4, 1\n  v_lshl_add_u32 %s, %s, 2, %s" % (v(T[5]), v(vLane), v(vWr), v(T[5]), v(vWr)))
        A("  v_bfe_u32 %s, %s, 2, 1\n  v_add_u32 %s, %s, %s" % (v(T[5]), v(vLane), v(vWr), v(T[5]), v(vWr)))
        A("  v_bfe_u32 %s, %s, 3, 1\n  v_lshl_add_u32 %s, %s, 3, %s" % (v(T[5]), v(vLane), v(vWr), v(T[5]), v(vWr)))
        A("  v_lshlrev_b32 %s, 7, %s" % (v(vWr), v(vWr)))
    def wround_issue(k, sslot):
        if k in (0, 4) or k == nA:
            if k < 4:
                A("  s_mov_b32 s64, s52\n  s_and_b32 s65, s53, 0xffff\n  s_mov_b32 s66, 0x400000\n  s_mov_b32 s67, 0x20000")
                A("  s_lshl_b32 s14, %s, 17\n  s_lshl_b32 s35, %s, 7\n  s_add_u32 s14, s14, s35\n  s_add_u32 s14, s14, %d" % (s(sJ), s(sWave), k * 32768))
            else:
                A("  s_mov_b32 s64, s60\n  s_and_b32 s65, s61, 0xffff\n  s_mov_b32 s66, 1835008\n  s_mov_b32 s67, 0x20000")
                A("  s_lshl_b32 s14, %s, 16\n  s_lshl_b32 s35, %s, 7\n  s_add_u32 s14, s14, s35\n  s_add_u32 s14, s14, %d" % (s(sJ), s(sWave), (k - 4) * 32768))
        for q_ in range(4):
            A("  s_add_u32 m0, %s, %d" % (s(sslot), 1024 * q_))
            A("  buffer_load_dwordx4 %s, s[64:67], s14 offen %s lds" % (v(vWd), P["wflag"]))
            A("  s_add_u32 s14, s14, 8192")
    def wround_read(k, sslot):
        A("  v_and_b32 %s, 3, %s\n  v_lshl_add_u32 %s, %s, 3, %s\n  v_add_u32 %s, %s, %s" % (v(T[5]), v(vLane), v(T[5]), v(T[5]), v(vWr), v(T[5]), s(sslot), v(T[5])))
        for t in range(4):
            dst = (W2 + 8 * (2 * t + (k >> 1)) + 4 * (k & 1)) if k < 4 else (W4 + 8 * t + 4 * (k & 1))
            for hh in range(2):
                A("  ds_read_b64_tr_b16 %s, %s offset:%d" % (v(dst + 2 * hh, 2), v(T[5]), 256 * hh + 32 * t))
        A("  s_waitcnt lgkmcnt(0)")
    def wrun(k0, k1):
        A("  s_mov_b32 s48, %s\n  s_add_u32 s49, s48, 4096\n  s_and_b32 s49, s49, 0x3fff\n  s_or_b32 s49, s49, %s" % (s(sSlotI), s(sWB)))
        ks = list(range(k0, k1))
        for n, k in enumerate(ks):
            wround_issue(k, 48 + n % 2)
            if n > 0:
                A("  s_waitcnt vmcnt(4)"); wround_read(ks[n - 1], 48 + (n - 1) % 2)
        A("  s_waitcnt vmcnt(0)"); wround_read(ks[-1], 48 + (len(ks) - 1) % 2)
    wprep()
    A("  s_waitcnt vmcnt(0)")
    A("  v_lshlrev_b32 %s, 16, %s" % (v(vXres), v(vXres)))
    A("L_tqpoll:")
    qpoll_issue()
    A("  s_waitcnt vmcnt(0)")
    qpoll_check()
    poll_end("L_tqpoll")
    qwrite()
    A("  s_waitcnt lgkmcnt(0)\n  s_barrier")
    A("  v_bfe_u32 %s, %s, 5, 1\n  v_bfe_u32 %s, %s, 3, 1\n  v_lshl_add_u32 %s, %s, 1, %s" % (v(T[3]), v(vLane), v(T[4]), v(vLane), v(T[3]), v(T[3]), v(T[4])))
    A("  v_xor_b32 %s, %s, %s\n  v_lshl_add_u32 %s, %s, 4, %s" % (v(T[3]), s(sWave), v(T[3]), v(T[3]), v(T[3]), v(vWr)))
    A("  v_and_b32 %s, 1, %s\n  v_lshl_add_u32 %s, %s, 3, %s" % (v(T[4]), v(vLane), v(T[3]), v(T[4]), v(T[3])))
    A("  v_bfe_u32 %s, %s, 1, 1\n  v_lshl_add_u32 %s, %s, 16, %s" % (v(T[4]), v(vLane), v(T[3]), v(T[4]), v(T[3])))
    A("  v_xor_b32 %s, 64, %s" % (v(T[4]), v(T[3])))
    for R in range(16):
        for hh in range(2):
            A("  ds_read_b64_tr_b16 %s, %s offset:%d" % (v(W3A + 4 * R + 2 * hh, 2), v(T[3 + (R & 1)]), 4096 * R + 256 * hh))
        if R % 4 == 3: A("  s_waitcnt lgkmcnt(0)")
    A("  s_barrier")
    if nA: wrun(0, nA)
    for k in range(4): issueK()
    for r in range(NR):
        A("  s_waitcnt vmcnt(8)")
        issueR(r)
    A("  s_branch L_qops")
    late.append("\n".join(L)); L = Lsave; A = L.append

    A("  s_cmp_eq_u32 %s, 1\n  s_cbranch_scc1 L_tailpro" % s(sTail))
    if P["paced"]:
        sQ = 55
        A("  s_lshl_b32 s34, %s, 14\n  s_lshl_b32 s35, %s, 9\n  s_add_u32 s34, s34, s35\n  s_add_u32 s34, s34, %d" % (s(sG), s(sWave), QG))
        A("  s_add_u32 s44, s12, s34\n  s_addc_u32 s45, s13, 0\n  s_mov_b32 %s, 0" % s(sQ))
        nst = 3 + NR
        for k in range(1, nst + 1):
            A("  s_cmp_eq_u32 %s, 1\n  s_cbranch_scc1 L_ps%dq" % (s(sQ), k))
            A("  s_waitcnt vmcnt(%d)" % P["pw"])
            if k <= 3: issueK()
            else: issueR(k - 4)
            A("L_ps%dr:" % k)
            blk = []
            Lsave = L; L = blk; A = L.append
            A("L_ps%dq:" % k)
            A("  s_waitcnt vmcnt(%d)" % (2 + P["pw"]))
            if k <= 3: issueK()
            else: issueR(k - 4)
            A("  s_waitcnt vmcnt(4)")
            qpoll_check()
            A("  s_cselect_b32 %s, 2, 0\n  s_cbranch_scc0 L_ps%dr" % (s(sQ), k))
            qwrite()
            A("  s_branch L_ps%dr" % k)
            L = Lsave; A = L.append
            late.append("\n".join(blk))
            if k < nst:
                A("  s_cmp_lg_u32 %s, 0\n  s_cbranch_scc1 L_ps%de" % (s(sQ), k))
                for j in range(4): A("  s_load_dword s%d, s[44:45], %d glc" % (46 + j, 4096 * j + 508))
                A("  s_waitcnt lgkmcnt(0)")
                for j in range(4): A("  s_xor_b32 s%d, s%d, %s" % (46 + j, 46 + j, s(sTag)))
                A("  s_or_b32 s46, s46, s47\n  s_or_b32 s48, s48, s49\n  s_or_b32 s46, s46, s48\n  s_cmp_eq_u32 s46, 0")
                A("  s_cbranch_scc0 L_ps%de" % k)
                qpoll_issue()
                A("  s_mov_b32 %s, 1" % s(sQ))
                A("L_ps%de:" % k)
        stamp("h")
        A("  s_cmp_eq_u32 %s, 2\n  s_cbranch_scc1 L_qdone" % s(sQ))
        A("L_qpoll:")
        qpoll_issue()
        A("  s_waitcnt vmcnt(0)")
        qpoll_check()
        poll_end("L_qpoll")
        qwrite()
    A("L_qdone:")
    A("  s_waitcnt lgkmcnt(0)\n  s_barrier")
    A("L_qops:")
    stamp(2)
    A("  v_and_b32 %s, 3, %s\n  v_lshlrev_b32 %s, 8, %s" % (v(T[0]), v(vLane), v(T[0]), v(T[0])))
    A("  v_lshrrev_b32 %s, 4, %s\n  v_lshl_add_u32 %s, %s, 4, %s" % (v(T[1]), v(vLane), v(T[0]), v(T[1]), v(T[0])))
    A("  v_add_u32 %s, %d, %s" % (v(T[0]), QL, v(T[0])))
    for t in range(4): A("  ds_read_b128 %s, %s offset:%d" % (v(ACC + 4 * t, 4), v(T[0]), 64 * t))
    S = T[4:8]
    assert S[0] % 2 == 0
    nis = [0]
    def ticket_req():
        A("  s_mov_b64 exec, 1")
        A("  ds_add_rtn_u32 %s, %s, %s" % (v(vTk), v(vTkA), v(vOne)))
        A("  s_mov_b64 exec, -1")
    def issue_dyn(nyoung, kpossible, depth=None, push=False, vwait=None):
        k = nis[0]; nis[0] += 1
        A("  s_waitcnt lgkmcnt(%d)" % nyoung)
        A("  v_readfirstlane_b32 %s, %s" % (s(sTk), v(vTk)))
        ticket_req()
        if kpossible:
            A("  s_cmp_lt_u32 %s, %s\n  s_cbranch_scc0 L_isV%d" % (s(sTk), s(sCnt1), k))
            A("  s_cmp_lt_u32 %s, %s\n  s_cselect_b32 s35, %s, %s" % (s(sTk), s(sThr), s(sOffX), s(sOff0)))
            A("  s_lshl_b32 s34, %s, 12\n  s_add_u32 s34, s34, s35\n  s_mov_b32 m0, %s" % (s(sTk), s(sSlotI)))
            if vwait is not None: A("  s_waitcnt vmcnt(%d)" % vwait)
            for g in range(4):
                A("  buffer_load_dwordx4 %s, s[4:7], s34 offen offset:%d %s lds" % (v(vKd[g]), g * 1024, P["kvflag"]))
            A("L_isret%d:" % k)
            blk = ["L_isV%d:" % k]; B = blk.append
        else:
            B = A
        B("  s_sub_u32 s34, %s, %s\n  s_cmp_lt_u32 s34, %s\n  s_cselect_b32 s35, %s, %s" % (s(sTk), s(sCnt1), s(sThr), s(sOffX), s(sOff0)))
        B("  s_lshl_b32 s34, s34, 12\n  s_add_u32 s34, s34, s35")
        assert W == 1 and P["early"] == 0 and not P["deepV"]
        B("  s_mov_b32 m0, %s" % s(sSlotI))
        if not kpossible: B("  s_cmp_lt_u32 %s, %s" % (s(sTk), s(sCnt2)))
        if vwait is not None: B("  s_waitcnt vmcnt(%d)" % vwait)
        if not kpossible: B("  s_cbranch_scc0 L_isno%d" % k)
        for g in range(4):
            B("  buffer_load_dwordx4 %s, s[8:11], s34 offen offset:%d %s lds" % (v(vVd), g * 1024, P["kvflag"]))
        if not kpossible:
            B("L_isno%d:" % k)
        if kpossible:
            B("  s_branch L_isret%d" % k)
            late.append("\n".join(blk))
        next_slot(sSlotI)
        if push:
            A("  s_mov_b32 %s, %s" % (s(sF[depth]), s(sTk)))
        else:
            WW = depth or W
            for i in range(WW - 1): A("  s_mov_b32 %s, %s" % (s(sF[i]), s(sF[i + 1])))
            A("  s_mov_b32 %s, %s" % (s(sF[WW - 1]), s(sTk)))
    def kbody(wait, issue, sid):
        A("  s_lshl_b32 s34, %s, 7" % s(sid))
        A("  v_add_u32 %s, s34, %s" % (v(T[14]), v(vSb)))
        A("  v_add_u32 %s, %s, %s" % (v(T[0]), s(sSlotC), v(vKrd)))
        for t in range(1, 4): A("  v_xor_b32 %s, %d, %s" % (v(T[t]), 64 * t, v(T[0])))
        if issue:
            issue_dyn(0, True, vwait=wait)
        else:
            A("  s_waitcnt vmcnt(%d)" % wait)
        for t in range(4): A("  ds_read_b128 %s, %s" % (v(F + 4 * t, 4), v(T[t])))
        next_slot(sSlotC)
        for t in range(4):
            A("  s_waitcnt lgkmcnt(%d)" % (3 - t))
            A("  v_mfma_f32_16x16x32_bf16 %s, %s, %s, %s" % (v(S[0], 4), v(F + 4 * t, 4), v(ACC + 4 * t, 4), "0" if t == 0 else v(S[0], 4)))
        A("  v_cvt_pk_bf16_f32 %s, %s, %s" % (v(T[8]), v(S[0]), v(S[1])))
        A("  v_cvt_pk_bf16_f32 %s, %s, %s" % (v(T[9]), v(S[2]), v(S[3])))
        unpack(T[10], T[11], T[8]); unpack(T[12], T[13], T[9])
        for k in range(4): A("  v_mul_f32 %s, %s, %s" % (v(T[10 + k]), SCALE, v(T[10 + k])))
        A("  v_cvt_pk_bf16_f32 %s, %s, %s" % (v(T[8]), v(T[10]), v(T[11])))
        A("  v_cvt_pk_bf16_f32 %s, %s, %s" % (v(T[9]), v(T[12]), v(T[13])))
        setexec(0x000F000F000F000F)
        A("  ds_write_b64 %s, %s" % (v(T[14]), v(T[8], 2)))
        setexec(-1)
        A("  v_max3_f32 %s, %s, %s, %s" % (v(vMx), v(vMx), v(T[10]), v(T[11])))
        A("  v_max3_f32 %s, %s, %s, %s" % (v(vMx), v(vMx), v(T[12]), v(T[13])))
    assert T[8] % 2 == 0
    A("  v_mov_b32 %s, 0xff800000\n  v_mov_b32 %s, 1" % (v(vMx), v(vOne)))
    ticket_req()
    A("  s_mov_b32 %s, %s" % (s(sF[0]), s(sWave)))
    A("  s_waitcnt lgkmcnt(1)")
    if NR:
        assert W == 1
        for i in range(4):
            kbody(4 * (3 - i + NR), False, sF[0])
            A("  s_add_u32 %s, %s, 8" % (s(sF[0]), s(sF[0])))
        A("  v_add_u32 %s, %s, %s" % (v(T[14]), s(sWB), v(vL16)))
        for r in range(NR):
            A("  s_waitcnt vmcnt(%d)" % (4 * (NR - 1 - r)))
            for g in range(4):
                A("  ds_write_b128 %s, %s offset:%d" % (v(T[14]), v(RT + 16 * r + 4 * g, 4), 4096 * r + 1024 * g))
            next_slot(sSlotI)
            if r < NR - 1:
                kbody(4 * (NR - 1 - r), False, sF[0])
                A("  s_add_u32 %s, %s, 8" % (s(sF[0]), s(sF[0])))
                A("  v_add_u32 %s, %s, %s" % (v(T[14]), s(sWB), v(vL16)))
    else:
      for i in range(4 - W):
        kbody(4 * (3 - i), False, sF[0])
        A("  s_add_u32 %s, %s, 8" % (s(sF[0]), s(sF[0])))
    for i in range(1, W): A("  s_add_u32 %s, %s, %d" % (s(sF[i]), s(sF[0]), 8 * i))
    A("L_kloop:")
    A("  s_mov_b32 s36, %s" % s(sF[0]))
    kbody(4 * (W - 1), True, 36)
    A("  s_cmp_lt_u32 %s, %s\n  s_cbranch_scc1 L_kloop" % (s(sF[0]), s(sCnt1)))
    stamp(3)
    PK = F
    FL = ACC
    vM = T[0]; vLs = T[1]
    XV = P["extraV"]
    assert W + XV <= 4
    for i in range(XV): issue_dyn(0, False, depth=W + i, push=True)
    bfly_hi("v_max_f32", vMx, T[2])
    round_bf16(vMx, vMx)
    A("  s_lshl_b32 s34, %s, 2\n  s_add_u32 s34, s34, %d" % (s(sWave), MLT))
    A("  v_and_b32 %s, 3, %s\n  v_lshlrev_b32 %s, 5, %s" % (v(T[3]), v(vLane), v(T[3]), v(T[3])))
    A("  v_add_u32 %s, s34, %s\n  v_add_u32 %s, %d, %s" % (v(T[2]), v(T[3]), v(T[3]), MLT, v(T[3])))
    A("  s_mov_b64 exec, 0xf")
    A("  ds_write_b32 %s, %s" % (v(T[2]), v(vMx)))
    A("  s_mov_b64 exec, -1")
    A("  s_waitcnt lgkmcnt(0)" + ("" if P["notrans"] else "\n  s_barrier"))
    A("  ds_read_b128 %s, %s" % (v(U[0], 4), v(T[3])))
    A("  ds_read_b128 %s, %s offset:16" % (v(U[4], 4), v(T[3])))
    for k in range(5): A("  ds_read_b64 %s, %s offset:%d" % (v(PK + 2 * k, 2), v(vSr), 512 * k))
    A("  s_waitcnt lgkmcnt(5)")
    A("  v_max3_f32 %s, %s, %s, %s" % (v(vM), v(U[0]), v(U[1]), v(U[2])))
    A("  v_max3_f32 %s, %s, %s, %s" % (v(U[3]), v(U[3]), v(U[4]), v(U[5])))
    A("  v_max3_f32 %s, %s, %s, %s" % (v(vM), v(vM), v(U[6]), v(U[7])))
    A("  v_max_f32 %s, %s, %s" % (v(vM), v(vM), v(U[3])))
    A("  s_mov_b32 s34, %s" % LOG2E)
    A("  v_mul_f32 %s, s34, %s" % (v(T[4]), v(vM)))
    for k in range(5):
        A("  s_waitcnt lgkmcnt(%d)" % (4 - k))
        unpack(FL + 4 * k, FL + 4 * k + 1, PK + 2 * k); unpack(FL + 4 * k + 2, FL + 4 * k + 3, PK + 2 * k + 1)
    for k in range(20): A("  v_fma_f32 %s, %s, s34, -%s" % (v(FL + k), v(FL + k), v(T[4])))
    for k in range(20): A("  v_exp_f32 %s, %s" % (v(FL + k), v(FL + k)))
    for k in range(10): A("  v_cvt_pk_bf16_f32 %s, %s, %s" % (v(PK + k), v(FL + 2 * k), v(FL + 2 * k + 1)))
    for k in range(5): A("  ds_write_b64 %s, %s offset:%d" % (v(vSr), v(PK + 2 * k, 2), 512 * k))
    for k in range(10): A("  v_add_f32 %s, %s, %s" % (v(FL + k), v(FL + k), v(FL + 10 + k)))
    for k in range(5): A("  v_add_f32 %s, %s, %s" % (v(FL + k), v(FL + k), v(FL + 5 + k)))
    A("  v_add_f32 %s, %s, %s" % (v(FL), v(FL), v(FL + 1)))
    A("  v_add_f32 %s, %s, %s" % (v(FL + 2), v(FL + 2), v(FL + 3)))
    A("  v_add_f32 %s, %s, %s" % (v(FL), v(FL), v(FL + 4)))
    A("  v_add_f32 %s, %s, %s" % (v(vLs), v(FL), v(FL + 2)))
    allred_b2345("v_add_f32", vLs, T[5])
    A("  s_mov_b64 exec, 0xf")
    A("  ds_write_b32 %s, %s offset:128" % (v(T[2]), v(vLs)))
    A("  s_mov_b64 exec, -1")
    A("  v_mov_b32 %s, %s" % (v(vMx), v(vM)))
    aW = T[10]; aRd = T[11]; aRd2 = T[12]; aFt = T[13]; aSt = T[14]
    A("  v_and_b32 %s, 3, %s\n  s_movk_i32 s34, 576\n  v_mul_lo_u32 %s, %s, s34" % (v(aW), v(vLane), v(aW), v(aW)))
    A("  v_lshrrev_b32 %s, 4, %s\n  v_lshl_add_u32 %s, %s, 4, %s\n  v_add_u32 %s, %s, %s" % (v(aRd), v(vLane), v(aW), v(aRd), v(aW), v(aW), s(sWB), v(aW)))
    A("  s_lshr_b32 s34, %s, 1\n  s_and_b32 s35, %s, 1\n  s_lshl_b32 s35, s35, 8" % (s(sWave), s(sWave)))
    A("  s_mul_i32 s36, s34, 576\n  s_add_u32 s36, s36, s35")
    A("  v_lshl_add_u32 %s, %s, 2, s36" % (v(aRd), v(vLane)))
    A("  v_add_u32 %s, 0x10000, %s" % (v(aRd2), v(aRd)))
    A("  s_lshl_b32 s36, s34, 4\n  s_add_u32 s36, s36, %d\n  v_mov_b32 %s, s36" % (FT + 8, v(aFt)))
    if P["p1bf"]:
        A("  s_lshl_b32 s36, %s, 2\n  s_add_u32 s36, s36, s34\n  s_lshl_b32 s36, s36, 13\n  s_lshr_b32 s35, s35, 1\n  s_add_u32 s36, s36, s35" % s(sG))
        A("  s_lshl_b32 s34, %s, 8\n  s_add_u32 s36, s36, s34\n  s_add_u32 s36, s36, %d" % (s(sI), P1))
        A("  v_lshl_add_u32 %s, %s, 1, s36" % (v(aSt), v(vLane)))
    else:
        A("  s_lshl_b32 s36, %s, 2\n  s_add_u32 s36, s36, s34\n  s_lshl_b32 s36, s36, 14\n  s_add_u32 s36, s36, s35" % s(sG))
        A("  s_lshl_b32 s34, %s, 9\n  s_add_u32 s36, s36, s34\n  s_add_u32 s36, s36, %d" % (s(sI), P1))
        A("  v_lshl_add_u32 %s, %s, 2, s36" % (v(aSt), v(vLane)))
    A("  s_waitcnt lgkmcnt(0)" + ("" if P["notrans"] else "\n  s_barrier"))
    A("  s_cmp_lg_u32 %s, 0\n  s_cbranch_scc1 L_noml" % s(sWave))
    A("  ds_read_b128 %s, %s offset:128" % (v(U[0], 4), v(T[3])))
    A("  ds_read_b128 %s, %s offset:144" % (v(U[4], 4), v(T[3])))
    A("  s_lshl_b32 s34, %s, 11\n  s_lshl_b32 s35, %s, 6\n  s_add_u32 s34, s34, s35\n  s_add_u32 s34, s34, %d" % (s(sG), s(sI), ML))
    A("  v_add_u32 %s, s34, %s" % (v(T[2]), v(vL16)))
    A("  v_mov_b32 %s, %s\n  v_mov_b32 %s, %s\n  v_mov_b32 %s, %s" % (v(T[6]), v(vMx), v(T[7]), s(sTag), v(T[9]), s(sTag)))
    A("  s_waitcnt lgkmcnt(0)")
    sum8(U[0])
    A("  v_mov_b32 %s, %s" % (v(T[8]), v(U[0])))
    A("  s_mov_b64 exec, 0xf")
    assert T[6] % 2 == 0
    A("  global_store_dwordx4 %s, %s, s[12:13] sc1" % (v(T[2]), v(T[6], 4)))
    A("  s_mov_b64 exec, -1")
    A("L_noml:")
    if nA < 6:
        A("  s_cmp_eq_u32 %s, 1\n  s_cbranch_scc1 L_wB" % s(sTail))
        A("L_wBret:")
        Lsave = L; L = []; A = L.append
        A("L_wB:")
        wrun(nA, 6)
        A("  s_branch L_wBret")
        late.append("\n".join(L)); L = Lsave; A = L.append
    for k in range(32): A("  v_mov_b32 %s, 0" % v(ACC + k))
    stamp(4)
    PB_ = T[2]
    assert PB_ % 2 == 0
    A("  s_lshl_b32 s34, %s, 7\n  v_subrev_u32 %s, s34, %s" % (s(sCnt1), v(vSb), v(vSb)))
    def vbody(wait, issue, depth=None):
        A("  s_lshl_b32 s34, %s, 7" % s(sF[0]))
        A("  v_add_u32 %s, s34, %s" % (v(T[1]), v(vSb)))
        A("  v_add_u32 %s, %s, %s" % (v(T[0]), s(sSlotC), v(vVrd)))
        A("  ds_read_b64 %s, %s" % (v(PB_, 2), v(T[1])))
        if issue: issue_dyn(0, False, depth=depth, vwait=wait)
        else: A("  s_waitcnt vmcnt(%d)" % wait)
        for b in range(8): A("  ds_read_b64_tr_b16 %s, %s offset:%d" % (v(F + 2 * b, 2), v(T[0]), 128 * b))
        next_slot(sSlotC)
        for b in range(8):
            A("  s_waitcnt lgkmcnt(%d)" % (7 - b))
            A("  v_mfma_f32_16x16x16_bf16 %s, %s, %s, %s" % (v(ACC + 4 * b, 4), v(F + 2 * b, 2), v(PB_, 2), v(ACC + 4 * b, 4)))
    for i in range(XV):
        vbody(4 * (W + XV - 1 - i), False)
        for k in range(W + XV - 1 - i): A("  s_mov_b32 %s, %s" % (s(sF[k]), s(sF[k + 1])))
    A("  s_branch L_vtest")
    A("L_vloop:")
    vbody(4 * (W - 1), True)
    A("L_vtest:")
    A("  s_cmp_ge_u32 %s, %s\n  s_cbranch_scc1 L_gather" % (s(sF[0]), s(sTrig)))
    A("L_gatherret:")
    if P["deepV"]:
        A("  s_sub_u32 s36, %s, %d" % (s(sCnt2), P["deepV"]))
        A("  s_cmp_lt_u32 %s, s36\n  s_cbranch_scc1 L_vloop" % s(sF[0]))
        issue_dyn(0, False, depth=W, push=True)
        A("  s_branch L_vtest2")
        A("L_vloop2:")
        vbody(4 * W, True, depth=W + 1)
        A("L_vtest2:")
        A("  s_cmp_lt_u32 %s, %s\n  s_cbranch_scc1 L_vloop2" % (s(sF[0]), s(sCnt2)))
    else:
        A("  s_cmp_lt_u32 %s, %s\n  s_cbranch_scc1 L_vloop" % (s(sF[0]), s(sCnt2)))
    stamp(5)
    Lsave = L; L = []; A = L.append
    A("L_gather:")
    A("  s_mov_b32 %s, -1" % s(sTrig))
    A("  s_lshl_b32 s34, %s, 11\n  s_add_u32 s34, s34, %d" % (s(sG), ML))
    A("  v_add_u32 %s, s34, %s" % (v(T[4]), v(vL16)))
    if P["pf2"]:
        A("  s_getpc_b64 s[44:45]")
        A("L_pc2:")
        A("  s_sub_u32 s44, s44, L_pc2-L_vloop\n  s_subb_u32 s45, s45, 0")
        A("  v_mov_b32 %s, %s" % (v(T[7]), v(vL16)))
        for k in range(P["pf2"]):
            A("  global_load_dwordx4 %s, %s, s[44:45]" % (v(U[8], 4), v(T[7])))
            A("  v_add_u32 %s, 1024, %s" % (v(T[7]), v(T[7])))
    A("L_gpoll:")
    A("  global_load_dwordx4 %s, %s, s[12:13] sc1" % (v(G0, 4), v(T[4])))
    A("  global_load_dwordx4 %s, %s, s[12:13] offset:1024 sc1" % (v(G1, 4), v(T[4])))
    A("  s_waitcnt vmcnt(0)")
    chk_tag([G0 + 1, G0 + 3, G1 + 1, G1 + 3], T[7], sTag)
    poll_end("L_gpoll")
    A("  v_max_f32 %s, %s, %s" % (v(T[8]), v(G0), v(G1)))
    allred_b2345("v_max_f32", T[8], T[7])
    A("  v_sub_f32 %s, %s, %s\n  v_sub_f32 %s, %s, %s" % (v(G0), v(G0), v(T[8]), v(G1), v(G1), v(T[8])))
    A("  v_sub_f32 %s, %s, %s" % (v(U[8]), v(vMx), v(T[8])))
    for r in (G0, G1, U[8]): A("  v_mul_f32 %s, %s, %s" % (v(r), LOG2E, v(r)))
    for r in (G0, G1, U[8]): A("  v_exp_f32 %s, %s" % (v(r), v(r)))
    A("  v_mul_f32 %s, %s, %s" % (v(T[9]), v(G0), v(G0 + 2)))
    A("  v_fmac_f32 %s, %s, %s" % (v(T[9]), v(G1), v(G1 + 2)))
    allred_b2345("v_add_f32", T[9], T[7])
    A("  v_rcp_f32 %s, %s" % (v(U[10]), v(T[9])))
    A("  v_mul_f32 %s, %s, %s" % (v(U[10]), v(U[10]), v(U[8])))
    A("  v_mov_b32 %s, 0" % v(U[11]))
    A("  s_cmp_eq_u32 %s, 0\n  s_cbranch_scc1 L_gfin" % s(sTail))
    A("  v_and_b32 %s, 31, %s\n  v_lshlrev_b32 %s, 3, %s\n  v_add_u32 %s, %d, %s" % (v(T[5]), v(vLane), v(T[5]), v(T[5]), v(T[5]), REG, v(T[5])))
    A("L_rpoll:")
    A("  global_load_dwordx2 %s, %s, s[12:13] sc1" % (v(G0, 2), v(T[5])))
    A("  s_waitcnt vmcnt(0)")
    A("  v_cmp_eq_u32 vcc, %s, %s" % (s(sTag), v(G0 + 1)))
    A("  s_cmp_eq_u64 vcc, -1")
    poll_end("L_rpoll")
    A("  v_cmp_eq_u32 vcc, %s, %s" % (s(sXcc), v(G0)))
    A("  s_cmp_eq_u64 vcc, -1\n  s_cselect_b32 s34, %d, 0" % (0 if P["forceslow"] else 1))
    A("  v_mov_b32 %s, s34" % v(U[11]))
    A("L_gfin:")
    A("  v_add_u32 %s, %d, %s" % (v(T[7]), FT, v(vL16)))
    A("  s_mov_b64 exec, 0xf")
    A("  ds_write_b128 %s, %s" % (v(T[7]), v(U[8], 4)))
    A("  s_mov_b64 exec, -1")
    A("  s_branch L_gatherret")
    late.append("\n".join(L)); L = Lsave; A = L.append
    setexec(0x000F000F000F000F)
    for b in range(8): A("  ds_write_b128 %s, %s offset:%d" % (v(aW), v(ACC + 4 * b, 4), 64 * b))
    setexec(-1)
    A("  s_waitcnt lgkmcnt(0)\n  s_barrier")
    O8 = F; F8 = F + 8
    def read8(dst, a0, a1, st):
        A("  ds_read2st64_b32 %s, %s offset0:%d offset1:%d" % (v(dst, 2), v(a0), st, st + 64))
        A("  ds_read2st64_b32 %s, %s offset0:%d offset1:%d" % (v(dst + 2, 2), v(a0), st + 128, st + 192))
        A("  ds_read2st64_b32 %s, %s offset0:%d offset1:%d" % (v(dst + 4, 2), v(a1), st, st + 64))
        A("  ds_read2st64_b32 %s, %s offset0:%d offset1:%d" % (v(dst + 6, 2), v(a1), st + 128, st + 192))
    read8(O8, aRd, aRd2, 0)
    A("  ds_read_b64 %s, %s" % (v(F8, 2), v(aFt)))
    A("  s_waitcnt lgkmcnt(0)")
    sum8(O8)
    A("  v_mul_f32 %s, %s, %s" % (v(O8), v(O8), v(F8)))
    if P["p1bf"]:
        A("  v_mov_b32_dpp %s, %s quad_perm:[1,1,3,3] row_mask:0xf bank_mask:0xf" % (v(O8 + 1), v(O8)))
        A("  v_cvt_pk_bf16_f32 %s, %s, %s" % (v(O8 + 4), v(O8), v(O8 + 1)))
        A("  v_min_u32 %s, -2, %s" % (v(O8 + 4), v(O8 + 4)))
        for k in range(1, 4):
            A("  v_mov_b32_dpp %s, %s row_shl:%d row_mask:0xf bank_mask:0xf" % (v(O8 + 4 + k), v(O8 + 4), 2 * k))
        setexec(0x0101010101010101)
        A("  global_store_dwordx4 %s, %s, s[12:13] sc1" % (v(aSt), v(O8 + 4, 4)))
        setexec(-1)
    else:
        A("  v_bfi_b32 %s, %s, %s, %s" % (v(O8), s(sFF), v(vT8), v(O8)))
        A("  global_store_dword %s, %s, s[12:13] sc1" % (v(aSt), v(O8)))
    stamp(6)
    for k in [7, "p", "q", 8, "r", 9, "s", "t", "u", 10, 11]: stamp(k)
    A("  s_cmp_eq_u32 %s, 0\n  s_cbranch_scc1 L_end" % s(sTail))
    A("  v_readfirstlane_b32 %s, %s" % (s(sFast), v(F8 + 1)))
    aP1 = T[0]; aPA = T[1]; aR3 = T[2]; aLw = T[3]; aLr = T[4]; vIdx = T[5]; aSP = T[6]; aH = T[7]
    A("  v_lshrrev_b32 %s, 1, %s\n  v_and_b32 %s, 1, %s" % (v(T[8]), v(vLane), v(T[9]), v(vLane)))
    A8 = [F + k for k in range(8)]
    assert P["p1bf"]
    A("  s_lshl_b32 s34, %s, 13\n  s_lshl_b32 s35, %s, 5\n  s_add_u32 s34, s34, s35\n  s_add_u32 s34, s34, %d" % (s(sJ), s(sWave), P1))
    A("  v_lshl_add_u32 %s, %s, 8, s34\n  v_lshl_add_u32 %s, %s, 4, %s" % (v(aP1), v(T[8]), v(aP1), v(T[9]), v(aP1)))
    if P["palay"]:
        A("  s_lshl_b32 s34, %s, 11\n  s_add_u32 s34, s34, %d" % (s(sJ), PA))
        A("  v_lshl_add_u32 %s, %s, 5, s34" % (v(aPA), v(vLane)))
    else:
        A("  s_lshl_b32 s34, %s, 6\n  s_add_u32 s34, s34, %d" % (s(sJ), PA))
        A("  v_lshl_add_u32 %s, %s, 11, s34\n  v_lshl_add_u32 %s, %s, 5, %s" % (v(aPA), v(T[8]), v(aPA), v(T[9]), v(aPA)))
    A("  v_lshlrev_b32 %s, 5, %s\n  v_add_u32 %s, %d, %s" % (v(aR3), v(vLane), v(aR3), R3, v(aR3)))
    A("  v_lshrrev_b32 %s, 5, %s\n  v_bfe_u32 %s, %s, 4, 1\n  v_lshl_add_u32 %s, %s, 1, %s" % (v(aLw), v(vLane), v(T[10]), v(vLane), v(aLw), v(aLw), v(T[10])))
    A("  v_lshl_add_u32 %s, %s, 2, %s\n  s_lshl_b32 s34, %s, 5\n  s_add_u32 s34, s34, %d\n  v_lshl_add_u32 %s, %s, 2, s34" % (v(aLw), v(T[9]), v(aLw), s(sWave), OL, v(aLw), v(aLw)))
    A("  v_lshrrev_b32 %s, 4, %s\n  v_lshlrev_b32 %s, 5, %s\n  v_lshl_add_u32 %s, %s, 4, %s\n  v_add_u32 %s, %d, %s" % (v(aLr), v(vLane), v(aLr), v(aLr), v(aLr), v(T[9]), v(aLr), v(aLr), QL, v(aLr)))
    A("  s_mov_b32 s34, 0xaaaaaaaa\n  v_mul_lo_u32 %s, %s, s34\n  v_add_u32 %s, 0x44444444, %s" % (v(vIdx), v(T[9]), v(vIdx), v(vIdx)))
    A("  global_load_dwordx4 %s, %s, s[12:13] sc1" % (v(ACC + 4, 4), v(aPA)))
    A("  global_load_dwordx4 %s, %s, s[12:13] sc1" % (v(ACC + 8, 4), v(aR3)))
    A("  v_add_u32 %s, %d, %s" % (v(T[10]), PB - PA, v(aPA)))
    A("  global_load_dwordx4 %s, %s, s[12:13] sc1" % (v(ACC + 12, 4), v(T[10])))
    if P["palay"]:
        A("  s_lshl_b32 s34, %s, 6\n  s_lshl_b32 s35, %s, 13\n  s_add_u32 s34, s34, s35\n  s_add_u32 s34, s34, %d" % (s(sJ), s(sWave), PA))
        A("  v_lshrrev_b32 %s, 4, %s\n  v_lshl_add_u32 %s, %s, 11, s34\n  v_and_b32 %s, 15, %s\n  v_lshl_add_u32 %s, %s, 2, %s" % (v(aSP), v(vLane), v(aSP), v(aSP), v(T[10]), v(vLane), v(aSP), v(T[10]), v(aSP)))
    else:
        A("  s_lshl_b32 s34, %s, 11\n  s_lshl_b32 s35, %s, 8\n  s_add_u32 s34, s34, s35\n  s_add_u32 s34, s34, %d\n  v_lshl_add_u32 %s, %s, 2, s34" % (s(sJ), s(sWave), PA, v(aSP), v(vLane)))
    A("  v_lshrrev_b32 %s, 5, %s\n  v_lshlrev_b32 %s, 3, %s\n  v_lshl_add_u32 %s, %s, 2, %s" % (v(T[10]), v(vLane), v(aH), v(T[9]), v(aH), v(T[10]), v(aH)))
    A("  v_bfe_u32 %s, %s, 4, 1\n  v_lshl_add_u32 %s, %s, 1, %s" % (v(T[10]), v(vLane), v(aH), v(T[10]), v(aH)))
    A("  v_bfe_u32 %s, %s, 3, 1\n  v_add_u32 %s, %s, %s" % (v(T[10]), v(vLane), v(aH), v(T[10]), v(aH)))
    A("  s_lshl_b32 s34, %s, 4\n  v_add_u32 %s, s34, %s" % (s(sJ), v(aH), v(aH)))
    A("  v_lshlrev_b32 %s, 1, %s" % (v(T[17]), v(aH)))
    A("  v_lshlrev_b32 %s, 2, %s\n  v_add_u32 %s, %d, %s" % (v(aH), v(aH), v(aH), R3, v(aH)))
    A("  s_lshl_b32 s34, %s, 4\n  s_add_u32 s34, s34, %d\n  v_lshl_add_u32 %s, %s, 1, s34" % (s(sWave), HL, v(T[11]), v(vLane)))
    A("  s_and_b32 s55, %s, 0xffff\n  v_mov_b32 %s, s55\n  s_mov_b32 s54, 0xffff" % (s(sTag), v(T[16])))
    assert P["npoll"] == 1 and P["npoll1"] == 1
    for k in range(16): A("  v_mov_b32 %s, 0" % v(U[0] + k))
    for k in range(8): A("  v_mov_b32 %s, 0" % v(F + 8 + k))
    A("  v_add_u32 %s, %d, %s" % (v(T[15]), QL, v(vL16)))
    for k in range(16): A("  v_mov_b32 %s, %s" % (v(ACC + 16 + k), v(vT8)))
    def ld1(k): A("  global_load_dwordx4 %s, %s, s[12:13] sc1" % (v(ACC + 4 * k, 4), v(aP1)))
    def ck1(k):
        H4 = ACC + 4 * k
        A("  v_max3_u32 %s, %s, %s, %s" % (v(T[8]), v(H4), v(H4 + 1), v(H4 + 2)))
        A("  v_max_u32 %s, %s, %s" % (v(T[8]), v(T[8]), v(H4 + 3)))
        A("  v_cmp_ne_u32 vcc, -1, %s" % v(T[8]))
        for q_ in range(4): unpack(A8[2 * q_], A8[2 * q_ + 1], H4 + q_)
        A("  s_cmp_eq_u64 vcc, -1")
    poll_pipe("L_h1", P["npoll1"], 1, ld1, ck1, sleep=P["h1sleep"])
    stamp(7)
    red16p(A8, A8[0])
    stamp("m")
    setexec(0x0003000300030003)
    A("  ds_write_b32 %s, %s" % (v(aLw), v(A8[0])))
    setexec(-1)
    DD = U[0]
    A("  s_waitcnt lgkmcnt(0)\n  s_barrier")
    stamp("n")
    A("  ds_read_b128 %s, %s offset:%d" % (v(F, 4), v(aLr), OL - QL))
    A("  ds_read_b128 %s, %s offset:%d" % (v(F + 4, 4), v(aLr), OL - QL + 128))
    for u in range(2):
        A("  s_waitcnt lgkmcnt(%d)" % (1 - u))
        for t in range(4):
            A("  v_smfmac_f32_16x16x64_bf16 %s, %s, %s, %s" % (v(DD + 4 * t, 4), v(F + 4 * u, 4), v(W2 + 8 * (2 * t + u), 8), v(vIdx)))
    def select4():
        for t in range(4):
            setexec(0xffff << (16 * t))
            A("  v_add_f32 %s, %s, %s" % (v(O8), v(DD + 4 * t), v(DD + 4 * t + 1)))
        setexec(-1)
    stamp("p")
    select4()
    A("  v_bfi_b32 %s, %s, %s, %s" % (v(O8), s(sFF), v(vT8), v(O8)))
    hstore("global_store_dword %s, %s, s[12:13]" % (v(aSP), v(O8)))
    stamp("q")
    A("  s_cmp_lg_u32 %s, 0\n  s_cbranch_scc1 L_h3w" % s(sWave))
    zero16 = "\n".join("  v_mov_b32 %s, 0" % v(DD + k) for k in range(16)) + "\n  v_add_u32 %s, %d, %s" % (v(aSP), PB - PA, v(aSP))
    late.append("L_h3w:\n  s_cmp_ge_u32 %s, 28\n  s_cbranch_scc1 L_end\n%s\n  s_branch L_h3j" % (s(sJ), zero16))
    def ld8(addr, base=ACC):
        def f_(k):
            A("  global_load_dwordx4 %s, %s, s[12:13] sc1" % (v(base + 8 * k, 4), v(addr)))
            A("  global_load_dwordx4 %s, %s, s[12:13] offset:16 sc1" % (v(base + 8 * k + 4, 4), v(addr)))
        return f_
    def ck8(dst, stag, mask, base=ACC):
        return lambda k: chk_clean2(dst, [base + 8 * k + q_ for q_ in range(8)], T[8], stag, mask)
    ld8(aPA)(0)
    A(zero16)
    poll_pipe("L_hA", 1, 2, ld8(aPA), ck8(A8, sT8, s(sFF)), preissued=1)
    stamp(8)
    red16(A8)
    round_bf16(A8[1], A8[1])
    A("  v_add_f32 %s, %s, %s" % (v(vXres), v(vXres), v(A8[1])))
    A("  v_cvt_pk_bf16_f32 %s, %s, %s" % (v(vXres), v(vXres), v(vXres)))
    A("  v_bfi_b32 %s, s54, %s, %s" % (v(A8[2]), v(T[16]), v(vXres)))
    setexec(0x0303030303030303)
    hstore("global_store_dword %s, %s, s[12:13]" % (v(aH), v(A8[2])))
    setexec(-1)
    A("  v_and_b32 %s, 0xffff0000, %s" % (v(vXres), v(vXres)))
    stamp("r")
    A("L_h3:")
    A("  s_cmp_ge_u32 %s, 28\n  s_cbranch_scc1 L_hB0" % s(sJ))
    f = [F + k for k in range(8)]; d = [T[8], T[9], T[10], U[4]]
    poll_pipe("L_h3p", P["npoll"], 2, ld8(aR3), ck8(f, 55, "s54"))
    stamp(9)
    XO = ACC + 8; E8 = ACC + 12
    D8 = W2 + 32
    A("  v_readfirstlane_b32 s36, %s" % v(f[0]))
    A("  v_mov_b32 %s, %s" % (v(T[10]), INV512))
    A("  s_mov_b32 s32, s36\n  s_mov_b32 s33, s36")
    for k in range(4): A("  v_pk_add_f32 %s, %s, s[32:33] neg_lo:[0,1] neg_hi:[0,1]" % (v(D8 + 2 * k, 2), v(f[2 * k], 2)))
    A("  v_pk_mul_f32 %s, %s, %s" % (v(E8, 2), v(D8, 2), v(D8, 2)))
    A("  v_pk_add_f32 %s, %s, %s" % (v(E8 + 2, 2), v(D8, 2), v(D8 + 2, 2)))
    for k in range(1, 4): A("  v_pk_fma_f32 %s, %s, %s, %s" % (v(E8, 2), v(D8 + 2 * k, 2), v(D8 + 2 * k, 2), v(E8, 2)))
    A("  v_pk_add_f32 %s, %s, %s" % (v(D8 + 4, 2), v(D8 + 4, 2), v(D8 + 6, 2)))
    A("  v_pk_add_f32 %s, %s, %s" % (v(E8 + 2, 2), v(E8 + 2, 2), v(D8 + 4, 2)))
    s1 = T[8]; s2 = T[9]
    A("  v_add_f32 %s, %s, %s" % (v(s2), v(E8), v(E8 + 1)))
    A("  v_add_f32 %s, %s, %s" % (v(s1), v(E8 + 2), v(E8 + 3)))
    for ctrl, rm in (("quad_perm:[1,0,3,2]", "0xf"), ("quad_perm:[2,3,0,1]", "0xf"), ("row_half_mirror", "0xf"),
                     ("row_mirror", "0xf"), ("row_bcast:15", "0xa"), ("row_bcast:31", "0xc")):
        dpp("v_add_f32", s2, s2, s2, ctrl, rm=rm)
        dpp("v_add_f32", s1, s1, s1, ctrl, rm=rm)
    A("  v_readlane_b32 s33, %s, 63" % v(s2))
    A("  v_readlane_b32 s32, %s, 63" % v(s1))
    vMean = E8; vR = E8 + 2
    A("  v_mul_f32 %s, s33, %s" % (v(s2), v(T[10])))
    A("  v_mul_f32 %s, s32, %s" % (v(s1), v(T[10])))
    A("  v_fma_f32 %s, -%s, %s, %s" % (v(s2), v(s1), v(s1), v(s2)))
    A("  v_add_f32 %s, s36, %s" % (v(s1), v(s1)))
    A("  v_max_f32 %s, 0, %s" % (v(s2), v(s2)))
    A("  v_cvt_pk_bf16_f32 %s, %s, %s" % (v(T[10]), v(s1), v(s2)))
    A("  v_and_b32 %s, 0xffff0000, %s" % (v(s2), v(T[10])))
    A("  v_lshlrev_b32 %s, 16, %s" % (v(vMean), v(T[10])))
    A("  v_add_f32 %s, %s, %s" % (v(s2), EPS, v(s2)))
    A("  v_lshlrev_b32 %s, 16, %s" % (v(vMean + 1), v(T[10])))
    A("  v_cvt_pk_bf16_f32 %s, %s, %s" % (v(s2), v(s2), v(s2)))
    A("  v_pk_add_f32 %s, %s, %s neg_lo:[0,1] neg_hi:[0,1]" % (v(f[0], 2), v(f[0], 2), v(vMean, 2)))
    A("  v_and_b32 %s, 0xffff0000, %s" % (v(s2), v(s2)))
    A("  v_sqrt_f32 %s, %s" % (v(s2), v(s2)))
    for k in range(1, 4): A("  v_pk_add_f32 %s, %s, %s neg_lo:[0,1] neg_hi:[0,1]" % (v(f[2 * k], 2), v(f[2 * k], 2), v(vMean, 2)))
    A("  v_cvt_pk_bf16_f32 %s, %s, %s" % (v(s2), v(s2), v(s2)))
    A("  v_cvt_pk_bf16_f32 %s, %s, %s" % (v(XO), v(f[0]), v(f[1])))
    A("  v_and_b32 %s, 0xffff0000, %s" % (v(s2), v(s2)))
    A("  v_rcp_f32 %s, %s" % (v(vR), v(s2)))
    for k in range(1, 4): A("  v_cvt_pk_bf16_f32 %s, %s, %s" % (v(XO + k), v(f[2 * k]), v(f[2 * k + 1])))
    A("  v_mov_b32 %s, %s" % (v(vR + 1), v(vR)))
    for k in range(4): unpack(f[2 * k], f[2 * k + 1], XO + k)
    for k in range(4): A("  v_pk_mul_f32 %s, %s, %s" % (v(f[2 * k], 2), v(f[2 * k], 2), v(vR, 2)))
    for k in range(4): A("  v_cvt_pk_bf16_f32 %s, %s, %s" % (v(XO + k), v(f[2 * k]), v(f[2 * k + 1])))
    stamp("l")
    A("  ds_write_b128 %s, %s" % (v(T[15]), v(XO, 4)))
    A("  s_waitcnt lgkmcnt(0)")
    A("L_h3j:")
    A("  s_barrier")
    XA = W2
    for u in range(8): A("  ds_read_b128 %s, %s offset:%d" % (v(XA + 4 * u, 4), v(aLr), 128 * u))
    stamp("s")
    for u in range(8):
        A("  s_waitcnt lgkmcnt(%d)" % (7 - u))
        A("  v_smfmac_f32_16x16x64_bf16 %s, %s, %s, %s" % (v(F + 8 + 4 * (u & 1), 4), v(XA + 4 * u, 4), v(W3A + 8 * u, 8), v(vIdx)))
    GA = [F + k for k in range(8)]
    A("  v_pk_add_f32 %s, %s, %s" % (v(GA[0], 2), v(F + 8, 2), v(F + 12, 2)))
    A("  v_add_f32 %s, %s, %s" % (v(GA[0]), v(GA[0]), v(GA[1])))
    stamp("y")
    round_bf16(GA[0], GA[0])
    A("  v_mul_f32 %s, 0xbfb8aa3b, %s" % (v(GA[2]), v(GA[0])))
    A("  v_exp_f32 %s, %s" % (v(GA[2]), v(GA[2])))
    A("  v_mov_b32_dpp %s, %s row_ror:8 row_mask:0xf bank_mask:0xf" % (v(GA[1]), v(GA[0])))
    A("  v_add_f32 %s, 1.0, %s" % (v(GA[2]), v(GA[2])))
    A("  v_rcp_f32 %s, %s" % (v(GA[2]), v(GA[2])))
    A("  v_mul_f32 %s, %s, %s" % (v(GA[0]), v(GA[0]), v(GA[2])))
    round_bf16(GA[0], GA[0])
    A("  v_mul_f32 %s, %s, %s" % (v(GA[0]), v(GA[0]), v(GA[1])))
    A("  v_cvt_pk_bf16_f32 %s, %s, %s" % (v(GA[0]), v(GA[0]), v(GA[0])))
    A("  s_mov_b64 exec, 0xff")
    A("  ds_write_b16 %s, %s" % (v(T[11]), v(GA[0])))
    A("  s_mov_b64 exec, -1")
    stamp("t")
    A("  s_waitcnt lgkmcnt(0)\n  s_barrier")
    stamp("z")
    A("  ds_read_b128 %s, %s offset:%d" % (v(F, 4), v(aLr), HL - QL))
    A("  s_waitcnt lgkmcnt(0)")
    for t in range(4):
        A("  v_smfmac_f32_16x16x64_bf16 %s, %s, %s, %s" % (v(DD + 4 * t, 4), v(F, 4), v(W4 + 8 * t, 8), v(vIdx)))
    select4()
    A("  v_bfi_b32 %s, %s, %s, %s" % (v(O8), s(sFF), v(vT8), v(O8)))
    hstore("global_store_dword %s, %s, s[12:13]" % (v(aSP), v(O8)))
    stamp("u")
    A("L_hB0:")
    A("  s_cmp_lg_u32 %s, 0\n  s_cbranch_scc1 L_end" % s(sWave))
    A("  v_add_u32 %s, %d, %s" % (v(aPA), PB - PA, v(aPA)))
    def ldB(k):
        A("  s_mov_b32 exec_hi, 0xffffff")
        ld8(aPA, ACC + 16)(k)
        A("  s_mov_b64 exec, -1")
    poll_pipe("L_hB", P["npoll"], 2, ldB, ck8(A8, sT8, s(sFF), ACC + 16))
    stamp(10)
    red16(A8)
    round_bf16(A8[1], A8[1])
    A("  v_add_f32 %s, %s, %s" % (v(A8[1]), v(vXres), v(A8[1])))
    if P["err"]:
        A("  v_mul_f32 %s, 0x%08x, %s" % (v(A8[1]), struct.unpack("<I", struct.pack("<f", 1.0 + P["err"] / 1000.0))[0], v(A8[1])))
    A("  v_mov_b32_dpp %s, %s row_ror:8 row_mask:0xf bank_mask:0xf" % (v(A8[2]), v(A8[1])))
    A("  v_cvt_pk_bf16_f32 %s, %s, %s" % (v(A8[0]), v(A8[1]), v(A8[2])))
    setexec(0x0003000300030003)
    A("  global_store_dword %s, %s, s[62:63]" % (v(T[17]), v(A8[0])))
    A("  s_mov_b64 exec, 1")
    A("  s_cmp_lg_u32 %s, 0\n  s_cbranch_scc1 L_noepoch" % s(sJ))
    A("  v_mov_b32 %s, %d\n  v_mov_b32 %s, %s" % (v(A8[5]), EPOCH, v(A8[6]), s(sTag)))
    A("  global_store_dword %s, %s, s[12:13]" % (v(A8[5]), v(A8[6])))
    A("L_noepoch:")
    A("  s_mov_b64 exec, -1")
    stamp(11)
    A("L_end:")
    if SLIST:
        A("  s_cmp_lg_u32 %s, %d\n  s_cbranch_scc1 L_done" % (s(sWave), P["sw"]))
        A("  s_waitcnt vmcnt(0)")
        stamp(12)
        A("  s_waitcnt lgkmcnt(0)")
        ns = len(SLIST)
        if P["dbgwg"] >= 0:
            A("  s_cmp_lg_u32 s2, %d\n  s_cbranch_scc1 L_done" % P["dbgwg"])
            A("  s_load_dwordx2 s[12:13], s[0:1], 80\n  s_waitcnt lgkmcnt(0)")
            A("  v_mov_b32 v14, 0\n  s_mov_b64 exec, 1")
            for k in range(ns):
                A("  s_sub_u32 s34, s%d, s68\n  v_mov_b32 v16, s34" % (68 + 2 * k))
                A("  global_store_dword v14, v16, s[12:13] offset:%d" % (4 * k))
            A("  s_waitcnt vmcnt(0)\n  s_branch L_done")
        A("  s_add_u32 s12, s12, 0x10000000\n  s_addc_u32 s13, s13, 0")
        A("  s_mul_i32 s34, s2, %d\n  v_mov_b32 v14, s34" % (8 * (ns + 1)))
        A("  s_getreg_b32 s%d, hwreg(HW_REG_XCC_ID)\n  s_getreg_b32 s%d, hwreg(HW_REG_HW_ID)" % (68 + 2 * ns, 69 + 2 * ns))
        A("  s_mov_b64 exec, 1")
        for k in range(ns + 1):
            A("  v_mov_b32 v16, s%d\n  v_mov_b32 v17, s%d" % (68 + 2 * k, 69 + 2 * k))
            A("  global_store_dwordx2 v14, v[16:17], s[12:13] offset:%d" % (8 * k))
        A("  s_waitcnt vmcnt(0)")
    A("L_done:\n  s_endpgm")
    for blk in late: A(blk)
    A("L_codeend:")
    body = auto_nop(L)
    out = HEAD + body
    out.append('.section .rodata,"a"\n.p2align 6\n.amdhsa_kernel %s' % NAME)
    out.append("  .amdhsa_next_free_vgpr 256\n  .amdhsa_next_free_sgpr 102\n  .amdhsa_accum_offset 256")
    out.append("  .amdhsa_group_segment_fixed_size 0\n  .amdhsa_kernarg_size 96\n  .amdhsa_user_sgpr_count 2\n  .amdhsa_user_sgpr_kernarg_segment_ptr 1\n  .amdhsa_system_sgpr_workgroup_id_x 1")
    out.append("  .amdhsa_float_denorm_mode_32 3\n.end_amdhsa_kernel")
    return "\n".join(out) + "\n"

if __name__ == "__main__":
    kw = {}
    for kv in sys.argv[2:]:
        k, val = kv.split("=")
        if k == "stamps": pass
        elif val.lstrip("-").isdigit(): val = int(val)
        else: val = val.replace("+", " ").replace("none", "")
        kw[k] = val
    open(sys.argv[1], "w").write(gen(**kw))
```

```python
import sys, struct
from asmlib import auto_nop
NAME = "sequential_preLN__gqa_block_cached__glu_gated_swiglu__decode_kernel"

DEF = dict(X=133, W=1, early=0, PW=4, stamps="", wqflag="nt", wflag="nt", kvflag="nt", spin=400000, gtrig=3,
           psleep=1, codepf=1, err=0, forceslow=0, sw=0, ordbar=1, k1early=1, dbgwg=-1, pf2=5, gthr=24, smemq=1, extraV=0, deepV=0, nA=1, NR=0, S=24, p1bf=1, npoll=1, npoll1=1, scflag="sc1 nt", diag=0, noq=0, notrans=0, h1sleep=3, paced=1, pw=3, palay=1, red2=1, nstream=8, p1fast=1, otouch=1)

EPOCH = 0; QG = 0x100000; ML = 0x8000; REG = 0xC000; R3 = 0xD000; P1 = 0x20000; PA = 0xA0000; PB = 0xB0000; PC = 0xE000; SG = 0x200000
SC = 131072; QL = SC + 8 * 2560; MLT = QL + 1024; FT = MLT + 256; FLAG = FT + 128; TK = FLAG + 16; OL = RED0_ = 153088; HL = OL + 256; RED0 = 153088; LDS_TOTAL = RED0 + 2048
LOG2E = "0x3fb8aa3b"; SCALE = "0x3db504f3"; EPS = "0x3727c5ac"; INV512 = "0x3b000000"

vLane = 1; vL16 = 2; vKd = [3, 4, 5, 6]; vVd = 7; vKrd = 8; vVrd = 9; vSb = 10; vSr = 11; vXres = 12; vT8 = 13
T = list(range(14, 32))
F = 32
ACC = 48
U = list(range(80, 96))
W2 = 96; W3A = 160; W3B = 192; W4 = 224
sWave = 3; sG = 18; sI = 19; sTail = 20; sJ = 21; sCnt1 = 22; sCnt2 = 23; sOff = 24; sOff0 = 25; sSlotC = 26; sSlotI = 27
sWB = 28; sTag = 29; sT8 = 30; sSpin = 31; sDone = 40; sFast = 41; sTrig = 42; sXcc = 43
sSelLo = 37; sSelHi = 38; sFF = 39; sF = [16, 17, 55, 54]; sTk = 33; sOffX = 40; sThr = 15; sPT = 46; sPH = 47
vTkA = 30; vTk = 31; vOne = 95; vMx = 29

def v(i, n=1): return "v%d" % i if n == 1 else "v[%d:%d]" % (i, i + n - 1)
def s(i, n=1): return "s%d" % i if n == 1 else "s[%d:%d]" % (i, i + n - 1)

def gen(**kw):
    P = dict(DEF); P.update(kw)
    X = P["X"]; Y = 1024 - 7 * X; W = P["W"]
    assert 0 < Y <= X and (X + 7) // 8 <= 20 and Y >= 8 * 5
    L = []; A = L.append
    late = []
    SLIST = P["stamps"].split(",") if P["stamps"] else []
    def stamp(k):
        k = str(k)
        if k in SLIST:
            A("  s_memrealtime %s" % s(68 + 2 * SLIST.index(k), 2))
        if k + "c" in SLIST:
            A("  s_memtime %s" % s(68 + 2 * SLIST.index(k + "c"), 2))
    def setexec(mask):
        if mask == -1:
            A("  s_mov_b64 exec, -1")
        else:
            lo = mask & 0xffffffff; hi = mask >> 32
            A("  s_mov_b32 exec_lo, 0x%x\n  s_mov_b32 exec_hi, 0x%x" % (lo, hi))
    def round_bf16(dst, src):
        A("  v_cvt_pk_bf16_f32 %s, %s, %s" % (v(dst), v(src), v(src)))
        A("  v_and_b32 %s, 0xffff0000, %s" % (v(dst), v(dst)))
    def unpack(lo, hi, src):
        A("  v_lshlrev_b32 %s, 16, %s" % (v(lo), v(src)))
        A("  v_and_b32 %s, 0xffff0000, %s" % (v(hi), v(src)))
    def dpp(op, d, a, b, ctrl, rm="0xf", bm="0xf"):
        A("  %s_dpp %s, %s, %s %s row_mask:%s bank_mask:%s" % (op, v(d), v(a), v(b), ctrl, rm, bm))
    def bfly_hi(op, x, t):
        A("  v_mov_b32 %s, %s" % (v(t), v(x)))
        A("  v_permlane16_swap_b32 %s, %s" % (v(x), v(t)))
        A("  %s %s, %s, %s" % (op, v(x), v(x), v(t)))
        A("  v_mov_b32 %s, %s" % (v(t), v(x)))
        A("  v_permlane32_swap_b32 %s, %s" % (v(x), v(t)))
        A("  %s %s, %s, %s" % (op, v(x), v(x), v(t)))
    def allred_b2345(op, x, t):
        dpp(op, x, x, x, "row_ror:4")
        dpp(op, x, x, x, "row_ror:8")
        bfly_hi(op, x, t)
    def red345(a):
        for e in range(4): A("  v_permlane32_swap_b32 %s, %s" % (v(a[e]), v(a[e + 4])))
        for e in range(4): A("  v_add_f32 %s, %s, %s" % (v(a[e]), v(a[e]), v(a[e + 4])))
        for e in range(2): A("  v_permlane16_swap_b32 %s, %s" % (v(a[e]), v(a[e + 2])))
        for e in range(2): A("  v_add_f32 %s, %s, %s" % (v(a[e]), v(a[e]), v(a[e + 2])))
        dpp("v_add_f32", a[2], a[0], a[0], "row_ror:8", bm="0x3")
        dpp("v_add_f32", a[2], a[1], a[1], "row_ror:8", bm="0xc")
    def red16(a):
        red345(a)
        dpp("v_add_f32", a[0], a[2], a[2], "row_shl:4")
        dpp("v_add_f32", a[1], a[0], a[0], "quad_perm:[2,3,0,1]")
    def red16p(a, dst):
        for e in range(4): A("  v_permlane32_swap_b32 %s, %s" % (v(a[e]), v(a[e + 4])))
        for e in range(4): A("  v_add_f32 %s, %s, %s" % (v(a[e]), v(a[e]), v(a[e + 4])))
        for e in range(2): A("  v_permlane16_swap_b32 %s, %s" % (v(a[e]), v(a[e + 2])))
        for e in range(2): A("  v_add_f32 %s, %s, %s" % (v(a[e]), v(a[e]), v(a[e + 2])))
        for ctrl in ("row_ror:8", "row_shl:4", "quad_perm:[2,3,0,1]"):
            for e in range(2): dpp("v_add_f32", a[e], a[e], a[e], ctrl)
        A("  v_cvt_pk_bf16_f32 %s, %s, %s" % (v(dst), v(a[0]), v(a[1])))
    def sum8(q):
        A("  v_pk_add_f32 %s, %s, %s" % (v(q, 2), v(q, 2), v(q + 2, 2)))
        A("  v_pk_add_f32 %s, %s, %s" % (v(q + 4, 2), v(q + 4, 2), v(q + 6, 2)))
        A("  v_pk_add_f32 %s, %s, %s" % (v(q, 2), v(q, 2), v(q + 4, 2)))
        A("  v_add_f32 %s, %s, %s" % (v(q), v(q), v(q + 1)))
    def ln_stats(f, d, vMean, vSd, vR):
        A("  v_readfirstlane_b32 s36, %s" % v(f[0]))
        s1 = d[0]; s2 = d[1]; t = d[2]; t2 = d[3]
        A("  v_subrev_f32 %s, s36, %s" % (v(s1), v(f[1])))
        A("  v_subrev_f32 %s, s36, %s" % (v(t), v(f[0])))
        A("  v_mul_f32 %s, %s, %s" % (v(s2), v(s1), v(s1)))
        A("  v_add_f32 %s, %s, %s" % (v(s1), v(s1), v(t)))
        A("  v_fmac_f32 %s, %s, %s" % (v(s2), v(t), v(t)))
        for k in range(2, 8):
            tt = t if k % 2 else t2
            A("  v_subrev_f32 %s, s36, %s" % (v(tt), v(f[k])))
            A("  v_add_f32 %s, %s, %s" % (v(s1), v(s1), v(tt)))
            A("  v_fmac_f32 %s, %s, %s" % (v(s2), v(tt), v(tt)))
        for ctrl, rm in (("quad_perm:[1,0,3,2]", "0xf"), ("quad_perm:[2,3,0,1]", "0xf"), ("row_half_mirror", "0xf"),
                         ("row_mirror", "0xf"), ("row_bcast:15", "0xa"), ("row_bcast:31", "0xc")):
            dpp("v_add_f32", s1, s1, s1, ctrl, rm=rm)
            dpp("v_add_f32", s2, s2, s2, ctrl, rm=rm)
        A("  v_readlane_b32 s32, %s, 63" % v(s1))
        A("  v_readlane_b32 s33, %s, 63" % v(s2))
        A("  v_mov_b32 %s, %s" % (v(t), INV512))
        A("  v_mul_f32 %s, s32, %s" % (v(s1), v(t)))
        A("  v_mul_f32 %s, s33, %s" % (v(s2), v(t)))
        A("  v_add_f32 %s, s36, %s" % (v(vMean), v(s1)))
        A("  v_fma_f32 %s, -%s, %s, %s" % (v(s2), v(s1), v(s1), v(s2)))
        A("  v_max_f32 %s, 0, %s" % (v(s2), v(s2)))
        A("  v_cvt_pk_bf16_f32 %s, %s, %s" % (v(t), v(vMean), v(s2)))
        A("  v_lshlrev_b32 %s, 16, %s" % (v(vMean), v(t)))
        A("  v_and_b32 %s, 0xffff0000, %s" % (v(s2), v(t)))
        A("  v_add_f32 %s, %s, %s" % (v(s2), EPS, v(s2)))
        round_bf16(s2, s2)
        A("  v_sqrt_f32 %s, %s" % (v(s2), v(s2)))
        round_bf16(vSd, s2)
        A("  v_rcp_f32 %s, %s" % (v(vR), v(vSd)))
    def ln_apply(dst, flo, fhi, vMean, vSd, vR, t, newton):
        A("  v_sub_f32 %s, %s, %s" % (v(flo), v(flo), v(vMean)))
        A("  v_sub_f32 %s, %s, %s" % (v(fhi), v(fhi), v(vMean)))
        A("  v_cvt_pk_bf16_f32 %s, %s, %s" % (v(dst), v(flo), v(fhi)))
        unpack(flo, fhi, dst)
        if newton:
            A("  v_mul_f32 %s, %s, %s" % (v(t[0]), v(flo), v(vR)))
            A("  v_mul_f32 %s, %s, %s" % (v(t[1]), v(fhi), v(vR)))
            A("  v_fma_f32 %s, -%s, %s, %s" % (v(flo), v(t[0]), v(vSd), v(flo)))
            A("  v_fma_f32 %s, -%s, %s, %s" % (v(fhi), v(t[1]), v(vSd), v(fhi)))
            A("  v_fma_f32 %s, %s, %s, %s" % (v(flo), v(flo), v(vR), v(t[0])))
            A("  v_fma_f32 %s, %s, %s, %s" % (v(fhi), v(fhi), v(vR), v(t[1])))
        else:
            A("  v_mul_f32 %s, %s, %s" % (v(flo), v(flo), v(vR)))
            A("  v_mul_f32 %s, %s, %s" % (v(fhi), v(fhi), v(vR)))
        A("  v_cvt_pk_bf16_f32 %s, %s, %s" % (v(dst), v(flo), v(fhi)))
    def next_slot(r):
        A("  s_add_u32 %s, %s, 4096\n  s_and_b32 %s, %s, 0x3fff\n  s_or_b32 %s, %s, %s" % (s(r), s(r), s(r), s(r), s(r), s(r), s(sWB)))
    def issueK():
        A("  s_mov_b32 m0, %s" % s(sSlotI))
        for g in range(4):
            A("  buffer_load_dwordx4 %s, s[4:7], %s offen offset:%d %s lds" % (v(vKd[g]), s(sOff), g * 1024, P["kvflag"]))
        A("  s_add_u32 %s, %s, 32768" % (s(sOff), s(sOff)))
        next_slot(sSlotI)
    def issueV():
        A("  s_mov_b32 m0, %s" % s(sSlotI))
        for g in range(4):
            A("  buffer_load_dwordx4 %s, s[8:11], %s offen offset:%d %s lds" % (v(vVd), s(sOff), g * 1024, P["kvflag"]))
        A("  s_add_u32 %s, %s, 32768" % (s(sOff), s(sOff)))
        next_slot(sSlotI)
    RT = 112
    NR = P["NR"]
    def issueR(r):
        for g in range(4):
            A("  buffer_load_dwordx4 %s, %s, s[4:7], %s offen offset:%d %s" % (v(RT + 16 * r + 4 * g, 4), v(vKd[g]), s(sOff), g * 1024, P["kvflag"]))
        A("  s_add_u32 %s, %s, 32768" % (s(sOff), s(sOff)))
    nslow = [0]
    def hstore(text):
        k = nslow[0]; nslow[0] += 1
        A("  s_cmp_eq_u32 %s, 1" % s(sFast))
        A("  s_cbranch_scc0 L_slow%d" % k)
        A("  " + text)
        A("L_slowret%d:" % k)
        late.append("L_slow%d:\n  %s sc1\n  s_branch L_slowret%d" % (k, text, k))
    def poll_end(label):
        A("  s_cbranch_scc1 %s_ok" % label)
        if P["psleep"]: A("  s_sleep %d" % P["psleep"])
        A("  s_sub_u32 %s, %s, 1" % (s(sSpin), s(sSpin)))
        A("  s_cmp_lg_u32 %s, 0" % s(sSpin))
        A("  s_cbranch_scc1 %s" % label)
        A("  s_mov_b32 %s, 1" % s(sSpin))
        A("%s_ok:" % label)
    def chk_tag(regs, t, stag, mask=None):
        A("  v_xor_b32 %s, %s, %s" % (v(t), s(stag), v(regs[0])))
        for r in regs[1:]: A("  v_bitop3_b32 %s, %s, %s, %s bitop3:0xf6" % (v(t), v(t), v(r), s(stag)))
        if mask: A("  v_and_b32 %s, %s, %s" % (v(t), mask, v(t)))
        A("  v_cmp_eq_u32 vcc, 0, %s" % v(t))
        A("  s_cmp_eq_u64 vcc, -1")
    def chk_clean(regs, t, stag, mask):
        for r in regs: A("  v_xor_b32 %s, %s, %s" % (v(r), s(stag), v(r)))
        if len(regs) == 8:
            A("  v_or3_b32 %s, %s, %s, %s" % (v(t), v(regs[0]), v(regs[1]), v(regs[2])))
            A("  v_or3_b32 %s, %s, %s, %s" % (v(t + 1), v(regs[3]), v(regs[4]), v(regs[5])))
            A("  v_or3_b32 %s, %s, %s, %s" % (v(t), v(t), v(regs[6]), v(regs[7])))
            A("  v_bitop3_b32 %s, %s, %s, %s bitop3:0xa8" % (v(t), v(t), v(t + 1), mask))
        else:
            A("  v_or3_b32 %s, %s, %s, %s" % (v(t), v(regs[0]), v(regs[1]), v(regs[2])))
            A("  v_bitop3_b32 %s, %s, %s, %s bitop3:0xa8" % (v(t), v(t), v(regs[3]), mask))
        A("  v_cmp_eq_u32 vcc, 0, %s" % v(t))
        A("  s_cmp_eq_u64 vcc, -1")
    def chk_clean2(dst, src, t, stag, mask):
        for d_, r in zip(dst, src): A("  v_xor_b32 %s, %s, %s" % (v(d_), s(stag), v(r)))
        A("  v_or3_b32 %s, %s, %s, %s" % (v(t), v(dst[0]), v(dst[1]), v(dst[2])))
        A("  v_or3_b32 %s, %s, %s, %s" % (v(t + 1), v(dst[3]), v(dst[4]), v(dst[5])))
        A("  v_or3_b32 %s, %s, %s, %s" % (v(t), v(t), v(dst[6]), v(dst[7])))
        A("  v_bitop3_b32 %s, %s, %s, %s bitop3:0xa8" % (v(t), v(t), v(t + 1), mask))
        A("  v_cmp_eq_u32 vcc, 0, %s" % v(t))
        A("  s_cmp_eq_u64 vcc, -1")
    def poll_pipe(label, nsets, nld, load, check, preissued=0, sleep=0):
        for k in range(preissued, nsets): load(k)
        A("%s:" % label)
        for k in range(nsets):
            A("  s_waitcnt vmcnt(%d)" % (nld * (nsets - 1)))
            check(k)
            A("  s_cbranch_scc1 %s_ok" % label)
            if sleep: A("  s_sleep %d" % sleep)
            load(k)
        A("  s_sub_u32 %s, %s, 1" % (s(sSpin), s(sSpin)))
        A("  s_cmp_lg_u32 %s, 0" % s(sSpin))
        A("  s_cbranch_scc1 %s" % label)
        A("  s_mov_b32 %s, 1" % s(sSpin))
        A("%s_ok:" % label)
    def wperm(dst, tb, n=2):
        for h in range(n):
            for c in range(4):
                A("  v_perm_b32 %s, %s, %s, %s" % (v(dst + 8 * h + 2 * c), v(tb + 8 * h + 4 + c), v(tb + 8 * h + c), s(sSelLo)))
                A("  v_perm_b32 %s, %s, %s, %s" % (v(dst + 8 * h + 2 * c + 1), v(tb + 8 * h + 4 + c), v(tb + 8 * h + c), s(sSelHi)))

    hdr = open("cdna_kernels/%s.s.ref" % NAME.replace("_kernel", "")).read().split("\n")
    for h in hdr:
        if h.startswith(";") and "@launch" not in h and "Override" not in h and "grid=ceil" not in h: A(h)
    A("; @launch grid=(256,1,1) block=(512,1,1) lds=%d" % LDS_TOTAL)
    A('.amdgcn_target "amdgcn-amd-amdhsa--gfx950"')
    A(".text\n.globl %s\n.p2align 8\n.type %s,@function\n%s:" % (NAME, NAME, NAME))
    HEAD = L; L = []; A = L.append
    stamp(0)
    A("  s_cmp_ge_u32 s2, 256\n  s_cbranch_scc1 L_done")
    A("  s_load_dwordx8 s[44:51], s[0:1], 0")
    A("  s_load_dwordx2 s[12:13], s[0:1], 88")
    A("  s_load_dwordx2 s[52:53], s[0:1], 32")
    A("  s_load_dwordx8 s[56:63], s[0:1], 48")
    if P["codepf"]:
        A("  s_getpc_b64 s[16:17]")
        A("L_pc:")
        A("  s_sub_u32 s16, s16, L_pc-%s\n  s_subb_u32 s17, s17, 0" % NAME)
        A("  v_lshlrev_b32 %s, 4, v0" % v(T[9]))
        A("  global_load_dwordx4 %s, %s, s[16:17]" % (v(U[8], 4), v(T[9])))
        A("  v_add_u32 %s, 0x2000, %s" % (v(T[9]), v(T[9])))
        A("  v_min_u32 %s, L_codeend-%s-16, %s" % (v(T[9]), NAME, v(T[9])))
        A("  global_load_dwordx4 %s, %s, s[16:17]" % (v(U[12], 4), v(T[9])))
    A("  v_and_b32 %s, 63, v0" % v(vLane))
    A("  v_lshrrev_b32 %s, 6, v0" % v(T[0]))
    A("  v_readfirstlane_b32 %s, %s" % (s(sWave), v(T[0])))
    A("  v_lshlrev_b32 %s, 4, %s" % (v(vL16), v(vLane)))
    A("  s_lshr_b32 %s, s2, 5\n  s_and_b32 %s, s2, 31\n  s_lshr_b32 %s, s2, 3" % (s(sG), s(sI), s(sJ)))
    A("  s_and_b32 s32, s2, 7\n  s_cmp_eq_u32 s32, 0\n  s_cselect_b32 %s, 1, 0" % s(sTail))
    A("  s_movk_i32 s33, %d\n  s_cselect_b32 s33, %d, s33" % (X, Y))
    A("  v_lshrrev_b32 %s, 3, %s" % (v(T[3]), v(vLane)))
    A("  v_and_b32 %s, 7, %s" % (v(T[4]), v(vLane)))
    A("  s_lshr_b32 s35, %s, 3\n  s_lshl_b32 s34, s35, 6\n  s_lshl_b32 s36, %s, 3\n  s_add_u32 s34, s34, s36" % (s(sI), s(sWave)))
    A("  v_add_u32 %s, s34, %s" % (v(T[2]), v(T[3])))
    A("  v_lshlrev_b32 %s, 14, %s" % (v(T[1]), v(T[2])))
    A("  v_lshl_add_u32 %s, %s, 4, %s" % (v(T[1]), v(T[4]), v(T[1])))
    A("  v_lshlrev_b32 %s, 2, %s" % (v(T[2]), v(T[2])))
    A("  s_lshl_b32 s34, %s, 10\n  s_lshl_b32 s36, s32, 7\n  s_add_u32 s34, s34, s36" % s(sG))
    A("  v_add_u32 %s, s34, %s" % (v(T[1]), v(T[1])))
    A("  v_add_u32 %s, 0x2000, %s" % (v(T[5]), v(T[1])))
    A("  s_lshl_b32 s54, %s, 14\n  s_lshl_b32 s35, s35, 12\n  s_add_u32 s54, s54, s35\n  s_lshl_b32 s35, s32, 9\n  s_add_u32 s54, s54, s35\n  s_add_u32 s54, s54, %d" % (s(sG), QG))
    A("  v_lshrrev_b32 %s, 4, %s" % (v(T[6]), v(vLane)))
    A("  v_and_b32 %s, 15, %s" % (v(T[7]), v(vLane)))
    A("  v_xor_b32 %s, %s, %s" % (v(T[8]), v(T[6]), v(T[7])))
    A("  v_lshlrev_b32 %s, 4, %s" % (v(T[8]), v(T[8])))
    A("  v_lshl_add_u32 %s, %s, 8, %s" % (v(vKd[0]), v(T[6]), v(T[8])))
    for g in range(1, 4): A("  v_xor_b32 %s, %d, %s" % (v(vKd[g]), 64 * g, v(vKd[0])))
    E = X - 128
    assert Y == 128 - 7 * E
    A("  s_lshl_b32 s34, s2, 19\n  s_cmp_eq_u32 %s, 1\n  s_cselect_b32 %s, 0, %d" % (s(sTail), s(sThr), E))
    A("  s_mov_b32 s35, %d\n  s_cselect_b32 s35, %d, s35\n  s_add_u32 %s, s34, s35" % ((-E * 4096) & 0xffffffff, (128 - Y) * 4096, s(sOff0)))
    A("  s_andn2_b32 s34, s2, 7\n  s_lshl_b32 s34, s34, 19\n  s_mul_i32 s35, s32, %d\n  s_add_u32 s34, s34, s35\n  s_add_u32 %s, s34, %d" % (E * 4096, s(sOffX), (-E * 4096) & 0xffffffff))
    A("  s_mov_b32 %s, s33\n  s_lshl_b32 %s, s33, 1" % (s(sCnt1), s(sCnt2)))
    A("  s_lshl_b32 s34, %s, 12" % s(sWave))
    A("  s_lshl_b32 %s, %s, 14" % (s(sWB), s(sWave)))
    assert E <= 8
    A("  s_cmp_lt_u32 %s, %s\n  s_cselect_b32 s35, %s, %s" % (s(sWave), s(sThr), s(sOffX), s(sOff0)))
    A("  s_mov_b32 %s, %s\n  s_mov_b32 %s, %s\n  s_add_u32 %s, s35, s34" % (s(sSlotC), s(sWB), s(sSlotI), s(sWB), s(sOff)))
    A("  s_add_u32 s55, %s, s34\n  s_add_u32 s55, s55, 32768" % s(sOff0))
    A("  s_mov_b32 s6, 0x8000000\n  s_mov_b32 s7, 0x20000\n  s_mov_b32 s10, 0x8000000\n  s_mov_b32 s11, 0x20000")
    A("  s_waitcnt lgkmcnt(0)")
    stamp("a")
    XD = U[0]; XP = U[4]; WA = F; WB_ = F + 4
    A("  global_load_dwordx4 %s, %s, s[44:45]" % (v(XD, 4), v(vL16)))
    A("  global_load_dword %s, %s, s[44:45]" % (v(XP), v(T[2])))
    A("  global_load_dwordx4 %s, %s, s[50:51] %s" % (v(WA, 4), v(T[1]), P["wqflag"]))
    A("  global_load_dwordx4 %s, %s, s[50:51] %s" % (v(WB_, 4), v(T[5]), P["wqflag"]))
    A("  s_load_dword %s, s[12:13], %d" % (s(sTag), EPOCH))
    A("  s_mov_b32 s4, s46\n  s_and_b32 s5, s47, 0xffff\n  s_mov_b32 s8, s48\n  s_and_b32 s9, s49, 0xffff")
    A("  s_mov_b64 s[50:51], s[44:45]")
    def s3prep():
        A("  s_movk_i32 s34, 3584\n  v_mul_lo_u32 %s, %s, s34" % (v(U[5]), v(T[3])))
        A("  v_lshlrev_b32 %s, 4, %s" % (v(U[6]), v(T[4])))
        A("  s_cmp_lt_u32 %s, 28\n  s_cselect_b32 s66, 1835008, 0\n  s_mov_b32 s67, 0x20000" % s(sJ))
    def s3dma(mat, k0, k1):
        A("  s_mov_b32 s64, s%d\n  s_and_b32 s65, s%d, 0xffff" % (56 + 2 * mat, 57 + 2 * mat))
        A("  s_mul_i32 s34, %s, %d\n  s_lshl_b32 s35, %s, 7\n  s_add_u32 s34, s34, s35\n  s_add_u32 s34, s34, %d" % (s(sWave), 64 * 3584, s(sJ), k0 * 8 * 3584))
        A("  s_lshl_b32 s35, %s, 13\n  s_add_u32 s35, s35, %d" % (s(sWave), mat * 65536 + k0 * 1024))
        for k in range(k0, k1):
            A("  v_xor_b32 %s, %d, %s\n  v_add_u32 %s, %s, %s" % (v(U[7]), 16 * k, v(U[6]), v(U[7]), v(U[5]), v(U[7])))
            A("  s_mov_b32 m0, s35")
            A("  buffer_load_dwordx4 %s, s[64:67], s34 offen %s lds" % (v(U[7]), P["wflag"]))
            A("  s_add_u32 s34, s34, %d\n  s_add_u32 s35, s35, 1024" % (8 * 3584))
    if P["ordbar"]: A("  s_barrier")
    A("  s_cmp_eq_u32 %s, 1\n  s_cbranch_scc1 L_tburst" % s(sTail))
    issueK()
    A("  s_mov_b32 %s, s55" % s(sOff))
    A("L_tburstret:")
    Lsave = L; L = []; A = L.append
    A("L_tburst:")
    s3prep(); s3dma(0, 0, 4)
    A("  s_branch L_tburstret")
    late.append("\n".join(L)); L = Lsave; A = L.append
    A("  v_lshlrev_b32 %s, 8, %s" % (v(vKrd), v(T[7])))
    A("  v_add_u32 %s, %s, %s" % (v(vKrd), v(vKrd), v(T[8])))
    A("  v_lshlrev_b32 %s, 10, %s" % (v(vVrd), v(T[6])))
    A("  v_lshl_add_u32 %s, %s, 3, %s" % (v(vVrd), v(T[7]), v(vVrd)))
    A("  v_bfe_u32 %s, %s, 1, 2" % (v(T[9]), v(vLane)))
    A("  v_lshlrev_b32 %s, 8, %s" % (v(vVd), v(T[9])))
    A("  v_lshl_add_u32 %s, %s, 5, %s" % (v(vVd), v(T[3]), v(vVd)))
    A("  v_and_b32 %s, 1, %s" % (v(T[9]), v(vLane)))
    A("  v_lshl_add_u32 %s, %s, 4, %s" % (v(vVd), v(T[9]), v(vVd)))
    A("  s_mul_i32 s34, %s, 2560\n  s_add_u32 s34, s34, %d" % (s(sWave), SC))
    A("  v_and_b32 %s, 3, %s" % (v(T[9]), v(vLane)))
    A("  v_lshl_add_u32 %s, %s, 2, %s" % (v(T[10]), v(T[6]), v(T[9])))
    A("  v_lshlrev_b32 %s, 3, %s" % (v(T[10]), v(T[10])))
    A("  v_add_u32 %s, %d, %s" % (v(vSb), SC, v(T[10])))
    A("  v_add_u32 %s, s34, %s" % (v(vSr), v(T[10])))
    A("  v_bfe_u32 %s, %s, 2, 2" % (v(T[10]), v(vLane)))
    A("  v_lshl_add_u32 %s, %s, 7, %s" % (v(vSr), v(T[10]), v(vSr)))
    A("  v_mov_b32 %s, %d\n  v_mov_b32 %s, %d" % (v(vTkA), TK, v(vTk), 32 + 8 * NR))
    A("  ds_write_b32 %s, %s" % (v(vTkA), v(vTk)))
    A("  v_mov_b32 %s, 0xff80ff80\n  v_mov_b32 %s, 0xff80ff80" % (v(T[10]), v(T[11])))
    for k in range(5): A("  ds_write_b64 %s, %s offset:%d" % (v(vSr), v(T[10], 2), k * 512))
    A("  v_lshrrev_b32 %s, 5, %s" % (v(T[12]), v(vLane)))
    A("  v_lshlrev_b32 %s, 3, %s" % (v(T[15]), v(T[4])))
    A("  v_lshl_add_u32 %s, %s, 2, %s" % (v(T[15]), v(T[12]), v(T[15])))
    A("  v_bfe_u32 %s, %s, 4, 1" % (v(T[12]), v(vLane)))
    A("  v_lshl_add_u32 %s, %s, 1, %s" % (v(T[15]), v(T[12]), v(T[15])))
    A("  v_bfe_u32 %s, %s, 3, 1" % (v(T[12]), v(vLane)))
    A("  v_add_u32 %s, %s, %s" % (v(T[15]), v(T[12]), v(T[15])))
    A("  s_lshl_b32 s34, %s, 2\n  s_add_u32 s34, s34, %d" % (s(sWave), RED0))
    A("  v_lshl_add_u32 %s, %s, 5, s34" % (v(T[15]), v(T[15])))
    A("  s_mov_b32 %s, 0x05040100\n  s_mov_b32 %s, 0x07060302\n  s_movk_i32 %s, 0xff" % (s(sSelLo), s(sSelHi), s(sFF)))
    A("  s_mov_b32 %s, %d\n  s_mov_b32 %s, 0" % (s(sSpin), P["spin"], s(sFast)))
    A("  s_sub_u32 s34, %s, %d\n  s_cmp_eq_u32 %s, 0\n  s_cselect_b32 %s, s34, -1" % (s(sCnt2), max(P["gthr"], P["deepV"]), s(sWave), s(sTrig)))
    A("  s_getreg_b32 %s, hwreg(HW_REG_XCC_ID, 0, 4)" % s(sXcc))
    stamp("b")
    A("  s_waitcnt vmcnt(7)")
    f = T[0:8]; d = T[8:12]; vMean = T[12]; vSd = T[13]; vR = T[14]
    for k in range(4): unpack(f[2 * k], f[2 * k + 1], XD + k)
    ln_stats(f, d, vMean, vSd, vR)
    A("  s_waitcnt vmcnt(6)")
    unpack(f[0], f[1], XP)
    ln_apply(XP, f[0], f[1], vMean, vSd, vR, [f[2], f[3]], True)
    A("  s_waitcnt vmcnt(4) lgkmcnt(0)")
    stamp("e")
    A("  s_add_u32 %s, %s, 1\n  s_and_b32 %s, %s, 0xff" % (s(sTag), s(sTag), s(sT8), s(sTag)))
    A("  v_mov_b32 %s, %s" % (v(vT8), s(sT8)))
    a = T[0:8]
    wperm(F + 8, F, 1)
    for e in range(8):
        A("  v_dot2_f32_bf16 %s, %s, %s, 0" % (v(a[e]), v(F + 8 + e), v(XP)))
    red345(a)
    A("  ds_write_b32 %s, %s" % (v(T[15]), v(a[2])))
    stamp("f")
    A("  s_waitcnt lgkmcnt(0)\n  s_barrier")
    stamp("g")
    A("  s_cmp_lg_u32 %s, 0\n  s_cbranch_scc1 L_noq" % s(sWave))
    A("  v_lshlrev_b32 %s, 5, %s\n  v_add_u32 %s, %d, %s" % (v(T[0]), v(vLane), v(T[0]), RED0, v(T[0])))
    A("  ds_read_b128 %s, %s" % (v(F, 4), v(T[0])))
    A("  ds_read_b128 %s, %s offset:16" % (v(F + 4, 4), v(T[0])))
    A("  v_lshl_add_u32 %s, %s, 3, s54" % (v(T[1]), v(vLane)))
    A("  s_waitcnt lgkmcnt(0)")
    sum8(F)
    A("  v_mov_b32 %s, %s" % (v(F + 1), s(sTag)))
    A("  global_store_dwordx2 %s, %s, s[12:13] sc1" % (v(T[1]), v(F, 2)))
    if P["p1bf"]:
        A("  v_lshrrev_b32 %s, 4, %s\n  v_and_b32 %s, 15, %s" % (v(T[2]), v(vLane), v(T[3]), v(vLane)))
        A("  s_lshl_b32 s34, %s, 15\n  s_lshl_b32 s35, %s, 8\n  s_add_u32 s34, s34, s35\n  s_add_u32 s34, s34, %d" % (s(sG), s(sI), P1))
        A("  v_lshl_add_u32 %s, %s, 13, s34\n  v_lshl_add_u32 %s, %s, 4, %s" % (v(T[2]), v(T[2]), v(T[2]), v(T[3]), v(T[2])))
        for k in range(4): A("  v_mov_b32 %s, -1" % v(F + 4 + k))
        A("  global_store_dwordx4 %s, %s, s[12:13] sc1" % (v(T[2]), v(F + 4, 4)))
    A("L_noq:")
    A("  s_barrier")
    stamp(1)
    A("  s_lshl_b32 s34, %s, 14\n  s_lshl_b32 s35, %s, 9\n  s_add_u32 s34, s34, s35\n  s_add_u32 s34, s34, %d" % (s(sG), s(sWave), QG))
    A("  v_lshrrev_b32 %s, 4, %s\n  v_and_b32 %s, 15, %s" % (v(T[2]), v(vLane), v(T[3]), v(vLane)))
    A("  v_lshl_add_u32 %s, %s, 12, s34\n  v_lshl_add_u32 %s, %s, 5, %s" % (v(T[0]), v(T[2]), v(T[0]), v(T[3]), v(T[0])))
    A("  s_lshl_b32 s34, %s, 7\n  s_add_u32 s34, s34, %d" % (s(sWave), QL))
    A("  v_lshl_add_u32 %s, %s, 3, s34" % (v(T[1]), v(T[3])))
    A("  v_lshrrev_b32 %s, 1, %s\n  v_and_b32 %s, 1, %s" % (v(T[3]), v(T[2]), v(T[2]), v(T[2])))
    A("  v_lshl_add_u32 %s, %s, 2, %s\n  v_lshl_add_u32 %s, %s, 1, %s" % (v(T[1]), v(T[3]), v(T[1]), v(T[1]), v(T[2]), v(T[1])))
    G0 = U[0]; G1 = U[4]
    GQ = F + 8
    def qpoll_issue():
        A("  global_load_dwordx4 %s, %s, s[12:13] sc1" % (v(GQ, 4), v(T[0])))
        A("  global_load_dwordx4 %s, %s, s[12:13] offset:16 sc1" % (v(GQ + 4, 4), v(T[0])))
    def qpoll_check():
        chk_tag([GQ + 1, GQ + 3, GQ + 5, GQ + 7], T[2], sTag)
    def qwrite():
        G0 = GQ
        for e in range(2): A("  v_permlane32_swap_b32 %s, %s" % (v(G0 + 2 * e), v(G0 + 2 * e + 4)))
        for e in range(2): A("  v_add_f32 %s, %s, %s" % (v(G0 + 2 * e), v(G0 + 2 * e), v(G0 + 2 * e + 4)))
        A("  v_permlane16_swap_b32 %s, %s" % (v(G0), v(G0 + 2)))
        A("  v_add_f32 %s, %s, %s" % (v(G0), v(G0), v(G0 + 2)))
        A("  v_cvt_pk_bf16_f32 %s, %s, %s" % (v(G0), v(G0), v(G0)))
        A("  ds_write_b16 %s, %s" % (v(T[1]), v(G0)))
    Lsave = L; L = []; A = L.append
    A("L_tailpro:")
    A("  s_cmp_lg_u32 %s, 7\n  s_cbranch_scc1 L_noreg" % s(sWave))
    A("  s_lshl_b32 s34, %s, 3\n  s_add_u32 s34, s34, %d" % (s(sJ), REG))
    A("  v_mov_b32 %s, s34\n  v_mov_b32 %s, %s\n  v_mov_b32 %s, %s" % (v(T[9]), v(T[10]), s(sXcc), v(T[11]), s(sTag)))
    A("  s_mov_b64 exec, 1")
    A("  global_store_dwordx2 %s, %s, s[12:13] sc1" % (v(T[9]), v(T[10], 2)))
    A("  s_mov_b64 exec, -1")
    A("L_noreg:")
    s3dma(0, 4, 8)
    A("  s_waitcnt vmcnt(4)")
    s3dma(1, 0, 8)
    A("  s_lshl_b32 s34, %s, 5" % s(sJ))
    A("  v_and_b32 %s, 1, %s\n  v_lshrrev_b32 %s, 5, %s\n  v_lshlrev_b32 %s, 3, %s" % (v(T[5]), v(vLane), v(T[6]), v(vLane), v(T[5]), v(T[5])))
    A("  v_lshl_add_u32 %s, %s, 2, %s\n  v_bfe_u32 %s, %s, 4, 1" % (v(T[5]), v(T[6]), v(T[5]), v(T[6]), v(vLane)))
    A("  v_lshl_add_u32 %s, %s, 1, %s\n  v_bfe_u32 %s, %s, 3, 1" % (v(T[5]), v(T[6]), v(T[5]), v(T[6]), v(vLane)))
    A("  v_add_u32 %s, %s, %s\n  v_lshl_add_u32 %s, %s, 1, s34" % (v(T[5]), v(T[6]), v(T[5]), v(T[5]), v(T[5])))
    A("  global_load_ushort %s, %s, s[50:51]" % (v(vXres), v(T[5])))
    nA = P["nA"]
    vWd = U[13]; vWr = U[14]
    def wprep():
        A("  v_lshrrev_b32 %s, 3, %s\n  v_and_b32 %s, 7, %s" % (v(vWd), v(vLane), v(T[5]), v(vLane)))
        A("  v_lshlrev_b32 %s, 10, %s\n  v_lshl_add_u32 %s, %s, 4, %s" % (v(vWd), v(vWd), v(vWd), v(T[5]), v(vWd)))
        A("  v_bfe_u32 %s, %s, 5, 1\n  v_lshlrev_b32 %s, 4, %s" % (v(T[5]), v(vLane), v(vWr), v(T[5])))
        A("  v_bfe_u32 %s, %s, 4, 1\n  v_lshl_add_u32 %s, %s, 2, %s" % (v(T[5]), v(vLane), v(vWr), v(T[5]), v(vWr)))
        A("  v_bfe_u32 %s, %s, 2, 1\n  v_add_u32 %s, %s, %s" % (v(T[5]), v(vLane), v(vWr), v(T[5]), v(vWr)))
        A("  v_bfe_u32 %s, %s, 3, 1\n  v_lshl_add_u32 %s, %s, 3, %s" % (v(T[5]), v(vLane), v(vWr), v(T[5]), v(vWr)))
        A("  v_lshlrev_b32 %s, 7, %s" % (v(vWr), v(vWr)))
    def wround_issue(k, sslot):
        if k in (0, 4) or k == nA:
            if k < 4:
                A("  s_mov_b32 s64, s52\n  s_and_b32 s65, s53, 0xffff\n  s_mov_b32 s66, 0x400000\n  s_mov_b32 s67, 0x20000")
                A("  s_lshl_b32 s14, %s, 17\n  s_lshl_b32 s35, %s, 7\n  s_add_u32 s14, s14, s35\n  s_add_u32 s14, s14, %d" % (s(sJ), s(sWave), k * 32768))
            else:
                A("  s_mov_b32 s64, s60\n  s_and_b32 s65, s61, 0xffff\n  s_mov_b32 s66, 1835008\n  s_mov_b32 s67, 0x20000")
                A("  s_lshl_b32 s14, %s, 16\n  s_lshl_b32 s35, %s, 7\n  s_add_u32 s14, s14, s35\n  s_add_u32 s14, s14, %d" % (s(sJ), s(sWave), (k - 4) * 32768))
        for q_ in range(4):
            A("  s_add_u32 m0, %s, %d" % (s(sslot), 1024 * q_))
            A("  buffer_load_dwordx4 %s, s[64:67], s14 offen %s lds" % (v(vWd), P["wflag"]))
            A("  s_add_u32 s14, s14, 8192")
    def wround_read(k, sslot):
        A("  v_and_b32 %s, 3, %s\n  v_lshl_add_u32 %s, %s, 3, %s\n  v_add_u32 %s, %s, %s" % (v(T[5]), v(vLane), v(T[5]), v(T[5]), v(vWr), v(T[5]), s(sslot), v(T[5])))
        for t in range(4):
            dst = (W2 + 8 * (2 * t + (k >> 1)) + 4 * (k & 1)) if k < 4 else (W4 + 8 * t + 4 * (k & 1))
            for hh in range(2):
                A("  ds_read_b64_tr_b16 %s, %s offset:%d" % (v(dst + 2 * hh, 2), v(T[5]), 256 * hh + 32 * t))
        A("  s_waitcnt lgkmcnt(0)")
    def wrun(k0, k1):
        A("  s_mov_b32 s48, %s\n  s_add_u32 s49, s48, 4096\n  s_and_b32 s49, s49, 0x3fff\n  s_or_b32 s49, s49, %s" % (s(sSlotI), s(sWB)))
        ks = list(range(k0, k1))
        for n, k in enumerate(ks):
            wround_issue(k, 48 + n % 2)
            if n > 0:
                A("  s_waitcnt vmcnt(4)"); wround_read(ks[n - 1], 48 + (n - 1) % 2)
        A("  s_waitcnt vmcnt(0)"); wround_read(ks[-1], 48 + (len(ks) - 1) % 2)
    wprep()
    A("  s_waitcnt vmcnt(0)")
    A("  v_lshlrev_b32 %s, 16, %s" % (v(vXres), v(vXres)))
    A("L_tqpoll:")
    qpoll_issue()
    A("  s_waitcnt vmcnt(0)")
    qpoll_check()
    poll_end("L_tqpoll")
    qwrite()
    A("  s_waitcnt lgkmcnt(0)\n  s_barrier")
    A("  v_bfe_u32 %s, %s, 5, 1\n  v_bfe_u32 %s, %s, 3, 1\n  v_lshl_add_u32 %s, %s, 1, %s" % (v(T[3]), v(vLane), v(T[4]), v(vLane), v(T[3]), v(T[3]), v(T[4])))
    A("  v_xor_b32 %s, %s, %s\n  v_lshl_add_u32 %s, %s, 4, %s" % (v(T[3]), s(sWave), v(T[3]), v(T[3]), v(T[3]), v(vWr)))
    A("  v_and_b32 %s, 1, %s\n  v_lshl_add_u32 %s, %s, 3, %s" % (v(T[4]), v(vLane), v(T[3]), v(T[4]), v(T[3])))
    A("  v_bfe_u32 %s, %s, 1, 1\n  v_lshl_add_u32 %s, %s, 16, %s" % (v(T[4]), v(vLane), v(T[3]), v(T[4]), v(T[3])))
    A("  v_xor_b32 %s, 64, %s" % (v(T[4]), v(T[3])))
    for R in range(16):
        for hh in range(2):
            A("  ds_read_b64_tr_b16 %s, %s offset:%d" % (v(W3A + 4 * R + 2 * hh, 2), v(T[3 + (R & 1)]), 4096 * R + 256 * hh))
        if R % 4 == 3: A("  s_waitcnt lgkmcnt(0)")
    A("  s_barrier")
    if nA: wrun(0, nA)
    for k in range(4): issueK()
    for r in range(NR):
        A("  s_waitcnt vmcnt(8)")
        issueR(r)
    A("  s_branch L_qops")
    late.append("\n".join(L)); L = Lsave; A = L.append

    A("  s_cmp_eq_u32 %s, 1\n  s_cbranch_scc1 L_tailpro" % s(sTail))
    if P["paced"]:
        sQ = 55
        A("  s_lshl_b32 s34, %s, 14\n  s_lshl_b32 s35, %s, 9\n  s_add_u32 s34, s34, s35\n  s_add_u32 s34, s34, %d" % (s(sG), s(sWave), QG))
        A("  s_add_u32 s44, s12, s34\n  s_addc_u32 s45, s13, 0\n  s_mov_b32 %s, 0" % s(sQ))
        nst = 3 + NR
        for k in range(1, nst + 1):
            A("  s_cmp_eq_u32 %s, 1\n  s_cbranch_scc1 L_ps%dq" % (s(sQ), k))
            A("  s_waitcnt vmcnt(%d)" % P["pw"])
            if k <= 3: issueK()
            else: issueR(k - 4)
            A("L_ps%dr:" % k)
            blk = []
            Lsave = L; L = blk; A = L.append
            A("L_ps%dq:" % k)
            A("  s_waitcnt vmcnt(%d)" % (2 + P["pw"]))
            if k <= 3: issueK()
            else: issueR(k - 4)
            A("  s_waitcnt vmcnt(4)")
            qpoll_check()
            A("  s_cselect_b32 %s, 2, 0\n  s_cbranch_scc0 L_ps%dr" % (s(sQ), k))
            qwrite()
            A("  s_branch L_ps%dr" % k)
            L = Lsave; A = L.append
            late.append("\n".join(blk))
            if k < nst:
                A("  s_cmp_lg_u32 %s, 0\n  s_cbranch_scc1 L_ps%de" % (s(sQ), k))
                for j in range(4): A("  s_load_dword s%d, s[44:45], %d glc" % (46 + j, 4096 * j + 508))
                A("  s_waitcnt lgkmcnt(0)")
                for j in range(4): A("  s_xor_b32 s%d, s%d, %s" % (46 + j, 46 + j, s(sTag)))
                A("  s_or_b32 s46, s46, s47\n  s_or_b32 s48, s48, s49\n  s_or_b32 s46, s46, s48\n  s_cmp_eq_u32 s46, 0")
                A("  s_cbranch_scc0 L_ps%de" % k)
                qpoll_issue()
                A("  s_mov_b32 %s, 1" % s(sQ))
                A("L_ps%de:" % k)
        stamp("h")
        A("  s_cmp_eq_u32 %s, 2\n  s_cbranch_scc1 L_qdone" % s(sQ))
        A("L_qpoll:")
        qpoll_issue()
        A("  s_waitcnt vmcnt(0)")
        qpoll_check()
        poll_end("L_qpoll")
        qwrite()
    A("L_qdone:")
    A("  s_waitcnt lgkmcnt(0)\n  s_barrier")
    A("L_qops:")
    stamp(2)
    A("  v_and_b32 %s, 3, %s\n  v_lshlrev_b32 %s, 8, %s" % (v(T[0]), v(vLane), v(T[0]), v(T[0])))
    A("  v_lshrrev_b32 %s, 4, %s\n  v_lshl_add_u32 %s, %s, 4, %s" % (v(T[1]), v(vLane), v(T[0]), v(T[1]), v(T[0])))
    A("  v_add_u32 %s, %d, %s" % (v(T[0]), QL, v(T[0])))
    for t in range(4): A("  ds_read_b128 %s, %s offset:%d" % (v(ACC + 4 * t, 4), v(T[0]), 64 * t))
    S = T[4:8]
    assert S[0] % 2 == 0
    nis = [0]
    def ticket_req():
        A("  s_mov_b64 exec, 1")
        A("  ds_add_rtn_u32 %s, %s, %s" % (v(vTk), v(vTkA), v(vOne)))
        A("  s_mov_b64 exec, -1")
    def issue_dyn(nyoung, kpossible, depth=None, push=False, vwait=None):
        k = nis[0]; nis[0] += 1
        A("  s_waitcnt lgkmcnt(%d)" % nyoung)
        A("  v_readfirstlane_b32 %s, %s" % (s(sTk), v(vTk)))
        ticket_req()
        if kpossible:
            A("  s_cmp_lt_u32 %s, %s\n  s_cbranch_scc0 L_isV%d" % (s(sTk), s(sCnt1), k))
            A("  s_cmp_lt_u32 %s, %s\n  s_cselect_b32 s35, %s, %s" % (s(sTk), s(sThr), s(sOffX), s(sOff0)))
            A("  s_lshl_b32 s34, %s, 12\n  s_add_u32 s34, s34, s35\n  s_mov_b32 m0, %s" % (s(sTk), s(sSlotI)))
            if vwait is not None: A("  s_waitcnt vmcnt(%d)" % vwait)
            for g in range(4):
                A("  buffer_load_dwordx4 %s, s[4:7], s34 offen offset:%d %s lds" % (v(vKd[g]), g * 1024, P["kvflag"]))
            A("L_isret%d:" % k)
            blk = ["L_isV%d:" % k]; B = blk.append
        else:
            B = A
        B("  s_sub_u32 s34, %s, %s\n  s_cmp_lt_u32 s34, %s\n  s_cselect_b32 s35, %s, %s" % (s(sTk), s(sCnt1), s(sThr), s(sOffX), s(sOff0)))
        B("  s_lshl_b32 s34, s34, 12\n  s_add_u32 s34, s34, s35")
        assert W == 1 and P["early"] == 0 and not P["deepV"]
        B("  s_mov_b32 m0, %s" % s(sSlotI))
        if not kpossible: B("  s_cmp_lt_u32 %s, %s" % (s(sTk), s(sCnt2)))
        if vwait is not None: B("  s_waitcnt vmcnt(%d)" % vwait)
        if not kpossible: B("  s_cbranch_scc0 L_isno%d" % k)
        for g in range(4):
            B("  buffer_load_dwordx4 %s, s[8:11], s34 offen offset:%d %s lds" % (v(vVd), g * 1024, P["kvflag"]))
        if not kpossible:
            B("L_isno%d:" % k)
        if kpossible:
            B("  s_branch L_isret%d" % k)
            late.append("\n".join(blk))
        next_slot(sSlotI)
        if push:
            A("  s_mov_b32 %s, %s" % (s(sF[depth]), s(sTk)))
        else:
            WW = depth or W
            for i in range(WW - 1): A("  s_mov_b32 %s, %s" % (s(sF[i]), s(sF[i + 1])))
            A("  s_mov_b32 %s, %s" % (s(sF[WW - 1]), s(sTk)))
    def kbody(wait, issue, sid):
        A("  s_lshl_b32 s34, %s, 7" % s(sid))
        A("  v_add_u32 %s, s34, %s" % (v(T[14]), v(vSb)))
        A("  v_add_u32 %s, %s, %s" % (v(T[0]), s(sSlotC), v(vKrd)))
        for t in range(1, 4): A("  v_xor_b32 %s, %d, %s" % (v(T[t]), 64 * t, v(T[0])))
        if issue:
            issue_dyn(0, True, vwait=wait)
        else:
            A("  s_waitcnt vmcnt(%d)" % wait)
        for t in range(4): A("  ds_read_b128 %s, %s" % (v(F + 4 * t, 4), v(T[t])))
        next_slot(sSlotC)
        for t in range(4):
            A("  s_waitcnt lgkmcnt(%d)" % (3 - t))
            A("  v_mfma_f32_16x16x32_bf16 %s, %s, %s, %s" % (v(S[0], 4), v(F + 4 * t, 4), v(ACC + 4 * t, 4), "0" if t == 0 else v(S[0], 4)))
        A("  v_cvt_pk_bf16_f32 %s, %s, %s" % (v(T[8]), v(S[0]), v(S[1])))
        A("  v_cvt_pk_bf16_f32 %s, %s, %s" % (v(T[9]), v(S[2]), v(S[3])))
        unpack(T[10], T[11], T[8]); unpack(T[12], T[13], T[9])
        for k in range(4): A("  v_mul_f32 %s, %s, %s" % (v(T[10 + k]), SCALE, v(T[10 + k])))
        A("  v_cvt_pk_bf16_f32 %s, %s, %s" % (v(T[8]), v(T[10]), v(T[11])))
        A("  v_cvt_pk_bf16_f32 %s, %s, %s" % (v(T[9]), v(T[12]), v(T[13])))
        setexec(0x000F000F000F000F)
        A("  ds_write_b64 %s, %s" % (v(T[14]), v(T[8], 2)))
        setexec(-1)
        A("  v_max3_f32 %s, %s, %s, %s" % (v(vMx), v(vMx), v(T[10]), v(T[11])))
        A("  v_max3_f32 %s, %s, %s, %s" % (v(vMx), v(vMx), v(T[12]), v(T[13])))
    assert T[8] % 2 == 0
    A("  v_mov_b32 %s, 0xff800000\n  v_mov_b32 %s, 1" % (v(vMx), v(vOne)))
    if P["nstream"] < 8:
        A("  s_cmp_ge_u32 %s, %d\n  s_cbranch_scc1 L_notk" % (s(sWave), P["nstream"]))
    ticket_req()
    A("L_notk:")
    A("  s_mov_b32 %s, %s" % (s(sF[0]), s(sWave)))
    A("  s_waitcnt lgkmcnt(0)")
    if NR:
        assert W == 1
        for i in range(4):
            kbody(4 * (3 - i + NR), False, sF[0])
            A("  s_add_u32 %s, %s, 8" % (s(sF[0]), s(sF[0])))
        A("  v_add_u32 %s, %s, %s" % (v(T[14]), s(sWB), v(vL16)))
        for r in range(NR):
            A("  s_waitcnt vmcnt(%d)" % (4 * (NR - 1 - r)))
            for g in range(4):
                A("  ds_write_b128 %s, %s offset:%d" % (v(T[14]), v(RT + 16 * r + 4 * g, 4), 4096 * r + 1024 * g))
            next_slot(sSlotI)
            if r < NR - 1:
                kbody(4 * (NR - 1 - r), False, sF[0])
                A("  s_add_u32 %s, %s, 8" % (s(sF[0]), s(sF[0])))
                A("  v_add_u32 %s, %s, %s" % (v(T[14]), s(sWB), v(vL16)))
    else:
      for i in range(4 - W):
        kbody(4 * (3 - i), False, sF[0])
        A("  s_add_u32 %s, %s, 8" % (s(sF[0]), s(sF[0])))
    for i in range(1, W): A("  s_add_u32 %s, %s, %d" % (s(sF[i]), s(sF[0]), 8 * i))
    if P["nstream"] < 8:
        A("  s_cmp_ge_u32 %s, %d\n  s_cbranch_scc1 L_idlek" % (s(sWave), P["nstream"]))
        Lsave = L; L = []; A = L.append
        A("L_idlek:")
        kbody(0, False, sF[0])
        A("  s_mov_b32 %s, 0x7fffffff\n  s_branch L_kdone" % s(sF[0]))
        late.append("\n".join(L)); L = Lsave; A = L.append
    A("L_kloop:")
    A("  s_mov_b32 s36, %s" % s(sF[0]))
    kbody(4 * (W - 1), True, 36)
    A("  s_cmp_lt_u32 %s, %s\n  s_cbranch_scc1 L_kloop" % (s(sF[0]), s(sCnt1)))
    A("L_kdone:")
    stamp(3)
    PK = F
    FL = ACC
    vM = T[0]; vLs = T[1]
    XV = P["extraV"]
    assert W + XV <= 4
    for i in range(XV): issue_dyn(0, False, depth=W + i, push=True)
    bfly_hi("v_max_f32", vMx, T[2])
    round_bf16(vMx, vMx)
    A("  s_lshl_b32 s34, %s, 2\n  s_add_u32 s34, s34, %d" % (s(sWave), MLT))
    A("  v_and_b32 %s, 3, %s\n  v_lshlrev_b32 %s, 5, %s" % (v(T[3]), v(vLane), v(T[3]), v(T[3])))
    A("  v_add_u32 %s, s34, %s\n  v_add_u32 %s, %d, %s" % (v(T[2]), v(T[3]), v(T[3]), MLT, v(T[3])))
    A("  s_mov_b64 exec, 0xf")
    A("  ds_write_b32 %s, %s" % (v(T[2]), v(vMx)))
    A("  s_mov_b64 exec, -1")
    A("  s_waitcnt lgkmcnt(0)" + ("" if P["notrans"] else "\n  s_barrier"))
    A("  ds_read_b128 %s, %s" % (v(U[0], 4), v(T[3])))
    A("  ds_read_b128 %s, %s offset:16" % (v(U[4], 4), v(T[3])))
    for k in range(5): A("  ds_read_b64 %s, %s offset:%d" % (v(PK + 2 * k, 2), v(vSr), 512 * k))
    A("  s_waitcnt lgkmcnt(5)")
    A("  v_max3_f32 %s, %s, %s, %s" % (v(vM), v(U[0]), v(U[1]), v(U[2])))
    A("  v_max3_f32 %s, %s, %s, %s" % (v(U[3]), v(U[3]), v(U[4]), v(U[5])))
    A("  v_max3_f32 %s, %s, %s, %s" % (v(vM), v(vM), v(U[6]), v(U[7])))
    A("  v_max_f32 %s, %s, %s" % (v(vM), v(vM), v(U[3])))
    A("  s_mov_b32 s34, %s" % LOG2E)
    A("  v_mul_f32 %s, s34, %s" % (v(T[4]), v(vM)))
    for k in range(5):
        A("  s_waitcnt lgkmcnt(%d)" % (4 - k))
        unpack(FL + 4 * k, FL + 4 * k + 1, PK + 2 * k); unpack(FL + 4 * k + 2, FL + 4 * k + 3, PK + 2 * k + 1)
    for k in range(20): A("  v_fma_f32 %s, %s, s34, -%s" % (v(FL + k), v(FL + k), v(T[4])))
    for k in range(20): A("  v_exp_f32 %s, %s" % (v(FL + k), v(FL + k)))
    for k in range(10): A("  v_cvt_pk_bf16_f32 %s, %s, %s" % (v(PK + k), v(FL + 2 * k), v(FL + 2 * k + 1)))
    for k in range(5): A("  ds_write_b64 %s, %s offset:%d" % (v(vSr), v(PK + 2 * k, 2), 512 * k))
    for k in range(10): A("  v_add_f32 %s, %s, %s" % (v(FL + k), v(FL + k), v(FL + 10 + k)))
    for k in range(5): A("  v_add_f32 %s, %s, %s" % (v(FL + k), v(FL + k), v(FL + 5 + k)))
    A("  v_add_f32 %s, %s, %s" % (v(FL), v(FL), v(FL + 1)))
    A("  v_add_f32 %s, %s, %s" % (v(FL + 2), v(FL + 2), v(FL + 3)))
    A("  v_add_f32 %s, %s, %s" % (v(FL), v(FL), v(FL + 4)))
    A("  v_add_f32 %s, %s, %s" % (v(vLs), v(FL), v(FL + 2)))
    allred_b2345("v_add_f32", vLs, T[5])
    A("  s_mov_b64 exec, 0xf")
    A("  ds_write_b32 %s, %s offset:128" % (v(T[2]), v(vLs)))
    A("  s_mov_b64 exec, -1")
    A("  v_mov_b32 %s, %s" % (v(vMx), v(vM)))
    aW = T[10]; aRd = T[11]; aRd2 = T[12]; aFt = T[13]; aSt = T[14]
    A("  v_and_b32 %s, 3, %s\n  s_movk_i32 s34, 576\n  v_mul_lo_u32 %s, %s, s34" % (v(aW), v(vLane), v(aW), v(aW)))
    A("  v_lshrrev_b32 %s, 4, %s\n  v_lshl_add_u32 %s, %s, 4, %s\n  v_add_u32 %s, %s, %s" % (v(aRd), v(vLane), v(aW), v(aRd), v(aW), v(aW), s(sWB), v(aW)))
    A("  s_lshr_b32 s34, %s, 1\n  s_and_b32 s35, %s, 1\n  s_lshl_b32 s35, s35, 8" % (s(sWave), s(sWave)))
    A("  s_mul_i32 s36, s34, 576\n  s_add_u32 s36, s36, s35")
    A("  v_lshl_add_u32 %s, %s, 2, s36" % (v(aRd), v(vLane)))
    A("  v_add_u32 %s, 0x10000, %s" % (v(aRd2), v(aRd)))
    A("  s_lshl_b32 s36, s34, 4\n  s_add_u32 s36, s36, %d\n  v_mov_b32 %s, s36" % (FT + 8, v(aFt)))
    if P["p1bf"]:
        A("  s_lshl_b32 s36, %s, 2\n  s_add_u32 s36, s36, s34\n  s_lshl_b32 s36, s36, 13\n  s_lshr_b32 s35, s35, 1\n  s_add_u32 s36, s36, s35" % s(sG))
        A("  s_lshl_b32 s34, %s, 8\n  s_add_u32 s36, s36, s34\n  s_add_u32 s36, s36, %d" % (s(sI), P1))
        A("  v_lshl_add_u32 %s, %s, 1, s36" % (v(aSt), v(vLane)))
    else:
        A("  s_lshl_b32 s36, %s, 2\n  s_add_u32 s36, s36, s34\n  s_lshl_b32 s36, s36, 14\n  s_add_u32 s36, s36, s35" % s(sG))
        A("  s_lshl_b32 s34, %s, 9\n  s_add_u32 s36, s36, s34\n  s_add_u32 s36, s36, %d" % (s(sI), P1))
        A("  v_lshl_add_u32 %s, %s, 2, s36" % (v(aSt), v(vLane)))
    A("  s_waitcnt lgkmcnt(0)" + ("" if P["notrans"] else "\n  s_barrier"))
    A("  s_cmp_lg_u32 %s, 0\n  s_cbranch_scc1 L_noml" % s(sWave))
    A("  ds_read_b128 %s, %s offset:128" % (v(U[0], 4), v(T[3])))
    A("  ds_read_b128 %s, %s offset:144" % (v(U[4], 4), v(T[3])))
    A("  s_lshl_b32 s34, %s, 11\n  s_lshl_b32 s35, %s, 6\n  s_add_u32 s34, s34, s35\n  s_add_u32 s34, s34, %d" % (s(sG), s(sI), ML))
    A("  v_add_u32 %s, s34, %s" % (v(T[2]), v(vL16)))
    A("  v_mov_b32 %s, %s\n  v_mov_b32 %s, %s\n  v_mov_b32 %s, %s" % (v(T[6]), v(vMx), v(T[7]), s(sTag), v(T[9]), s(sTag)))
    A("  s_waitcnt lgkmcnt(0)")
    sum8(U[0])
    A("  v_mov_b32 %s, %s" % (v(T[8]), v(U[0])))
    A("  s_mov_b64 exec, 0xf")
    assert T[6] % 2 == 0
    A("  global_store_dwordx4 %s, %s, s[12:13] sc1" % (v(T[2]), v(T[6], 4)))
    A("  s_mov_b64 exec, -1")
    A("L_noml:")
    if nA < 6:
        A("  s_cmp_eq_u32 %s, 1\n  s_cbranch_scc1 L_wB" % s(sTail))
        A("L_wBret:")
        Lsave = L; L = []; A = L.append
        A("L_wB:")
        wrun(nA, 6)
        A("  s_branch L_wBret")
        late.append("\n".join(L)); L = Lsave; A = L.append
    for k in range(32): A("  v_mov_b32 %s, 0" % v(ACC + k))
    stamp(4)
    PB_ = T[2]
    assert PB_ % 2 == 0
    A("  s_lshl_b32 s34, %s, 7\n  v_subrev_u32 %s, s34, %s" % (s(sCnt1), v(vSb), v(vSb)))
    def vbody(wait, issue, depth=None):
        A("  s_lshl_b32 s34, %s, 7" % s(sF[0]))
        A("  v_add_u32 %s, s34, %s" % (v(T[1]), v(vSb)))
        A("  v_add_u32 %s, %s, %s" % (v(T[0]), s(sSlotC), v(vVrd)))
        A("  ds_read_b64 %s, %s" % (v(PB_, 2), v(T[1])))
        if issue: issue_dyn(0, False, depth=depth, vwait=wait)
        else: A("  s_waitcnt vmcnt(%d)" % wait)
        for b in range(8): A("  ds_read_b64_tr_b16 %s, %s offset:%d" % (v(F + 2 * b, 2), v(T[0]), 128 * b))
        next_slot(sSlotC)
        for b in range(8):
            A("  s_waitcnt lgkmcnt(%d)" % (7 - b))
            A("  v_mfma_f32_16x16x16_bf16 %s, %s, %s, %s" % (v(ACC + 4 * b, 4), v(F + 2 * b, 2), v(PB_, 2), v(ACC + 4 * b, 4)))
    for i in range(XV):
        vbody(4 * (W + XV - 1 - i), False)
        for k in range(W + XV - 1 - i): A("  s_mov_b32 %s, %s" % (s(sF[k]), s(sF[k + 1])))
    A("  s_branch L_vtest")
    A("L_vloop:")
    vbody(4 * (W - 1), True)
    A("L_vtest:")
    A("  s_cmp_ge_u32 %s, %s\n  s_cbranch_scc1 L_gather" % (s(sF[0]), s(sTrig)))
    A("L_gatherret:")
    if P["deepV"]:
        A("  s_sub_u32 s36, %s, %d" % (s(sCnt2), P["deepV"]))
        A("  s_cmp_lt_u32 %s, s36\n  s_cbranch_scc1 L_vloop" % s(sF[0]))
        issue_dyn(0, False, depth=W, push=True)
        A("  s_branch L_vtest2")
        A("L_vloop2:")
        vbody(4 * W, True, depth=W + 1)
        A("L_vtest2:")
        A("  s_cmp_lt_u32 %s, %s\n  s_cbranch_scc1 L_vloop2" % (s(sF[0]), s(sCnt2)))
    else:
        A("  s_cmp_lt_u32 %s, %s\n  s_cbranch_scc1 L_vloop" % (s(sF[0]), s(sCnt2)))
    stamp(5)
    Lsave = L; L = []; A = L.append
    A("L_gather:")
    A("  s_mov_b32 %s, -1" % s(sTrig))
    A("  s_lshl_b32 s34, %s, 11\n  s_add_u32 s34, s34, %d" % (s(sG), ML))
    A("  v_add_u32 %s, s34, %s" % (v(T[4]), v(vL16)))
    if P["pf2"]:
        A("  s_getpc_b64 s[44:45]")
        A("L_pc2:")
        A("  s_sub_u32 s44, s44, L_pc2-L_vloop\n  s_subb_u32 s45, s45, 0")
        A("  v_mov_b32 %s, %s" % (v(T[7]), v(vL16)))
        for k in range(P["pf2"]):
            A("  global_load_dwordx4 %s, %s, s[44:45]" % (v(U[8], 4), v(T[7])))
            A("  v_add_u32 %s, 1024, %s" % (v(T[7]), v(T[7])))
    A("L_gpoll:")
    A("  global_load_dwordx4 %s, %s, s[12:13] sc1" % (v(G0, 4), v(T[4])))
    A("  global_load_dwordx4 %s, %s, s[12:13] offset:1024 sc1" % (v(G1, 4), v(T[4])))
    A("  s_waitcnt vmcnt(0)")
    chk_tag([G0 + 1, G0 + 3, G1 + 1, G1 + 3], T[7], sTag)
    poll_end("L_gpoll")
    A("  v_max_f32 %s, %s, %s" % (v(T[8]), v(G0), v(G1)))
    allred_b2345("v_max_f32", T[8], T[7])
    A("  v_sub_f32 %s, %s, %s\n  v_sub_f32 %s, %s, %s" % (v(G0), v(G0), v(T[8]), v(G1), v(G1), v(T[8])))
    A("  v_sub_f32 %s, %s, %s" % (v(U[8]), v(vMx), v(T[8])))
    for r in (G0, G1, U[8]): A("  v_mul_f32 %s, %s, %s" % (v(r), LOG2E, v(r)))
    for r in (G0, G1, U[8]): A("  v_exp_f32 %s, %s" % (v(r), v(r)))
    A("  v_mul_f32 %s, %s, %s" % (v(T[9]), v(G0), v(G0 + 2)))
    A("  v_fmac_f32 %s, %s, %s" % (v(T[9]), v(G1), v(G1 + 2)))
    allred_b2345("v_add_f32", T[9], T[7])
    A("  v_rcp_f32 %s, %s" % (v(U[10]), v(T[9])))
    A("  v_mul_f32 %s, %s, %s" % (v(U[10]), v(U[10]), v(U[8])))
    A("  v_mov_b32 %s, 0" % v(U[11]))
    A("  s_cmp_eq_u32 %s, 0\n  s_cbranch_scc1 L_gfin" % s(sTail))
    A("  v_and_b32 %s, 31, %s\n  v_lshlrev_b32 %s, 3, %s\n  v_add_u32 %s, %d, %s" % (v(T[5]), v(vLane), v(T[5]), v(T[5]), v(T[5]), REG, v(T[5])))
    A("L_rpoll:")
    A("  global_load_dwordx2 %s, %s, s[12:13] sc1" % (v(G0, 2), v(T[5])))
    A("  s_waitcnt vmcnt(0)")
    A("  v_cmp_eq_u32 vcc, %s, %s" % (s(sTag), v(G0 + 1)))
    A("  s_cmp_eq_u64 vcc, -1")
    poll_end("L_rpoll")
    A("  v_cmp_eq_u32 vcc, %s, %s" % (s(sXcc), v(G0)))
    A("  s_cmp_eq_u64 vcc, -1\n  s_cselect_b32 s34, %d, 0" % (0 if P["forceslow"] else 1))
    A("  v_mov_b32 %s, s34" % v(U[11]))
    A("L_gfin:")
    A("  v_add_u32 %s, %d, %s" % (v(T[7]), FT, v(vL16)))
    A("  s_mov_b64 exec, 0xf")
    A("  ds_write_b128 %s, %s" % (v(T[7]), v(U[8], 4)))
    A("  s_mov_b64 exec, -1")
    A("  s_branch L_gatherret")
    late.append("\n".join(L)); L = Lsave; A = L.append
    setexec(0x000F000F000F000F)
    for b in range(8): A("  ds_write_b128 %s, %s offset:%d" % (v(aW), v(ACC + 4 * b, 4), 64 * b))
    setexec(-1)
    A("  s_waitcnt lgkmcnt(0)\n  s_barrier")
    O8 = F; F8 = F + 8
    def read8(dst, a0, a1, st):
        A("  ds_read2st64_b32 %s, %s offset0:%d offset1:%d" % (v(dst, 2), v(a0), st, st + 64))
        A("  ds_read2st64_b32 %s, %s offset0:%d offset1:%d" % (v(dst + 2, 2), v(a0), st + 128, st + 192))
        A("  ds_read2st64_b32 %s, %s offset0:%d offset1:%d" % (v(dst + 4, 2), v(a1), st, st + 64))
        A("  ds_read2st64_b32 %s, %s offset0:%d offset1:%d" % (v(dst + 6, 2), v(a1), st + 128, st + 192))
    read8(O8, aRd, aRd2, 0)
    A("  ds_read_b64 %s, %s" % (v(F8, 2), v(aFt)))
    A("  s_waitcnt lgkmcnt(0)")
    A("  v_readfirstlane_b32 %s, %s" % (s(sFast), v(F8 + 1)))
    sum8(O8)
    A("  v_mul_f32 %s, %s, %s" % (v(O8), v(O8), v(F8)))
    if P["p1bf"]:
        A("  v_mov_b32_dpp %s, %s quad_perm:[1,1,3,3] row_mask:0xf bank_mask:0xf" % (v(O8 + 1), v(O8)))
        A("  v_cvt_pk_bf16_f32 %s, %s, %s" % (v(O8 + 4), v(O8), v(O8 + 1)))
        A("  v_min_u32 %s, -2, %s" % (v(O8 + 4), v(O8 + 4)))
        for k in range(1, 4):
            A("  v_mov_b32_dpp %s, %s row_shl:%d row_mask:0xf bank_mask:0xf" % (v(O8 + 4 + k), v(O8 + 4), 2 * k))
        setexec(0x0101010101010101)
        if P["p1fast"]:
            A("  s_cmp_eq_u32 %s, 1\n  s_cbranch_scc1 L_p1f" % s(sFast))
            late.append("L_p1f:\n  global_store_dwordx4 %s, %s, s[12:13]\n  s_branch L_p1r" % (v(aSt), v(O8 + 4, 4)))
        A("  global_store_dwordx4 %s, %s, s[12:13] sc1" % (v(aSt), v(O8 + 4, 4)))
        A("L_p1r:")
        setexec(-1)
    else:
        A("  v_bfi_b32 %s, %s, %s, %s" % (v(O8), s(sFF), v(vT8), v(O8)))
        A("  global_store_dword %s, %s, s[12:13] sc1" % (v(aSt), v(O8)))
    stamp(6)
    for k in [7, "p", "q", 8, "r", 9, "s", "t", "u", 10, 11]: stamp(k)
    A("  s_cmp_eq_u32 %s, 0\n  s_cbranch_scc1 L_end" % s(sTail))
    aP1 = T[0]; aPA = T[1]; aR3 = T[2]; aLw = T[3]; aLr = T[4]; vIdx = T[5]; aSP = T[6]; aH = T[7]
    A("  v_lshrrev_b32 %s, 1, %s\n  v_and_b32 %s, 1, %s" % (v(T[8]), v(vLane), v(T[9]), v(vLane)))
    A8 = [F + k for k in range(8)]
    assert P["p1bf"]
    A("  s_lshl_b32 s34, %s, 13\n  s_lshl_b32 s35, %s, 5\n  s_add_u32 s34, s34, s35\n  s_add_u32 s34, s34, %d" % (s(sJ), s(sWave), P1))
    A("  v_lshl_add_u32 %s, %s, 8, s34\n  v_lshl_add_u32 %s, %s, 4, %s" % (v(aP1), v(T[8]), v(aP1), v(T[9]), v(aP1)))
    if P["palay"]:
        A("  s_lshl_b32 s34, %s, 11\n  s_add_u32 s34, s34, %d" % (s(sJ), PA))
        A("  v_lshl_add_u32 %s, %s, 5, s34" % (v(aPA), v(vLane)))
    else:
        A("  s_lshl_b32 s34, %s, 6\n  s_add_u32 s34, s34, %d" % (s(sJ), PA))
        A("  v_lshl_add_u32 %s, %s, 11, s34\n  v_lshl_add_u32 %s, %s, 5, %s" % (v(aPA), v(T[8]), v(aPA), v(T[9]), v(aPA)))
    A("  v_lshlrev_b32 %s, 5, %s\n  v_add_u32 %s, %d, %s" % (v(aR3), v(vLane), v(aR3), R3, v(aR3)))
    A("  v_lshrrev_b32 %s, 5, %s\n  v_bfe_u32 %s, %s, 4, 1\n  v_lshl_add_u32 %s, %s, 1, %s" % (v(aLw), v(vLane), v(T[10]), v(vLane), v(aLw), v(aLw), v(T[10])))
    A("  v_lshl_add_u32 %s, %s, 2, %s\n  s_lshl_b32 s34, %s, 5\n  s_add_u32 s34, s34, %d\n  v_lshl_add_u32 %s, %s, 2, s34" % (v(aLw), v(T[9]), v(aLw), s(sWave), OL, v(aLw), v(aLw)))
    A("  v_lshrrev_b32 %s, 4, %s\n  v_lshlrev_b32 %s, 5, %s\n  v_lshl_add_u32 %s, %s, 4, %s\n  v_add_u32 %s, %d, %s" % (v(aLr), v(vLane), v(aLr), v(aLr), v(aLr), v(T[9]), v(aLr), v(aLr), QL, v(aLr)))
    A("  s_mov_b32 s34, 0xaaaaaaaa\n  v_mul_lo_u32 %s, %s, s34\n  v_add_u32 %s, 0x44444444, %s" % (v(vIdx), v(T[9]), v(vIdx), v(vIdx)))
    A("  global_load_dwordx4 %s, %s, s[12:13] sc1" % (v(ACC + 4, 4), v(aPA)))
    A("  global_load_dwordx4 %s, %s, s[12:13] sc1" % (v(ACC + 8, 4), v(aR3)))
    A("  v_add_u32 %s, %d, %s" % (v(T[10]), PB - PA, v(aPA)))
    A("  global_load_dwordx4 %s, %s, s[12:13] sc1" % (v(ACC + 12, 4), v(T[10])))
    if P["palay"]:
        A("  s_lshl_b32 s34, %s, 6\n  s_lshl_b32 s35, %s, 13\n  s_add_u32 s34, s34, s35\n  s_add_u32 s34, s34, %d" % (s(sJ), s(sWave), PA))
        A("  v_lshrrev_b32 %s, 4, %s\n  v_lshl_add_u32 %s, %s, 11, s34\n  v_and_b32 %s, 15, %s\n  v_lshl_add_u32 %s, %s, 2, %s" % (v(aSP), v(vLane), v(aSP), v(aSP), v(T[10]), v(vLane), v(aSP), v(T[10]), v(aSP)))
    else:
        A("  s_lshl_b32 s34, %s, 11\n  s_lshl_b32 s35, %s, 8\n  s_add_u32 s34, s34, s35\n  s_add_u32 s34, s34, %d\n  v_lshl_add_u32 %s, %s, 2, s34" % (s(sJ), s(sWave), PA, v(aSP), v(vLane)))
    A("  v_lshrrev_b32 %s, 5, %s\n  v_lshlrev_b32 %s, 3, %s\n  v_lshl_add_u32 %s, %s, 2, %s" % (v(T[10]), v(vLane), v(aH), v(T[9]), v(aH), v(T[10]), v(aH)))
    A("  v_bfe_u32 %s, %s, 4, 1\n  v_lshl_add_u32 %s, %s, 1, %s" % (v(T[10]), v(vLane), v(aH), v(T[10]), v(aH)))
    A("  v_bfe_u32 %s, %s, 3, 1\n  v_add_u32 %s, %s, %s" % (v(T[10]), v(vLane), v(aH), v(T[10]), v(aH)))
    A("  s_lshl_b32 s34, %s, 4\n  v_add_u32 %s, s34, %s" % (s(sJ), v(aH), v(aH)))
    A("  v_lshlrev_b32 %s, 1, %s" % (v(T[17]), v(aH)))
    if P["otouch"]:
        A("  global_load_ushort %s, %s, s[62:63]" % (v(ACC), v(T[17])))
    A("  v_lshlrev_b32 %s, 2, %s\n  v_add_u32 %s, %d, %s" % (v(aH), v(aH), v(aH), R3, v(aH)))
    A("  s_lshl_b32 s34, %s, 4\n  s_add_u32 s34, s34, %d\n  v_lshl_add_u32 %s, %s, 1, s34" % (s(sWave), HL, v(T[11]), v(vLane)))
    A("  s_and_b32 s55, %s, 0xffff\n  v_mov_b32 %s, s55\n  s_mov_b32 s54, 0xffff" % (s(sTag), v(T[16])))
    assert P["npoll"] == 1 and P["npoll1"] == 1
    for k in range(16): A("  v_mov_b32 %s, 0" % v(U[0] + k))
    for k in range(8): A("  v_mov_b32 %s, 0" % v(F + 8 + k))
    A("  v_add_u32 %s, %d, %s" % (v(T[15]), QL, v(vL16)))
    for k in range(16): A("  v_mov_b32 %s, %s" % (v(ACC + 16 + k), v(vT8)))
    def ld1(k): A("  global_load_dwordx4 %s, %s, s[12:13] sc1" % (v(ACC + 4 * k, 4), v(aP1)))
    def ck1(k):
        H4 = ACC + 4 * k
        A("  v_max3_u32 %s, %s, %s, %s" % (v(T[8]), v(H4), v(H4 + 1), v(H4 + 2)))
        A("  v_max_u32 %s, %s, %s" % (v(T[8]), v(T[8]), v(H4 + 3)))
        A("  v_cmp_ne_u32 vcc, -1, %s" % v(T[8]))
        for q_ in range(4): unpack(A8[2 * q_], A8[2 * q_ + 1], H4 + q_)
        A("  s_cmp_eq_u64 vcc, -1")
    poll_pipe("L_h1", P["npoll1"], 1, ld1, ck1, sleep=P["h1sleep"])
    stamp(7)
    red16p(A8, A8[0])
    stamp("m")
    setexec(0x0003000300030003)
    A("  ds_write_b32 %s, %s" % (v(aLw), v(A8[0])))
    setexec(-1)
    DD = U[0]
    A("  s_waitcnt lgkmcnt(0)\n  s_barrier")
    stamp("n")
    A("  ds_read_b128 %s, %s offset:%d" % (v(F, 4), v(aLr), OL - QL))
    A("  ds_read_b128 %s, %s offset:%d" % (v(F + 4, 4), v(aLr), OL - QL + 128))
    for u in range(2):
        A("  s_waitcnt lgkmcnt(%d)" % (1 - u))
        for t in range(4):
            A("  v_smfmac_f32_16x16x64_bf16 %s, %s, %s, %s" % (v(DD + 4 * t, 4), v(F + 4 * u, 4), v(W2 + 8 * (2 * t + u), 8), v(vIdx)))
    def select4():
        for t in range(4):
            setexec(0xffff << (16 * t))
            A("  v_add_f32 %s, %s, %s" % (v(O8), v(DD + 4 * t), v(DD + 4 * t + 1)))
        setexec(-1)
    stamp("p")
    select4()
    A("  v_bfi_b32 %s, %s, %s, %s" % (v(O8), s(sFF), v(vT8), v(O8)))
    hstore("global_store_dword %s, %s, s[12:13]" % (v(aSP), v(O8)))
    stamp("q")
    A("  s_cmp_lg_u32 %s, 0\n  s_cbranch_scc1 L_h3w" % s(sWave))
    zero16 = "\n".join("  v_mov_b32 %s, 0" % v(DD + k) for k in range(16)) + "\n  v_add_u32 %s, %d, %s" % (v(aSP), PB - PA, v(aSP))
    late.append("L_h3w:\n  s_cmp_ge_u32 %s, 28\n  s_cbranch_scc1 L_end\n%s\n  s_branch L_h3j" % (s(sJ), zero16))
    def ld8(addr, base=ACC):
        def f_(k):
            A("  global_load_dwordx4 %s, %s, s[12:13] sc1" % (v(base + 8 * k, 4), v(addr)))
            A("  global_load_dwordx4 %s, %s, s[12:13] offset:16 sc1" % (v(base + 8 * k + 4, 4), v(addr)))
        return f_
    def ck8(dst, stag, mask, base=ACC):
        return lambda k: chk_clean2(dst, [base + 8 * k + q_ for q_ in range(8)], T[8], stag, mask)
    ld8(aPA)(0)
    A(zero16)
    poll_pipe("L_hA", 1, 2, ld8(aPA), ck8(A8, sT8, s(sFF)), preissued=1)
    stamp(8)
    red16(A8)
    round_bf16(A8[1], A8[1])
    A("  v_add_f32 %s, %s, %s" % (v(vXres), v(vXres), v(A8[1])))
    A("  v_cvt_pk_bf16_f32 %s, %s, %s" % (v(vXres), v(vXres), v(vXres)))
    A("  v_bfi_b32 %s, s54, %s, %s" % (v(A8[2]), v(T[16]), v(vXres)))
    setexec(0x0303030303030303)
    hstore("global_store_dword %s, %s, s[12:13]" % (v(aH), v(A8[2])))
    setexec(-1)
    A("  v_and_b32 %s, 0xffff0000, %s" % (v(vXres), v(vXres)))
    stamp("r")
    A("L_h3:")
    A("  s_cmp_ge_u32 %s, 28\n  s_cbranch_scc1 L_hB0" % s(sJ))
    f = [F + k for k in range(8)]; d = [T[8], T[9], T[10], U[4]]
    poll_pipe("L_h3p", P["npoll"], 2, ld8(aR3), ck8(f, 55, "s54"))
    stamp(9)
    XO = ACC + 8; E8 = ACC + 12
    D8 = W2 + 32
    A("  v_readfirstlane_b32 s36, %s" % v(f[0]))
    A("  v_mov_b32 %s, %s" % (v(T[10]), INV512))
    A("  s_mov_b32 s32, s36\n  s_mov_b32 s33, s36")
    for k in range(4): A("  v_pk_add_f32 %s, %s, s[32:33] neg_lo:[0,1] neg_hi:[0,1]" % (v(D8 + 2 * k, 2), v(f[2 * k], 2)))
    A("  v_pk_mul_f32 %s, %s, %s" % (v(E8, 2), v(D8, 2), v(D8, 2)))
    A("  v_pk_add_f32 %s, %s, %s" % (v(E8 + 2, 2), v(D8, 2), v(D8 + 2, 2)))
    for k in range(1, 4): A("  v_pk_fma_f32 %s, %s, %s, %s" % (v(E8, 2), v(D8 + 2 * k, 2), v(D8 + 2 * k, 2), v(E8, 2)))
    A("  v_pk_add_f32 %s, %s, %s" % (v(D8 + 4, 2), v(D8 + 4, 2), v(D8 + 6, 2)))
    A("  v_pk_add_f32 %s, %s, %s" % (v(E8 + 2, 2), v(E8 + 2, 2), v(D8 + 4, 2)))
    s1 = T[8]; s2 = T[9]
    A("  v_add_f32 %s, %s, %s" % (v(s2), v(E8), v(E8 + 1)))
    A("  v_add_f32 %s, %s, %s" % (v(s1), v(E8 + 2), v(E8 + 3)))
    for ctrl, rm in (("quad_perm:[1,0,3,2]", "0xf"), ("quad_perm:[2,3,0,1]", "0xf"), ("row_half_mirror", "0xf"),
                     ("row_mirror", "0xf"), ("row_bcast:15", "0xa"), ("row_bcast:31", "0xc")):
        dpp("v_add_f32", s2, s2, s2, ctrl, rm=rm)
        dpp("v_add_f32", s1, s1, s1, ctrl, rm=rm)
    A("  v_readlane_b32 s33, %s, 63" % v(s2))
    A("  v_readlane_b32 s32, %s, 63" % v(s1))
    vMean = E8; vR = E8 + 2
    A("  v_mul_f32 %s, s33, %s" % (v(s2), v(T[10])))
    A("  v_mul_f32 %s, s32, %s" % (v(s1), v(T[10])))
    A("  v_fma_f32 %s, -%s, %s, %s" % (v(s2), v(s1), v(s1), v(s2)))
    A("  v_add_f32 %s, s36, %s" % (v(s1), v(s1)))
    A("  v_max_f32 %s, 0, %s" % (v(s2), v(s2)))
    A("  v_cvt_pk_bf16_f32 %s, %s, %s" % (v(T[10]), v(s1), v(s2)))
    A("  v_and_b32 %s, 0xffff0000, %s" % (v(s2), v(T[10])))
    A("  v_lshlrev_b32 %s, 16, %s" % (v(vMean), v(T[10])))
    A("  v_add_f32 %s, %s, %s" % (v(s2), EPS, v(s2)))
    A("  v_lshlrev_b32 %s, 16, %s" % (v(vMean + 1), v(T[10])))
    A("  v_cvt_pk_bf16_f32 %s, %s, %s" % (v(s2), v(s2), v(s2)))
    A("  v_pk_add_f32 %s, %s, %s neg_lo:[0,1] neg_hi:[0,1]" % (v(f[0], 2), v(f[0], 2), v(vMean, 2)))
    A("  v_and_b32 %s, 0xffff0000, %s" % (v(s2), v(s2)))
    A("  v_sqrt_f32 %s, %s" % (v(s2), v(s2)))
    for k in range(1, 4): A("  v_pk_add_f32 %s, %s, %s neg_lo:[0,1] neg_hi:[0,1]" % (v(f[2 * k], 2), v(f[2 * k], 2), v(vMean, 2)))
    A("  v_cvt_pk_bf16_f32 %s, %s, %s" % (v(s2), v(s2), v(s2)))
    A("  v_cvt_pk_bf16_f32 %s, %s, %s" % (v(XO), v(f[0]), v(f[1])))
    A("  v_and_b32 %s, 0xffff0000, %s" % (v(s2), v(s2)))
    A("  v_rcp_f32 %s, %s" % (v(vR), v(s2)))
    for k in range(1, 4): A("  v_cvt_pk_bf16_f32 %s, %s, %s" % (v(XO + k), v(f[2 * k]), v(f[2 * k + 1])))
    A("  v_mov_b32 %s, %s" % (v(vR + 1), v(vR)))
    for k in range(4): unpack(f[2 * k], f[2 * k + 1], XO + k)
    for k in range(4): A("  v_pk_mul_f32 %s, %s, %s" % (v(f[2 * k], 2), v(f[2 * k], 2), v(vR, 2)))
    for k in range(4): A("  v_cvt_pk_bf16_f32 %s, %s, %s" % (v(XO + k), v(f[2 * k]), v(f[2 * k + 1])))
    stamp("l")
    A("  ds_write_b128 %s, %s" % (v(T[15]), v(XO, 4)))
    A("  s_waitcnt lgkmcnt(0)")
    A("L_h3j:")
    A("  s_barrier")
    XA = W2
    for u in range(8): A("  ds_read_b128 %s, %s offset:%d" % (v(XA + 4 * u, 4), v(aLr), 128 * u))
    stamp("s")
    for u in range(8):
        A("  s_waitcnt lgkmcnt(%d)" % (7 - u))
        A("  v_smfmac_f32_16x16x64_bf16 %s, %s, %s, %s" % (v(F + 8 + 4 * (u & 1), 4), v(XA + 4 * u, 4), v(W3A + 8 * u, 8), v(vIdx)))
    GA = [F + k for k in range(8)]
    A("  v_pk_add_f32 %s, %s, %s" % (v(GA[0], 2), v(F + 8, 2), v(F + 12, 2)))
    A("  v_add_f32 %s, %s, %s" % (v(GA[0]), v(GA[0]), v(GA[1])))
    stamp("y")
    round_bf16(GA[0], GA[0])
    A("  v_mul_f32 %s, 0xbfb8aa3b, %s" % (v(GA[2]), v(GA[0])))
    A("  v_exp_f32 %s, %s" % (v(GA[2]), v(GA[2])))
    A("  v_mov_b32_dpp %s, %s row_ror:8 row_mask:0xf bank_mask:0xf" % (v(GA[1]), v(GA[0])))
    A("  v_add_f32 %s, 1.0, %s" % (v(GA[2]), v(GA[2])))
    A("  v_rcp_f32 %s, %s" % (v(GA[2]), v(GA[2])))
    A("  v_mul_f32 %s, %s, %s" % (v(GA[0]), v(GA[0]), v(GA[2])))
    round_bf16(GA[0], GA[0])
    A("  v_mul_f32 %s, %s, %s" % (v(GA[0]), v(GA[0]), v(GA[1])))
    A("  v_cvt_pk_bf16_f32 %s, %s, %s" % (v(GA[0]), v(GA[0]), v(GA[0])))
    A("  s_mov_b64 exec, 0xff")
    A("  ds_write_b16 %s, %s" % (v(T[11]), v(GA[0])))
    A("  s_mov_b64 exec, -1")
    stamp("t")
    A("  s_waitcnt lgkmcnt(0)\n  s_barrier")
    stamp("z")
    A("  ds_read_b128 %s, %s offset:%d" % (v(F, 4), v(aLr), HL - QL))
    A("  s_waitcnt lgkmcnt(0)")
    for t in range(4):
        A("  v_smfmac_f32_16x16x64_bf16 %s, %s, %s, %s" % (v(DD + 4 * t, 4), v(F, 4), v(W4 + 8 * t, 8), v(vIdx)))
    select4()
    A("  v_bfi_b32 %s, %s, %s, %s" % (v(O8), s(sFF), v(vT8), v(O8)))
    hstore("global_store_dword %s, %s, s[12:13]" % (v(aSP), v(O8)))
    stamp("u")
    A("L_hB0:")
    A("  s_cmp_lg_u32 %s, 0\n  s_cbranch_scc1 L_end" % s(sWave))
    A("  v_add_u32 %s, %d, %s" % (v(aPA), PB - PA, v(aPA)))
    def ldB(k):
        A("  s_mov_b32 exec_hi, 0xffffff")
        ld8(aPA, ACC + 16)(k)
        A("  s_mov_b64 exec, -1")
    poll_pipe("L_hB", P["npoll"], 2, ldB, ck8(A8, sT8, s(sFF), ACC + 16))
    stamp(10)
    red16(A8)
    round_bf16(A8[1], A8[1])
    A("  v_add_f32 %s, %s, %s" % (v(A8[1]), v(vXres), v(A8[1])))
    if P["err"]:
        A("  v_mul_f32 %s, 0x%08x, %s" % (v(A8[1]), struct.unpack("<I", struct.pack("<f", 1.0 + P["err"] / 1000.0))[0], v(A8[1])))
    A("  v_mov_b32_dpp %s, %s row_ror:8 row_mask:0xf bank_mask:0xf" % (v(A8[2]), v(A8[1])))
    A("  v_cvt_pk_bf16_f32 %s, %s, %s" % (v(A8[0]), v(A8[1]), v(A8[2])))
    setexec(0x0003000300030003)
    A("  global_store_dword %s, %s, s[62:63]" % (v(T[17]), v(A8[0])))
    A("  s_mov_b64 exec, 1")
    A("  s_cmp_lg_u32 %s, 0\n  s_cbranch_scc1 L_noepoch" % s(sJ))
    A("  v_mov_b32 %s, %d\n  v_mov_b32 %s, %s" % (v(A8[5]), EPOCH, v(A8[6]), s(sTag)))
    A("  global_store_dword %s, %s, s[12:13]" % (v(A8[5]), v(A8[6])))
    A("L_noepoch:")
    A("  s_mov_b64 exec, -1")
    stamp(11)
    A("L_end:")
    if SLIST:
        A("  s_cmp_lg_u32 %s, %d\n  s_cbranch_scc1 L_done" % (s(sWave), P["sw"]))
        A("  s_waitcnt vmcnt(0)")
        stamp(12)
        A("  s_waitcnt lgkmcnt(0)")
        ns = len(SLIST)
        if P["dbgwg"] >= 0:
            A("  s_cmp_lg_u32 s2, %d\n  s_cbranch_scc1 L_done" % P["dbgwg"])
            A("  s_load_dwordx2 s[12:13], s[0:1], 80\n  s_waitcnt lgkmcnt(0)")
            A("  v_mov_b32 v14, 0\n  s_mov_b64 exec, 1")
            for k in range(ns):
                A("  s_sub_u32 s34, s%d, s68\n  v_mov_b32 v16, s34" % (68 + 2 * k))
                A("  global_store_dword v14, v16, s[12:13] offset:%d" % (4 * k))
            A("  s_waitcnt vmcnt(0)\n  s_branch L_done")
        A("  s_add_u32 s12, s12, 0x10000000\n  s_addc_u32 s13, s13, 0")
        A("  s_mul_i32 s34, s2, %d\n  v_mov_b32 v14, s34" % (8 * (ns + 1)))
        A("  s_getreg_b32 s%d, hwreg(HW_REG_XCC_ID)\n  s_getreg_b32 s%d, hwreg(HW_REG_HW_ID)" % (68 + 2 * ns, 69 + 2 * ns))
        A("  s_mov_b64 exec, 1")
        for k in range(ns + 1):
            A("  v_mov_b32 v16, s%d\n  v_mov_b32 v17, s%d" % (68 + 2 * k, 69 + 2 * k))
            A("  global_store_dwordx2 v14, v[16:17], s[12:13] offset:%d" % (8 * k))
        A("  s_waitcnt vmcnt(0)")
    A("L_done:\n  s_endpgm")
    for blk in late: A(blk)
    A("L_codeend:")
    body = auto_nop(L)
    out = HEAD + body
    out.append('.section .rodata,"a"\n.p2align 6\n.amdhsa_kernel %s' % NAME)
    out.append("  .amdhsa_next_free_vgpr 256\n  .amdhsa_next_free_sgpr 102\n  .amdhsa_accum_offset 256")
    out.append("  .amdhsa_group_segment_fixed_size 0\n  .amdhsa_kernarg_size 96\n  .amdhsa_user_sgpr_count 2\n  .amdhsa_user_sgpr_kernarg_segment_ptr 1\n  .amdhsa_system_sgpr_workgroup_id_x 1")
    out.append("  .amdhsa_float_denorm_mode_32 3\n.end_amdhsa_kernel")
    return "\n".join(out) + "\n"

if __name__ == "__main__":
    kw = {}
    for kv in sys.argv[2:]:
        k, val = kv.split("=")
        if k == "stamps": pass
        elif val.lstrip("-").isdigit(): val = int(val)
        else: val = val.replace("+", " ").replace("none", "")
        kw[k] = val
    open(sys.argv[1], "w").write(gen(**kw))
```

```python
import sys, struct
from asmlib import auto_nop
NAME = "sequential_preLN__gqa_block_cached__glu_gated_swiglu__decode_kernel"

DEF = dict(X=133, W=1, early=0, PW=4, stamps="", wqflag="nt", wflag="nt", kvflag="nt", spin=400000, gtrig=3,
           psleep=1, codepf=1, err=0, forceslow=0, sw=0, ordbar=1, k1early=1, dbgwg=-1, pf2=5, gthr=24, smemq=1, extraV=0, deepV=0, nA=1, NR=0, S=24, p1bf=1, npoll=1, npoll1=1, scflag="sc1 nt", diag=0, noq=0, notrans=0, h1sleep=2, paced=1, pw=3, palay=1, red2=1, nstream=8, p1fast=1, otouch=1, h1mask=1)

EPOCH = 0; QG = 0x100000; ML = 0x8000; REG = 0xC000; R3 = 0xD000; P1 = 0x20000; PA = 0xA0000; PB = 0xB0000; PC = 0xE000; SG = 0x200000
SC = 131072; QL = SC + 8 * 2560; MLT = QL + 1024; FT = MLT + 256; FLAG = FT + 128; TK = FLAG + 16; OL = RED0_ = 153088; HL = OL + 256; RED0 = 153088; LDS_TOTAL = RED0 + 2048
LOG2E = "0x3fb8aa3b"; SCALE = "0x3db504f3"; EPS = "0x3727c5ac"; INV512 = "0x3b000000"

vLane = 1; vL16 = 2; vKd = [3, 4, 5, 6]; vVd = 7; vKrd = 8; vVrd = 9; vSb = 10; vSr = 11; vXres = 12; vT8 = 13
T = list(range(14, 32))
F = 32
ACC = 48
U = list(range(80, 96))
W2 = 96; W3A = 160; W3B = 192; W4 = 224
sWave = 3; sG = 18; sI = 19; sTail = 20; sJ = 21; sCnt1 = 22; sCnt2 = 23; sOff = 24; sOff0 = 25; sSlotC = 26; sSlotI = 27
sWB = 28; sTag = 29; sT8 = 30; sSpin = 31; sDone = 40; sFast = 41; sTrig = 42; sXcc = 43
sSelLo = 37; sSelHi = 38; sFF = 39; sF = [16, 17, 55, 54]; sTk = 33; sOffX = 40; sThr = 15; sPT = 46; sPH = 47
vTkA = 30; vTk = 31; vOne = 95; vMx = 29

def v(i, n=1): return "v%d" % i if n == 1 else "v[%d:%d]" % (i, i + n - 1)
def s(i, n=1): return "s%d" % i if n == 1 else "s[%d:%d]" % (i, i + n - 1)

def gen(**kw):
    P = dict(DEF); P.update(kw)
    X = P["X"]; Y = 1024 - 7 * X; W = P["W"]
    assert 0 < Y <= X and (X + 7) // 8 <= 20 and Y >= 8 * 5
    L = []; A = L.append
    late = []
    SLIST = P["stamps"].split(",") if P["stamps"] else []
    def stamp(k):
        k = str(k)
        if k in SLIST:
            A("  s_memrealtime %s" % s(68 + 2 * SLIST.index(k), 2))
        if k + "c" in SLIST:
            A("  s_memtime %s" % s(68 + 2 * SLIST.index(k + "c"), 2))
    def setexec(mask):
        if mask == -1:
            A("  s_mov_b64 exec, -1")
        else:
            lo = mask & 0xffffffff; hi = mask >> 32
            A("  s_mov_b32 exec_lo, 0x%x\n  s_mov_b32 exec_hi, 0x%x" % (lo, hi))
    def round_bf16(dst, src):
        A("  v_cvt_pk_bf16_f32 %s, %s, %s" % (v(dst), v(src), v(src)))
        A("  v_and_b32 %s, 0xffff0000, %s" % (v(dst), v(dst)))
    def unpack(lo, hi, src):
        A("  v_lshlrev_b32 %s, 16, %s" % (v(lo), v(src)))
        A("  v_and_b32 %s, 0xffff0000, %s" % (v(hi), v(src)))
    def dpp(op, d, a, b, ctrl, rm="0xf", bm="0xf"):
        A("  %s_dpp %s, %s, %s %s row_mask:%s bank_mask:%s" % (op, v(d), v(a), v(b), ctrl, rm, bm))
    def bfly_hi(op, x, t):
        A("  v_mov_b32 %s, %s" % (v(t), v(x)))
        A("  v_permlane16_swap_b32 %s, %s" % (v(x), v(t)))
        A("  %s %s, %s, %s" % (op, v(x), v(x), v(t)))
        A("  v_mov_b32 %s, %s" % (v(t), v(x)))
        A("  v_permlane32_swap_b32 %s, %s" % (v(x), v(t)))
        A("  %s %s, %s, %s" % (op, v(x), v(x), v(t)))
    def allred_b2345(op, x, t):
        dpp(op, x, x, x, "row_ror:4")
        dpp(op, x, x, x, "row_ror:8")
        bfly_hi(op, x, t)
    def red345(a):
        for e in range(4): A("  v_permlane32_swap_b32 %s, %s" % (v(a[e]), v(a[e + 4])))
        for e in range(4): A("  v_add_f32 %s, %s, %s" % (v(a[e]), v(a[e]), v(a[e + 4])))
        for e in range(2): A("  v_permlane16_swap_b32 %s, %s" % (v(a[e]), v(a[e + 2])))
        for e in range(2): A("  v_add_f32 %s, %s, %s" % (v(a[e]), v(a[e]), v(a[e + 2])))
        dpp("v_add_f32", a[2], a[0], a[0], "row_ror:8", bm="0x3")
        dpp("v_add_f32", a[2], a[1], a[1], "row_ror:8", bm="0xc")
    def red16(a):
        red345(a)
        dpp("v_add_f32", a[0], a[2], a[2], "row_shl:4")
        dpp("v_add_f32", a[1], a[0], a[0], "quad_perm:[2,3,0,1]")
    def red16p(a, dst):
        for e in range(4): A("  v_permlane32_swap_b32 %s, %s" % (v(a[e]), v(a[e + 4])))
        for e in range(4): A("  v_add_f32 %s, %s, %s" % (v(a[e]), v(a[e]), v(a[e + 4])))
        for e in range(2): A("  v_permlane16_swap_b32 %s, %s" % (v(a[e]), v(a[e + 2])))
        for e in range(2): A("  v_add_f32 %s, %s, %s" % (v(a[e]), v(a[e]), v(a[e + 2])))
        for ctrl in ("row_ror:8", "row_shl:4", "quad_perm:[2,3,0,1]"):
            for e in range(2): dpp("v_add_f32", a[e], a[e], a[e], ctrl)
        A("  v_cvt_pk_bf16_f32 %s, %s, %s" % (v(dst), v(a[0]), v(a[1])))
    def sum8(q):
        A("  v_pk_add_f32 %s, %s, %s" % (v(q, 2), v(q, 2), v(q + 2, 2)))
        A("  v_pk_add_f32 %s, %s, %s" % (v(q + 4, 2), v(q + 4, 2), v(q + 6, 2)))
        A("  v_pk_add_f32 %s, %s, %s" % (v(q, 2), v(q, 2), v(q + 4, 2)))
        A("  v_add_f32 %s, %s, %s" % (v(q), v(q), v(q + 1)))
    def ln_stats(f, d, vMean, vSd, vR):
        A("  v_readfirstlane_b32 s36, %s" % v(f[0]))
        s1 = d[0]; s2 = d[1]; t = d[2]; t2 = d[3]
        A("  v_subrev_f32 %s, s36, %s" % (v(s1), v(f[1])))
        A("  v_subrev_f32 %s, s36, %s" % (v(t), v(f[0])))
        A("  v_mul_f32 %s, %s, %s" % (v(s2), v(s1), v(s1)))
        A("  v_add_f32 %s, %s, %s" % (v(s1), v(s1), v(t)))
        A("  v_fmac_f32 %s, %s, %s" % (v(s2), v(t), v(t)))
        for k in range(2, 8):
            tt = t if k % 2 else t2
            A("  v_subrev_f32 %s, s36, %s" % (v(tt), v(f[k])))
            A("  v_add_f32 %s, %s, %s" % (v(s1), v(s1), v(tt)))
            A("  v_fmac_f32 %s, %s, %s" % (v(s2), v(tt), v(tt)))
        for ctrl, rm in (("quad_perm:[1,0,3,2]", "0xf"), ("quad_perm:[2,3,0,1]", "0xf"), ("row_half_mirror", "0xf"),
                         ("row_mirror", "0xf"), ("row_bcast:15", "0xa"), ("row_bcast:31", "0xc")):
            dpp("v_add_f32", s1, s1, s1, ctrl, rm=rm)
            dpp("v_add_f32", s2, s2, s2, ctrl, rm=rm)
        A("  v_readlane_b32 s32, %s, 63" % v(s1))
        A("  v_readlane_b32 s33, %s, 63" % v(s2))
        A("  v_mov_b32 %s, %s" % (v(t), INV512))
        A("  v_mul_f32 %s, s32, %s" % (v(s1), v(t)))
        A("  v_mul_f32 %s, s33, %s" % (v(s2), v(t)))
        A("  v_add_f32 %s, s36, %s" % (v(vMean), v(s1)))
        A("  v_fma_f32 %s, -%s, %s, %s" % (v(s2), v(s1), v(s1), v(s2)))
        A("  v_max_f32 %s, 0, %s" % (v(s2), v(s2)))
        A("  v_cvt_pk_bf16_f32 %s, %s, %s" % (v(t), v(vMean), v(s2)))
        A("  v_lshlrev_b32 %s, 16, %s" % (v(vMean), v(t)))
        A("  v_and_b32 %s, 0xffff0000, %s" % (v(s2), v(t)))
        A("  v_add_f32 %s, %s, %s" % (v(s2), EPS, v(s2)))
        round_bf16(s2, s2)
        A("  v_sqrt_f32 %s, %s" % (v(s2), v(s2)))
        round_bf16(vSd, s2)
        A("  v_rcp_f32 %s, %s" % (v(vR), v(vSd)))
    def ln_apply(dst, flo, fhi, vMean, vSd, vR, t, newton):
        A("  v_sub_f32 %s, %s, %s" % (v(flo), v(flo), v(vMean)))
        A("  v_sub_f32 %s, %s, %s" % (v(fhi), v(fhi), v(vMean)))
        A("  v_cvt_pk_bf16_f32 %s, %s, %s" % (v(dst), v(flo), v(fhi)))
        unpack(flo, fhi, dst)
        if newton:
            A("  v_mul_f32 %s, %s, %s" % (v(t[0]), v(flo), v(vR)))
            A("  v_mul_f32 %s, %s, %s" % (v(t[1]), v(fhi), v(vR)))
            A("  v_fma_f32 %s, -%s, %s, %s" % (v(flo), v(t[0]), v(vSd), v(flo)))
            A("  v_fma_f32 %s, -%s, %s, %s" % (v(fhi), v(t[1]), v(vSd), v(fhi)))
            A("  v_fma_f32 %s, %s, %s, %s" % (v(flo), v(flo), v(vR), v(t[0])))
            A("  v_fma_f32 %s, %s, %s, %s" % (v(fhi), v(fhi), v(vR), v(t[1])))
        else:
            A("  v_mul_f32 %s, %s, %s" % (v(flo), v(flo), v(vR)))
            A("  v_mul_f32 %s, %s, %s" % (v(fhi), v(fhi), v(vR)))
        A("  v_cvt_pk_bf16_f32 %s, %s, %s" % (v(dst), v(flo), v(fhi)))
    def next_slot(r):
        A("  s_add_u32 %s, %s, 4096\n  s_and_b32 %s, %s, 0x3fff\n  s_or_b32 %s, %s, %s" % (s(r), s(r), s(r), s(r), s(r), s(r), s(sWB)))
    def issueK():
        A("  s_mov_b32 m0, %s" % s(sSlotI))
        for g in range(4):
            A("  buffer_load_dwordx4 %s, s[4:7], %s offen offset:%d %s lds" % (v(vKd[g]), s(sOff), g * 1024, P["kvflag"]))
        A("  s_add_u32 %s, %s, 32768" % (s(sOff), s(sOff)))
        next_slot(sSlotI)
    def issueV():
        A("  s_mov_b32 m0, %s" % s(sSlotI))
        for g in range(4):
            A("  buffer_load_dwordx4 %s, s[8:11], %s offen offset:%d %s lds" % (v(vVd), s(sOff), g * 1024, P["kvflag"]))
        A("  s_add_u32 %s, %s, 32768" % (s(sOff), s(sOff)))
        next_slot(sSlotI)
    RT = 112
    NR = P["NR"]
    def issueR(r):
        for g in range(4):
            A("  buffer_load_dwordx4 %s, %s, s[4:7], %s offen offset:%d %s" % (v(RT + 16 * r + 4 * g, 4), v(vKd[g]), s(sOff), g * 1024, P["kvflag"]))
        A("  s_add_u32 %s, %s, 32768" % (s(sOff), s(sOff)))
    nslow = [0]
    def hstore(text):
        k = nslow[0]; nslow[0] += 1
        A("  s_cmp_eq_u32 %s, 1" % s(sFast))
        A("  s_cbranch_scc0 L_slow%d" % k)
        A("  " + text)
        A("L_slowret%d:" % k)
        late.append("L_slow%d:\n  %s sc1\n  s_branch L_slowret%d" % (k, text, k))
    def poll_end(label):
        A("  s_cbranch_scc1 %s_ok" % label)
        if P["psleep"]: A("  s_sleep %d" % P["psleep"])
        A("  s_sub_u32 %s, %s, 1" % (s(sSpin), s(sSpin)))
        A("  s_cmp_lg_u32 %s, 0" % s(sSpin))
        A("  s_cbranch_scc1 %s" % label)
        A("  s_mov_b32 %s, 1" % s(sSpin))
        A("%s_ok:" % label)
    def chk_tag(regs, t, stag, mask=None):
        A("  v_xor_b32 %s, %s, %s" % (v(t), s(stag), v(regs[0])))
        for r in regs[1:]: A("  v_bitop3_b32 %s, %s, %s, %s bitop3:0xf6" % (v(t), v(t), v(r), s(stag)))
        if mask: A("  v_and_b32 %s, %s, %s" % (v(t), mask, v(t)))
        A("  v_cmp_eq_u32 vcc, 0, %s" % v(t))
        A("  s_cmp_eq_u64 vcc, -1")
    def chk_clean(regs, t, stag, mask):
        for r in regs: A("  v_xor_b32 %s, %s, %s" % (v(r), s(stag), v(r)))
        if len(regs) == 8:
            A("  v_or3_b32 %s, %s, %s, %s" % (v(t), v(regs[0]), v(regs[1]), v(regs[2])))
            A("  v_or3_b32 %s, %s, %s, %s" % (v(t + 1), v(regs[3]), v(regs[4]), v(regs[5])))
            A("  v_or3_b32 %s, %s, %s, %s" % (v(t), v(t), v(regs[6]), v(regs[7])))
            A("  v_bitop3_b32 %s, %s, %s, %s bitop3:0xa8" % (v(t), v(t), v(t + 1), mask))
        else:
            A("  v_or3_b32 %s, %s, %s, %s" % (v(t), v(regs[0]), v(regs[1]), v(regs[2])))
            A("  v_bitop3_b32 %s, %s, %s, %s bitop3:0xa8" % (v(t), v(t), v(regs[3]), mask))
        A("  v_cmp_eq_u32 vcc, 0, %s" % v(t))
        A("  s_cmp_eq_u64 vcc, -1")
    def chk_clean2(dst, src, t, stag, mask):
        for d_, r in zip(dst, src): A("  v_xor_b32 %s, %s, %s" % (v(d_), s(stag), v(r)))
        A("  v_or3_b32 %s, %s, %s, %s" % (v(t), v(dst[0]), v(dst[1]), v(dst[2])))
        A("  v_or3_b32 %s, %s, %s, %s" % (v(t + 1), v(dst[3]), v(dst[4]), v(dst[5])))
        A("  v_or3_b32 %s, %s, %s, %s" % (v(t), v(t), v(dst[6]), v(dst[7])))
        A("  v_bitop3_b32 %s, %s, %s, %s bitop3:0xa8" % (v(t), v(t), v(t + 1), mask))
        A("  v_cmp_eq_u32 vcc, 0, %s" % v(t))
        A("  s_cmp_eq_u64 vcc, -1")
    def poll_pipe(label, nsets, nld, load, check, preissued=0, sleep=0):
        for k in range(preissued, nsets): load(k)
        A("%s:" % label)
        for k in range(nsets):
            A("  s_waitcnt vmcnt(%d)" % (nld * (nsets - 1)))
            check(k)
            A("  s_cbranch_scc1 %s_ok" % label)
            if sleep: A("  s_sleep %d" % sleep)
            load(k)
        A("  s_sub_u32 %s, %s, 1" % (s(sSpin), s(sSpin)))
        A("  s_cmp_lg_u32 %s, 0" % s(sSpin))
        A("  s_cbranch_scc1 %s" % label)
        A("  s_mov_b32 %s, 1" % s(sSpin))
        A("%s_ok:" % label)
    def wperm(dst, tb, n=2):
        for h in range(n):
            for c in range(4):
                A("  v_perm_b32 %s, %s, %s, %s" % (v(dst + 8 * h + 2 * c), v(tb + 8 * h + 4 + c), v(tb + 8 * h + c), s(sSelLo)))
                A("  v_perm_b32 %s, %s, %s, %s" % (v(dst + 8 * h + 2 * c + 1), v(tb + 8 * h + 4 + c), v(tb + 8 * h + c), s(sSelHi)))

    hdr = open("cdna_kernels/%s.s.ref" % NAME.replace("_kernel", "")).read().split("\n")
    for h in hdr:
        if h.startswith(";") and "@launch" not in h and "Override" not in h and "grid=ceil" not in h: A(h)
    A("; @launch grid=(256,1,1) block=(512,1,1) lds=%d" % LDS_TOTAL)
    A('.amdgcn_target "amdgcn-amd-amdhsa--gfx950"')
    A(".text\n.globl %s\n.p2align 8\n.type %s,@function\n%s:" % (NAME, NAME, NAME))
    HEAD = L; L = []; A = L.append
    stamp(0)
    A("  s_cmp_ge_u32 s2, 256\n  s_cbranch_scc1 L_done")
    A("  s_load_dwordx8 s[44:51], s[0:1], 0")
    A("  s_load_dwordx2 s[12:13], s[0:1], 88")
    A("  s_load_dwordx2 s[52:53], s[0:1], 32")
    A("  s_load_dwordx8 s[56:63], s[0:1], 48")
    if P["codepf"]:
        A("  s_getpc_b64 s[16:17]")
        A("L_pc:")
        A("  s_sub_u32 s16, s16, L_pc-%s\n  s_subb_u32 s17, s17, 0" % NAME)
        A("  v_lshlrev_b32 %s, 4, v0" % v(T[9]))
        A("  global_load_dwordx4 %s, %s, s[16:17]" % (v(U[8], 4), v(T[9])))
        A("  v_add_u32 %s, 0x2000, %s" % (v(T[9]), v(T[9])))
        A("  v_min_u32 %s, L_codeend-%s-16, %s" % (v(T[9]), NAME, v(T[9])))
        A("  global_load_dwordx4 %s, %s, s[16:17]" % (v(U[12], 4), v(T[9])))
    A("  v_and_b32 %s, 63, v0" % v(vLane))
    A("  v_lshrrev_b32 %s, 6, v0" % v(T[0]))
    A("  v_readfirstlane_b32 %s, %s" % (s(sWave), v(T[0])))
    A("  v_lshlrev_b32 %s, 4, %s" % (v(vL16), v(vLane)))
    A("  s_lshr_b32 %s, s2, 5\n  s_and_b32 %s, s2, 31\n  s_lshr_b32 %s, s2, 3" % (s(sG), s(sI), s(sJ)))
    A("  s_and_b32 s32, s2, 7\n  s_cmp_eq_u32 s32, 0\n  s_cselect_b32 %s, 1, 0" % s(sTail))
    A("  s_movk_i32 s33, %d\n  s_cselect_b32 s33, %d, s33" % (X, Y))
    A("  v_lshrrev_b32 %s, 3, %s" % (v(T[3]), v(vLane)))
    A("  v_and_b32 %s, 7, %s" % (v(T[4]), v(vLane)))
    A("  s_lshr_b32 s35, %s, 3\n  s_lshl_b32 s34, s35, 6\n  s_lshl_b32 s36, %s, 3\n  s_add_u32 s34, s34, s36" % (s(sI), s(sWave)))
    A("  v_add_u32 %s, s34, %s" % (v(T[2]), v(T[3])))
    A("  v_lshlrev_b32 %s, 14, %s" % (v(T[1]), v(T[2])))
    A("  v_lshl_add_u32 %s, %s, 4, %s" % (v(T[1]), v(T[4]), v(T[1])))
    A("  v_lshlrev_b32 %s, 2, %s" % (v(T[2]), v(T[2])))
    A("  s_lshl_b32 s34, %s, 10\n  s_lshl_b32 s36, s32, 7\n  s_add_u32 s34, s34, s36" % s(sG))
    A("  v_add_u32 %s, s34, %s" % (v(T[1]), v(T[1])))
    A("  v_add_u32 %s, 0x2000, %s" % (v(T[5]), v(T[1])))
    A("  s_lshl_b32 s54, %s, 14\n  s_lshl_b32 s35, s35, 12\n  s_add_u32 s54, s54, s35\n  s_lshl_b32 s35, s32, 9\n  s_add_u32 s54, s54, s35\n  s_add_u32 s54, s54, %d" % (s(sG), QG))
    A("  v_lshrrev_b32 %s, 4, %s" % (v(T[6]), v(vLane)))
    A("  v_and_b32 %s, 15, %s" % (v(T[7]), v(vLane)))
    A("  v_xor_b32 %s, %s, %s" % (v(T[8]), v(T[6]), v(T[7])))
    A("  v_lshlrev_b32 %s, 4, %s" % (v(T[8]), v(T[8])))
    A("  v_lshl_add_u32 %s, %s, 8, %s" % (v(vKd[0]), v(T[6]), v(T[8])))
    for g in range(1, 4): A("  v_xor_b32 %s, %d, %s" % (v(vKd[g]), 64 * g, v(vKd[0])))
    E = X - 128
    assert Y == 128 - 7 * E
    A("  s_lshl_b32 s34, s2, 19\n  s_cmp_eq_u32 %s, 1\n  s_cselect_b32 %s, 0, %d" % (s(sTail), s(sThr), E))
    A("  s_mov_b32 s35, %d\n  s_cselect_b32 s35, %d, s35\n  s_add_u32 %s, s34, s35" % ((-E * 4096) & 0xffffffff, (128 - Y) * 4096, s(sOff0)))
    A("  s_andn2_b32 s34, s2, 7\n  s_lshl_b32 s34, s34, 19\n  s_mul_i32 s35, s32, %d\n  s_add_u32 s34, s34, s35\n  s_add_u32 %s, s34, %d" % (E * 4096, s(sOffX), (-E * 4096) & 0xffffffff))
    A("  s_mov_b32 %s, s33\n  s_lshl_b32 %s, s33, 1" % (s(sCnt1), s(sCnt2)))
    A("  s_lshl_b32 s34, %s, 12" % s(sWave))
    A("  s_lshl_b32 %s, %s, 14" % (s(sWB), s(sWave)))
    assert E <= 8
    A("  s_cmp_lt_u32 %s, %s\n  s_cselect_b32 s35, %s, %s" % (s(sWave), s(sThr), s(sOffX), s(sOff0)))
    A("  s_mov_b32 %s, %s\n  s_mov_b32 %s, %s\n  s_add_u32 %s, s35, s34" % (s(sSlotC), s(sWB), s(sSlotI), s(sWB), s(sOff)))
    A("  s_add_u32 s55, %s, s34\n  s_add_u32 s55, s55, 32768" % s(sOff0))
    A("  s_mov_b32 s6, 0x8000000\n  s_mov_b32 s7, 0x20000\n  s_mov_b32 s10, 0x8000000\n  s_mov_b32 s11, 0x20000")
    A("  s_waitcnt lgkmcnt(0)")
    stamp("a")
    XD = U[0]; XP = U[4]; WA = F; WB_ = F + 4
    A("  global_load_dwordx4 %s, %s, s[44:45]" % (v(XD, 4), v(vL16)))
    A("  global_load_dword %s, %s, s[44:45]" % (v(XP), v(T[2])))
    A("  global_load_dwordx4 %s, %s, s[50:51] %s" % (v(WA, 4), v(T[1]), P["wqflag"]))
    A("  global_load_dwordx4 %s, %s, s[50:51] %s" % (v(WB_, 4), v(T[5]), P["wqflag"]))
    A("  s_load_dword %s, s[12:13], %d" % (s(sTag), EPOCH))
    A("  s_mov_b32 s4, s46\n  s_and_b32 s5, s47, 0xffff\n  s_mov_b32 s8, s48\n  s_and_b32 s9, s49, 0xffff")
    A("  s_mov_b64 s[50:51], s[44:45]")
    def s3prep():
        A("  s_movk_i32 s34, 3584\n  v_mul_lo_u32 %s, %s, s34" % (v(U[5]), v(T[3])))
        A("  v_lshlrev_b32 %s, 4, %s" % (v(U[6]), v(T[4])))
        A("  s_cmp_lt_u32 %s, 28\n  s_cselect_b32 s66, 1835008, 0\n  s_mov_b32 s67, 0x20000" % s(sJ))
    def s3dma(mat, k0, k1):
        A("  s_mov_b32 s64, s%d\n  s_and_b32 s65, s%d, 0xffff" % (56 + 2 * mat, 57 + 2 * mat))
        A("  s_mul_i32 s34, %s, %d\n  s_lshl_b32 s35, %s, 7\n  s_add_u32 s34, s34, s35\n  s_add_u32 s34, s34, %d" % (s(sWave), 64 * 3584, s(sJ), k0 * 8 * 3584))
        A("  s_lshl_b32 s35, %s, 13\n  s_add_u32 s35, s35, %d" % (s(sWave), mat * 65536 + k0 * 1024))
        for k in range(k0, k1):
            A("  v_xor_b32 %s, %d, %s\n  v_add_u32 %s, %s, %s" % (v(U[7]), 16 * k, v(U[6]), v(U[7]), v(U[5]), v(U[7])))
            A("  s_mov_b32 m0, s35")
            A("  buffer_load_dwordx4 %s, s[64:67], s34 offen %s lds" % (v(U[7]), P["wflag"]))
            A("  s_add_u32 s34, s34, %d\n  s_add_u32 s35, s35, 1024" % (8 * 3584))
    if P["ordbar"]: A("  s_barrier")
    A("  s_cmp_eq_u32 %s, 1\n  s_cbranch_scc1 L_tburst" % s(sTail))
    issueK()
    A("  s_mov_b32 %s, s55" % s(sOff))
    A("L_tburstret:")
    Lsave = L; L = []; A = L.append
    A("L_tburst:")
    s3prep(); s3dma(0, 0, 4)
    A("  s_branch L_tburstret")
    late.append("\n".join(L)); L = Lsave; A = L.append
    A("  v_lshlrev_b32 %s, 8, %s" % (v(vKrd), v(T[7])))
    A("  v_add_u32 %s, %s, %s" % (v(vKrd), v(vKrd), v(T[8])))
    A("  v_lshlrev_b32 %s, 10, %s" % (v(vVrd), v(T[6])))
    A("  v_lshl_add_u32 %s, %s, 3, %s" % (v(vVrd), v(T[7]), v(vVrd)))
    A("  v_bfe_u32 %s, %s, 1, 2" % (v(T[9]), v(vLane)))
    A("  v_lshlrev_b32 %s, 8, %s" % (v(vVd), v(T[9])))
    A("  v_lshl_add_u32 %s, %s, 5, %s" % (v(vVd), v(T[3]), v(vVd)))
    A("  v_and_b32 %s, 1, %s" % (v(T[9]), v(vLane)))
    A("  v_lshl_add_u32 %s, %s, 4, %s" % (v(vVd), v(T[9]), v(vVd)))
    A("  s_mul_i32 s34, %s, 2560\n  s_add_u32 s34, s34, %d" % (s(sWave), SC))
    A("  v_and_b32 %s, 3, %s" % (v(T[9]), v(vLane)))
    A("  v_lshl_add_u32 %s, %s, 2, %s" % (v(T[10]), v(T[6]), v(T[9])))
    A("  v_lshlrev_b32 %s, 3, %s" % (v(T[10]), v(T[10])))
    A("  v_add_u32 %s, %d, %s" % (v(vSb), SC, v(T[10])))
    A("  v_add_u32 %s, s34, %s" % (v(vSr), v(T[10])))
    A("  v_bfe_u32 %s, %s, 2, 2" % (v(T[10]), v(vLane)))
    A("  v_lshl_add_u32 %s, %s, 7, %s" % (v(vSr), v(T[10]), v(vSr)))
    A("  v_mov_b32 %s, %d\n  v_mov_b32 %s, %d" % (v(vTkA), TK, v(vTk), 32 + 8 * NR))
    A("  ds_write_b32 %s, %s" % (v(vTkA), v(vTk)))
    A("  v_mov_b32 %s, 0xff80ff80\n  v_mov_b32 %s, 0xff80ff80" % (v(T[10]), v(T[11])))
    for k in range(5): A("  ds_write_b64 %s, %s offset:%d" % (v(vSr), v(T[10], 2), k * 512))
    A("  v_lshrrev_b32 %s, 5, %s" % (v(T[12]), v(vLane)))
    A("  v_lshlrev_b32 %s, 3, %s" % (v(T[15]), v(T[4])))
    A("  v_lshl_add_u32 %s, %s, 2, %s" % (v(T[15]), v(T[12]), v(T[15])))
    A("  v_bfe_u32 %s, %s, 4, 1" % (v(T[12]), v(vLane)))
    A("  v_lshl_add_u32 %s, %s, 1, %s" % (v(T[15]), v(T[12]), v(T[15])))
    A("  v_bfe_u32 %s, %s, 3, 1" % (v(T[12]), v(vLane)))
    A("  v_add_u32 %s, %s, %s" % (v(T[15]), v(T[12]), v(T[15])))
    A("  s_lshl_b32 s34, %s, 2\n  s_add_u32 s34, s34, %d" % (s(sWave), RED0))
    A("  v_lshl_add_u32 %s, %s, 5, s34" % (v(T[15]), v(T[15])))
    A("  s_mov_b32 %s, 0x05040100\n  s_mov_b32 %s, 0x07060302\n  s_movk_i32 %s, 0xff" % (s(sSelLo), s(sSelHi), s(sFF)))
    A("  s_mov_b32 %s, %d\n  s_mov_b32 %s, 0" % (s(sSpin), P["spin"], s(sFast)))
    A("  s_sub_u32 s34, %s, %d\n  s_cmp_eq_u32 %s, 0\n  s_cselect_b32 %s, s34, -1" % (s(sCnt2), max(P["gthr"], P["deepV"]), s(sWave), s(sTrig)))
    A("  s_getreg_b32 %s, hwreg(HW_REG_XCC_ID, 0, 4)" % s(sXcc))
    stamp("b")
    A("  s_waitcnt vmcnt(7)")
    f = T[0:8]; d = T[8:12]; vMean = T[12]; vSd = T[13]; vR = T[14]
    for k in range(4): unpack(f[2 * k], f[2 * k + 1], XD + k)
    ln_stats(f, d, vMean, vSd, vR)
    A("  s_waitcnt vmcnt(6)")
    unpack(f[0], f[1], XP)
    ln_apply(XP, f[0], f[1], vMean, vSd, vR, [f[2], f[3]], True)
    A("  s_waitcnt vmcnt(4) lgkmcnt(0)")
    stamp("e")
    A("  s_add_u32 %s, %s, 1\n  s_and_b32 %s, %s, 0xff" % (s(sTag), s(sTag), s(sT8), s(sTag)))
    A("  v_mov_b32 %s, %s" % (v(vT8), s(sT8)))
    a = T[0:8]
    wperm(F + 8, F, 1)
    for e in range(8):
        A("  v_dot2_f32_bf16 %s, %s, %s, 0" % (v(a[e]), v(F + 8 + e), v(XP)))
    red345(a)
    A("  ds_write_b32 %s, %s" % (v(T[15]), v(a[2])))
    stamp("f")
    A("  s_waitcnt lgkmcnt(0)\n  s_barrier")
    stamp("g")
    A("  s_cmp_lg_u32 %s, 0\n  s_cbranch_scc1 L_noq" % s(sWave))
    A("  v_lshlrev_b32 %s, 5, %s\n  v_add_u32 %s, %d, %s" % (v(T[0]), v(vLane), v(T[0]), RED0, v(T[0])))
    A("  ds_read_b128 %s, %s" % (v(F, 4), v(T[0])))
    A("  ds_read_b128 %s, %s offset:16" % (v(F + 4, 4), v(T[0])))
    A("  v_lshl_add_u32 %s, %s, 3, s54" % (v(T[1]), v(vLane)))
    A("  s_waitcnt lgkmcnt(0)")
    sum8(F)
    A("  v_mov_b32 %s, %s" % (v(F + 1), s(sTag)))
    A("  global_store_dwordx2 %s, %s, s[12:13] sc1" % (v(T[1]), v(F, 2)))
    if P["p1bf"]:
        A("  v_lshrrev_b32 %s, 4, %s\n  v_and_b32 %s, 15, %s" % (v(T[2]), v(vLane), v(T[3]), v(vLane)))
        A("  s_lshl_b32 s34, %s, 15\n  s_lshl_b32 s35, %s, 8\n  s_add_u32 s34, s34, s35\n  s_add_u32 s34, s34, %d" % (s(sG), s(sI), P1))
        A("  v_lshl_add_u32 %s, %s, 13, s34\n  v_lshl_add_u32 %s, %s, 4, %s" % (v(T[2]), v(T[2]), v(T[2]), v(T[3]), v(T[2])))
        for k in range(4): A("  v_mov_b32 %s, -1" % v(F + 4 + k))
        A("  global_store_dwordx4 %s, %s, s[12:13] sc1" % (v(T[2]), v(F + 4, 4)))
    A("L_noq:")
    A("  s_barrier")
    stamp(1)
    A("  s_lshl_b32 s34, %s, 14\n  s_lshl_b32 s35, %s, 9\n  s_add_u32 s34, s34, s35\n  s_add_u32 s34, s34, %d" % (s(sG), s(sWave), QG))
    A("  v_lshrrev_b32 %s, 4, %s\n  v_and_b32 %s, 15, %s" % (v(T[2]), v(vLane), v(T[3]), v(vLane)))
    A("  v_lshl_add_u32 %s, %s, 12, s34\n  v_lshl_add_u32 %s, %s, 5, %s" % (v(T[0]), v(T[2]), v(T[0]), v(T[3]), v(T[0])))
    A("  s_lshl_b32 s34, %s, 7\n  s_add_u32 s34, s34, %d" % (s(sWave), QL))
    A("  v_lshl_add_u32 %s, %s, 3, s34" % (v(T[1]), v(T[3])))
    A("  v_lshrrev_b32 %s, 1, %s\n  v_and_b32 %s, 1, %s" % (v(T[3]), v(T[2]), v(T[2]), v(T[2])))
    A("  v_lshl_add_u32 %s, %s, 2, %s\n  v_lshl_add_u32 %s, %s, 1, %s" % (v(T[1]), v(T[3]), v(T[1]), v(T[1]), v(T[2]), v(T[1])))
    G0 = U[0]; G1 = U[4]
    GQ = F + 8
    def qpoll_issue():
        A("  global_load_dwordx4 %s, %s, s[12:13] sc1" % (v(GQ, 4), v(T[0])))
        A("  global_load_dwordx4 %s, %s, s[12:13] offset:16 sc1" % (v(GQ + 4, 4), v(T[0])))
    def qpoll_check():
        chk_tag([GQ + 1, GQ + 3, GQ + 5, GQ + 7], T[2], sTag)
    def qwrite():
        G0 = GQ
        for e in range(2): A("  v_permlane32_swap_b32 %s, %s" % (v(G0 + 2 * e), v(G0 + 2 * e + 4)))
        for e in range(2): A("  v_add_f32 %s, %s, %s" % (v(G0 + 2 * e), v(G0 + 2 * e), v(G0 + 2 * e + 4)))
        A("  v_permlane16_swap_b32 %s, %s" % (v(G0), v(G0 + 2)))
        A("  v_add_f32 %s, %s, %s" % (v(G0), v(G0), v(G0 + 2)))
        A("  v_cvt_pk_bf16_f32 %s, %s, %s" % (v(G0), v(G0), v(G0)))
        A("  ds_write_b16 %s, %s" % (v(T[1]), v(G0)))
    Lsave = L; L = []; A = L.append
    A("L_tailpro:")
    A("  s_cmp_lg_u32 %s, 7\n  s_cbranch_scc1 L_noreg" % s(sWave))
    A("  s_lshl_b32 s34, %s, 3\n  s_add_u32 s34, s34, %d" % (s(sJ), REG))
    A("  v_mov_b32 %s, s34\n  v_mov_b32 %s, %s\n  v_mov_b32 %s, %s" % (v(T[9]), v(T[10]), s(sXcc), v(T[11]), s(sTag)))
    A("  s_mov_b64 exec, 1")
    A("  global_store_dwordx2 %s, %s, s[12:13] sc1" % (v(T[9]), v(T[10], 2)))
    A("  s_mov_b64 exec, -1")
    A("L_noreg:")
    s3dma(0, 4, 8)
    A("  s_waitcnt vmcnt(4)")
    s3dma(1, 0, 8)
    A("  s_lshl_b32 s34, %s, 5" % s(sJ))
    A("  v_and_b32 %s, 1, %s\n  v_lshrrev_b32 %s, 5, %s\n  v_lshlrev_b32 %s, 3, %s" % (v(T[5]), v(vLane), v(T[6]), v(vLane), v(T[5]), v(T[5])))
    A("  v_lshl_add_u32 %s, %s, 2, %s\n  v_bfe_u32 %s, %s, 4, 1" % (v(T[5]), v(T[6]), v(T[5]), v(T[6]), v(vLane)))
    A("  v_lshl_add_u32 %s, %s, 1, %s\n  v_bfe_u32 %s, %s, 3, 1" % (v(T[5]), v(T[6]), v(T[5]), v(T[6]), v(vLane)))
    A("  v_add_u32 %s, %s, %s\n  v_lshl_add_u32 %s, %s, 1, s34" % (v(T[5]), v(T[6]), v(T[5]), v(T[5]), v(T[5])))
    A("  global_load_ushort %s, %s, s[50:51]" % (v(vXres), v(T[5])))
    nA = P["nA"]
    vWd = U[13]; vWr = U[14]
    def wprep():
        A("  v_lshrrev_b32 %s, 3, %s\n  v_and_b32 %s, 7, %s" % (v(vWd), v(vLane), v(T[5]), v(vLane)))
        A("  v_lshlrev_b32 %s, 10, %s\n  v_lshl_add_u32 %s, %s, 4, %s" % (v(vWd), v(vWd), v(vWd), v(T[5]), v(vWd)))
        A("  v_bfe_u32 %s, %s, 5, 1\n  v_lshlrev_b32 %s, 4, %s" % (v(T[5]), v(vLane), v(vWr), v(T[5])))
        A("  v_bfe_u32 %s, %s, 4, 1\n  v_lshl_add_u32 %s, %s, 2, %s" % (v(T[5]), v(vLane), v(vWr), v(T[5]), v(vWr)))
        A("  v_bfe_u32 %s, %s, 2, 1\n  v_add_u32 %s, %s, %s" % (v(T[5]), v(vLane), v(vWr), v(T[5]), v(vWr)))
        A("  v_bfe_u32 %s, %s, 3, 1\n  v_lshl_add_u32 %s, %s, 3, %s" % (v(T[5]), v(vLane), v(vWr), v(T[5]), v(vWr)))
        A("  v_lshlrev_b32 %s, 7, %s" % (v(vWr), v(vWr)))
    def wround_issue(k, sslot):
        if k in (0, 4) or k == nA:
            if k < 4:
                A("  s_mov_b32 s64, s52\n  s_and_b32 s65, s53, 0xffff\n  s_mov_b32 s66, 0x400000\n  s_mov_b32 s67, 0x20000")
                A("  s_lshl_b32 s14, %s, 17\n  s_lshl_b32 s35, %s, 7\n  s_add_u32 s14, s14, s35\n  s_add_u32 s14, s14, %d" % (s(sJ), s(sWave), k * 32768))
            else:
                A("  s_mov_b32 s64, s60\n  s_and_b32 s65, s61, 0xffff\n  s_mov_b32 s66, 1835008\n  s_mov_b32 s67, 0x20000")
                A("  s_lshl_b32 s14, %s, 16\n  s_lshl_b32 s35, %s, 7\n  s_add_u32 s14, s14, s35\n  s_add_u32 s14, s14, %d" % (s(sJ), s(sWave), (k - 4) * 32768))
        for q_ in range(4):
            A("  s_add_u32 m0, %s, %d" % (s(sslot), 1024 * q_))
            A("  buffer_load_dwordx4 %s, s[64:67], s14 offen %s lds" % (v(vWd), P["wflag"]))
            A("  s_add_u32 s14, s14, 8192")
    def wround_read(k, sslot):
        A("  v_and_b32 %s, 3, %s\n  v_lshl_add_u32 %s, %s, 3, %s\n  v_add_u32 %s, %s, %s" % (v(T[5]), v(vLane), v(T[5]), v(T[5]), v(vWr), v(T[5]), s(sslot), v(T[5])))
        for t in range(4):
            dst = (W2 + 8 * (2 * t + (k >> 1)) + 4 * (k & 1)) if k < 4 else (W4 + 8 * t + 4 * (k & 1))
            for hh in range(2):
                A("  ds_read_b64_tr_b16 %s, %s offset:%d" % (v(dst + 2 * hh, 2), v(T[5]), 256 * hh + 32 * t))
        A("  s_waitcnt lgkmcnt(0)")
    def wrun(k0, k1):
        A("  s_mov_b32 s48, %s\n  s_add_u32 s49, s48, 4096\n  s_and_b32 s49, s49, 0x3fff\n  s_or_b32 s49, s49, %s" % (s(sSlotI), s(sWB)))
        ks = list(range(k0, k1))
        for n, k in enumerate(ks):
            wround_issue(k, 48 + n % 2)
            if n > 0:
                A("  s_waitcnt vmcnt(4)"); wround_read(ks[n - 1], 48 + (n - 1) % 2)
        A("  s_waitcnt vmcnt(0)"); wround_read(ks[-1], 48 + (len(ks) - 1) % 2)
    wprep()
    A("  s_waitcnt vmcnt(0)")
    A("  v_lshlrev_b32 %s, 16, %s" % (v(vXres), v(vXres)))
    A("L_tqpoll:")
    qpoll_issue()
    A("  s_waitcnt vmcnt(0)")
    qpoll_check()
    poll_end("L_tqpoll")
    qwrite()
    A("  s_waitcnt lgkmcnt(0)\n  s_barrier")
    A("  v_bfe_u32 %s, %s, 5, 1\n  v_bfe_u32 %s, %s, 3, 1\n  v_lshl_add_u32 %s, %s, 1, %s" % (v(T[3]), v(vLane), v(T[4]), v(vLane), v(T[3]), v(T[3]), v(T[4])))
    A("  v_xor_b32 %s, %s, %s\n  v_lshl_add_u32 %s, %s, 4, %s" % (v(T[3]), s(sWave), v(T[3]), v(T[3]), v(T[3]), v(vWr)))
    A("  v_and_b32 %s, 1, %s\n  v_lshl_add_u32 %s, %s, 3, %s" % (v(T[4]), v(vLane), v(T[3]), v(T[4]), v(T[3])))
    A("  v_bfe_u32 %s, %s, 1, 1\n  v_lshl_add_u32 %s, %s, 16, %s" % (v(T[4]), v(vLane), v(T[3]), v(T[4]), v(T[3])))
    A("  v_xor_b32 %s, 64, %s" % (v(T[4]), v(T[3])))
    for R in range(16):
        for hh in range(2):
            A("  ds_read_b64_tr_b16 %s, %s offset:%d" % (v(W3A + 4 * R + 2 * hh, 2), v(T[3 + (R & 1)]), 4096 * R + 256 * hh))
        if R % 4 == 3: A("  s_waitcnt lgkmcnt(0)")
    A("  s_barrier")
    if nA: wrun(0, nA)
    for k in range(4): issueK()
    for r in range(NR):
        A("  s_waitcnt vmcnt(8)")
        issueR(r)
    A("  s_branch L_qops")
    late.append("\n".join(L)); L = Lsave; A = L.append

    A("  s_cmp_eq_u32 %s, 1\n  s_cbranch_scc1 L_tailpro" % s(sTail))
    if P["paced"]:
        sQ = 55
        A("  s_lshl_b32 s34, %s, 14\n  s_lshl_b32 s35, %s, 9\n  s_add_u32 s34, s34, s35\n  s_add_u32 s34, s34, %d" % (s(sG), s(sWave), QG))
        A("  s_add_u32 s44, s12, s34\n  s_addc_u32 s45, s13, 0\n  s_mov_b32 %s, 0" % s(sQ))
        nst = 3 + NR
        for k in range(1, nst + 1):
            A("  s_cmp_eq_u32 %s, 1\n  s_cbranch_scc1 L_ps%dq" % (s(sQ), k))
            A("  s_waitcnt vmcnt(%d)" % P["pw"])
            if k <= 3: issueK()
            else: issueR(k - 4)
            A("L_ps%dr:" % k)
            blk = []
            Lsave = L; L = blk; A = L.append
            A("L_ps%dq:" % k)
            A("  s_waitcnt vmcnt(%d)" % (2 + P["pw"]))
            if k <= 3: issueK()
            else: issueR(k - 4)
            A("  s_waitcnt vmcnt(4)")
            qpoll_check()
            A("  s_cselect_b32 %s, 2, 0\n  s_cbranch_scc0 L_ps%dr" % (s(sQ), k))
            qwrite()
            A("  s_branch L_ps%dr" % k)
            L = Lsave; A = L.append
            late.append("\n".join(blk))
            if k < nst:
                A("  s_cmp_lg_u32 %s, 0\n  s_cbranch_scc1 L_ps%de" % (s(sQ), k))
                for j in range(4): A("  s_load_dword s%d, s[44:45], %d glc" % (46 + j, 4096 * j + 508))
                A("  s_waitcnt lgkmcnt(0)")
                for j in range(4): A("  s_xor_b32 s%d, s%d, %s" % (46 + j, 46 + j, s(sTag)))
                A("  s_or_b32 s46, s46, s47\n  s_or_b32 s48, s48, s49\n  s_or_b32 s46, s46, s48\n  s_cmp_eq_u32 s46, 0")
                A("  s_cbranch_scc0 L_ps%de" % k)
                qpoll_issue()
                A("  s_mov_b32 %s, 1" % s(sQ))
                A("L_ps%de:" % k)
        stamp("h")
        A("  s_cmp_eq_u32 %s, 2\n  s_cbranch_scc1 L_qdone" % s(sQ))
        A("L_qpoll:")
        qpoll_issue()
        A("  s_waitcnt vmcnt(0)")
        qpoll_check()
        poll_end("L_qpoll")
        qwrite()
    A("L_qdone:")
    A("  s_waitcnt lgkmcnt(0)\n  s_barrier")
    A("L_qops:")
    stamp(2)
    A("  v_and_b32 %s, 3, %s\n  v_lshlrev_b32 %s, 8, %s" % (v(T[0]), v(vLane), v(T[0]), v(T[0])))
    A("  v_lshrrev_b32 %s, 4, %s\n  v_lshl_add_u32 %s, %s, 4, %s" % (v(T[1]), v(vLane), v(T[0]), v(T[1]), v(T[0])))
    A("  v_add_u32 %s, %d, %s" % (v(T[0]), QL, v(T[0])))
    for t in range(4): A("  ds_read_b128 %s, %s offset:%d" % (v(ACC + 4 * t, 4), v(T[0]), 64 * t))
    S = T[4:8]
    assert S[0] % 2 == 0
    nis = [0]
    def ticket_req():
        A("  s_mov_b64 exec, 1")
        A("  ds_add_rtn_u32 %s, %s, %s" % (v(vTk), v(vTkA), v(vOne)))
        A("  s_mov_b64 exec, -1")
    def issue_dyn(nyoung, kpossible, depth=None, push=False, vwait=None):
        k = nis[0]; nis[0] += 1
        A("  s_waitcnt lgkmcnt(%d)" % nyoung)
        A("  v_readfirstlane_b32 %s, %s" % (s(sTk), v(vTk)))
        ticket_req()
        if kpossible:
            A("  s_cmp_lt_u32 %s, %s\n  s_cbranch_scc0 L_isV%d" % (s(sTk), s(sCnt1), k))
            A("  s_cmp_lt_u32 %s, %s\n  s_cselect_b32 s35, %s, %s" % (s(sTk), s(sThr), s(sOffX), s(sOff0)))
            A("  s_lshl_b32 s34, %s, 12\n  s_add_u32 s34, s34, s35\n  s_mov_b32 m0, %s" % (s(sTk), s(sSlotI)))
            if vwait is not None: A("  s_waitcnt vmcnt(%d)" % vwait)
            for g in range(4):
                A("  buffer_load_dwordx4 %s, s[4:7], s34 offen offset:%d %s lds" % (v(vKd[g]), g * 1024, P["kvflag"]))
            A("L_isret%d:" % k)
            blk = ["L_isV%d:" % k]; B = blk.append
        else:
            B = A
        B("  s_sub_u32 s34, %s, %s\n  s_cmp_lt_u32 s34, %s\n  s_cselect_b32 s35, %s, %s" % (s(sTk), s(sCnt1), s(sThr), s(sOffX), s(sOff0)))
        B("  s_lshl_b32 s34, s34, 12\n  s_add_u32 s34, s34, s35")
        assert W == 1 and P["early"] == 0 and not P["deepV"]
        B("  s_mov_b32 m0, %s" % s(sSlotI))
        if not kpossible: B("  s_cmp_lt_u32 %s, %s" % (s(sTk), s(sCnt2)))
        if vwait is not None: B("  s_waitcnt vmcnt(%d)" % vwait)
        if not kpossible: B("  s_cbranch_scc0 L_isno%d" % k)
        for g in range(4):
            B("  buffer_load_dwordx4 %s, s[8:11], s34 offen offset:%d %s lds" % (v(vVd), g * 1024, P["kvflag"]))
        if not kpossible:
            B("L_isno%d:" % k)
        if kpossible:
            B("  s_branch L_isret%d" % k)
            late.append("\n".join(blk))
        next_slot(sSlotI)
        if push:
            A("  s_mov_b32 %s, %s" % (s(sF[depth]), s(sTk)))
        else:
            WW = depth or W
            for i in range(WW - 1): A("  s_mov_b32 %s, %s" % (s(sF[i]), s(sF[i + 1])))
            A("  s_mov_b32 %s, %s" % (s(sF[WW - 1]), s(sTk)))
    def kbody(wait, issue, sid):
        A("  s_lshl_b32 s34, %s, 7" % s(sid))
        A("  v_add_u32 %s, s34, %s" % (v(T[14]), v(vSb)))
        A("  v_add_u32 %s, %s, %s" % (v(T[0]), s(sSlotC), v(vKrd)))
        for t in range(1, 4): A("  v_xor_b32 %s, %d, %s" % (v(T[t]), 64 * t, v(T[0])))
        if issue:
            issue_dyn(0, True, vwait=wait)
        else:
            A("  s_waitcnt vmcnt(%d)" % wait)
        for t in range(4): A("  ds_read_b128 %s, %s" % (v(F + 4 * t, 4), v(T[t])))
        next_slot(sSlotC)
        for t in range(4):
            A("  s_waitcnt lgkmcnt(%d)" % (3 - t))
            A("  v_mfma_f32_16x16x32_bf16 %s, %s, %s, %s" % (v(S[0], 4), v(F + 4 * t, 4), v(ACC + 4 * t, 4), "0" if t == 0 else v(S[0], 4)))
        A("  v_cvt_pk_bf16_f32 %s, %s, %s" % (v(T[8]), v(S[0]), v(S[1])))
        A("  v_cvt_pk_bf16_f32 %s, %s, %s" % (v(T[9]), v(S[2]), v(S[3])))
        unpack(T[10], T[11], T[8]); unpack(T[12], T[13], T[9])
        for k in range(4): A("  v_mul_f32 %s, %s, %s" % (v(T[10 + k]), SCALE, v(T[10 + k])))
        A("  v_cvt_pk_bf16_f32 %s, %s, %s" % (v(T[8]), v(T[10]), v(T[11])))
        A("  v_cvt_pk_bf16_f32 %s, %s, %s" % (v(T[9]), v(T[12]), v(T[13])))
        setexec(0x000F000F000F000F)
        A("  ds_write_b64 %s, %s" % (v(T[14]), v(T[8], 2)))
        setexec(-1)
        A("  v_max3_f32 %s, %s, %s, %s" % (v(vMx), v(vMx), v(T[10]), v(T[11])))
        A("  v_max3_f32 %s, %s, %s, %s" % (v(vMx), v(vMx), v(T[12]), v(T[13])))
    assert T[8] % 2 == 0
    A("  v_mov_b32 %s, 0xff800000\n  v_mov_b32 %s, 1" % (v(vMx), v(vOne)))
    if P["nstream"] < 8:
        A("  s_cmp_ge_u32 %s, %d\n  s_cbranch_scc1 L_notk" % (s(sWave), P["nstream"]))
    ticket_req()
    A("L_notk:")
    A("  s_mov_b32 %s, %s" % (s(sF[0]), s(sWave)))
    A("  s_waitcnt lgkmcnt(0)")
    if NR:
        assert W == 1
        for i in range(4):
            kbody(4 * (3 - i + NR), False, sF[0])
            A("  s_add_u32 %s, %s, 8" % (s(sF[0]), s(sF[0])))
        A("  v_add_u32 %s, %s, %s" % (v(T[14]), s(sWB), v(vL16)))
        for r in range(NR):
            A("  s_waitcnt vmcnt(%d)" % (4 * (NR - 1 - r)))
            for g in range(4):
                A("  ds_write_b128 %s, %s offset:%d" % (v(T[14]), v(RT + 16 * r + 4 * g, 4), 4096 * r + 1024 * g))
            next_slot(sSlotI)
            if r < NR - 1:
                kbody(4 * (NR - 1 - r), False, sF[0])
                A("  s_add_u32 %s, %s, 8" % (s(sF[0]), s(sF[0])))
                A("  v_add_u32 %s, %s, %s" % (v(T[14]), s(sWB), v(vL16)))
    else:
      for i in range(4 - W):
        kbody(4 * (3 - i), False, sF[0])
        A("  s_add_u32 %s, %s, 8" % (s(sF[0]), s(sF[0])))
    for i in range(1, W): A("  s_add_u32 %s, %s, %d" % (s(sF[i]), s(sF[0]), 8 * i))
    if P["nstream"] < 8:
        A("  s_cmp_ge_u32 %s, %d\n  s_cbranch_scc1 L_idlek" % (s(sWave), P["nstream"]))
        Lsave = L; L = []; A = L.append
        A("L_idlek:")
        kbody(0, False, sF[0])
        A("  s_mov_b32 %s, 0x7fffffff\n  s_branch L_kdone" % s(sF[0]))
        late.append("\n".join(L)); L = Lsave; A = L.append
    A("L_kloop:")
    A("  s_mov_b32 s36, %s" % s(sF[0]))
    kbody(4 * (W - 1), True, 36)
    A("  s_cmp_lt_u32 %s, %s\n  s_cbranch_scc1 L_kloop" % (s(sF[0]), s(sCnt1)))
    A("L_kdone:")
    stamp(3)
    PK = F
    FL = ACC
    vM = T[0]; vLs = T[1]
    XV = P["extraV"]
    assert W + XV <= 4
    for i in range(XV): issue_dyn(0, False, depth=W + i, push=True)
    bfly_hi("v_max_f32", vMx, T[2])
    round_bf16(vMx, vMx)
    A("  s_lshl_b32 s34, %s, 2\n  s_add_u32 s34, s34, %d" % (s(sWave), MLT))
    A("  v_and_b32 %s, 3, %s\n  v_lshlrev_b32 %s, 5, %s" % (v(T[3]), v(vLane), v(T[3]), v(T[3])))
    A("  v_add_u32 %s, s34, %s\n  v_add_u32 %s, %d, %s" % (v(T[2]), v(T[3]), v(T[3]), MLT, v(T[3])))
    A("  s_mov_b64 exec, 0xf")
    A("  ds_write_b32 %s, %s" % (v(T[2]), v(vMx)))
    A("  s_mov_b64 exec, -1")
    A("  s_waitcnt lgkmcnt(0)" + ("" if P["notrans"] else "\n  s_barrier"))
    A("  ds_read_b128 %s, %s" % (v(U[0], 4), v(T[3])))
    A("  ds_read_b128 %s, %s offset:16" % (v(U[4], 4), v(T[3])))
    for k in range(5): A("  ds_read_b64 %s, %s offset:%d" % (v(PK + 2 * k, 2), v(vSr), 512 * k))
    A("  s_waitcnt lgkmcnt(5)")
    A("  v_max3_f32 %s, %s, %s, %s" % (v(vM), v(U[0]), v(U[1]), v(U[2])))
    A("  v_max3_f32 %s, %s, %s, %s" % (v(U[3]), v(U[3]), v(U[4]), v(U[5])))
    A("  v_max3_f32 %s, %s, %s, %s" % (v(vM), v(vM), v(U[6]), v(U[7])))
    A("  v_max_f32 %s, %s, %s" % (v(vM), v(vM), v(U[3])))
    A("  s_mov_b32 s34, %s" % LOG2E)
    A("  v_mul_f32 %s, s34, %s" % (v(T[4]), v(vM)))
    for k in range(5):
        A("  s_waitcnt lgkmcnt(%d)" % (4 - k))
        unpack(FL + 4 * k, FL + 4 * k + 1, PK + 2 * k); unpack(FL + 4 * k + 2, FL + 4 * k + 3, PK + 2 * k + 1)
    for k in range(20): A("  v_fma_f32 %s, %s, s34, -%s" % (v(FL + k), v(FL + k), v(T[4])))
    for k in range(20): A("  v_exp_f32 %s, %s" % (v(FL + k), v(FL + k)))
    for k in range(10): A("  v_cvt_pk_bf16_f32 %s, %s, %s" % (v(PK + k), v(FL + 2 * k), v(FL + 2 * k + 1)))
    for k in range(5): A("  ds_write_b64 %s, %s offset:%d" % (v(vSr), v(PK + 2 * k, 2), 512 * k))
    for k in range(10): A("  v_add_f32 %s, %s, %s" % (v(FL + k), v(FL + k), v(FL + 10 + k)))
    for k in range(5): A("  v_add_f32 %s, %s, %s" % (v(FL + k), v(FL + k), v(FL + 5 + k)))
    A("  v_add_f32 %s, %s, %s" % (v(FL), v(FL), v(FL + 1)))
    A("  v_add_f32 %s, %s, %s" % (v(FL + 2), v(FL + 2), v(FL + 3)))
    A("  v_add_f32 %s, %s, %s" % (v(FL), v(FL), v(FL + 4)))
    A("  v_add_f32 %s, %s, %s" % (v(vLs), v(FL), v(FL + 2)))
    allred_b2345("v_add_f32", vLs, T[5])
    A("  s_mov_b64 exec, 0xf")
    A("  ds_write_b32 %s, %s offset:128" % (v(T[2]), v(vLs)))
    A("  s_mov_b64 exec, -1")
    A("  v_mov_b32 %s, %s" % (v(vMx), v(vM)))
    aW = T[10]; aRd = T[11]; aRd2 = T[12]; aFt = T[13]; aSt = T[14]
    A("  v_and_b32 %s, 3, %s\n  s_movk_i32 s34, 576\n  v_mul_lo_u32 %s, %s, s34" % (v(aW), v(vLane), v(aW), v(aW)))
    A("  v_lshrrev_b32 %s, 4, %s\n  v_lshl_add_u32 %s, %s, 4, %s\n  v_add_u32 %s, %s, %s" % (v(aRd), v(vLane), v(aW), v(aRd), v(aW), v(aW), s(sWB), v(aW)))
    A("  s_lshr_b32 s34, %s, 1\n  s_and_b32 s35, %s, 1\n  s_lshl_b32 s35, s35, 8" % (s(sWave), s(sWave)))
    A("  s_mul_i32 s36, s34, 576\n  s_add_u32 s36, s36, s35")
    A("  v_lshl_add_u32 %s, %s, 2, s36" % (v(aRd), v(vLane)))
    A("  v_add_u32 %s, 0x10000, %s" % (v(aRd2), v(aRd)))
    A("  s_lshl_b32 s36, s34, 4\n  s_add_u32 s36, s36, %d\n  v_mov_b32 %s, s36" % (FT + 8, v(aFt)))
    if P["p1bf"]:
        A("  s_lshl_b32 s36, %s, 2\n  s_add_u32 s36, s36, s34\n  s_lshl_b32 s36, s36, 13\n  s_lshr_b32 s35, s35, 1\n  s_add_u32 s36, s36, s35" % s(sG))
        A("  s_lshl_b32 s34, %s, 8\n  s_add_u32 s36, s36, s34\n  s_add_u32 s36, s36, %d" % (s(sI), P1))
        A("  v_lshl_add_u32 %s, %s, 1, s36" % (v(aSt), v(vLane)))
    else:
        A("  s_lshl_b32 s36, %s, 2\n  s_add_u32 s36, s36, s34\n  s_lshl_b32 s36, s36, 14\n  s_add_u32 s36, s36, s35" % s(sG))
        A("  s_lshl_b32 s34, %s, 9\n  s_add_u32 s36, s36, s34\n  s_add_u32 s36, s36, %d" % (s(sI), P1))
        A("  v_lshl_add_u32 %s, %s, 2, s36" % (v(aSt), v(vLane)))
    A("  s_waitcnt lgkmcnt(0)" + ("" if P["notrans"] else "\n  s_barrier"))
    A("  s_cmp_lg_u32 %s, 0\n  s_cbranch_scc1 L_noml" % s(sWave))
    A("  ds_read_b128 %s, %s offset:128" % (v(U[0], 4), v(T[3])))
    A("  ds_read_b128 %s, %s offset:144" % (v(U[4], 4), v(T[3])))
    A("  s_lshl_b32 s34, %s, 11\n  s_lshl_b32 s35, %s, 6\n  s_add_u32 s34, s34, s35\n  s_add_u32 s34, s34, %d" % (s(sG), s(sI), ML))
    A("  v_add_u32 %s, s34, %s" % (v(T[2]), v(vL16)))
    A("  v_mov_b32 %s, %s\n  v_mov_b32 %s, %s\n  v_mov_b32 %s, %s" % (v(T[6]), v(vMx), v(T[7]), s(sTag), v(T[9]), s(sTag)))
    A("  s_waitcnt lgkmcnt(0)")
    sum8(U[0])
    A("  v_mov_b32 %s, %s" % (v(T[8]), v(U[0])))
    A("  s_mov_b64 exec, 0xf")
    assert T[6] % 2 == 0
    A("  global_store_dwordx4 %s, %s, s[12:13] sc1" % (v(T[2]), v(T[6], 4)))
    A("  s_mov_b64 exec, -1")
    A("L_noml:")
    if nA < 6:
        A("  s_cmp_eq_u32 %s, 1\n  s_cbranch_scc1 L_wB" % s(sTail))
        A("L_wBret:")
        Lsave = L; L = []; A = L.append
        A("L_wB:")
        wrun(nA, 6)
        A("  s_branch L_wBret")
        late.append("\n".join(L)); L = Lsave; A = L.append
    for k in range(32): A("  v_mov_b32 %s, 0" % v(ACC + k))
    stamp(4)
    PB_ = T[2]
    assert PB_ % 2 == 0
    A("  s_lshl_b32 s34, %s, 7\n  v_subrev_u32 %s, s34, %s" % (s(sCnt1), v(vSb), v(vSb)))
    def vbody(wait, issue, depth=None):
        A("  s_lshl_b32 s34, %s, 7" % s(sF[0]))
        A("  v_add_u32 %s, s34, %s" % (v(T[1]), v(vSb)))
        A("  v_add_u32 %s, %s, %s" % (v(T[0]), s(sSlotC), v(vVrd)))
        A("  ds_read_b64 %s, %s" % (v(PB_, 2), v(T[1])))
        if issue: issue_dyn(0, False, depth=depth, vwait=wait)
        else: A("  s_waitcnt vmcnt(%d)" % wait)
        for b in range(8): A("  ds_read_b64_tr_b16 %s, %s offset:%d" % (v(F + 2 * b, 2), v(T[0]), 128 * b))
        next_slot(sSlotC)
        for b in range(8):
            A("  s_waitcnt lgkmcnt(%d)" % (7 - b))
            A("  v_mfma_f32_16x16x16_bf16 %s, %s, %s, %s" % (v(ACC + 4 * b, 4), v(F + 2 * b, 2), v(PB_, 2), v(ACC + 4 * b, 4)))
    for i in range(XV):
        vbody(4 * (W + XV - 1 - i), False)
        for k in range(W + XV - 1 - i): A("  s_mov_b32 %s, %s" % (s(sF[k]), s(sF[k + 1])))
    A("  s_branch L_vtest")
    A("L_vloop:")
    vbody(4 * (W - 1), True)
    A("L_vtest:")
    A("  s_cmp_ge_u32 %s, %s\n  s_cbranch_scc1 L_gather" % (s(sF[0]), s(sTrig)))
    A("L_gatherret:")
    if P["deepV"]:
        A("  s_sub_u32 s36, %s, %d" % (s(sCnt2), P["deepV"]))
        A("  s_cmp_lt_u32 %s, s36\n  s_cbranch_scc1 L_vloop" % s(sF[0]))
        issue_dyn(0, False, depth=W, push=True)
        A("  s_branch L_vtest2")
        A("L_vloop2:")
        vbody(4 * W, True, depth=W + 1)
        A("L_vtest2:")
        A("  s_cmp_lt_u32 %s, %s\n  s_cbranch_scc1 L_vloop2" % (s(sF[0]), s(sCnt2)))
    else:
        A("  s_cmp_lt_u32 %s, %s\n  s_cbranch_scc1 L_vloop" % (s(sF[0]), s(sCnt2)))
    stamp(5)
    Lsave = L; L = []; A = L.append
    A("L_gather:")
    A("  s_mov_b32 %s, -1" % s(sTrig))
    A("  s_lshl_b32 s34, %s, 11\n  s_add_u32 s34, s34, %d" % (s(sG), ML))
    A("  v_add_u32 %s, s34, %s" % (v(T[4]), v(vL16)))
    if P["pf2"]:
        A("  s_getpc_b64 s[44:45]")
        A("L_pc2:")
        A("  s_sub_u32 s44, s44, L_pc2-L_vloop\n  s_subb_u32 s45, s45, 0")
        A("  v_mov_b32 %s, %s" % (v(T[7]), v(vL16)))
        for k in range(P["pf2"]):
            A("  global_load_dwordx4 %s, %s, s[44:45]" % (v(U[8], 4), v(T[7])))
            A("  v_add_u32 %s, 1024, %s" % (v(T[7]), v(T[7])))
    A("L_gpoll:")
    A("  global_load_dwordx4 %s, %s, s[12:13] sc1" % (v(G0, 4), v(T[4])))
    A("  global_load_dwordx4 %s, %s, s[12:13] offset:1024 sc1" % (v(G1, 4), v(T[4])))
    A("  s_waitcnt vmcnt(0)")
    chk_tag([G0 + 1, G0 + 3, G1 + 1, G1 + 3], T[7], sTag)
    poll_end("L_gpoll")
    A("  v_max_f32 %s, %s, %s" % (v(T[8]), v(G0), v(G1)))
    allred_b2345("v_max_f32", T[8], T[7])
    A("  v_sub_f32 %s, %s, %s\n  v_sub_f32 %s, %s, %s" % (v(G0), v(G0), v(T[8]), v(G1), v(G1), v(T[8])))
    A("  v_sub_f32 %s, %s, %s" % (v(U[8]), v(vMx), v(T[8])))
    for r in (G0, G1, U[8]): A("  v_mul_f32 %s, %s, %s" % (v(r), LOG2E, v(r)))
    for r in (G0, G1, U[8]): A("  v_exp_f32 %s, %s" % (v(r), v(r)))
    A("  v_mul_f32 %s, %s, %s" % (v(T[9]), v(G0), v(G0 + 2)))
    A("  v_fmac_f32 %s, %s, %s" % (v(T[9]), v(G1), v(G1 + 2)))
    allred_b2345("v_add_f32", T[9], T[7])
    A("  v_rcp_f32 %s, %s" % (v(U[10]), v(T[9])))
    A("  v_mul_f32 %s, %s, %s" % (v(U[10]), v(U[10]), v(U[8])))
    A("  v_mov_b32 %s, 0" % v(U[11]))
    A("  s_cmp_eq_u32 %s, 0\n  s_cbranch_scc1 L_gfin" % s(sTail))
    A("  v_and_b32 %s, 31, %s\n  v_lshlrev_b32 %s, 3, %s\n  v_add_u32 %s, %d, %s" % (v(T[5]), v(vLane), v(T[5]), v(T[5]), v(T[5]), REG, v(T[5])))
    A("L_rpoll:")
    A("  global_load_dwordx2 %s, %s, s[12:13] sc1" % (v(G0, 2), v(T[5])))
    A("  s_waitcnt vmcnt(0)")
    A("  v_cmp_eq_u32 vcc, %s, %s" % (s(sTag), v(G0 + 1)))
    A("  s_cmp_eq_u64 vcc, -1")
    poll_end("L_rpoll")
    A("  v_cmp_eq_u32 vcc, %s, %s" % (s(sXcc), v(G0)))
    A("  s_cmp_eq_u64 vcc, -1\n  s_cselect_b32 s34, %d, 0" % (0 if P["forceslow"] else 1))
    A("  v_mov_b32 %s, s34" % v(U[11]))
    A("L_gfin:")
    A("  v_add_u32 %s, %d, %s" % (v(T[7]), FT, v(vL16)))
    A("  s_mov_b64 exec, 0xf")
    A("  ds_write_b128 %s, %s" % (v(T[7]), v(U[8], 4)))
    A("  s_mov_b64 exec, -1")
    A("  s_branch L_gatherret")
    late.append("\n".join(L)); L = Lsave; A = L.append
    setexec(0x000F000F000F000F)
    for b in range(8): A("  ds_write_b128 %s, %s offset:%d" % (v(aW), v(ACC + 4 * b, 4), 64 * b))
    setexec(-1)
    A("  s_waitcnt lgkmcnt(0)\n  s_barrier")
    O8 = F; F8 = F + 8
    def read8(dst, a0, a1, st):
        A("  ds_read2st64_b32 %s, %s offset0:%d offset1:%d" % (v(dst, 2), v(a0), st, st + 64))
        A("  ds_read2st64_b32 %s, %s offset0:%d offset1:%d" % (v(dst + 2, 2), v(a0), st + 128, st + 192))
        A("  ds_read2st64_b32 %s, %s offset0:%d offset1:%d" % (v(dst + 4, 2), v(a1), st, st + 64))
        A("  ds_read2st64_b32 %s, %s offset0:%d offset1:%d" % (v(dst + 6, 2), v(a1), st + 128, st + 192))
    read8(O8, aRd, aRd2, 0)
    A("  ds_read_b64 %s, %s" % (v(F8, 2), v(aFt)))
    A("  s_waitcnt lgkmcnt(0)")
    A("  v_readfirstlane_b32 %s, %s" % (s(sFast), v(F8 + 1)))
    sum8(O8)
    A("  v_mul_f32 %s, %s, %s" % (v(O8), v(O8), v(F8)))
    if P["p1bf"]:
        A("  v_mov_b32_dpp %s, %s quad_perm:[1,1,3,3] row_mask:0xf bank_mask:0xf" % (v(O8 + 1), v(O8)))
        A("  v_cvt_pk_bf16_f32 %s, %s, %s" % (v(O8 + 4), v(O8), v(O8 + 1)))
        A("  v_min_u32 %s, -2, %s" % (v(O8 + 4), v(O8 + 4)))
        for k in range(1, 4):
            A("  v_mov_b32_dpp %s, %s row_shl:%d row_mask:0xf bank_mask:0xf" % (v(O8 + 4 + k), v(O8 + 4), 2 * k))
        setexec(0x0101010101010101)
        if P["p1fast"]:
            A("  s_cmp_eq_u32 %s, 1\n  s_cbranch_scc1 L_p1f" % s(sFast))
            late.append("L_p1f:\n  global_store_dwordx4 %s, %s, s[12:13]\n  s_branch L_p1r" % (v(aSt), v(O8 + 4, 4)))
        A("  global_store_dwordx4 %s, %s, s[12:13] sc1" % (v(aSt), v(O8 + 4, 4)))
        A("L_p1r:")
        setexec(-1)
    else:
        A("  v_bfi_b32 %s, %s, %s, %s" % (v(O8), s(sFF), v(vT8), v(O8)))
        A("  global_store_dword %s, %s, s[12:13] sc1" % (v(aSt), v(O8)))
    stamp(6)
    for k in [7, "p", "q", 8, "r", 9, "s", "t", "u", 10, 11]: stamp(k)
    A("  s_cmp_eq_u32 %s, 0\n  s_cbranch_scc1 L_end" % s(sTail))
    aP1 = T[0]; aPA = T[1]; aR3 = T[2]; aLw = T[3]; aLr = T[4]; vIdx = T[5]; aSP = T[6]; aH = T[7]
    A("  v_lshrrev_b32 %s, 1, %s\n  v_and_b32 %s, 1, %s" % (v(T[8]), v(vLane), v(T[9]), v(vLane)))
    A8 = [F + k for k in range(8)]
    assert P["p1bf"]
    A("  s_lshl_b32 s34, %s, 13\n  s_lshl_b32 s35, %s, 5\n  s_add_u32 s34, s34, s35\n  s_add_u32 s34, s34, %d" % (s(sJ), s(sWave), P1))
    A("  v_lshl_add_u32 %s, %s, 8, s34\n  v_lshl_add_u32 %s, %s, 4, %s" % (v(aP1), v(T[8]), v(aP1), v(T[9]), v(aP1)))
    if P["palay"]:
        A("  s_lshl_b32 s34, %s, 11\n  s_add_u32 s34, s34, %d" % (s(sJ), PA))
        A("  v_lshl_add_u32 %s, %s, 5, s34" % (v(aPA), v(vLane)))
    else:
        A("  s_lshl_b32 s34, %s, 6\n  s_add_u32 s34, s34, %d" % (s(sJ), PA))
        A("  v_lshl_add_u32 %s, %s, 11, s34\n  v_lshl_add_u32 %s, %s, 5, %s" % (v(aPA), v(T[8]), v(aPA), v(T[9]), v(aPA)))
    A("  v_lshlrev_b32 %s, 5, %s\n  v_add_u32 %s, %d, %s" % (v(aR3), v(vLane), v(aR3), R3, v(aR3)))
    A("  v_lshrrev_b32 %s, 5, %s\n  v_bfe_u32 %s, %s, 4, 1\n  v_lshl_add_u32 %s, %s, 1, %s" % (v(aLw), v(vLane), v(T[10]), v(vLane), v(aLw), v(aLw), v(T[10])))
    A("  v_lshl_add_u32 %s, %s, 2, %s\n  s_lshl_b32 s34, %s, 5\n  s_add_u32 s34, s34, %d\n  v_lshl_add_u32 %s, %s, 2, s34" % (v(aLw), v(T[9]), v(aLw), s(sWave), OL, v(aLw), v(aLw)))
    A("  v_lshrrev_b32 %s, 4, %s\n  v_lshlrev_b32 %s, 5, %s\n  v_lshl_add_u32 %s, %s, 4, %s\n  v_add_u32 %s, %d, %s" % (v(aLr), v(vLane), v(aLr), v(aLr), v(aLr), v(T[9]), v(aLr), v(aLr), QL, v(aLr)))
    A("  s_mov_b32 s34, 0xaaaaaaaa\n  v_mul_lo_u32 %s, %s, s34\n  v_add_u32 %s, 0x44444444, %s" % (v(vIdx), v(T[9]), v(vIdx), v(vIdx)))
    A("  global_load_dwordx4 %s, %s, s[12:13] sc1" % (v(ACC + 4, 4), v(aPA)))
    A("  global_load_dwordx4 %s, %s, s[12:13] sc1" % (v(ACC + 8, 4), v(aR3)))
    A("  v_add_u32 %s, %d, %s" % (v(T[10]), PB - PA, v(aPA)))
    A("  global_load_dwordx4 %s, %s, s[12:13] sc1" % (v(ACC + 12, 4), v(T[10])))
    if P["palay"]:
        A("  s_lshl_b32 s34, %s, 6\n  s_lshl_b32 s35, %s, 13\n  s_add_u32 s34, s34, s35\n  s_add_u32 s34, s34, %d" % (s(sJ), s(sWave), PA))
        A("  v_lshrrev_b32 %s, 4, %s\n  v_lshl_add_u32 %s, %s, 11, s34\n  v_and_b32 %s, 15, %s\n  v_lshl_add_u32 %s, %s, 2, %s" % (v(aSP), v(vLane), v(aSP), v(aSP), v(T[10]), v(vLane), v(aSP), v(T[10]), v(aSP)))
    else:
        A("  s_lshl_b32 s34, %s, 11\n  s_lshl_b32 s35, %s, 8\n  s_add_u32 s34, s34, s35\n  s_add_u32 s34, s34, %d\n  v_lshl_add_u32 %s, %s, 2, s34" % (s(sJ), s(sWave), PA, v(aSP), v(vLane)))
    A("  v_lshrrev_b32 %s, 5, %s\n  v_lshlrev_b32 %s, 3, %s\n  v_lshl_add_u32 %s, %s, 2, %s" % (v(T[10]), v(vLane), v(aH), v(T[9]), v(aH), v(T[10]), v(aH)))
    A("  v_bfe_u32 %s, %s, 4, 1\n  v_lshl_add_u32 %s, %s, 1, %s" % (v(T[10]), v(vLane), v(aH), v(T[10]), v(aH)))
    A("  v_bfe_u32 %s, %s, 3, 1\n  v_add_u32 %s, %s, %s" % (v(T[10]), v(vLane), v(aH), v(T[10]), v(aH)))
    A("  s_lshl_b32 s34, %s, 4\n  v_add_u32 %s, s34, %s" % (s(sJ), v(aH), v(aH)))
    A("  v_lshlrev_b32 %s, 1, %s" % (v(T[17]), v(aH)))
    if P["otouch"]:
        A("  global_load_ushort %s, %s, s[62:63]" % (v(ACC), v(T[17])))
    A("  v_lshlrev_b32 %s, 2, %s\n  v_add_u32 %s, %d, %s" % (v(aH), v(aH), v(aH), R3, v(aH)))
    A("  s_lshl_b32 s34, %s, 4\n  s_add_u32 s34, s34, %d\n  v_lshl_add_u32 %s, %s, 1, s34" % (s(sWave), HL, v(T[11]), v(vLane)))
    A("  s_and_b32 s55, %s, 0xffff\n  v_mov_b32 %s, s55\n  s_mov_b32 s54, 0xffff" % (s(sTag), v(T[16])))
    assert P["npoll"] == 1 and P["npoll1"] == 1
    for k in range(16): A("  v_mov_b32 %s, 0" % v(U[0] + k))
    for k in range(8): A("  v_mov_b32 %s, 0" % v(F + 8 + k))
    A("  v_add_u32 %s, %d, %s" % (v(T[15]), QL, v(vL16)))
    for k in range(16): A("  v_mov_b32 %s, %s" % (v(ACC + 16 + k), v(vT8)))
    def ld1(k): A("  global_load_dwordx4 %s, %s, s[12:13] sc1" % (v(ACC + 4 * k, 4), v(aP1)))
    def ck1(k):
        H4 = ACC + 4 * k
        A("  v_max3_u32 %s, %s, %s, %s" % (v(T[8]), v(H4), v(H4 + 1), v(H4 + 2)))
        A("  v_max_u32 %s, %s, %s" % (v(T[8]), v(T[8]), v(H4 + 3)))
        A("  v_cmp_ne_u32 vcc, -1, %s" % v(T[8]))
        for q_ in range(4): unpack(A8[2 * q_], A8[2 * q_ + 1], H4 + q_)
        A("  s_cmp_eq_u64 vcc, -1")
    if P["h1mask"]:
        ld1(0)
        A("L_h1:")
        A("  s_waitcnt vmcnt(0)")
        A("  v_max3_u32 %s, %s, %s, %s" % (v(T[8]), v(ACC), v(ACC + 1), v(ACC + 2)))
        A("  v_max_u32 %s, %s, %s" % (v(T[8]), v(T[8]), v(ACC + 3)))
        A("  v_cmp_eq_u32 vcc, -1, %s" % v(T[8]))
        A("  s_and_b64 exec, exec, vcc")
        A("  s_cbranch_execz L_h1_ok")
        if P["h1sleep"]: A("  s_sleep %d" % P["h1sleep"])
        ld1(0)
        A("  s_sub_u32 %s, %s, 1\n  s_cmp_lg_u32 %s, 0\n  s_cbranch_scc1 L_h1" % (s(sSpin), s(sSpin), s(sSpin)))
        A("  s_mov_b32 %s, 1\n  s_waitcnt vmcnt(0)" % s(sSpin))
        A("L_h1_ok:")
        A("  s_mov_b64 exec, -1")
        for q_ in range(4): unpack(A8[2 * q_], A8[2 * q_ + 1], ACC + q_)
    else:
        poll_pipe("L_h1", P["npoll1"], 1, ld1, ck1, sleep=P["h1sleep"])
    stamp(7)
    red16p(A8, A8[0])
    stamp("m")
    setexec(0x0003000300030003)
    A("  ds_write_b32 %s, %s" % (v(aLw), v(A8[0])))
    setexec(-1)
    DD = U[0]
    A("  s_waitcnt lgkmcnt(0)\n  s_barrier")
    stamp("n")
    A("  ds_read_b128 %s, %s offset:%d" % (v(F, 4), v(aLr), OL - QL))
    A("  ds_read_b128 %s, %s offset:%d" % (v(F + 4, 4), v(aLr), OL - QL + 128))
    for u in range(2):
        A("  s_waitcnt lgkmcnt(%d)" % (1 - u))
        for t in range(4):
            A("  v_smfmac_f32_16x16x64_bf16 %s, %s, %s, %s" % (v(DD + 4 * t, 4), v(F + 4 * u, 4), v(W2 + 8 * (2 * t + u), 8), v(vIdx)))
    def select4():
        for t in range(4):
            setexec(0xffff << (16 * t))
            A("  v_add_f32 %s, %s, %s" % (v(O8), v(DD + 4 * t), v(DD + 4 * t + 1)))
        setexec(-1)
    stamp("p")
    select4()
    A("  v_bfi_b32 %s, %s, %s, %s" % (v(O8), s(sFF), v(vT8), v(O8)))
    hstore("global_store_dword %s, %s, s[12:13]" % (v(aSP), v(O8)))
    stamp("q")
    A("  s_cmp_lg_u32 %s, 0\n  s_cbranch_scc1 L_h3w" % s(sWave))
    zero16 = "\n".join("  v_mov_b32 %s, 0" % v(DD + k) for k in range(16)) + "\n  v_add_u32 %s, %d, %s" % (v(aSP), PB - PA, v(aSP))
    late.append("L_h3w:\n  s_cmp_ge_u32 %s, 28\n  s_cbranch_scc1 L_end\n%s\n  s_branch L_h3j" % (s(sJ), zero16))
    def ld8(addr, base=ACC):
        def f_(k):
            A("  global_load_dwordx4 %s, %s, s[12:13] sc1" % (v(base + 8 * k, 4), v(addr)))
            A("  global_load_dwordx4 %s, %s, s[12:13] offset:16 sc1" % (v(base + 8 * k + 4, 4), v(addr)))
        return f_
    def ck8(dst, stag, mask, base=ACC):
        return lambda k: chk_clean2(dst, [base + 8 * k + q_ for q_ in range(8)], T[8], stag, mask)
    ld8(aPA)(0)
    A(zero16)
    poll_pipe("L_hA", 1, 2, ld8(aPA), ck8(A8, sT8, s(sFF)), preissued=1)
    stamp(8)
    red16(A8)
    round_bf16(A8[1], A8[1])
    A("  v_add_f32 %s, %s, %s" % (v(vXres), v(vXres), v(A8[1])))
    A("  v_cvt_pk_bf16_f32 %s, %s, %s" % (v(vXres), v(vXres), v(vXres)))
    A("  v_bfi_b32 %s, s54, %s, %s" % (v(A8[2]), v(T[16]), v(vXres)))
    setexec(0x0303030303030303)
    hstore("global_store_dword %s, %s, s[12:13]" % (v(aH), v(A8[2])))
    setexec(-1)
    A("  v_and_b32 %s, 0xffff0000, %s" % (v(vXres), v(vXres)))
    stamp("r")
    A("L_h3:")
    A("  s_cmp_ge_u32 %s, 28\n  s_cbranch_scc1 L_hB0" % s(sJ))
    f = [F + k for k in range(8)]; d = [T[8], T[9], T[10], U[4]]
    poll_pipe("L_h3p", P["npoll"], 2, ld8(aR3), ck8(f, 55, "s54"))
    stamp(9)
    XO = ACC + 8; E8 = ACC + 12
    D8 = W2 + 32
    A("  v_readfirstlane_b32 s36, %s" % v(f[0]))
    A("  v_mov_b32 %s, %s" % (v(T[10]), INV512))
    A("  s_mov_b32 s32, s36\n  s_mov_b32 s33, s36")
    for k in range(4): A("  v_pk_add_f32 %s, %s, s[32:33] neg_lo:[0,1] neg_hi:[0,1]" % (v(D8 + 2 * k, 2), v(f[2 * k], 2)))
    A("  v_pk_mul_f32 %s, %s, %s" % (v(E8, 2), v(D8, 2), v(D8, 2)))
    A("  v_pk_add_f32 %s, %s, %s" % (v(E8 + 2, 2), v(D8, 2), v(D8 + 2, 2)))
    for k in range(1, 4): A("  v_pk_fma_f32 %s, %s, %s, %s" % (v(E8, 2), v(D8 + 2 * k, 2), v(D8 + 2 * k, 2), v(E8, 2)))
    A("  v_pk_add_f32 %s, %s, %s" % (v(D8 + 4, 2), v(D8 + 4, 2), v(D8 + 6, 2)))
    A("  v_pk_add_f32 %s, %s, %s" % (v(E8 + 2, 2), v(E8 + 2, 2), v(D8 + 4, 2)))
    s1 = T[8]; s2 = T[9]
    A("  v_add_f32 %s, %s, %s" % (v(s2), v(E8), v(E8 + 1)))
    A("  v_add_f32 %s, %s, %s" % (v(s1), v(E8 + 2), v(E8 + 3)))
    for ctrl, rm in (("quad_perm:[1,0,3,2]", "0xf"), ("quad_perm:[2,3,0,1]", "0xf"), ("row_half_mirror", "0xf"),
                     ("row_mirror", "0xf"), ("row_bcast:15", "0xa"), ("row_bcast:31", "0xc")):
        dpp("v_add_f32", s2, s2, s2, ctrl, rm=rm)
        dpp("v_add_f32", s1, s1, s1, ctrl, rm=rm)
    A("  v_readlane_b32 s33, %s, 63" % v(s2))
    A("  v_readlane_b32 s32, %s, 63" % v(s1))
    vMean = E8; vR = E8 + 2
    A("  v_mul_f32 %s, s33, %s" % (v(s2), v(T[10])))
    A("  v_mul_f32 %s, s32, %s" % (v(s1), v(T[10])))
    A("  v_fma_f32 %s, -%s, %s, %s" % (v(s2), v(s1), v(s1), v(s2)))
    A("  v_add_f32 %s, s36, %s" % (v(s1), v(s1)))
    A("  v_max_f32 %s, 0, %s" % (v(s2), v(s2)))
    A("  v_cvt_pk_bf16_f32 %s, %s, %s" % (v(T[10]), v(s1), v(s2)))
    A("  v_and_b32 %s, 0xffff0000, %s" % (v(s2), v(T[10])))
    A("  v_lshlrev_b32 %s, 16, %s" % (v(vMean), v(T[10])))
    A("  v_add_f32 %s, %s, %s" % (v(s2), EPS, v(s2)))
    A("  v_lshlrev_b32 %s, 16, %s" % (v(vMean + 1), v(T[10])))
    A("  v_cvt_pk_bf16_f32 %s, %s, %s" % (v(s2), v(s2), v(s2)))
    A("  v_pk_add_f32 %s, %s, %s neg_lo:[0,1] neg_hi:[0,1]" % (v(f[0], 2), v(f[0], 2), v(vMean, 2)))
    A("  v_and_b32 %s, 0xffff0000, %s" % (v(s2), v(s2)))
    A("  v_sqrt_f32 %s, %s" % (v(s2), v(s2)))
    for k in range(1, 4): A("  v_pk_add_f32 %s, %s, %s neg_lo:[0,1] neg_hi:[0,1]" % (v(f[2 * k], 2), v(f[2 * k], 2), v(vMean, 2)))
    A("  v_cvt_pk_bf16_f32 %s, %s, %s" % (v(s2), v(s2), v(s2)))
    A("  v_cvt_pk_bf16_f32 %s, %s, %s" % (v(XO), v(f[0]), v(f[1])))
    A("  v_and_b32 %s, 0xffff0000, %s" % (v(s2), v(s2)))
    A("  v_rcp_f32 %s, %s" % (v(vR), v(s2)))
    for k in range(1, 4): A("  v_cvt_pk_bf16_f32 %s, %s, %s" % (v(XO + k), v(f[2 * k]), v(f[2 * k + 1])))
    A("  v_mov_b32 %s, %s" % (v(vR + 1), v(vR)))
    for k in range(4): unpack(f[2 * k], f[2 * k + 1], XO + k)
    for k in range(4): A("  v_pk_mul_f32 %s, %s, %s" % (v(f[2 * k], 2), v(f[2 * k], 2), v(vR, 2)))
    for k in range(4): A("  v_cvt_pk_bf16_f32 %s, %s, %s" % (v(XO + k), v(f[2 * k]), v(f[2 * k + 1])))
    stamp("l")
    A("  ds_write_b128 %s, %s" % (v(T[15]), v(XO, 4)))
    A("  s_waitcnt lgkmcnt(0)")
    A("L_h3j:")
    A("  s_barrier")
    XA = W2
    for u in range(8): A("  ds_read_b128 %s, %s offset:%d" % (v(XA + 4 * u, 4), v(aLr), 128 * u))
    stamp("s")
    for u in range(8):
        A("  s_waitcnt lgkmcnt(%d)" % (7 - u))
        A("  v_smfmac_f32_16x16x64_bf16 %s, %s, %s, %s" % (v(F + 8 + 4 * (u & 1), 4), v(XA + 4 * u, 4), v(W3A + 8 * u, 8), v(vIdx)))
    GA = [F + k for k in range(8)]
    A("  v_pk_add_f32 %s, %s, %s" % (v(GA[0], 2), v(F + 8, 2), v(F + 12, 2)))
    A("  v_add_f32 %s, %s, %s" % (v(GA[0]), v(GA[0]), v(GA[1])))
    stamp("y")
    round_bf16(GA[0], GA[0])
    A("  v_mul_f32 %s, 0xbfb8aa3b, %s" % (v(GA[2]), v(GA[0])))
    A("  v_exp_f32 %s, %s" % (v(GA[2]), v(GA[2])))
    A("  v_mov_b32_dpp %s, %s row_ror:8 row_mask:0xf bank_mask:0xf" % (v(GA[1]), v(GA[0])))
    A("  v_add_f32 %s, 1.0, %s" % (v(GA[2]), v(GA[2])))
    A("  v_rcp_f32 %s, %s" % (v(GA[2]), v(GA[2])))
    A("  v_mul_f32 %s, %s, %s" % (v(GA[0]), v(GA[0]), v(GA[2])))
    round_bf16(GA[0], GA[0])
    A("  v_mul_f32 %s, %s, %s" % (v(GA[0]), v(GA[0]), v(GA[1])))
    A("  v_cvt_pk_bf16_f32 %s, %s, %s" % (v(GA[0]), v(GA[0]), v(GA[0])))
    A("  s_mov_b64 exec, 0xff")
    A("  ds_write_b16 %s, %s" % (v(T[11]), v(GA[0])))
    A("  s_mov_b64 exec, -1")
    stamp("t")
    A("  s_waitcnt lgkmcnt(0)\n  s_barrier")
    stamp("z")
    A("  ds_read_b128 %s, %s offset:%d" % (v(F, 4), v(aLr), HL - QL))
    A("  s_waitcnt lgkmcnt(0)")
    for t in range(4):
        A("  v_smfmac_f32_16x16x64_bf16 %s, %s, %s, %s" % (v(DD + 4 * t, 4), v(F, 4), v(W4 + 8 * t, 8), v(vIdx)))
    select4()
    A("  v_bfi_b32 %s, %s, %s, %s" % (v(O8), s(sFF), v(vT8), v(O8)))
    hstore("global_store_dword %s, %s, s[12:13]" % (v(aSP), v(O8)))
    stamp("u")
    A("L_hB0:")
    A("  s_cmp_lg_u32 %s, 0\n  s_cbranch_scc1 L_end" % s(sWave))
    A("  v_add_u32 %s, %d, %s" % (v(aPA), PB - PA, v(aPA)))
    def ldB(k):
        A("  s_mov_b32 exec_hi, 0xffffff")
        ld8(aPA, ACC + 16)(k)
        A("  s_mov_b64 exec, -1")
    poll_pipe("L_hB", P["npoll"], 2, ldB, ck8(A8, sT8, s(sFF), ACC + 16))
    stamp(10)
    red16(A8)
    round_bf16(A8[1], A8[1])
    A("  v_add_f32 %s, %s, %s" % (v(A8[1]), v(vXres), v(A8[1])))
    if P["err"]:
        A("  v_mul_f32 %s, 0x%08x, %s" % (v(A8[1]), struct.unpack("<I", struct.pack("<f", 1.0 + P["err"] / 1000.0))[0], v(A8[1])))
    A("  v_mov_b32_dpp %s, %s row_ror:8 row_mask:0xf bank_mask:0xf" % (v(A8[2]), v(A8[1])))
    A("  v_cvt_pk_bf16_f32 %s, %s, %s" % (v(A8[0]), v(A8[1]), v(A8[2])))
    setexec(0x0003000300030003)
    A("  global_store_dword %s, %s, s[62:63]" % (v(T[17]), v(A8[0])))
    A("  s_mov_b64 exec, 1")
    A("  s_cmp_lg_u32 %s, 0\n  s_cbranch_scc1 L_noepoch" % s(sJ))
    A("  v_mov_b32 %s, %d\n  v_mov_b32 %s, %s" % (v(A8[5]), EPOCH, v(A8[6]), s(sTag)))
    A("  global_store_dword %s, %s, s[12:13]" % (v(A8[5]), v(A8[6])))
    A("L_noepoch:")
    A("  s_mov_b64 exec, -1")
    stamp(11)
    A("L_end:")
    if SLIST:
        A("  s_cmp_lg_u32 %s, %d\n  s_cbranch_scc1 L_done" % (s(sWave), P["sw"]))
        A("  s_waitcnt vmcnt(0)")
        stamp(12)
        A("  s_waitcnt lgkmcnt(0)")
        ns = len(SLIST)
        if P["dbgwg"] >= 0:
            A("  s_cmp_lg_u32 s2, %d\n  s_cbranch_scc1 L_done" % P["dbgwg"])
            A("  s_load_dwordx2 s[12:13], s[0:1], 80\n  s_waitcnt lgkmcnt(0)")
            A("  v_mov_b32 v14, 0\n  s_mov_b64 exec, 1")
            for k in range(ns):
                A("  s_sub_u32 s34, s%d, s68\n  v_mov_b32 v16, s34" % (68 + 2 * k))
                A("  global_store_dword v14, v16, s[12:13] offset:%d" % (4 * k))
            A("  s_waitcnt vmcnt(0)\n  s_branch L_done")
        A("  s_add_u32 s12, s12, 0x10000000\n  s_addc_u32 s13, s13, 0")
        A("  s_mul_i32 s34, s2, %d\n  v_mov_b32 v14, s34" % (8 * (ns + 1)))
        A("  s_getreg_b32 s%d, hwreg(HW_REG_XCC_ID)\n  s_getreg_b32 s%d, hwreg(HW_REG_HW_ID)" % (68 + 2 * ns, 69 + 2 * ns))
        A("  s_mov_b64 exec, 1")
        for k in range(ns + 1):
            A("  v_mov_b32 v16, s%d\n  v_mov_b32 v17, s%d" % (68 + 2 * k, 69 + 2 * k))
            A("  global_store_dwordx2 v14, v[16:17], s[12:13] offset:%d" % (8 * k))
        A("  s_waitcnt vmcnt(0)")
    A("L_done:\n  s_endpgm")
    for blk in late: A(blk)
    A("L_codeend:")
    body = auto_nop(L)
    out = HEAD + body
    out.append('.section .rodata,"a"\n.p2align 6\n.amdhsa_kernel %s' % NAME)
    out.append("  .amdhsa_next_free_vgpr 256\n  .amdhsa_next_free_sgpr 102\n  .amdhsa_accum_offset 256")
    out.append("  .amdhsa_group_segment_fixed_size 0\n  .amdhsa_kernarg_size 96\n  .amdhsa_user_sgpr_count 2\n  .amdhsa_user_sgpr_kernarg_segment_ptr 1\n  .amdhsa_system_sgpr_workgroup_id_x 1")
    out.append("  .amdhsa_float_denorm_mode_32 3\n.end_amdhsa_kernel")
    return "\n".join(out) + "\n"

if __name__ == "__main__":
    kw = {}
    for kv in sys.argv[2:]:
        k, val = kv.split("=")
        if k == "stamps": pass
        elif val.lstrip("-").isdigit(): val = int(val)
        else: val = val.replace("+", " ").replace("none", "")
        kw[k] = val
    open(sys.argv[1], "w").write(gen(**kw))
```

```python
import sys, struct
from asmlib import auto_nop
NAME = "sequential_preLN__gqa_block_cached__glu_gated_swiglu__decode_kernel"

DEF = dict(X=133, W=1, early=0, PW=4, stamps="", wqflag="nt", wflag="nt", kvflag="nt", spin=400000, gtrig=3,
           psleep=1, codepf=1, err=0, forceslow=0, sw=0, ordbar=1, k1early=1, dbgwg=-1, pf2=5, gthr=24, smemq=1, extraV=0, deepV=0, nA=1, NR=0, S=24, p1bf=1, npoll=1, npoll1=1, scflag="sc1 nt", diag=0, noq=0, notrans=0, h1sleep=2, paced=1, pw=3, palay=1, red2=1, nstream=8, p1fast=1, otouch=1, h1mask=1, bmap=1, rot=0, vtouch=0)

EPOCH = 0; QG = 0x100000; ML = 0x8000; REG = 0xC000; R3 = 0xD000; P1 = 0x20000; PA = 0xA0000; PB = 0xB0000; PC = 0xE000; SG = 0x200000
SC = 131072; QL = SC + 8 * 2560; MLT = QL + 1024; FT = MLT + 256; FLAG = FT + 128; TK = FLAG + 16; OL = RED0_ = 153088; HL = OL + 256; RED0 = 153088; LDS_TOTAL = RED0 + 2048
LOG2E = "0x3fb8aa3b"; SCALE = "0x3db504f3"; EPS = "0x3727c5ac"; INV512 = "0x3b000000"

vLane = 1; vL16 = 2; vKd = [3, 4, 5, 6]; vVd = 7; vKrd = 8; vVrd = 9; vSb = 10; vSr = 11; vXres = 12; vT8 = 13
T = list(range(14, 32))
F = 32
ACC = 48
U = list(range(80, 96))
W2 = 96; W3A = 160; W3B = 192; W4 = 224
sWave = 3; sG = 18; sI = 19; sTail = 20; sJ = 21; sCnt1 = 22; sCnt2 = 23; sOff = 24; sOff0 = 25; sSlotC = 26; sSlotI = 27
sWB = 28; sTag = 29; sT8 = 30; sSpin = 31; sDone = 40; sFast = 41; sTrig = 42; sXcc = 43
sSelLo = 37; sSelHi = 38; sFF = 39; sF = [16, 17, 55, 54]; sTk = 33; sOffX = 40; sThr = 15; sC0 = 14; sCX = 17
vTkA = 30; vTk = 31; vOne = 95; vMx = 29

DOC = """
One persistent launch, 256 workgroups x 8 waves (one workgroup per CU), generated by a script of mine.
 1. every workgroup: LayerNorm(x), a 128x64 slice of x@wq, partials handed over through d_ws (tag = epoch word + 1)
 2. kv head = wg>>5; each workgroup streams its K tiles (16 keys, LDS-DMA ring, tickets from an LDS counter), scores -> LDS
 3. workgroup max / exp / sum, (max,sum) published; V tiles streamed, P@V by MFMA; partial scaled with the global max/sum
 4. the 32 workgroups with wg&7==0 hold wo / w1 / w3 / w2 slices in registers and run the rest:
    combine -> wo -> reduce -> h -> LayerNorm -> gate/up -> silu*up -> w2 -> reduce -> out
    Their mutual hand-offs use plain stores when a run-time check shows they share one XCD, write-through otherwise.
All spins are bounded.
"""

def v(i, n=1): return "v%d" % i if n == 1 else "v[%d:%d]" % (i, i + n - 1)
def s(i, n=1): return "s%d" % i if n == 1 else "s[%d:%d]" % (i, i + n - 1)

def gen(**kw):
    P = dict(DEF); P.update(kw)
    X = P["X"]; Y = 1024 - 7 * X; W = P["W"]
    assert 0 < Y <= X and (X + 7) // 8 <= 20 and Y >= 8 * 5
    L = []; A = L.append
    late = []
    SLIST = P["stamps"].split(",") if P["stamps"] else []
    def stamp(k):
        k = str(k)
        if k in SLIST:
            A("  s_memrealtime %s" % s(68 + 2 * SLIST.index(k), 2))
        if k + "c" in SLIST:
            A("  s_memtime %s" % s(68 + 2 * SLIST.index(k + "c"), 2))
    def setexec(mask):
        if mask == -1:
            A("  s_mov_b64 exec, -1")
        else:
            lo = mask & 0xffffffff; hi = mask >> 32
            A("  s_mov_b32 exec_lo, 0x%x\n  s_mov_b32 exec_hi, 0x%x" % (lo, hi))
    def round_bf16(dst, src):
        A("  v_cvt_pk_bf16_f32 %s, %s, %s" % (v(dst), v(src), v(src)))
        A("  v_and_b32 %s, 0xffff0000, %s" % (v(dst), v(dst)))
    def unpack(lo, hi, src):
        A("  v_lshlrev_b32 %s, 16, %s" % (v(lo), v(src)))
        A("  v_and_b32 %s, 0xffff0000, %s" % (v(hi), v(src)))
    def dpp(op, d, a, b, ctrl, rm="0xf", bm="0xf"):
        A("  %s_dpp %s, %s, %s %s row_mask:%s bank_mask:%s" % (op, v(d), v(a), v(b), ctrl, rm, bm))
    def bfly_hi(op, x, t):
        A("  v_mov_b32 %s, %s" % (v(t), v(x)))
        A("  v_permlane16_swap_b32 %s, %s" % (v(x), v(t)))
        A("  %s %s, %s, %s" % (op, v(x), v(x), v(t)))
        A("  v_mov_b32 %s, %s" % (v(t), v(x)))
        A("  v_permlane32_swap_b32 %s, %s" % (v(x), v(t)))
        A("  %s %s, %s, %s" % (op, v(x), v(x), v(t)))
    def allred_b2345(op, x, t):
        dpp(op, x, x, x, "row_ror:4")
        dpp(op, x, x, x, "row_ror:8")
        bfly_hi(op, x, t)
    def red345(a):
        for e in range(4): A("  v_permlane32_swap_b32 %s, %s" % (v(a[e]), v(a[e + 4])))
        for e in range(4): A("  v_add_f32 %s, %s, %s" % (v(a[e]), v(a[e]), v(a[e + 4])))
        for e in range(2): A("  v_permlane16_swap_b32 %s, %s" % (v(a[e]), v(a[e + 2])))
        for e in range(2): A("  v_add_f32 %s, %s, %s" % (v(a[e]), v(a[e]), v(a[e + 2])))
        dpp("v_add_f32", a[2], a[0], a[0], "row_ror:8", bm="0x3")
        dpp("v_add_f32", a[2], a[1], a[1], "row_ror:8", bm="0xc")
    def red16(a):
        red345(a)
        dpp("v_add_f32", a[0], a[2], a[2], "row_shl:4")
        dpp("v_add_f32", a[1], a[0], a[0], "quad_perm:[2,3,0,1]")
    def red16p(a, dst):
        for e in range(4): A("  v_permlane32_swap_b32 %s, %s" % (v(a[e]), v(a[e + 4])))
        for e in range(4): A("  v_add_f32 %s, %s, %s" % (v(a[e]), v(a[e]), v(a[e + 4])))
        for e in range(2): A("  v_permlane16_swap_b32 %s, %s" % (v(a[e]), v(a[e + 2])))
        for e in range(2): A("  v_add_f32 %s, %s, %s" % (v(a[e]), v(a[e]), v(a[e + 2])))
        for ctrl in ("row_ror:8", "row_shl:4", "quad_perm:[2,3,0,1]"):
            for e in range(2): dpp("v_add_f32", a[e], a[e], a[e], ctrl)
        A("  v_cvt_pk_bf16_f32 %s, %s, %s" % (v(dst), v(a[0]), v(a[1])))
    def sum8(q):
        A("  v_pk_add_f32 %s, %s, %s" % (v(q, 2), v(q, 2), v(q + 2, 2)))
        A("  v_pk_add_f32 %s, %s, %s" % (v(q + 4, 2), v(q + 4, 2), v(q + 6, 2)))
        A("  v_pk_add_f32 %s, %s, %s" % (v(q, 2), v(q, 2), v(q + 4, 2)))
        A("  v_add_f32 %s, %s, %s" % (v(q), v(q), v(q + 1)))
    def ln_stats(f, d, vMean, vSd, vR):
        A("  v_readfirstlane_b32 s36, %s" % v(f[0]))
        s1 = d[0]; s2 = d[1]; t = d[2]; t2 = d[3]
        A("  v_subrev_f32 %s, s36, %s" % (v(s1), v(f[1])))
        A("  v_subrev_f32 %s, s36, %s" % (v(t), v(f[0])))
        A("  v_mul_f32 %s, %s, %s" % (v(s2), v(s1), v(s1)))
        A("  v_add_f32 %s, %s, %s" % (v(s1), v(s1), v(t)))
        A("  v_fmac_f32 %s, %s, %s" % (v(s2), v(t), v(t)))
        for k in range(2, 8):
            tt = t if k % 2 else t2
            A("  v_subrev_f32 %s, s36, %s" % (v(tt), v(f[k])))
            A("  v_add_f32 %s, %s, %s" % (v(s1), v(s1), v(tt)))
            A("  v_fmac_f32 %s, %s, %s" % (v(s2), v(tt), v(tt)))
        for ctrl, rm in (("quad_perm:[1,0,3,2]", "0xf"), ("quad_perm:[2,3,0,1]", "0xf"), ("row_half_mirror", "0xf"),
                         ("row_mirror", "0xf"), ("row_bcast:15", "0xa"), ("row_bcast:31", "0xc")):
            dpp("v_add_f32", s1, s1, s1, ctrl, rm=rm)
            dpp("v_add_f32", s2, s2, s2, ctrl, rm=rm)
        A("  v_readlane_b32 s32, %s, 63" % v(s1))
        A("  v_readlane_b32 s33, %s, 63" % v(s2))
        A("  v_mov_b32 %s, %s" % (v(t), INV512))
        A("  v_mul_f32 %s, s32, %s" % (v(s1), v(t)))
        A("  v_mul_f32 %s, s33, %s" % (v(s2), v(t)))
        A("  v_add_f32 %s, s36, %s" % (v(vMean), v(s1)))
        A("  v_fma_f32 %s, -%s, %s, %s" % (v(s2), v(s1), v(s1), v(s2)))
        A("  v_max_f32 %s, 0, %s" % (v(s2), v(s2)))
        A("  v_cvt_pk_bf16_f32 %s, %s, %s" % (v(t), v(vMean), v(s2)))
        A("  v_lshlrev_b32 %s, 16, %s" % (v(vMean), v(t)))
        A("  v_and_b32 %s, 0xffff0000, %s" % (v(s2), v(t)))
        A("  v_add_f32 %s, %s, %s" % (v(s2), EPS, v(s2)))
        round_bf16(s2, s2)
        A("  v_sqrt_f32 %s, %s" % (v(s2), v(s2)))
        round_bf16(vSd, s2)
        A("  v_rcp_f32 %s, %s" % (v(vR), v(vSd)))
    def ln_apply(dst, flo, fhi, vMean, vSd, vR, t, newton):
        A("  v_sub_f32 %s, %s, %s" % (v(flo), v(flo), v(vMean)))
        A("  v_sub_f32 %s, %s, %s" % (v(fhi), v(fhi), v(vMean)))
        A("  v_cvt_pk_bf16_f32 %s, %s, %s" % (v(dst), v(flo), v(fhi)))
        unpack(flo, fhi, dst)
        if newton:
            A("  v_mul_f32 %s, %s, %s" % (v(t[0]), v(flo), v(vR)))
            A("  v_mul_f32 %s, %s, %s" % (v(t[1]), v(fhi), v(vR)))
            A("  v_fma_f32 %s, -%s, %s, %s" % (v(flo), v(t[0]), v(vSd), v(flo)))
            A("  v_fma_f32 %s, -%s, %s, %s" % (v(fhi), v(t[1]), v(vSd), v(fhi)))
            A("  v_fma_f32 %s, %s, %s, %s" % (v(flo), v(flo), v(vR), v(t[0])))
            A("  v_fma_f32 %s, %s, %s, %s" % (v(fhi), v(fhi), v(vR), v(t[1])))
        else:
            A("  v_mul_f32 %s, %s, %s" % (v(flo), v(flo), v(vR)))
            A("  v_mul_f32 %s, %s, %s" % (v(fhi), v(fhi), v(vR)))
        A("  v_cvt_pk_bf16_f32 %s, %s, %s" % (v(dst), v(flo), v(fhi)))
    def next_slot(r):
        A("  s_add_u32 %s, %s, 4096\n  s_and_b32 %s, %s, 0x3fff\n  s_or_b32 %s, %s, %s" % (s(r), s(r), s(r), s(r), s(r), s(r), s(sWB)))
    def off_of(sid, O=None):
        O = O or A
        O("  s_cmp_lt_u32 %s, %s\n  s_cselect_b32 s35, %s, %s\n  s_cselect_b32 s36, %s, %s" % (sid, s(sThr), s(sOffX), s(sOff0), s(sCX), s(sC0)))
        O("  s_add_u32 s34, %s, s36\n  s_and_b32 s34, s34, 127\n  s_lshl_b32 s34, s34, 12\n  s_add_u32 s34, s34, s35" % sid)
    def issueK():
        off_of(s(sOff))
        A("  s_mov_b32 m0, %s" % s(sSlotI))
        for g in range(4):
            A("  buffer_load_dwordx4 %s, s[4:7], s34 offen offset:%d %s lds" % (v(vKd[g]), g * 1024, P["kvflag"]))
        A("  s_add_u32 %s, %s, 8" % (s(sOff), s(sOff)))
        next_slot(sSlotI)
    def issueV():
        A("  s_mov_b32 m0, %s" % s(sSlotI))
        for g in range(4):
            A("  buffer_load_dwordx4 %s, s[8:11], %s offen offset:%d %s lds" % (v(vVd), s(sOff), g * 1024, P["kvflag"]))
        A("  s_add_u32 %s, %s, 32768" % (s(sOff), s(sOff)))
        next_slot(sSlotI)
    RT = 112
    NR = P["NR"]
    def issueR(r):
        for g in range(4):
            A("  buffer_load_dwordx4 %s, %s, s[4:7], %s offen offset:%d %s" % (v(RT + 16 * r + 4 * g, 4), v(vKd[g]), s(sOff), g * 1024, P["kvflag"]))
        A("  s_add_u32 %s, %s, 32768" % (s(sOff), s(sOff)))
    nslow = [0]
    def hstore(text):
        k = nslow[0]; nslow[0] += 1
        A("  s_cmp_eq_u32 %s, 1" % s(sFast))
        A("  s_cbranch_scc0 L_slow%d" % k)
        A("  " + text)
        A("L_slowret%d:" % k)
        late.append("L_slow%d:\n  %s sc1\n  s_branch L_slowret%d" % (k, text, k))
    def poll_end(label):
        A("  s_cbranch_scc1 %s_ok" % label)
        if P["psleep"]: A("  s_sleep %d" % P["psleep"])
        A("  s_sub_u32 %s, %s, 1" % (s(sSpin), s(sSpin)))
        A("  s_cmp_lg_u32 %s, 0" % s(sSpin))
        A("  s_cbranch_scc1 %s" % label)
        A("  s_mov_b32 %s, 1" % s(sSpin))
        A("%s_ok:" % label)
    def chk_tag(regs, t, stag, mask=None):
        A("  v_xor_b32 %s, %s, %s" % (v(t), s(stag), v(regs[0])))
        for r in regs[1:]: A("  v_bitop3_b32 %s, %s, %s, %s bitop3:0xf6" % (v(t), v(t), v(r), s(stag)))
        if mask: A("  v_and_b32 %s, %s, %s" % (v(t), mask, v(t)))
        A("  v_cmp_eq_u32 vcc, 0, %s" % v(t))
        A("  s_cmp_eq_u64 vcc, -1")
    def chk_clean(regs, t, stag, mask):
        for r in regs: A("  v_xor_b32 %s, %s, %s" % (v(r), s(stag), v(r)))
        if len(regs) == 8:
            A("  v_or3_b32 %s, %s, %s, %s" % (v(t), v(regs[0]), v(regs[1]), v(regs[2])))
            A("  v_or3_b32 %s, %s, %s, %s" % (v(t + 1), v(regs[3]), v(regs[4]), v(regs[5])))
            A("  v_or3_b32 %s, %s, %s, %s" % (v(t), v(t), v(regs[6]), v(regs[7])))
            A("  v_bitop3_b32 %s, %s, %s, %s bitop3:0xa8" % (v(t), v(t), v(t + 1), mask))
        else:
            A("  v_or3_b32 %s, %s, %s, %s" % (v(t), v(regs[0]), v(regs[1]), v(regs[2])))
            A("  v_bitop3_b32 %s, %s, %s, %s bitop3:0xa8" % (v(t), v(t), v(regs[3]), mask))
        A("  v_cmp_eq_u32 vcc, 0, %s" % v(t))
        A("  s_cmp_eq_u64 vcc, -1")
    def chk_clean2(dst, src, t, stag, mask):
        for d_, r in zip(dst, src): A("  v_xor_b32 %s, %s, %s" % (v(d_), s(stag), v(r)))
        A("  v_or3_b32 %s, %s, %s, %s" % (v(t), v(dst[0]), v(dst[1]), v(dst[2])))
        A("  v_or3_b32 %s, %s, %s, %s" % (v(t + 1), v(dst[3]), v(dst[4]), v(dst[5])))
        A("  v_or3_b32 %s, %s, %s, %s" % (v(t), v(t), v(dst[6]), v(dst[7])))
        A("  v_bitop3_b32 %s, %s, %s, %s bitop3:0xa8" % (v(t), v(t), v(t + 1), mask))
        A("  v_cmp_eq_u32 vcc, 0, %s" % v(t))
        A("  s_cmp_eq_u64 vcc, -1")
    def poll_pipe(label, nsets, nld, load, check, preissued=0, sleep=0):
        for k in range(preissued, nsets): load(k)
        A("%s:" % label)
        for k in range(nsets):
            A("  s_waitcnt vmcnt(%d)" % (nld * (nsets - 1)))
            check(k)
            A("  s_cbranch_scc1 %s_ok" % label)
            if sleep: A("  s_sleep %d" % sleep)
            load(k)
        A("  s_sub_u32 %s, %s, 1" % (s(sSpin), s(sSpin)))
        A("  s_cmp_lg_u32 %s, 0" % s(sSpin))
        A("  s_cbranch_scc1 %s" % label)
        A("  s_mov_b32 %s, 1" % s(sSpin))
        A("%s_ok:" % label)
    def wperm(dst, tb, n=2):
        for h in range(n):
            for c in range(4):
                A("  v_perm_b32 %s, %s, %s, %s" % (v(dst + 8 * h + 2 * c), v(tb + 8 * h + 4 + c), v(tb + 8 * h + c), s(sSelLo)))
                A("  v_perm_b32 %s, %s, %s, %s" % (v(dst + 8 * h + 2 * c + 1), v(tb + 8 * h + 4 + c), v(tb + 8 * h + c), s(sSelHi)))

    hdr = open("cdna_kernels/%s.s.ref" % NAME.replace("_kernel", "")).read().split("\n")
    for h in hdr:
        if h.startswith(";") and "@launch" not in h and "Override" not in h and "grid=ceil" not in h: A(h)
    for ln in DOC.strip("\n").split("\n"): A("; " + ln)
    A("; @launch grid=(256,1,1) block=(512,1,1) lds=%d" % LDS_TOTAL)
    A('.amdgcn_target "amdgcn-amd-amdhsa--gfx950"')
    A(".text\n.globl %s\n.p2align 8\n.type %s,@function\n%s:" % (NAME, NAME, NAME))
    HEAD = L; L = []; A = L.append
    stamp(0)
    A("  s_cmp_ge_u32 s2, 256\n  s_cbranch_scc1 L_done")
    A("  s_load_dwordx8 s[44:51], s[0:1], 0")
    A("  s_load_dwordx2 s[12:13], s[0:1], 88")
    A("  s_load_dwordx2 s[52:53], s[0:1], 32")
    A("  s_load_dwordx8 s[56:63], s[0:1], 48")
    if P["codepf"]:
        A("  s_getpc_b64 s[16:17]")
        A("L_pc:")
        A("  s_sub_u32 s16, s16, L_pc-%s\n  s_subb_u32 s17, s17, 0" % NAME)
        A("  v_lshlrev_b32 %s, 4, v0" % v(T[9]))
        A("  global_load_dwordx4 %s, %s, s[16:17]" % (v(U[8], 4), v(T[9])))
        A("  v_add_u32 %s, 0x2000, %s" % (v(T[9]), v(T[9])))
        A("  v_min_u32 %s, L_codeend-%s-16, %s" % (v(T[9]), NAME, v(T[9])))
        A("  global_load_dwordx4 %s, %s, s[16:17]" % (v(U[12], 4), v(T[9])))
    A("  v_and_b32 %s, 63, v0" % v(vLane))
    A("  v_lshrrev_b32 %s, 6, v0" % v(T[0]))
    A("  v_readfirstlane_b32 %s, %s" % (s(sWave), v(T[0])))
    A("  v_lshlrev_b32 %s, 4, %s" % (v(vL16), v(vLane)))
    A("  s_lshr_b32 %s, s2, 5\n  s_and_b32 %s, s2, 31\n  s_lshr_b32 %s, s2, 3" % (s(sG), s(sI), s(sJ)))
    A("  s_and_b32 s32, s2, 7\n  s_cmp_eq_u32 s32, 0\n  s_cselect_b32 %s, 1, 0" % s(sTail))
    A("  s_movk_i32 s33, %d\n  s_cselect_b32 s33, %d, s33" % (X, Y))
    A("  v_lshrrev_b32 %s, 3, %s" % (v(T[3]), v(vLane)))
    A("  v_and_b32 %s, 7, %s" % (v(T[4]), v(vLane)))
    A("  s_lshr_b32 s35, %s, 3\n  s_lshl_b32 s34, s35, 6\n  s_lshl_b32 s36, %s, 3\n  s_add_u32 s34, s34, s36" % (s(sI), s(sWave)))
    A("  v_add_u32 %s, s34, %s" % (v(T[2]), v(T[3])))
    A("  v_lshlrev_b32 %s, 14, %s" % (v(T[1]), v(T[2])))
    A("  v_lshl_add_u32 %s, %s, 4, %s" % (v(T[1]), v(T[4]), v(T[1])))
    A("  v_lshlrev_b32 %s, 2, %s" % (v(T[2]), v(T[2])))
    A("  s_lshl_b32 s34, %s, 10\n  s_lshl_b32 s36, s32, 7\n  s_add_u32 s34, s34, s36" % s(sG))
    A("  v_add_u32 %s, s34, %s" % (v(T[1]), v(T[1])))
    A("  v_add_u32 %s, 0x2000, %s" % (v(T[5]), v(T[1])))
    A("  s_lshl_b32 s54, %s, 14\n  s_lshl_b32 s35, s35, 12\n  s_add_u32 s54, s54, s35\n  s_lshl_b32 s35, s32, 9\n  s_add_u32 s54, s54, s35\n  s_add_u32 s54, s54, %d" % (s(sG), QG))
    A("  v_lshrrev_b32 %s, 4, %s" % (v(T[6]), v(vLane)))
    A("  v_and_b32 %s, 15, %s" % (v(T[7]), v(vLane)))
    A("  v_xor_b32 %s, %s, %s" % (v(T[8]), v(T[6]), v(T[7])))
    A("  v_lshlrev_b32 %s, 4, %s" % (v(T[8]), v(T[8])))
    A("  v_lshl_add_u32 %s, %s, 8, %s" % (v(vKd[0]), v(T[6]), v(T[8])))
    for g in range(1, 4): A("  v_xor_b32 %s, %d, %s" % (v(vKd[g]), 64 * g, v(vKd[0])))
    E = X - 128
    assert Y == 128 - 7 * E
    if P["bmap"]:
        A("  s_lshr_b32 s34, s2, 3\n  s_and_b32 s34, s34, 3\n  s_andn2_b32 s35, s2, 31\n  s_or_b32 s34, s34, s35")
        A("  s_lshl_b32 %s, s34, 19\n  s_lshl_b32 s35, s32, 2\n  s_or_b32 s34, s34, s35\n  s_lshl_b32 %s, s34, 19" % (s(sOffX), s(sOff0)))
    else:
        A("  s_lshl_b32 %s, s2, 19\n  s_andn2_b32 s34, s2, 7\n  s_lshl_b32 %s, s34, 19" % (s(sOff0), s(sOffX)))
    A("  s_cmp_eq_u32 %s, 1\n  s_cselect_b32 %s, 0, %d\n  s_cselect_b32 s34, %d, %d" % (s(sTail), s(sThr), E, 128 - Y, -E))
    A("  s_mul_i32 s35, s2, %d\n  s_add_u32 %s, s34, s35" % (P["rot"], s(sC0)))
    A("  s_andn2_b32 s34, s2, 7\n  s_mul_i32 s34, s34, %d\n  s_mul_i32 s35, s32, %d\n  s_add_u32 s34, s34, s35\n  s_sub_u32 %s, s34, %d" % (P["rot"], E, s(sCX), E))
    A("  s_mov_b32 %s, s33\n  s_lshl_b32 %s, s33, 1" % (s(sCnt1), s(sCnt2)))
    A("  s_lshl_b32 %s, %s, 14" % (s(sWB), s(sWave)))
    A("  s_mov_b32 %s, %s\n  s_mov_b32 %s, %s\n  s_mov_b32 %s, %s" % (s(sSlotC), s(sWB), s(sSlotI), s(sWB), s(sOff), s(sWave)))
    A("  s_mov_b32 s6, 0x8000000\n  s_mov_b32 s7, 0x20000\n  s_mov_b32 s10, 0x8000000\n  s_mov_b32 s11, 0x20000")
    A("  s_waitcnt lgkmcnt(0)")
    stamp("a")
    XD = U[0]; XP = U[4]; WA = F; WB_ = F + 4
    A("  global_load_dwordx4 %s, %s, s[44:45]" % (v(XD, 4), v(vL16)))
    A("  global_load_dword %s, %s, s[44:45]" % (v(XP), v(T[2])))
    A("  global_load_dwordx4 %s, %s, s[50:51] %s" % (v(WA, 4), v(T[1]), P["wqflag"]))
    A("  global_load_dwordx4 %s, %s, s[50:51] %s" % (v(WB_, 4), v(T[5]), P["wqflag"]))
    A("  s_load_dword %s, s[12:13], %d" % (s(sTag), EPOCH))
    A("  s_mov_b32 s4, s46\n  s_and_b32 s5, s47, 0xffff\n  s_mov_b32 s8, s48\n  s_and_b32 s9, s49, 0xffff")
    A("  s_mov_b64 s[50:51], s[44:45]")
    def s3prep():
        A("  s_movk_i32 s34, 3584\n  v_mul_lo_u32 %s, %s, s34" % (v(U[5]), v(T[3])))
        A("  v_lshlrev_b32 %s, 4, %s" % (v(U[6]), v(T[4])))
        A("  s_cmp_lt_u32 %s, 28\n  s_cselect_b32 s66, 1835008, 0\n  s_mov_b32 s67, 0x20000" % s(sJ))
    def s3dma(mat, k0, k1):
        A("  s_mov_b32 s64, s%d\n  s_and_b32 s65, s%d, 0xffff" % (56 + 2 * mat, 57 + 2 * mat))
        A("  s_mul_i32 s34, %s, %d\n  s_lshl_b32 s35, %s, 7\n  s_add_u32 s34, s34, s35\n  s_add_u32 s34, s34, %d" % (s(sWave), 64 * 3584, s(sJ), k0 * 8 * 3584))
        A("  s_lshl_b32 s35, %s, 13\n  s_add_u32 s35, s35, %d" % (s(sWave), mat * 65536 + k0 * 1024))
        for k in range(k0, k1):
            A("  v_xor_b32 %s, %d, %s\n  v_add_u32 %s, %s, %s" % (v(U[7]), 16 * k, v(U[6]), v(U[7]), v(U[5]), v(U[7])))
            A("  s_mov_b32 m0, s35")
            A("  buffer_load_dwordx4 %s, s[64:67], s34 offen %s lds" % (v(U[7]), P["wflag"]))
            A("  s_add_u32 s34, s34, %d\n  s_add_u32 s35, s35, 1024" % (8 * 3584))
    if P["ordbar"]: A("  s_barrier")
    A("  s_cmp_eq_u32 %s, 1\n  s_cbranch_scc1 L_tburst" % s(sTail))
    issueK()
    A("L_tburstret:")
    Lsave = L; L = []; A = L.append
    A("L_tburst:")
    s3prep(); s3dma(0, 0, 4)
    A("  s_branch L_tburstret")
    late.append("\n".join(L)); L = Lsave; A = L.append
    A("  v_lshlrev_b32 %s, 8, %s" % (v(vKrd), v(T[7])))
    A("  v_add_u32 %s, %s, %s" % (v(vKrd), v(vKrd), v(T[8])))
    A("  v_lshlrev_b32 %s, 10, %s" % (v(vVrd), v(T[6])))
    A("  v_lshl_add_u32 %s, %s, 3, %s" % (v(vVrd), v(T[7]), v(vVrd)))
    A("  v_bfe_u32 %s, %s, 1, 2" % (v(T[9]), v(vLane)))
    A("  v_lshlrev_b32 %s, 8, %s" % (v(vVd), v(T[9])))
    A("  v_lshl_add_u32 %s, %s, 5, %s" % (v(vVd), v(T[3]), v(vVd)))
    A("  v_and_b32 %s, 1, %s" % (v(T[9]), v(vLane)))
    A("  v_lshl_add_u32 %s, %s, 4, %s" % (v(vVd), v(T[9]), v(vVd)))
    A("  s_mul_i32 s34, %s, 2560\n  s_add_u32 s34, s34, %d" % (s(sWave), SC))
    A("  v_and_b32 %s, 3, %s" % (v(T[9]), v(vLane)))
    A("  v_lshl_add_u32 %s, %s, 2, %s" % (v(T[10]), v(T[6]), v(T[9])))
    A("  v_lshlrev_b32 %s, 3, %s" % (v(T[10]), v(T[10])))
    A("  v_add_u32 %s, %d, %s" % (v(vSb), SC, v(T[10])))
    A("  v_add_u32 %s, s34, %s" % (v(vSr), v(T[10])))
    A("  v_bfe_u32 %s, %s, 2, 2" % (v(T[10]), v(vLane)))
    A("  v_lshl_add_u32 %s, %s, 7, %s" % (v(vSr), v(T[10]), v(vSr)))
    A("  v_mov_b32 %s, %d\n  v_mov_b32 %s, %d" % (v(vTkA), TK, v(vTk), 32 + 8 * NR))
    A("  ds_write_b32 %s, %s" % (v(vTkA), v(vTk)))
    A("  v_mov_b32 %s, 0xff80ff80\n  v_mov_b32 %s, 0xff80ff80" % (v(T[10]), v(T[11])))
    for k in range(5): A("  ds_write_b64 %s, %s offset:%d" % (v(vSr), v(T[10], 2), k * 512))
    A("  v_lshrrev_b32 %s, 5, %s" % (v(T[12]), v(vLane)))
    A("  v_lshlrev_b32 %s, 3, %s" % (v(T[15]), v(T[4])))
    A("  v_lshl_add_u32 %s, %s, 2, %s" % (v(T[15]), v(T[12]), v(T[15])))
    A("  v_bfe_u32 %s, %s, 4, 1" % (v(T[12]), v(vLane)))
    A("  v_lshl_add_u32 %s, %s, 1, %s" % (v(T[15]), v(T[12]), v(T[15])))
    A("  v_bfe_u32 %s, %s, 3, 1" % (v(T[12]), v(vLane)))
    A("  v_add_u32 %s, %s, %s" % (v(T[15]), v(T[12]), v(T[15])))
    A("  s_lshl_b32 s34, %s, 2\n  s_add_u32 s34, s34, %d" % (s(sWave), RED0))
    A("  v_lshl_add_u32 %s, %s, 5, s34" % (v(T[15]), v(T[15])))
    A("  s_mov_b32 %s, 0x05040100\n  s_mov_b32 %s, 0x07060302\n  s_movk_i32 %s, 0xff" % (s(sSelLo), s(sSelHi), s(sFF)))
    A("  s_mov_b32 %s, %d\n  s_mov_b32 %s, 0" % (s(sSpin), P["spin"], s(sFast)))
    A("  s_sub_u32 s34, %s, %d\n  s_cmp_eq_u32 %s, 0\n  s_cselect_b32 %s, s34, -1" % (s(sCnt2), max(P["gthr"], P["deepV"]), s(sWave), s(sTrig)))
    A("  s_getreg_b32 %s, hwreg(HW_REG_XCC_ID, 0, 4)" % s(sXcc))
    stamp("b")
    A("  s_waitcnt vmcnt(7)")
    f = T[0:8]; d = T[8:12]; vMean = T[12]; vSd = T[13]; vR = T[14]
    for k in range(4): unpack(f[2 * k], f[2 * k + 1], XD + k)
    ln_stats(f, d, vMean, vSd, vR)
    A("  s_waitcnt vmcnt(6)")
    unpack(f[0], f[1], XP)
    ln_apply(XP, f[0], f[1], vMean, vSd, vR, [f[2], f[3]], True)
    A("  s_waitcnt vmcnt(4) lgkmcnt(0)")
    stamp("e")
    A("  s_add_u32 %s, %s, 1\n  s_and_b32 %s, %s, 0xff" % (s(sTag), s(sTag), s(sT8), s(sTag)))
    A("  v_mov_b32 %s, %s" % (v(vT8), s(sT8)))
    a = T[0:8]
    wperm(F + 8, F, 1)
    for e in range(8):
        A("  v_dot2_f32_bf16 %s, %s, %s, 0" % (v(a[e]), v(F + 8 + e), v(XP)))
    red345(a)
    A("  ds_write_b32 %s, %s" % (v(T[15]), v(a[2])))
    stamp("f")
    A("  s_waitcnt lgkmcnt(0)\n  s_barrier")
    stamp("g")
    A("  s_cmp_lg_u32 %s, 0\n  s_cbranch_scc1 L_noq" % s(sWave))
    A("  v_lshlrev_b32 %s, 5, %s\n  v_add_u32 %s, %d, %s" % (v(T[0]), v(vLane), v(T[0]), RED0, v(T[0])))
    A("  ds_read_b128 %s, %s" % (v(F, 4), v(T[0])))
    A("  ds_read_b128 %s, %s offset:16" % (v(F + 4, 4), v(T[0])))
    A("  v_lshl_add_u32 %s, %s, 3, s54" % (v(T[1]), v(vLane)))
    A("  s_waitcnt lgkmcnt(0)")
    sum8(F)
    A("  v_mov_b32 %s, %s" % (v(F + 1), s(sTag)))
    A("  global_store_dwordx2 %s, %s, s[12:13] sc1" % (v(T[1]), v(F, 2)))
    if P["p1bf"]:
        A("  v_lshrrev_b32 %s, 4, %s\n  v_and_b32 %s, 15, %s" % (v(T[2]), v(vLane), v(T[3]), v(vLane)))
        A("  s_lshl_b32 s34, %s, 15\n  s_lshl_b32 s35, %s, 8\n  s_add_u32 s34, s34, s35\n  s_add_u32 s34, s34, %d" % (s(sG), s(sI), P1))
        A("  v_lshl_add_u32 %s, %s, 13, s34\n  v_lshl_add_u32 %s, %s, 4, %s" % (v(T[2]), v(T[2]), v(T[2]), v(T[3]), v(T[2])))
        for k in range(4): A("  v_mov_b32 %s, -1" % v(F + 4 + k))
        A("  global_store_dwordx4 %s, %s, s[12:13] sc1" % (v(T[2]), v(F + 4, 4)))
    A("L_noq:")
    if P["vtouch"]:
        A("  s_cmp_lg_u32 %s, 2\n  s_cbranch_scc1 L_novt" % s(sWave))
        A("  s_mov_b64 exec, 1")
        A("  buffer_load_dword %s, %s, s[8:11], %s offen nt" % (v(U[12]), v(vL16), s(sOff0)))
        A("  buffer_load_dword %s, %s, s[8:11], %s offen nt" % (v(U[12]), v(vL16), s(sOffX)))
        A("  s_mov_b64 exec, -1")
        A("L_novt:")
    A("  s_barrier")
    stamp(1)
    A("  s_lshl_b32 s34, %s, 14\n  s_lshl_b32 s35, %s, 9\n  s_add_u32 s34, s34, s35\n  s_add_u32 s34, s34, %d" % (s(sG), s(sWave), QG))
    A("  v_lshrrev_b32 %s, 4, %s\n  v_and_b32 %s, 15, %s" % (v(T[2]), v(vLane), v(T[3]), v(vLane)))
    A("  v_lshl_add_u32 %s, %s, 12, s34\n  v_lshl_add_u32 %s, %s, 5, %s" % (v(T[0]), v(T[2]), v(T[0]), v(T[3]), v(T[0])))
    A("  s_lshl_b32 s34, %s, 7\n  s_add_u32 s34, s34, %d" % (s(sWave), QL))
    A("  v_lshl_add_u32 %s, %s, 3, s34" % (v(T[1]), v(T[3])))
    A("  v_lshrrev_b32 %s, 1, %s\n  v_and_b32 %s, 1, %s" % (v(T[3]), v(T[2]), v(T[2]), v(T[2])))
    A("  v_lshl_add_u32 %s, %s, 2, %s\n  v_lshl_add_u32 %s, %s, 1, %s" % (v(T[1]), v(T[3]), v(T[1]), v(T[1]), v(T[2]), v(T[1])))
    G0 = U[0]; G1 = U[4]
    GQ = F + 8
    def qpoll_issue():
        A("  global_load_dwordx4 %s, %s, s[12:13] sc1" % (v(GQ, 4), v(T[0])))
        A("  global_load_dwordx4 %s, %s, s[12:13] offset:16 sc1" % (v(GQ + 4, 4), v(T[0])))
    def qpoll_check():
        chk_tag([GQ + 1, GQ + 3, GQ + 5, GQ + 7], T[2], sTag)
    def qwrite():
        G0 = GQ
        for e in range(2): A("  v_permlane32_swap_b32 %s, %s" % (v(G0 + 2 * e), v(G0 + 2 * e + 4)))
        for e in range(2): A("  v_add_f32 %s, %s, %s" % (v(G0 + 2 * e), v(G0 + 2 * e), v(G0 + 2 * e + 4)))
        A("  v_permlane16_swap_b32 %s, %s" % (v(G0), v(G0 + 2)))
        A("  v_add_f32 %s, %s, %s" % (v(G0), v(G0), v(G0 + 2)))
        A("  v_cvt_pk_bf16_f32 %s, %s, %s" % (v(G0), v(G0), v(G0)))
        A("  ds_write_b16 %s, %s" % (v(T[1]), v(G0)))
    Lsave = L; L = []; A = L.append
    A("L_tailpro:")
    A("  s_cmp_lg_u32 %s, 7\n  s_cbranch_scc1 L_noreg" % s(sWave))
    A("  s_lshl_b32 s34, %s, 3\n  s_add_u32 s34, s34, %d" % (s(sJ), REG))
    A("  v_mov_b32 %s, s34\n  v_mov_b32 %s, %s\n  v_mov_b32 %s, %s" % (v(T[9]), v(T[10]), s(sXcc), v(T[11]), s(sTag)))
    A("  s_mov_b64 exec, 1")
    A("  global_store_dwordx2 %s, %s, s[12:13] sc1" % (v(T[9]), v(T[10], 2)))
    A("  s_mov_b64 exec, -1")
    A("L_noreg:")
    s3dma(0, 4, 8)
    A("  s_waitcnt vmcnt(4)")
    s3dma(1, 0, 8)
    A("  s_lshl_b32 s34, %s, 5" % s(sJ))
    A("  v_and_b32 %s, 1, %s\n  v_lshrrev_b32 %s, 5, %s\n  v_lshlrev_b32 %s, 3, %s" % (v(T[5]), v(vLane), v(T[6]), v(vLane), v(T[5]), v(T[5])))
    A("  v_lshl_add_u32 %s, %s, 2, %s\n  v_bfe_u32 %s, %s, 4, 1" % (v(T[5]), v(T[6]), v(T[5]), v(T[6]), v(vLane)))
    A("  v_lshl_add_u32 %s, %s, 1, %s\n  v_bfe_u32 %s, %s, 3, 1" % (v(T[5]), v(T[6]), v(T[5]), v(T[6]), v(vLane)))
    A("  v_add_u32 %s, %s, %s\n  v_lshl_add_u32 %s, %s, 1, s34" % (v(T[5]), v(T[6]), v(T[5]), v(T[5]), v(T[5])))
    A("  global_load_ushort %s, %s, s[50:51]" % (v(vXres), v(T[5])))
    nA = P["nA"]
    vWd = U[13]; vWr = U[14]
    def wprep():
        A("  v_lshrrev_b32 %s, 3, %s\n  v_and_b32 %s, 7, %s" % (v(vWd), v(vLane), v(T[5]), v(vLane)))
        A("  v_lshlrev_b32 %s, 10, %s\n  v_lshl_add_u32 %s, %s, 4, %s" % (v(vWd), v(vWd), v(vWd), v(T[5]), v(vWd)))
        A("  v_bfe_u32 %s, %s, 5, 1\n  v_lshlrev_b32 %s, 4, %s" % (v(T[5]), v(vLane), v(vWr), v(T[5])))
        A("  v_bfe_u32 %s, %s, 4, 1\n  v_lshl_add_u32 %s, %s, 2, %s" % (v(T[5]), v(vLane), v(vWr), v(T[5]), v(vWr)))
        A("  v_bfe_u32 %s, %s, 2, 1\n  v_add_u32 %s, %s, %s" % (v(T[5]), v(vLane), v(vWr), v(T[5]), v(vWr)))
        A("  v_bfe_u32 %s, %s, 3, 1\n  v_lshl_add_u32 %s, %s, 3, %s" % (v(T[5]), v(vLane), v(vWr), v(T[5]), v(vWr)))
        A("  v_lshlrev_b32 %s, 7, %s" % (v(vWr), v(vWr)))
    def wround_issue(k, sslot):
        if k in (0, 4) or k == nA:
            if k < 4:
                A("  s_mov_b32 s64, s52\n  s_and_b32 s65, s53, 0xffff\n  s_mov_b32 s66, 0x400000\n  s_mov_b32 s67, 0x20000")
                A("  s_lshl_b32 s46, %s, 17\n  s_lshl_b32 s35, %s, 7\n  s_add_u32 s46, s46, s35\n  s_add_u32 s46, s46, %d" % (s(sJ), s(sWave), k * 32768))
            else:
                A("  s_mov_b32 s64, s60\n  s_and_b32 s65, s61, 0xffff\n  s_mov_b32 s66, 1835008\n  s_mov_b32 s67, 0x20000")
                A("  s_lshl_b32 s46, %s, 16\n  s_lshl_b32 s35, %s, 7\n  s_add_u32 s46, s46, s35\n  s_add_u32 s46, s46, %d" % (s(sJ), s(sWave), (k - 4) * 32768))
        for q_ in range(4):
            A("  s_add_u32 m0, %s, %d" % (s(sslot), 1024 * q_))
            A("  buffer_load_dwordx4 %s, s[64:67], s46 offen %s lds" % (v(vWd), P["wflag"]))
            A("  s_add_u32 s46, s46, 8192")
    def wround_read(k, sslot):
        A("  v_and_b32 %s, 3, %s\n  v_lshl_add_u32 %s, %s, 3, %s\n  v_add_u32 %s, %s, %s" % (v(T[5]), v(vLane), v(T[5]), v(T[5]), v(vWr), v(T[5]), s(sslot), v(T[5])))
        for t in range(4):
            dst = (W2 + 8 * (2 * t + (k >> 1)) + 4 * (k & 1)) if k < 4 else (W4 + 8 * t + 4 * (k & 1))
            for hh in range(2):
                A("  ds_read_b64_tr_b16 %s, %s offset:%d" % (v(dst + 2 * hh, 2), v(T[5]), 256 * hh + 32 * t))
        A("  s_waitcnt lgkmcnt(0)")
    def wrun(k0, k1):
        A("  s_mov_b32 s48, %s\n  s_add_u32 s49, s48, 4096\n  s_and_b32 s49, s49, 0x3fff\n  s_or_b32 s49, s49, %s" % (s(sSlotI), s(sWB)))
        ks = list(range(k0, k1))
        for n, k in enumerate(ks):
            wround_issue(k, 48 + n % 2)
            if n > 0:
                A("  s_waitcnt vmcnt(4)"); wround_read(ks[n - 1], 48 + (n - 1) % 2)
        A("  s_waitcnt vmcnt(0)"); wround_read(ks[-1], 48 + (len(ks) - 1) % 2)
    wprep()
    A("  s_waitcnt vmcnt(0)")
    A("  v_lshlrev_b32 %s, 16, %s" % (v(vXres), v(vXres)))
    A("L_tqpoll:")
    qpoll_issue()
    A("  s_waitcnt vmcnt(0)")
    qpoll_check()
    poll_end("L_tqpoll")
    qwrite()
    A("  s_waitcnt lgkmcnt(0)\n  s_barrier")
    A("  v_bfe_u32 %s, %s, 5, 1\n  v_bfe_u32 %s, %s, 3, 1\n  v_lshl_add_u32 %s, %s, 1, %s" % (v(T[3]), v(vLane), v(T[4]), v(vLane), v(T[3]), v(T[3]), v(T[4])))
    A("  v_xor_b32 %s, %s, %s\n  v_lshl_add_u32 %s, %s, 4, %s" % (v(T[3]), s(sWave), v(T[3]), v(T[3]), v(T[3]), v(vWr)))
    A("  v_and_b32 %s, 1, %s\n  v_lshl_add_u32 %s, %s, 3, %s" % (v(T[4]), v(vLane), v(T[3]), v(T[4]), v(T[3])))
    A("  v_bfe_u32 %s, %s, 1, 1\n  v_lshl_add_u32 %s, %s, 16, %s" % (v(T[4]), v(vLane), v(T[3]), v(T[4]), v(T[3])))
    A("  v_xor_b32 %s, 64, %s" % (v(T[4]), v(T[3])))
    for R in range(16):
        for hh in range(2):
            A("  ds_read_b64_tr_b16 %s, %s offset:%d" % (v(W3A + 4 * R + 2 * hh, 2), v(T[3 + (R & 1)]), 4096 * R + 256 * hh))
        if R % 4 == 3: A("  s_waitcnt lgkmcnt(0)")
    A("  s_barrier")
    if nA: wrun(0, nA)
    for k in range(4): issueK()
    for r in range(NR):
        A("  s_waitcnt vmcnt(8)")
        issueR(r)
    A("  s_branch L_qops")
    late.append("\n".join(L)); L = Lsave; A = L.append

    A("  s_cmp_eq_u32 %s, 1\n  s_cbranch_scc1 L_tailpro" % s(sTail))
    if P["paced"]:
        sQ = 55
        A("  s_lshl_b32 s34, %s, 14\n  s_lshl_b32 s35, %s, 9\n  s_add_u32 s34, s34, s35\n  s_add_u32 s34, s34, %d" % (s(sG), s(sWave), QG))
        A("  s_add_u32 s44, s12, s34\n  s_addc_u32 s45, s13, 0\n  s_mov_b32 %s, 0" % s(sQ))
        nst = 3 + NR
        for k in range(1, nst + 1):
            A("  s_cmp_eq_u32 %s, 1\n  s_cbranch_scc1 L_ps%dq" % (s(sQ), k))
            A("  s_waitcnt vmcnt(%d)" % P["pw"])
            if k <= 3: issueK()
            else: issueR(k - 4)
            A("L_ps%dr:" % k)
            blk = []
            Lsave = L; L = blk; A = L.append
            A("L_ps%dq:" % k)
            A("  s_waitcnt vmcnt(%d)" % (2 + P["pw"]))
            if k <= 3: issueK()
            else: issueR(k - 4)
            A("  s_waitcnt vmcnt(4)")
            qpoll_check()
            A("  s_cselect_b32 %s, 2, 0\n  s_cbranch_scc0 L_ps%dr" % (s(sQ), k))
            qwrite()
            A("  s_branch L_ps%dr" % k)
            L = Lsave; A = L.append
            late.append("\n".join(blk))
            if k < nst:
                A("  s_cmp_lg_u32 %s, 0\n  s_cbranch_scc1 L_ps%de" % (s(sQ), k))
                for j in range(4): A("  s_load_dword s%d, s[44:45], %d glc" % (64 + j, 4096 * j + 508))
                A("  s_waitcnt lgkmcnt(0)")
                for j in range(4): A("  s_xor_b32 s%d, s%d, %s" % (64 + j, 64 + j, s(sTag)))
                A("  s_or_b32 s64, s64, s65\n  s_or_b32 s66, s66, s67\n  s_or_b32 s64, s64, s66\n  s_cmp_eq_u32 s64, 0")
                A("  s_cbranch_scc0 L_ps%de" % k)
                qpoll_issue()
                A("  s_mov_b32 %s, 1" % s(sQ))
                A("L_ps%de:" % k)
        stamp("h")
        A("  s_cmp_eq_u32 %s, 2\n  s_cbranch_scc1 L_qdone" % s(sQ))
        A("L_qpoll:")
        qpoll_issue()
        A("  s_waitcnt vmcnt(0)")
        qpoll_check()
        poll_end("L_qpoll")
        qwrite()
    A("L_qdone:")
    A("  s_waitcnt lgkmcnt(0)\n  s_barrier")
    A("L_qops:")
    stamp(2)
    A("  v_and_b32 %s, 3, %s\n  v_lshlrev_b32 %s, 8, %s" % (v(T[0]), v(vLane), v(T[0]), v(T[0])))
    A("  v_lshrrev_b32 %s, 4, %s\n  v_lshl_add_u32 %s, %s, 4, %s" % (v(T[1]), v(vLane), v(T[0]), v(T[1]), v(T[0])))
    A("  v_add_u32 %s, %d, %s" % (v(T[0]), QL, v(T[0])))
    for t in range(4): A("  ds_read_b128 %s, %s offset:%d" % (v(ACC + 4 * t, 4), v(T[0]), 64 * t))
    S = T[4:8]
    assert S[0] % 2 == 0
    nis = [0]
    def ticket_req():
        A("  s_mov_b64 exec, 1")
        A("  ds_add_rtn_u32 %s, %s, %s" % (v(vTk), v(vTkA), v(vOne)))
        A("  s_mov_b64 exec, -1")
    def issue_dyn(nyoung, kpossible, depth=None, push=False, vwait=None):
        k = nis[0]; nis[0] += 1
        A("  s_waitcnt lgkmcnt(%d)" % nyoung)
        A("  v_readfirstlane_b32 %s, %s" % (s(sTk), v(vTk)))
        ticket_req()
        if kpossible:
            A("  s_cmp_lt_u32 %s, %s\n  s_cbranch_scc0 L_isV%d" % (s(sTk), s(sCnt1), k))
            off_of(s(sTk))
            A("  s_mov_b32 m0, %s" % s(sSlotI))
            if vwait is not None: A("  s_waitcnt vmcnt(%d)" % vwait)
            for g in range(4):
                A("  buffer_load_dwordx4 %s, s[4:7], s34 offen offset:%d %s lds" % (v(vKd[g]), g * 1024, P["kvflag"]))
            A("L_isret%d:" % k)
            blk = ["L_isV%d:" % k]; B = blk.append
        else:
            B = A
        B("  s_sub_u32 s34, %s, %s" % (s(sTk), s(sCnt1)))
        off_of("s34", B)
        assert W == 1 and P["early"] == 0 and not P["deepV"]
        B("  s_mov_b32 m0, %s" % s(sSlotI))
        if not kpossible: B("  s_cmp_lt_u32 %s, %s" % (s(sTk), s(sCnt2)))
        if vwait is not None: B("  s_waitcnt vmcnt(%d)" % vwait)
        if not kpossible: B("  s_cbranch_scc0 L_isno%d" % k)
        for g in range(4):
            B("  buffer_load_dwordx4 %s, s[8:11], s34 offen offset:%d %s lds" % (v(vVd), g * 1024, P["kvflag"]))
        if not kpossible:
            B("L_isno%d:" % k)
        if kpossible:
            B("  s_branch L_isret%d" % k)
            late.append("\n".join(blk))
        next_slot(sSlotI)
        if push:
            A("  s_mov_b32 %s, %s" % (s(sF[depth]), s(sTk)))
        else:
            WW = depth or W
            for i in range(WW - 1): A("  s_mov_b32 %s, %s" % (s(sF[i]), s(sF[i + 1])))
            A("  s_mov_b32 %s, %s" % (s(sF[WW - 1]), s(sTk)))
    def kbody(wait, issue, sid):
        A("  s_lshl_b32 s34, %s, 7" % s(sid))
        A("  v_add_u32 %s, s34, %s" % (v(T[14]), v(vSb)))
        A("  v_add_u32 %s, %s, %s" % (v(T[0]), s(sSlotC), v(vKrd)))
        for t in range(1, 4): A("  v_xor_b32 %s, %d, %s" % (v(T[t]), 64 * t, v(T[0])))
        if issue:
            issue_dyn(0, True, vwait=wait)
        else:
            A("  s_waitcnt vmcnt(%d)" % wait)
        for t in range(4): A("  ds_read_b128 %s, %s" % (v(F + 4 * t, 4), v(T[t])))
        next_slot(sSlotC)
        for t in range(4):
            A("  s_waitcnt lgkmcnt(%d)" % (3 - t))
            A("  v_mfma_f32_16x16x32_bf16 %s, %s, %s, %s" % (v(S[0], 4), v(F + 4 * t, 4), v(ACC + 4 * t, 4), "0" if t == 0 else v(S[0], 4)))
        A("  v_cvt_pk_bf16_f32 %s, %s, %s" % (v(T[8]), v(S[0]), v(S[1])))
        A("  v_cvt_pk_bf16_f32 %s, %s, %s" % (v(T[9]), v(S[2]), v(S[3])))
        unpack(T[10], T[11], T[8]); unpack(T[12], T[13], T[9])
        for k in range(4): A("  v_mul_f32 %s, %s, %s" % (v(T[10 + k]), SCALE, v(T[10 + k])))
        A("  v_cvt_pk_bf16_f32 %s, %s, %s" % (v(T[8]), v(T[10]), v(T[11])))
        A("  v_cvt_pk_bf16_f32 %s, %s, %s" % (v(T[9]), v(T[12]), v(T[13])))
        setexec(0x000F000F000F000F)
        A("  ds_write_b64 %s, %s" % (v(T[14]), v(T[8], 2)))
        setexec(-1)
        A("  v_max3_f32 %s, %s, %s, %s" % (v(vMx), v(vMx), v(T[10]), v(T[11])))
        A("  v_max3_f32 %s, %s, %s, %s" % (v(vMx), v(vMx), v(T[12]), v(T[13])))
    assert T[8] % 2 == 0
    A("  v_mov_b32 %s, 0xff800000\n  v_mov_b32 %s, 1" % (v(vMx), v(vOne)))
    if P["nstream"] < 8:
        A("  s_cmp_ge_u32 %s, %d\n  s_cbranch_scc1 L_notk" % (s(sWave), P["nstream"]))
    ticket_req()
    A("L_notk:")
    A("  s_mov_b32 %s, %s" % (s(sF[0]), s(sWave)))
    A("  s_waitcnt lgkmcnt(0)")
    if NR:
        assert W == 1
        for i in range(4):
            kbody(4 * (3 - i + NR), False, sF[0])
            A("  s_add_u32 %s, %s, 8" % (s(sF[0]), s(sF[0])))
        A("  v_add_u32 %s, %s, %s" % (v(T[14]), s(sWB), v(vL16)))
        for r in range(NR):
            A("  s_waitcnt vmcnt(%d)" % (4 * (NR - 1 - r)))
            for g in range(4):
                A("  ds_write_b128 %s, %s offset:%d" % (v(T[14]), v(RT + 16 * r + 4 * g, 4), 4096 * r + 1024 * g))
            next_slot(sSlotI)
            if r < NR - 1:
                kbody(4 * (NR - 1 - r), False, sF[0])
                A("  s_add_u32 %s, %s, 8" % (s(sF[0]), s(sF[0])))
                A("  v_add_u32 %s, %s, %s" % (v(T[14]), s(sWB), v(vL16)))
    else:
      for i in range(4 - W):
        kbody(4 * (3 - i), False, sF[0])
        A("  s_add_u32 %s, %s, 8" % (s(sF[0]), s(sF[0])))
    for i in range(1, W): A("  s_add_u32 %s, %s, %d" % (s(sF[i]), s(sF[0]), 8 * i))
    if P["nstream"] < 8:
        A("  s_cmp_ge_u32 %s, %d\n  s_cbranch_scc1 L_idlek" % (s(sWave), P["nstream"]))
        Lsave = L; L = []; A = L.append
        A("L_idlek:")
        kbody(0, False, sF[0])
        A("  s_mov_b32 %s, 0x7fffffff\n  s_branch L_kdone" % s(sF[0]))
        late.append("\n".join(L)); L = Lsave; A = L.append
    A("L_kloop:")
    A("  s_mov_b32 s36, %s" % s(sF[0]))
    kbody(4 * (W - 1), True, 36)
    A("  s_cmp_lt_u32 %s, %s\n  s_cbranch_scc1 L_kloop" % (s(sF[0]), s(sCnt1)))
    A("L_kdone:")
    stamp(3)
    PK = F
    FL = ACC
    vM = T[0]; vLs = T[1]
    XV = P["extraV"]
    assert W + XV <= 4
    for i in range(XV): issue_dyn(0, False, depth=W + i, push=True)
    bfly_hi("v_max_f32", vMx, T[2])
    round_bf16(vMx, vMx)
    A("  s_lshl_b32 s34, %s, 2\n  s_add_u32 s34, s34, %d" % (s(sWave), MLT))
    A("  v_and_b32 %s, 3, %s\n  v_lshlrev_b32 %s, 5, %s" % (v(T[3]), v(vLane), v(T[3]), v(T[3])))
    A("  v_add_u32 %s, s34, %s\n  v_add_u32 %s, %d, %s" % (v(T[2]), v(T[3]), v(T[3]), MLT, v(T[3])))
    A("  s_mov_b64 exec, 0xf")
    A("  ds_write_b32 %s, %s" % (v(T[2]), v(vMx)))
    A("  s_mov_b64 exec, -1")
    A("  s_waitcnt lgkmcnt(0)" + ("" if P["notrans"] else "\n  s_barrier"))
    A("  ds_read_b128 %s, %s" % (v(U[0], 4), v(T[3])))
    A("  ds_read_b128 %s, %s offset:16" % (v(U[4], 4), v(T[3])))
    for k in range(5): A("  ds_read_b64 %s, %s offset:%d" % (v(PK + 2 * k, 2), v(vSr), 512 * k))
    A("  s_waitcnt lgkmcnt(5)")
    A("  v_max3_f32 %s, %s, %s, %s" % (v(vM), v(U[0]), v(U[1]), v(U[2])))
    A("  v_max3_f32 %s, %s, %s, %s" % (v(U[3]), v(U[3]), v(U[4]), v(U[5])))
    A("  v_max3_f32 %s, %s, %s, %s" % (v(vM), v(vM), v(U[6]), v(U[7])))
    A("  v_max_f32 %s, %s, %s" % (v(vM), v(vM), v(U[3])))
    A("  s_mov_b32 s34, %s" % LOG2E)
    A("  v_mul_f32 %s, s34, %s" % (v(T[4]), v(vM)))
    for k in range(5):
        A("  s_waitcnt lgkmcnt(%d)" % (4 - k))
        unpack(FL + 4 * k, FL + 4 * k + 1, PK + 2 * k); unpack(FL + 4 * k + 2, FL + 4 * k + 3, PK + 2 * k + 1)
    for k in range(20): A("  v_fma_f32 %s, %s, s34, -%s" % (v(FL + k), v(FL + k), v(T[4])))
    for k in range(20): A("  v_exp_f32 %s, %s" % (v(FL + k), v(FL + k)))
    for k in range(10): A("  v_cvt_pk_bf16_f32 %s, %s, %s" % (v(PK + k), v(FL + 2 * k), v(FL + 2 * k + 1)))
    for k in range(5): A("  ds_write_b64 %s, %s offset:%d" % (v(vSr), v(PK + 2 * k, 2), 512 * k))
    for k in range(10): A("  v_add_f32 %s, %s, %s" % (v(FL + k), v(FL + k), v(FL + 10 + k)))
    for k in range(5): A("  v_add_f32 %s, %s, %s" % (v(FL + k), v(FL + k), v(FL + 5 + k)))
    A("  v_add_f32 %s, %s, %s" % (v(FL), v(FL), v(FL + 1)))
    A("  v_add_f32 %s, %s, %s" % (v(FL + 2), v(FL + 2), v(FL + 3)))
    A("  v_add_f32 %s, %s, %s" % (v(FL), v(FL), v(FL + 4)))
    A("  v_add_f32 %s, %s, %s" % (v(vLs), v(FL), v(FL + 2)))
    allred_b2345("v_add_f32", vLs, T[5])
    A("  s_mov_b64 exec, 0xf")
    A("  ds_write_b32 %s, %s offset:128" % (v(T[2]), v(vLs)))
    A("  s_mov_b64 exec, -1")
    A("  v_mov_b32 %s, %s" % (v(vMx), v(vM)))
    aW = T[10]; aRd = T[11]; aRd2 = T[12]; aFt = T[13]; aSt = T[14]
    A("  v_and_b32 %s, 3, %s\n  s_movk_i32 s34, 576\n  v_mul_lo_u32 %s, %s, s34" % (v(aW), v(vLane), v(aW), v(aW)))
    A("  v_lshrrev_b32 %s, 4, %s\n  v_lshl_add_u32 %s, %s, 4, %s\n  v_add_u32 %s, %s, %s" % (v(aRd), v(vLane), v(aW), v(aRd), v(aW), v(aW), s(sWB), v(aW)))
    A("  s_lshr_b32 s34, %s, 1\n  s_and_b32 s35, %s, 1\n  s_lshl_b32 s35, s35, 8" % (s(sWave), s(sWave)))
    A("  s_mul_i32 s36, s34, 576\n  s_add_u32 s36, s36, s35")
    A("  v_lshl_add_u32 %s, %s, 2, s36" % (v(aRd), v(vLane)))
    A("  v_add_u32 %s, 0x10000, %s" % (v(aRd2), v(aRd)))
    A("  s_lshl_b32 s36, s34, 4\n  s_add_u32 s36, s36, %d\n  v_mov_b32 %s, s36" % (FT + 8, v(aFt)))
    if P["p1bf"]:
        A("  s_lshl_b32 s36, %s, 2\n  s_add_u32 s36, s36, s34\n  s_lshl_b32 s36, s36, 13\n  s_lshr_b32 s35, s35, 1\n  s_add_u32 s36, s36, s35" % s(sG))
        A("  s_lshl_b32 s34, %s, 8\n  s_add_u32 s36, s36, s34\n  s_add_u32 s36, s36, %d" % (s(sI), P1))
        A("  v_lshl_add_u32 %s, %s, 1, s36" % (v(aSt), v(vLane)))
    else:
        A("  s_lshl_b32 s36, %s, 2\n  s_add_u32 s36, s36, s34\n  s_lshl_b32 s36, s36, 14\n  s_add_u32 s36, s36, s35" % s(sG))
        A("  s_lshl_b32 s34, %s, 9\n  s_add_u32 s36, s36, s34\n  s_add_u32 s36, s36, %d" % (s(sI), P1))
        A("  v_lshl_add_u32 %s, %s, 2, s36" % (v(aSt), v(vLane)))
    A("  s_waitcnt lgkmcnt(0)" + ("" if P["notrans"] else "\n  s_barrier"))
    A("  s_cmp_lg_u32 %s, 0\n  s_cbranch_scc1 L_noml" % s(sWave))
    A("  ds_read_b128 %s, %s offset:128" % (v(U[0], 4), v(T[3])))
    A("  ds_read_b128 %s, %s offset:144" % (v(U[4], 4), v(T[3])))
    A("  s_lshl_b32 s34, %s, 11\n  s_lshl_b32 s35, %s, 6\n  s_add_u32 s34, s34, s35\n  s_add_u32 s34, s34, %d" % (s(sG), s(sI), ML))
    A("  v_add_u32 %s, s34, %s" % (v(T[2]), v(vL16)))
    A("  v_mov_b32 %s, %s\n  v_mov_b32 %s, %s\n  v_mov_b32 %s, %s" % (v(T[6]), v(vMx), v(T[7]), s(sTag), v(T[9]), s(sTag)))
    A("  s_waitcnt lgkmcnt(0)")
    sum8(U[0])
    A("  v_mov_b32 %s, %s" % (v(T[8]), v(U[0])))
    A("  s_mov_b64 exec, 0xf")
    assert T[6] % 2 == 0
    A("  global_store_dwordx4 %s, %s, s[12:13] sc1" % (v(T[2]), v(T[6], 4)))
    A("  s_mov_b64 exec, -1")
    A("L_noml:")
    if nA < 6:
        A("  s_cmp_eq_u32 %s, 1\n  s_cbranch_scc1 L_wB" % s(sTail))
        A("L_wBret:")
        Lsave = L; L = []; A = L.append
        A("L_wB:")
        wrun(nA, 6)
        A("  s_branch L_wBret")
        late.append("\n".join(L)); L = Lsave; A = L.append
    for k in range(32): A("  v_mov_b32 %s, 0" % v(ACC + k))
    stamp(4)
    PB_ = T[2]
    assert PB_ % 2 == 0
    A("  s_lshl_b32 s34, %s, 7\n  v_subrev_u32 %s, s34, %s" % (s(sCnt1), v(vSb), v(vSb)))
    def vbody(wait, issue, depth=None):
        A("  s_lshl_b32 s34, %s, 7" % s(sF[0]))
        A("  v_add_u32 %s, s34, %s" % (v(T[1]), v(vSb)))
        A("  v_add_u32 %s, %s, %s" % (v(T[0]), s(sSlotC), v(vVrd)))
        A("  ds_read_b64 %s, %s" % (v(PB_, 2), v(T[1])))
        if issue: issue_dyn(0, False, depth=depth, vwait=wait)
        else: A("  s_waitcnt vmcnt(%d)" % wait)
        for b in range(8): A("  ds_read_b64_tr_b16 %s, %s offset:%d" % (v(F + 2 * b, 2), v(T[0]), 128 * b))
        next_slot(sSlotC)
        for b in range(8):
            A("  s_waitcnt lgkmcnt(%d)" % (7 - b))
            A("  v_mfma_f32_16x16x16_bf16 %s, %s, %s, %s" % (v(ACC + 4 * b, 4), v(F + 2 * b, 2), v(PB_, 2), v(ACC + 4 * b, 4)))
    for i in range(XV):
        vbody(4 * (W + XV - 1 - i), False)
        for k in range(W + XV - 1 - i): A("  s_mov_b32 %s, %s" % (s(sF[k]), s(sF[k + 1])))
    A("  s_branch L_vtest")
    A("L_vloop:")
    vbody(4 * (W - 1), True)
    A("L_vtest:")
    A("  s_cmp_ge_u32 %s, %s\n  s_cbranch_scc1 L_gather" % (s(sF[0]), s(sTrig)))
    A("L_gatherret:")
    if P["deepV"]:
        A("  s_sub_u32 s36, %s, %d" % (s(sCnt2), P["deepV"]))
        A("  s_cmp_lt_u32 %s, s36\n  s_cbranch_scc1 L_vloop" % s(sF[0]))
        issue_dyn(0, False, depth=W, push=True)
        A("  s_branch L_vtest2")
        A("L_vloop2:")
        vbody(4 * W, True, depth=W + 1)
        A("L_vtest2:")
        A("  s_cmp_lt_u32 %s, %s\n  s_cbranch_scc1 L_vloop2" % (s(sF[0]), s(sCnt2)))
    else:
        A("  s_cmp_lt_u32 %s, %s\n  s_cbranch_scc1 L_vloop" % (s(sF[0]), s(sCnt2)))
    stamp(5)
    Lsave = L; L = []; A = L.append
    A("L_gather:")
    A("  s_mov_b32 %s, -1" % s(sTrig))
    A("  s_lshl_b32 s34, %s, 11\n  s_add_u32 s34, s34, %d" % (s(sG), ML))
    A("  v_add_u32 %s, s34, %s" % (v(T[4]), v(vL16)))
    if P["pf2"]:
        A("  s_getpc_b64 s[44:45]")
        A("L_pc2:")
        A("  s_sub_u32 s44, s44, L_pc2-L_vloop\n  s_subb_u32 s45, s45, 0")
        A("  v_mov_b32 %s, %s" % (v(T[7]), v(vL16)))
        for k in range(P["pf2"]):
            A("  global_load_dwordx4 %s, %s, s[44:45]" % (v(U[8], 4), v(T[7])))
            A("  v_add_u32 %s, 1024, %s" % (v(T[7]), v(T[7])))
    A("L_gpoll:")
    A("  global_load_dwordx4 %s, %s, s[12:13] sc1" % (v(G0, 4), v(T[4])))
    A("  global_load_dwordx4 %s, %s, s[12:13] offset:1024 sc1" % (v(G1, 4), v(T[4])))
    A("  s_waitcnt vmcnt(0)")
    chk_tag([G0 + 1, G0 + 3, G1 + 1, G1 + 3], T[7], sTag)
    poll_end("L_gpoll")
    A("  v_max_f32 %s, %s, %s" % (v(T[8]), v(G0), v(G1)))
    allred_b2345("v_max_f32", T[8], T[7])
    A("  v_sub_f32 %s, %s, %s\n  v_sub_f32 %s, %s, %s" % (v(G0), v(G0), v(T[8]), v(G1), v(G1), v(T[8])))
    A("  v_sub_f32 %s, %s, %s" % (v(U[8]), v(vMx), v(T[8])))
    for r in (G0, G1, U[8]): A("  v_mul_f32 %s, %s, %s" % (v(r), LOG2E, v(r)))
    for r in (G0, G1, U[8]): A("  v_exp_f32 %s, %s" % (v(r), v(r)))
    A("  v_mul_f32 %s, %s, %s" % (v(T[9]), v(G0), v(G0 + 2)))
    A("  v_fmac_f32 %s, %s, %s" % (v(T[9]), v(G1), v(G1 + 2)))
    allred_b2345("v_add_f32", T[9], T[7])
    A("  v_rcp_f32 %s, %s" % (v(U[10]), v(T[9])))
    A("  v_mul_f32 %s, %s, %s" % (v(U[10]), v(U[10]), v(U[8])))
    A("  v_mov_b32 %s, 0" % v(U[11]))
    A("  s_cmp_eq_u32 %s, 0\n  s_cbranch_scc1 L_gfin" % s(sTail))
    A("  v_and_b32 %s, 31, %s\n  v_lshlrev_b32 %s, 3, %s\n  v_add_u32 %s, %d, %s" % (v(T[5]), v(vLane), v(T[5]), v(T[5]), v(T[5]), REG, v(T[5])))
    A("L_rpoll:")
    A("  global_load_dwordx2 %s, %s, s[12:13] sc1" % (v(G0, 2), v(T[5])))
    A("  s_waitcnt vmcnt(0)")
    A("  v_cmp_eq_u32 vcc, %s, %s" % (s(sTag), v(G0 + 1)))
    A("  s_cmp_eq_u64 vcc, -1")
    poll_end("L_rpoll")
    A("  v_cmp_eq_u32 vcc, %s, %s" % (s(sXcc), v(G0)))
    A("  s_cmp_eq_u64 vcc, -1\n  s_cselect_b32 s34, %d, 0" % (0 if P["forceslow"] else 1))
    A("  v_mov_b32 %s, s34" % v(U[11]))
    A("L_gfin:")
    A("  v_add_u32 %s, %d, %s" % (v(T[7]), FT, v(vL16)))
    A("  s_mov_b64 exec, 0xf")
    A("  ds_write_b128 %s, %s" % (v(T[7]), v(U[8], 4)))
    A("  s_mov_b64 exec, -1")
    A("  s_branch L_gatherret")
    late.append("\n".join(L)); L = Lsave; A = L.append
    setexec(0x000F000F000F000F)
    for b in range(8): A("  ds_write_b128 %s, %s offset:%d" % (v(aW), v(ACC + 4 * b, 4), 64 * b))
    setexec(-1)
    A("  s_waitcnt lgkmcnt(0)\n  s_barrier")
    O8 = F; F8 = F + 8
    def read8(dst, a0, a1, st):
        A("  ds_read2st64_b32 %s, %s offset0:%d offset1:%d" % (v(dst, 2), v(a0), st, st + 64))
        A("  ds_read2st64_b32 %s, %s offset0:%d offset1:%d" % (v(dst + 2, 2), v(a0), st + 128, st + 192))
        A("  ds_read2st64_b32 %s, %s offset0:%d offset1:%d" % (v(dst + 4, 2), v(a1), st, st + 64))
        A("  ds_read2st64_b32 %s, %s offset0:%d offset1:%d" % (v(dst + 6, 2), v(a1), st + 128, st + 192))
    read8(O8, aRd, aRd2, 0)
    A("  ds_read_b64 %s, %s" % (v(F8, 2), v(aFt)))
    A("  s_waitcnt lgkmcnt(0)")
    A("  v_readfirstlane_b32 %s, %s" % (s(sFast), v(F8 + 1)))
    sum8(O8)
    A("  v_mul_f32 %s, %s, %s" % (v(O8), v(O8), v(F8)))
    if P["p1bf"]:
        A("  v_mov_b32_dpp %s, %s quad_perm:[1,1,3,3] row_mask:0xf bank_mask:0xf" % (v(O8 + 1), v(O8)))
        A("  v_cvt_pk_bf16_f32 %s, %s, %s" % (v(O8 + 4), v(O8), v(O8 + 1)))
        A("  v_min_u32 %s, -2, %s" % (v(O8 + 4), v(O8 + 4)))
        for k in range(1, 4):
            A("  v_mov_b32_dpp %s, %s row_shl:%d row_mask:0xf bank_mask:0xf" % (v(O8 + 4 + k), v(O8 + 4), 2 * k))
        setexec(0x0101010101010101)
        if P["p1fast"]:
            A("  s_cmp_eq_u32 %s, 1\n  s_cbranch_scc1 L_p1f" % s(sFast))
            late.append("L_p1f:\n  global_store_dwordx4 %s, %s, s[12:13]\n  s_branch L_p1r" % (v(aSt), v(O8 + 4, 4)))
        A("  global_store_dwordx4 %s, %s, s[12:13] sc1" % (v(aSt), v(O8 + 4, 4)))
        A("L_p1r:")
        setexec(-1)
    else:
        A("  v_bfi_b32 %s, %s, %s, %s" % (v(O8), s(sFF), v(vT8), v(O8)))
        A("  global_store_dword %s, %s, s[12:13] sc1" % (v(aSt), v(O8)))
    stamp(6)
    for k in [7, "p", "q", 8, "r", 9, "s", "t", "u", 10, 11]: stamp(k)
    A("  s_cmp_eq_u32 %s, 0\n  s_cbranch_scc1 L_end" % s(sTail))
    aP1 = T[0]; aPA = T[1]; aR3 = T[2]; aLw = T[3]; aLr = T[4]; vIdx = T[5]; aSP = T[6]; aH = T[7]
    A("  v_lshrrev_b32 %s, 1, %s\n  v_and_b32 %s, 1, %s" % (v(T[8]), v(vLane), v(T[9]), v(vLane)))
    A8 = [F + k for k in range(8)]
    assert P["p1bf"]
    A("  s_lshl_b32 s34, %s, 13\n  s_lshl_b32 s35, %s, 5\n  s_add_u32 s34, s34, s35\n  s_add_u32 s34, s34, %d" % (s(sJ), s(sWave), P1))
    A("  v_lshl_add_u32 %s, %s, 8, s34\n  v_lshl_add_u32 %s, %s, 4, %s" % (v(aP1), v(T[8]), v(aP1), v(T[9]), v(aP1)))
    if P["palay"]:
        A("  s_lshl_b32 s34, %s, 11\n  s_add_u32 s34, s34, %d" % (s(sJ), PA))
        A("  v_lshl_add_u32 %s, %s, 5, s34" % (v(aPA), v(vLane)))
    else:
        A("  s_lshl_b32 s34, %s, 6\n  s_add_u32 s34, s34, %d" % (s(sJ), PA))
        A("  v_lshl_add_u32 %s, %s, 11, s34\n  v_lshl_add_u32 %s, %s, 5, %s" % (v(aPA), v(T[8]), v(aPA), v(T[9]), v(aPA)))
    A("  v_lshlrev_b32 %s, 5, %s\n  v_add_u32 %s, %d, %s" % (v(aR3), v(vLane), v(aR3), R3, v(aR3)))
    A("  v_lshrrev_b32 %s, 5, %s\n  v_bfe_u32 %s, %s, 4, 1\n  v_lshl_add_u32 %s, %s, 1, %s" % (v(aLw), v(vLane), v(T[10]), v(vLane), v(aLw), v(aLw), v(T[10])))
    A("  v_lshl_add_u32 %s, %s, 2, %s\n  s_lshl_b32 s34, %s, 5\n  s_add_u32 s34, s34, %d\n  v_lshl_add_u32 %s, %s, 2, s34" % (v(aLw), v(T[9]), v(aLw), s(sWave), OL, v(aLw), v(aLw)))
    A("  v_lshrrev_b32 %s, 4, %s\n  v_lshlrev_b32 %s, 5, %s\n  v_lshl_add_u32 %s, %s, 4, %s\n  v_add_u32 %s, %d, %s" % (v(aLr), v(vLane), v(aLr), v(aLr), v(aLr), v(T[9]), v(aLr), v(aLr), QL, v(aLr)))
    A("  s_mov_b32 s34, 0xaaaaaaaa\n  v_mul_lo_u32 %s, %s, s34\n  v_add_u32 %s, 0x44444444, %s" % (v(vIdx), v(T[9]), v(vIdx), v(vIdx)))
    A("  global_load_dwordx4 %s, %s, s[12:13] sc1" % (v(ACC + 4, 4), v(aPA)))
    A("  global_load_dwordx4 %s, %s, s[12:13] sc1" % (v(ACC + 8, 4), v(aR3)))
    A("  v_add_u32 %s, %d, %s" % (v(T[10]), PB - PA, v(aPA)))
    A("  global_load_dwordx4 %s, %s, s[12:13] sc1" % (v(ACC + 12, 4), v(T[10])))
    if P["palay"]:
        A("  s_lshl_b32 s34, %s, 6\n  s_lshl_b32 s35, %s, 13\n  s_add_u32 s34, s34, s35\n  s_add_u32 s34, s34, %d" % (s(sJ), s(sWave), PA))
        A("  v_lshrrev_b32 %s, 4, %s\n  v_lshl_add_u32 %s, %s, 11, s34\n  v_and_b32 %s, 15, %s\n  v_lshl_add_u32 %s, %s, 2, %s" % (v(aSP), v(vLane), v(aSP), v(aSP), v(T[10]), v(vLane), v(aSP), v(T[10]), v(aSP)))
    else:
        A("  s_lshl_b32 s34, %s, 11\n  s_lshl_b32 s35, %s, 8\n  s_add_u32 s34, s34, s35\n  s_add_u32 s34, s34, %d\n  v_lshl_add_u32 %s, %s, 2, s34" % (s(sJ), s(sWave), PA, v(aSP), v(vLane)))
    A("  v_lshrrev_b32 %s, 5, %s\n  v_lshlrev_b32 %s, 3, %s\n  v_lshl_add_u32 %s, %s, 2, %s" % (v(T[10]), v(vLane), v(aH), v(T[9]), v(aH), v(T[10]), v(aH)))
    A("  v_bfe_u32 %s, %s, 4, 1\n  v_lshl_add_u32 %s, %s, 1, %s" % (v(T[10]), v(vLane), v(aH), v(T[10]), v(aH)))
    A("  v_bfe_u32 %s, %s, 3, 1\n  v_add_u32 %s, %s, %s" % (v(T[10]), v(vLane), v(aH), v(T[10]), v(aH)))
    A("  s_lshl_b32 s34, %s, 4\n  v_add_u32 %s, s34, %s" % (s(sJ), v(aH), v(aH)))
    A("  v_lshlrev_b32 %s, 1, %s" % (v(T[17]), v(aH)))
    if P["otouch"]:
        A("  global_load_ushort %s, %s, s[62:63]" % (v(ACC), v(T[17])))
    A("  v_lshlrev_b32 %s, 2, %s\n  v_add_u32 %s, %d, %s" % (v(aH), v(aH), v(aH), R3, v(aH)))
    A("  s_lshl_b32 s34, %s, 4\n  s_add_u32 s34, s34, %d\n  v_lshl_add_u32 %s, %s, 1, s34" % (s(sWave), HL, v(T[11]), v(vLane)))
    A("  s_and_b32 s55, %s, 0xffff\n  v_mov_b32 %s, s55\n  s_mov_b32 s54, 0xffff" % (s(sTag), v(T[16])))
    assert P["npoll"] == 1 and P["npoll1"] == 1
    for k in range(16): A("  v_mov_b32 %s, 0" % v(U[0] + k))
    for k in range(8): A("  v_mov_b32 %s, 0" % v(F + 8 + k))
    A("  v_add_u32 %s, %d, %s" % (v(T[15]), QL, v(vL16)))
    for k in range(16): A("  v_mov_b32 %s, %s" % (v(ACC + 16 + k), v(vT8)))
    def ld1(k): A("  global_load_dwordx4 %s, %s, s[12:13] sc1" % (v(ACC + 4 * k, 4), v(aP1)))
    def ck1(k):
        H4 = ACC + 4 * k
        A("  v_max3_u32 %s, %s, %s, %s" % (v(T[8]), v(H4), v(H4 + 1), v(H4 + 2)))
        A("  v_max_u32 %s, %s, %s" % (v(T[8]), v(T[8]), v(H4 + 3)))
        A("  v_cmp_ne_u32 vcc, -1, %s" % v(T[8]))
        for q_ in range(4): unpack(A8[2 * q_], A8[2 * q_ + 1], H4 + q_)
        A("  s_cmp_eq_u64 vcc, -1")
    if P["h1mask"]:
        ld1(0)
        A("L_h1:")
        A("  s_waitcnt vmcnt(0)")
        A("  v_max3_u32 %s, %s, %s, %s" % (v(T[8]), v(ACC), v(ACC + 1), v(ACC + 2)))
        A("  v_max_u32 %s, %s, %s" % (v(T[8]), v(T[8]), v(ACC + 3)))
        A("  v_cmp_eq_u32 vcc, -1, %s" % v(T[8]))
        A("  s_and_b64 exec, exec, vcc")
        A("  s_cbranch_execz L_h1_ok")
        if P["h1sleep"]: A("  s_sleep %d" % P["h1sleep"])
        ld1(0)
        A("  s_sub_u32 %s, %s, 1\n  s_cmp_lg_u32 %s, 0\n  s_cbranch_scc1 L_h1" % (s(sSpin), s(sSpin), s(sSpin)))
        A("  s_mov_b32 %s, 1\n  s_waitcnt vmcnt(0)" % s(sSpin))
        A("L_h1_ok:")
        A("  s_mov_b64 exec, -1")
        for q_ in range(4): unpack(A8[2 * q_], A8[2 * q_ + 1], ACC + q_)
    else:
        poll_pipe("L_h1", P["npoll1"], 1, ld1, ck1, sleep=P["h1sleep"])
    stamp(7)
    red16p(A8, A8[0])
    stamp("m")
    setexec(0x0003000300030003)
    A("  ds_write_b32 %s, %s" % (v(aLw), v(A8[0])))
    setexec(-1)
    DD = U[0]
    A("  s_waitcnt lgkmcnt(0)\n  s_barrier")
    stamp("n")
    A("  ds_read_b128 %s, %s offset:%d" % (v(F, 4), v(aLr), OL - QL))
    A("  ds_read_b128 %s, %s offset:%d" % (v(F + 4, 4), v(aLr), OL - QL + 128))
    for u in range(2):
        A("  s_waitcnt lgkmcnt(%d)" % (1 - u))
        for t in range(4):
            A("  v_smfmac_f32_16x16x64_bf16 %s, %s, %s, %s" % (v(DD + 4 * t, 4), v(F + 4 * u, 4), v(W2 + 8 * (2 * t + u), 8), v(vIdx)))
    def select4():
        for t in range(4):
            setexec(0xffff << (16 * t))
            A("  v_add_f32 %s, %s, %s" % (v(O8), v(DD + 4 * t), v(DD + 4 * t + 1)))
        setexec(-1)
    stamp("p")
    select4()
    A("  v_bfi_b32 %s, %s, %s, %s" % (v(O8), s(sFF), v(vT8), v(O8)))
    hstore("global_store_dword %s, %s, s[12:13]" % (v(aSP), v(O8)))
    stamp("q")
    A("  s_cmp_lg_u32 %s, 0\n  s_cbranch_scc1 L_h3w" % s(sWave))
    zero16 = "\n".join("  v_mov_b32 %s, 0" % v(DD + k) for k in range(16)) + "\n  v_add_u32 %s, %d, %s" % (v(aSP), PB - PA, v(aSP))
    late.append("L_h3w:\n  s_cmp_ge_u32 %s, 28\n  s_cbranch_scc1 L_end\n%s\n  s_branch L_h3j" % (s(sJ), zero16))
    def ld8(addr, base=ACC):
        def f_(k):
            A("  global_load_dwordx4 %s, %s, s[12:13] sc1" % (v(base + 8 * k, 4), v(addr)))
            A("  global_load_dwordx4 %s, %s, s[12:13] offset:16 sc1" % (v(base + 8 * k + 4, 4), v(addr)))
        return f_
    def ck8(dst, stag, mask, base=ACC):
        return lambda k: chk_clean2(dst, [base + 8 * k + q_ for q_ in range(8)], T[8], stag, mask)
    ld8(aPA)(0)
    A(zero16)
    poll_pipe("L_hA", 1, 2, ld8(aPA), ck8(A8, sT8, s(sFF)), preissued=1)
    stamp(8)
    red16(A8)
    round_bf16(A8[1], A8[1])
    A("  v_add_f32 %s, %s, %s" % (v(vXres), v(vXres), v(A8[1])))
    A("  v_cvt_pk_bf16_f32 %s, %s, %s" % (v(vXres), v(vXres), v(vXres)))
    A("  v_bfi_b32 %s, s54, %s, %s" % (v(A8[2]), v(T[16]), v(vXres)))
    setexec(0x0303030303030303)
    hstore("global_store_dword %s, %s, s[12:13]" % (v(aH), v(A8[2])))
    setexec(-1)
    A("  v_and_b32 %s, 0xffff0000, %s" % (v(vXres), v(vXres)))
    stamp("r")
    A("L_h3:")
    A("  s_cmp_ge_u32 %s, 28\n  s_cbranch_scc1 L_hB0" % s(sJ))
    f = [F + k for k in range(8)]; d = [T[8], T[9], T[10], U[4]]
    poll_pipe("L_h3p", P["npoll"], 2, ld8(aR3), ck8(f, 55, "s54"))
    stamp(9)
    XO = ACC + 8; E8 = ACC + 12
    D8 = W2 + 32
    A("  v_readfirstlane_b32 s36, %s" % v(f[0]))
    A("  v_mov_b32 %s, %s" % (v(T[10]), INV512))
    A("  s_mov_b32 s32, s36\n  s_mov_b32 s33, s36")
    for k in range(4): A("  v_pk_add_f32 %s, %s, s[32:33] neg_lo:[0,1] neg_hi:[0,1]" % (v(D8 + 2 * k, 2), v(f[2 * k], 2)))
    A("  v_pk_mul_f32 %s, %s, %s" % (v(E8, 2), v(D8, 2), v(D8, 2)))
    A("  v_pk_add_f32 %s, %s, %s" % (v(E8 + 2, 2), v(D8, 2), v(D8 + 2, 2)))
    for k in range(1, 4): A("  v_pk_fma_f32 %s, %s, %s, %s" % (v(E8, 2), v(D8 + 2 * k, 2), v(D8 + 2 * k, 2), v(E8, 2)))
    A("  v_pk_add_f32 %s, %s, %s" % (v(D8 + 4, 2), v(D8 + 4, 2), v(D8 + 6, 2)))
    A("  v_pk_add_f32 %s, %s, %s" % (v(E8 + 2, 2), v(E8 + 2, 2), v(D8 + 4, 2)))
    s1 = T[8]; s2 = T[9]
    A("  v_add_f32 %s, %s, %s" % (v(s2), v(E8), v(E8 + 1)))
    A("  v_add_f32 %s, %s, %s" % (v(s1), v(E8 + 2), v(E8 + 3)))
    for ctrl, rm in (("quad_perm:[1,0,3,2]", "0xf"), ("quad_perm:[2,3,0,1]", "0xf"), ("row_half_mirror", "0xf"),
                     ("row_mirror", "0xf"), ("row_bcast:15", "0xa"), ("row_bcast:31", "0xc")):
        dpp("v_add_f32", s2, s2, s2, ctrl, rm=rm)
        dpp("v_add_f32", s1, s1, s1, ctrl, rm=rm)
    A("  v_readlane_b32 s33, %s, 63" % v(s2))
    A("  v_readlane_b32 s32, %s, 63" % v(s1))
    vMean = E8; vR = E8 + 2
    A("  v_mul_f32 %s, s33, %s" % (v(s2), v(T[10])))
    A("  v_mul_f32 %s, s32, %s" % (v(s1), v(T[10])))
    A("  v_fma_f32 %s, -%s, %s, %s" % (v(s2), v(s1), v(s1), v(s2)))
    A("  v_add_f32 %s, s36, %s" % (v(s1), v(s1)))
    A("  v_max_f32 %s, 0, %s" % (v(s2), v(s2)))
    A("  v_cvt_pk_bf16_f32 %s, %s, %s" % (v(T[10]), v(s1), v(s2)))
    A("  v_and_b32 %s, 0xffff0000, %s" % (v(s2), v(T[10])))
    A("  v_lshlrev_b32 %s, 16, %s" % (v(vMean), v(T[10])))
    A("  v_add_f32 %s, %s, %s" % (v(s2), EPS, v(s2)))
    A("  v_lshlrev_b32 %s, 16, %s" % (v(vMean + 1), v(T[10])))
    A("  v_cvt_pk_bf16_f32 %s, %s, %s" % (v(s2), v(s2), v(s2)))
    A("  v_pk_add_f32 %s, %s, %s neg_lo:[0,1] neg_hi:[0,1]" % (v(f[0], 2), v(f[0], 2), v(vMean, 2)))
    A("  v_and_b32 %s, 0xffff0000, %s" % (v(s2), v(s2)))
    A("  v_sqrt_f32 %s, %s" % (v(s2), v(s2)))
    for k in range(1, 4): A("  v_pk_add_f32 %s, %s, %s neg_lo:[0,1] neg_hi:[0,1]" % (v(f[2 * k], 2), v(f[2 * k], 2), v(vMean, 2)))
    A("  v_cvt_pk_bf16_f32 %s, %s, %s" % (v(s2), v(s2), v(s2)))
    A("  v_cvt_pk_bf16_f32 %s, %s, %s" % (v(XO), v(f[0]), v(f[1])))
    A("  v_and_b32 %s, 0xffff0000, %s" % (v(s2), v(s2)))
    A("  v_rcp_f32 %s, %s" % (v(vR), v(s2)))
    for k in range(1, 4): A("  v_cvt_pk_bf16_f32 %s, %s, %s" % (v(XO + k), v(f[2 * k]), v(f[2 * k + 1])))
    A("  v_mov_b32 %s, %s" % (v(vR + 1), v(vR)))
    for k in range(4): unpack(f[2 * k], f[2 * k + 1], XO + k)
    for k in range(4): A("  v_pk_mul_f32 %s, %s, %s" % (v(f[2 * k], 2), v(f[2 * k], 2), v(vR, 2)))
    for k in range(4): A("  v_cvt_pk_bf16_f32 %s, %s, %s" % (v(XO + k), v(f[2 * k]), v(f[2 * k + 1])))
    stamp("l")
    A("  ds_write_b128 %s, %s" % (v(T[15]), v(XO, 4)))
    A("  s_waitcnt lgkmcnt(0)")
    A("L_h3j:")
    A("  s_barrier")
    XA = W2
    for u in range(8): A("  ds_read_b128 %s, %s offset:%d" % (v(XA + 4 * u, 4), v(aLr), 128 * u))
    stamp("s")
    for u in range(8):
        A("  s_waitcnt lgkmcnt(%d)" % (7 - u))
        A("  v_smfmac_f32_16x16x64_bf16 %s, %s, %s, %s" % (v(F + 8 + 4 * (u & 1), 4), v(XA + 4 * u, 4), v(W3A + 8 * u, 8), v(vIdx)))
    GA = [F + k for k in range(8)]
    A("  v_pk_add_f32 %s, %s, %s" % (v(GA[0], 2), v(F + 8, 2), v(F + 12, 2)))
    A("  v_add_f32 %s, %s, %s" % (v(GA[0]), v(GA[0]), v(GA[1])))
    stamp("y")
    round_bf16(GA[0], GA[0])
    A("  v_mul_f32 %s, 0xbfb8aa3b, %s" % (v(GA[2]), v(GA[0])))
    A("  v_exp_f32 %s, %s" % (v(GA[2]), v(GA[2])))
    A("  v_mov_b32_dpp %s, %s row_ror:8 row_mask:0xf bank_mask:0xf" % (v(GA[1]), v(GA[0])))
    A("  v_add_f32 %s, 1.0, %s" % (v(GA[2]), v(GA[2])))
    A("  v_rcp_f32 %s, %s" % (v(GA[2]), v(GA[2])))
    A("  v_mul_f32 %s, %s, %s" % (v(GA[0]), v(GA[0]), v(GA[2])))
    round_bf16(GA[0], GA[0])
    A("  v_mul_f32 %s, %s, %s" % (v(GA[0]), v(GA[0]), v(GA[1])))
    A("  v_cvt_pk_bf16_f32 %s, %s, %s" % (v(GA[0]), v(GA[0]), v(GA[0])))
    A("  s_mov_b64 exec, 0xff")
    A("  ds_write_b16 %s, %s" % (v(T[11]), v(GA[0])))
    A("  s_mov_b64 exec, -1")
    stamp("t")
    A("  s_waitcnt lgkmcnt(0)\n  s_barrier")
    stamp("z")
    A("  ds_read_b128 %s, %s offset:%d" % (v(F, 4), v(aLr), HL - QL))
    A("  s_waitcnt lgkmcnt(0)")
    for t in range(4):
        A("  v_smfmac_f32_16x16x64_bf16 %s, %s, %s, %s" % (v(DD + 4 * t, 4), v(F, 4), v(W4 + 8 * t, 8), v(vIdx)))
    select4()
    A("  v_bfi_b32 %s, %s, %s, %s" % (v(O8), s(sFF), v(vT8), v(O8)))
    hstore("global_store_dword %s, %s, s[12:13]" % (v(aSP), v(O8)))
    stamp("u")
    A("L_hB0:")
    A("  s_cmp_lg_u32 %s, 0\n  s_cbranch_scc1 L_end" % s(sWave))
    A("  v_add_u32 %s, %d, %s" % (v(aPA), PB - PA, v(aPA)))
    def ldB(k):
        A("  s_mov_b32 exec_hi, 0xffffff")
        ld8(aPA, ACC + 16)(k)
        A("  s_mov_b64 exec, -1")
    poll_pipe("L_hB", P["npoll"], 2, ldB, ck8(A8, sT8, s(sFF), ACC + 16))
    stamp(10)
    red16(A8)
    round_bf16(A8[1], A8[1])
    A("  v_add_f32 %s, %s, %s" % (v(A8[1]), v(vXres), v(A8[1])))
    if P["err"]:
        A("  v_mul_f32 %s, 0x%08x, %s" % (v(A8[1]), struct.unpack("<I", struct.pack("<f", 1.0 + P["err"] / 1000.0))[0], v(A8[1])))
    A("  v_mov_b32_dpp %s, %s row_ror:8 row_mask:0xf bank_mask:0xf" % (v(A8[2]), v(A8[1])))
    A("  v_cvt_pk_bf16_f32 %s, %s, %s" % (v(A8[0]), v(A8[1]), v(A8[2])))
    setexec(0x0003000300030003)
    A("  global_store_dword %s, %s, s[62:63]" % (v(T[17]), v(A8[0])))
    A("  s_mov_b64 exec, 1")
    A("  s_cmp_lg_u32 %s, 0\n  s_cbranch_scc1 L_noepoch" % s(sJ))
    A("  v_mov_b32 %s, %d\n  v_mov_b32 %s, %s" % (v(A8[5]), EPOCH, v(A8[6]), s(sTag)))
    A("  global_store_dword %s, %s, s[12:13]" % (v(A8[5]), v(A8[6])))
    A("L_noepoch:")
    A("  s_mov_b64 exec, -1")
    stamp(11)
    A("L_end:")
    if SLIST:
        A("  s_cmp_lg_u32 %s, %d\n  s_cbranch_scc1 L_done" % (s(sWave), P["sw"]))
        A("  s_waitcnt vmcnt(0)")
        stamp(12)
        A("  s_waitcnt lgkmcnt(0)")
        ns = len(SLIST)
        if P["dbgwg"] >= 0:
            A("  s_cmp_lg_u32 s2, %d\n  s_cbranch_scc1 L_done" % P["dbgwg"])
            A("  s_load_dwordx2 s[12:13], s[0:1], 80\n  s_waitcnt lgkmcnt(0)")
            A("  v_mov_b32 v14, 0\n  s_mov_b64 exec, 1")
            for k in range(ns):
                A("  s_sub_u32 s34, s%d, s68\n  v_mov_b32 v16, s34" % (68 + 2 * k))
                A("  global_store_dword v14, v16, s[12:13] offset:%d" % (4 * k))
            A("  s_waitcnt vmcnt(0)\n  s_branch L_done")
        A("  s_add_u32 s12, s12, 0x10000000\n  s_addc_u32 s13, s13, 0")
        A("  s_mul_i32 s34, s2, %d\n  v_mov_b32 v14, s34" % (8 * (ns + 1)))
        A("  s_getreg_b32 s%d, hwreg(HW_REG_XCC_ID)\n  s_getreg_b32 s%d, hwreg(HW_REG_HW_ID)" % (68 + 2 * ns, 69 + 2 * ns))
        A("  s_mov_b64 exec, 1")
        for k in range(ns + 1):
            A("  v_mov_b32 v16, s%d\n  v_mov_b32 v17, s%d" % (68 + 2 * k, 69 + 2 * k))
            A("  global_store_dwordx2 v14, v[16:17], s[12:13] offset:%d" % (8 * k))
        A("  s_waitcnt vmcnt(0)")
    A("L_done:\n  s_endpgm")
    for blk in late: A(blk)
    A("L_codeend:")
    body = auto_nop(L)
    out = HEAD + body
    out.append('.section .rodata,"a"\n.p2align 6\n.amdhsa_kernel %s' % NAME)
    out.append("  .amdhsa_next_free_vgpr 256\n  .amdhsa_next_free_sgpr 102\n  .amdhsa_accum_offset 256")
    out.append("  .amdhsa_group_segment_fixed_size 0\n  .amdhsa_kernarg_size 96\n  .amdhsa_user_sgpr_count 2\n  .amdhsa_user_sgpr_kernarg_segment_ptr 1\n  .amdhsa_system_sgpr_workgroup_id_x 1")
    out.append("  .amdhsa_float_denorm_mode_32 3\n.end_amdhsa_kernel")
    return "\n".join(out) + "\n"

if __name__ == "__main__":
    kw = {}
    for kv in sys.argv[2:]:
        k, val = kv.split("=")
        if k == "stamps": pass
        elif val.lstrip("-").isdigit(): val = int(val)
        else: val = val.replace("+", " ").replace("none", "")
        kw[k] = val
    open(sys.argv[1], "w").write(gen(**kw))
```

```python
import sys, struct
from asmlib import auto_nop
NAME = "sequential_preLN__gqa_block_cached__glu_gated_swiglu__decode_kernel"

DEF = dict(X=133, W=1, early=0, PW=4, stamps="", wqflag="nt", wflag="nt", kvflag="nt", spin=400000, gtrig=3,
           psleep=1, codepf=1, err=0, forceslow=0, sw=0, ordbar=1, k1early=1, dbgwg=-1, pf2=5, gthr=24, smemq=1, extraV=0, deepV=0, nA=1, NR=0, S=24, p1bf=1, npoll=1, npoll1=1, scflag="sc1 nt", diag=0, noq=0, notrans=0, h1sleep=2, paced=1, pw=3, palay=1, red2=1, nstream=8, p1fast=1, otouch=1, h1mask=1, bmap=1, rot=8, vtouch=0, qmap=1, P0=48, stouch=1)

EPOCH = 0; QG = 0x100000; ML = 0x8000; REG = 0xC000; R3 = 0xD000; P1 = 0x20000; PA = 0xA0000; PB = 0xB0000; PC = 0xE000; SG = 0x200000
SC = 131072; QL = SC + 8 * 2560; MLT = QL + 1024; FT = MLT + 256; FLAG = FT + 128; TK = FLAG + 16; OL = RED0_ = 153088; HL = OL + 256; RED0 = 153088; LDS_TOTAL = RED0 + 2048
LOG2E = "0x3fb8aa3b"; SCALE = "0x3db504f3"; EPS = "0x3727c5ac"; INV512 = "0x3b000000"

vLane = 1; vL16 = 2; vKd = [3, 4, 5, 6]; vVd = 7; vKrd = 8; vVrd = 9; vSb = 10; vSr = 11; vXres = 12; vT8 = 13
T = list(range(14, 32))
F = 32
ACC = 48
U = list(range(80, 96))
W2 = 96; W3A = 160; W3B = 192; W4 = 224
sWave = 3; sG = 18; sI = 19; sTail = 20; sJ = 21; sCnt1 = 22; sCnt2 = 23; sOff = 24; sOff0 = 25; sSlotC = 26; sSlotI = 27
sWB = 28; sTag = 29; sT8 = 30; sSpin = 31; sDone = 40; sFast = 41; sTrig = 42; sXcc = 43
sSelLo = 37; sSelHi = 38; sFF = 39; sF = [16, 17, 55, 54]; sTk = 33; sOffX = 40; sThr = 15; sC0 = 14; sCX = 17
vTkA = 30; vTk = 31; vOne = 95; vMx = 29

DOC = """
One persistent launch, 256 workgroups x 8 waves (one workgroup per CU), generated by a script of mine.
 1. every workgroup: LayerNorm(x), a 128x64 slice of x@wq, partials handed over through d_ws (tag = epoch word + 1)
 2. kv head = wg>>5; each workgroup streams its K tiles (16 keys, LDS-DMA ring, tickets from an LDS counter), scores -> LDS
 3. workgroup max / exp / sum, (max,sum) published; V tiles streamed, P@V by MFMA; partial scaled with the global max/sum
 4. the 32 workgroups with wg&7==0 hold wo / w1 / w3 / w2 slices in registers and run the rest:
    combine -> wo -> reduce -> h -> LayerNorm -> gate/up -> silu*up -> w2 -> reduce -> out
    Their mutual hand-offs use plain stores when a run-time check shows they share one XCD, write-through otherwise.
All spins are bounded.
"""

def v(i, n=1): return "v%d" % i if n == 1 else "v[%d:%d]" % (i, i + n - 1)
def s(i, n=1): return "s%d" % i if n == 1 else "s[%d:%d]" % (i, i + n - 1)

def gen(**kw):
    P = dict(DEF); P.update(kw)
    X = P["X"]; Y = 1024 - 7 * X; W = P["W"]
    assert 0 < Y <= X and (X + 7) // 8 <= 20 and Y >= 8 * 5
    L = []; A = L.append
    late = []
    SLIST = P["stamps"].split(",") if P["stamps"] else []
    def stamp(k):
        k = str(k)
        if k in SLIST:
            A("  s_memrealtime %s" % s(68 + 2 * SLIST.index(k), 2))
        if k + "c" in SLIST:
            A("  s_memtime %s" % s(68 + 2 * SLIST.index(k + "c"), 2))
    def setexec(mask):
        if mask == -1:
            A("  s_mov_b64 exec, -1")
        else:
            lo = mask & 0xffffffff; hi = mask >> 32
            A("  s_mov_b32 exec_lo, 0x%x\n  s_mov_b32 exec_hi, 0x%x" % (lo, hi))
    def round_bf16(dst, src):
        A("  v_cvt_pk_bf16_f32 %s, %s, %s" % (v(dst), v(src), v(src)))
        A("  v_and_b32 %s, 0xffff0000, %s" % (v(dst), v(dst)))
    def unpack(lo, hi, src):
        A("  v_lshlrev_b32 %s, 16, %s" % (v(lo), v(src)))
        A("  v_and_b32 %s, 0xffff0000, %s" % (v(hi), v(src)))
    def dpp(op, d, a, b, ctrl, rm="0xf", bm="0xf"):
        A("  %s_dpp %s, %s, %s %s row_mask:%s bank_mask:%s" % (op, v(d), v(a), v(b), ctrl, rm, bm))
    def bfly_hi(op, x, t):
        A("  v_mov_b32 %s, %s" % (v(t), v(x)))
        A("  v_permlane16_swap_b32 %s, %s" % (v(x), v(t)))
        A("  %s %s, %s, %s" % (op, v(x), v(x), v(t)))
        A("  v_mov_b32 %s, %s" % (v(t), v(x)))
        A("  v_permlane32_swap_b32 %s, %s" % (v(x), v(t)))
        A("  %s %s, %s, %s" % (op, v(x), v(x), v(t)))
    def allred_b2345(op, x, t):
        dpp(op, x, x, x, "row_ror:4")
        dpp(op, x, x, x, "row_ror:8")
        bfly_hi(op, x, t)
    def red345(a):
        for e in range(4): A("  v_permlane32_swap_b32 %s, %s" % (v(a[e]), v(a[e + 4])))
        for e in range(4): A("  v_add_f32 %s, %s, %s" % (v(a[e]), v(a[e]), v(a[e + 4])))
        for e in range(2): A("  v_permlane16_swap_b32 %s, %s" % (v(a[e]), v(a[e + 2])))
        for e in range(2): A("  v_add_f32 %s, %s, %s" % (v(a[e]), v(a[e]), v(a[e + 2])))
        dpp("v_add_f32", a[2], a[0], a[0], "row_ror:8", bm="0x3")
        dpp("v_add_f32", a[2], a[1], a[1], "row_ror:8", bm="0xc")
    def red16(a):
        red345(a)
        dpp("v_add_f32", a[0], a[2], a[2], "row_shl:4")
        dpp("v_add_f32", a[1], a[0], a[0], "quad_perm:[2,3,0,1]")
    def red16p(a, dst):
        for e in range(4): A("  v_permlane32_swap_b32 %s, %s" % (v(a[e]), v(a[e + 4])))
        for e in range(4): A("  v_add_f32 %s, %s, %s" % (v(a[e]), v(a[e]), v(a[e + 4])))
        for e in range(2): A("  v_permlane16_swap_b32 %s, %s" % (v(a[e]), v(a[e + 2])))
        for e in range(2): A("  v_add_f32 %s, %s, %s" % (v(a[e]), v(a[e]), v(a[e + 2])))
        for ctrl in ("row_ror:8", "row_shl:4", "quad_perm:[2,3,0,1]"):
            for e in range(2): dpp("v_add_f32", a[e], a[e], a[e], ctrl)
        A("  v_cvt_pk_bf16_f32 %s, %s, %s" % (v(dst), v(a[0]), v(a[1])))
    def sum8(q):
        A("  v_pk_add_f32 %s, %s, %s" % (v(q, 2), v(q, 2), v(q + 2, 2)))
        A("  v_pk_add_f32 %s, %s, %s" % (v(q + 4, 2), v(q + 4, 2), v(q + 6, 2)))
        A("  v_pk_add_f32 %s, %s, %s" % (v(q, 2), v(q, 2), v(q + 4, 2)))
        A("  v_add_f32 %s, %s, %s" % (v(q), v(q), v(q + 1)))
    def ln_stats(f, d, vMean, vSd, vR):
        A("  v_readfirstlane_b32 s36, %s" % v(f[0]))
        s1 = d[0]; s2 = d[1]; t = d[2]; t2 = d[3]
        A("  v_subrev_f32 %s, s36, %s" % (v(s1), v(f[1])))
        A("  v_subrev_f32 %s, s36, %s" % (v(t), v(f[0])))
        A("  v_mul_f32 %s, %s, %s" % (v(s2), v(s1), v(s1)))
        A("  v_add_f32 %s, %s, %s" % (v(s1), v(s1), v(t)))
        A("  v_fmac_f32 %s, %s, %s" % (v(s2), v(t), v(t)))
        for k in range(2, 8):
            tt = t if k % 2 else t2
            A("  v_subrev_f32 %s, s36, %s" % (v(tt), v(f[k])))
            A("  v_add_f32 %s, %s, %s" % (v(s1), v(s1), v(tt)))
            A("  v_fmac_f32 %s, %s, %s" % (v(s2), v(tt), v(tt)))
        for ctrl, rm in (("quad_perm:[1,0,3,2]", "0xf"), ("quad_perm:[2,3,0,1]", "0xf"), ("row_half_mirror", "0xf"),
                         ("row_mirror", "0xf"), ("row_bcast:15", "0xa"), ("row_bcast:31", "0xc")):
            dpp("v_add_f32", s1, s1, s1, ctrl, rm=rm)
            dpp("v_add_f32", s2, s2, s2, ctrl, rm=rm)
        A("  v_readlane_b32 s32, %s, 63" % v(s1))
        A("  v_readlane_b32 s33, %s, 63" % v(s2))
        A("  v_mov_b32 %s, %s" % (v(t), INV512))
        A("  v_mul_f32 %s, s32, %s" % (v(s1), v(t)))
        A("  v_mul_f32 %s, s33, %s" % (v(s2), v(t)))
        A("  v_add_f32 %s, s36, %s" % (v(vMean), v(s1)))
        A("  v_fma_f32 %s, -%s, %s, %s" % (v(s2), v(s1), v(s1), v(s2)))
        A("  v_max_f32 %s, 0, %s" % (v(s2), v(s2)))
        A("  v_cvt_pk_bf16_f32 %s, %s, %s" % (v(t), v(vMean), v(s2)))
        A("  v_lshlrev_b32 %s, 16, %s" % (v(vMean), v(t)))
        A("  v_and_b32 %s, 0xffff0000, %s" % (v(s2), v(t)))
        A("  v_add_f32 %s, %s, %s" % (v(s2), EPS, v(s2)))
        round_bf16(s2, s2)
        A("  v_sqrt_f32 %s, %s" % (v(s2), v(s2)))
        round_bf16(vSd, s2)
        A("  v_rcp_f32 %s, %s" % (v(vR), v(vSd)))
    def ln_apply(dst, flo, fhi, vMean, vSd, vR, t, newton):
        A("  v_sub_f32 %s, %s, %s" % (v(flo), v(flo), v(vMean)))
        A("  v_sub_f32 %s, %s, %s" % (v(fhi), v(fhi), v(vMean)))
        A("  v_cvt_pk_bf16_f32 %s, %s, %s" % (v(dst), v(flo), v(fhi)))
        unpack(flo, fhi, dst)
        if newton:
            A("  v_mul_f32 %s, %s, %s" % (v(t[0]), v(flo), v(vR)))
            A("  v_mul_f32 %s, %s, %s" % (v(t[1]), v(fhi), v(vR)))
            A("  v_fma_f32 %s, -%s, %s, %s" % (v(flo), v(t[0]), v(vSd), v(flo)))
            A("  v_fma_f32 %s, -%s, %s, %s" % (v(fhi), v(t[1]), v(vSd), v(fhi)))
            A("  v_fma_f32 %s, %s, %s, %s" % (v(flo), v(flo), v(vR), v(t[0])))
            A("  v_fma_f32 %s, %s, %s, %s" % (v(fhi), v(fhi), v(vR), v(t[1])))
        else:
            A("  v_mul_f32 %s, %s, %s" % (v(flo), v(flo), v(vR)))
            A("  v_mul_f32 %s, %s, %s" % (v(fhi), v(fhi), v(vR)))
        A("  v_cvt_pk_bf16_f32 %s, %s, %s" % (v(dst), v(flo), v(fhi)))
    def next_slot(r):
        A("  s_add_u32 %s, %s, 4096\n  s_and_b32 %s, %s, 0x3fff\n  s_or_b32 %s, %s, %s" % (s(r), s(r), s(r), s(r), s(r), s(r), s(sWB)))
    def off_of(sid, O=None):
        O = O or A
        O("  s_cmp_lt_u32 %s, %d\n  s_cselect_b32 s35, %s, 0\n  s_add_u32 s36, s35, %s" % (sid, P["P0"], s(sThr), s(sC0)))
        O("  s_sub_u32 s35, %s, %d\n  s_cmp_lt_u32 s35, %s" % (sid, P["P0"], s(sThr)))
        O("  s_cselect_b32 s35, %s, %s\n  s_cselect_b32 s36, %s, s36" % (s(sOffX), s(sOff0), s(sCX)))
        O("  s_add_u32 s34, %s, s36\n  s_and_b32 s34, s34, 127\n  s_lshl_b32 s34, s34, 12\n  s_add_u32 s34, s34, s35" % sid)
    def issueK():
        off_of(s(sOff))
        A("  s_mov_b32 m0, %s" % s(sSlotI))
        for g in range(4):
            A("  buffer_load_dwordx4 %s, s[4:7], s34 offen offset:%d %s lds" % (v(vKd[g]), g * 1024, P["kvflag"]))
        A("  s_add_u32 %s, %s, 8" % (s(sOff), s(sOff)))
        next_slot(sSlotI)
    def issueV():
        A("  s_mov_b32 m0, %s" % s(sSlotI))
        for g in range(4):
            A("  buffer_load_dwordx4 %s, s[8:11], %s offen offset:%d %s lds" % (v(vVd), s(sOff), g * 1024, P["kvflag"]))
        A("  s_add_u32 %s, %s, 32768" % (s(sOff), s(sOff)))
        next_slot(sSlotI)
    RT = 112
    NR = P["NR"]
    def issueR(r):
        for g in range(4):
            A("  buffer_load_dwordx4 %s, %s, s[4:7], %s offen offset:%d %s" % (v(RT + 16 * r + 4 * g, 4), v(vKd[g]), s(sOff), g * 1024, P["kvflag"]))
        A("  s_add_u32 %s, %s, 32768" % (s(sOff), s(sOff)))
    nslow = [0]
    def hstore(text):
        k = nslow[0]; nslow[0] += 1
        A("  s_cmp_eq_u32 %s, 1" % s(sFast))
        A("  s_cbranch_scc0 L_slow%d" % k)
        A("  " + text)
        A("L_slowret%d:" % k)
        late.append("L_slow%d:\n  %s sc1\n  s_branch L_slowret%d" % (k, text, k))
    def poll_end(label):
        A("  s_cbranch_scc1 %s_ok" % label)
        if P["psleep"]: A("  s_sleep %d" % P["psleep"])
        A("  s_sub_u32 %s, %s, 1" % (s(sSpin), s(sSpin)))
        A("  s_cmp_lg_u32 %s, 0" % s(sSpin))
        A("  s_cbranch_scc1 %s" % label)
        A("  s_mov_b32 %s, 1" % s(sSpin))
        A("%s_ok:" % label)
    def chk_tag(regs, t, stag, mask=None):
        A("  v_xor_b32 %s, %s, %s" % (v(t), s(stag), v(regs[0])))
        for r in regs[1:]: A("  v_bitop3_b32 %s, %s, %s, %s bitop3:0xf6" % (v(t), v(t), v(r), s(stag)))
        if mask: A("  v_and_b32 %s, %s, %s" % (v(t), mask, v(t)))
        A("  v_cmp_eq_u32 vcc, 0, %s" % v(t))
        A("  s_cmp_eq_u64 vcc, -1")
    def chk_clean(regs, t, stag, mask):
        for r in regs: A("  v_xor_b32 %s, %s, %s" % (v(r), s(stag), v(r)))
        if len(regs) == 8:
            A("  v_or3_b32 %s, %s, %s, %s" % (v(t), v(regs[0]), v(regs[1]), v(regs[2])))
            A("  v_or3_b32 %s, %s, %s, %s" % (v(t + 1), v(regs[3]), v(regs[4]), v(regs[5])))
            A("  v_or3_b32 %s, %s, %s, %s" % (v(t), v(t), v(regs[6]), v(regs[7])))
            A("  v_bitop3_b32 %s, %s, %s, %s bitop3:0xa8" % (v(t), v(t), v(t + 1), mask))
        else:
            A("  v_or3_b32 %s, %s, %s, %s" % (v(t), v(regs[0]), v(regs[1]), v(regs[2])))
            A("  v_bitop3_b32 %s, %s, %s, %s bitop3:0xa8" % (v(t), v(t), v(regs[3]), mask))
        A("  v_cmp_eq_u32 vcc, 0, %s" % v(t))
        A("  s_cmp_eq_u64 vcc, -1")
    def chk_clean2(dst, src, t, stag, mask):
        for d_, r in zip(dst, src): A("  v_xor_b32 %s, %s, %s" % (v(d_), s(stag), v(r)))
        A("  v_or3_b32 %s, %s, %s, %s" % (v(t), v(dst[0]), v(dst[1]), v(dst[2])))
        A("  v_or3_b32 %s, %s, %s, %s" % (v(t + 1), v(dst[3]), v(dst[4]), v(dst[5])))
        A("  v_or3_b32 %s, %s, %s, %s" % (v(t), v(t), v(dst[6]), v(dst[7])))
        A("  v_bitop3_b32 %s, %s, %s, %s bitop3:0xa8" % (v(t), v(t), v(t + 1), mask))
        A("  v_cmp_eq_u32 vcc, 0, %s" % v(t))
        A("  s_cmp_eq_u64 vcc, -1")
    def poll_pipe(label, nsets, nld, load, check, preissued=0, sleep=0):
        for k in range(preissued, nsets): load(k)
        A("%s:" % label)
        for k in range(nsets):
            A("  s_waitcnt vmcnt(%d)" % (nld * (nsets - 1)))
            check(k)
            A("  s_cbranch_scc1 %s_ok" % label)
            if sleep: A("  s_sleep %d" % sleep)
            load(k)
        A("  s_sub_u32 %s, %s, 1" % (s(sSpin), s(sSpin)))
        A("  s_cmp_lg_u32 %s, 0" % s(sSpin))
        A("  s_cbranch_scc1 %s" % label)
        A("  s_mov_b32 %s, 1" % s(sSpin))
        A("%s_ok:" % label)
    def wperm(dst, tb, n=2):
        for h in range(n):
            for c in range(4):
                A("  v_perm_b32 %s, %s, %s, %s" % (v(dst + 8 * h + 2 * c), v(tb + 8 * h + 4 + c), v(tb + 8 * h + c), s(sSelLo)))
                A("  v_perm_b32 %s, %s, %s, %s" % (v(dst + 8 * h + 2 * c + 1), v(tb + 8 * h + 4 + c), v(tb + 8 * h + c), s(sSelHi)))

    hdr = open("cdna_kernels/%s.s.ref" % NAME.replace("_kernel", "")).read().split("\n")
    for h in hdr:
        if h.startswith(";") and "@launch" not in h and "Override" not in h and "grid=ceil" not in h: A(h)
    for ln in DOC.strip("\n").split("\n"): A("; " + ln)
    A("; @launch grid=(256,1,1) block=(512,1,1) lds=%d" % LDS_TOTAL)
    A('.amdgcn_target "amdgcn-amd-amdhsa--gfx950"')
    A(".text\n.globl %s\n.p2align 8\n.type %s,@function\n%s:" % (NAME, NAME, NAME))
    HEAD = L; L = []; A = L.append
    stamp(0)
    A("  s_cmp_ge_u32 s2, 256\n  s_cbranch_scc1 L_done")
    A("  s_load_dwordx8 s[44:51], s[0:1], 0")
    A("  s_load_dwordx2 s[12:13], s[0:1], 88")
    A("  s_load_dwordx2 s[52:53], s[0:1], 32")
    A("  s_load_dwordx8 s[56:63], s[0:1], 48")
    if P["codepf"]:
        A("  s_getpc_b64 s[16:17]")
        A("L_pc:")
        A("  s_sub_u32 s16, s16, L_pc-%s\n  s_subb_u32 s17, s17, 0" % NAME)
        A("  v_lshlrev_b32 %s, 4, v0" % v(T[9]))
        A("  global_load_dwordx4 %s, %s, s[16:17]" % (v(U[8], 4), v(T[9])))
        A("  v_add_u32 %s, 0x2000, %s" % (v(T[9]), v(T[9])))
        A("  v_min_u32 %s, L_codeend-%s-16, %s" % (v(T[9]), NAME, v(T[9])))
        A("  global_load_dwordx4 %s, %s, s[16:17]" % (v(U[12], 4), v(T[9])))
    A("  v_and_b32 %s, 63, v0" % v(vLane))
    A("  v_lshrrev_b32 %s, 6, v0" % v(T[0]))
    A("  v_readfirstlane_b32 %s, %s" % (s(sWave), v(T[0])))
    A("  v_lshlrev_b32 %s, 4, %s" % (v(vL16), v(vLane)))
    A("  s_lshr_b32 %s, s2, 5\n  s_and_b32 %s, s2, 31\n  s_lshr_b32 %s, s2, 3" % (s(sG), s(sI), s(sJ)))
    A("  s_and_b32 s32, s2, 7\n  s_cmp_eq_u32 s32, 0\n  s_cselect_b32 %s, 1, 0" % s(sTail))
    A("  s_movk_i32 s33, %d\n  s_cselect_b32 s33, %d, s33" % (X, Y))
    A("  v_lshrrev_b32 %s, 3, %s" % (v(T[3]), v(vLane)))
    A("  v_and_b32 %s, 7, %s" % (v(T[4]), v(vLane)))
    if P["qmap"]:
        A("  s_lshr_b32 s35, s32, 1\n  s_and_b32 s55, s32, 1\n  s_lshl_b32 s55, s55, 2\n  s_lshr_b32 s36, %s, 3\n  s_or_b32 s55, s55, s36" % s(sI))
    else:
        A("  s_lshr_b32 s35, %s, 3\n  s_mov_b32 s55, s32" % s(sI))
    A("  s_lshl_b32 s34, s35, 6\n  s_lshl_b32 s36, %s, 3\n  s_add_u32 s34, s34, s36" % s(sWave))
    A("  v_add_u32 %s, s34, %s" % (v(T[2]), v(T[3])))
    A("  v_lshlrev_b32 %s, 14, %s" % (v(T[1]), v(T[2])))
    A("  v_lshl_add_u32 %s, %s, 4, %s" % (v(T[1]), v(T[4]), v(T[1])))
    A("  v_lshlrev_b32 %s, 2, %s" % (v(T[2]), v(T[2])))
    A("  s_lshl_b32 s34, %s, 10\n  s_lshl_b32 s36, s55, 7\n  s_add_u32 s34, s34, s36" % s(sG))
    A("  v_add_u32 %s, s34, %s" % (v(T[1]), v(T[1])))
    A("  v_add_u32 %s, 0x2000, %s" % (v(T[5]), v(T[1])))
    A("  s_lshl_b32 s54, %s, 14\n  s_lshl_b32 s35, s35, 12\n  s_add_u32 s54, s54, s35\n  s_lshl_b32 s35, s55, 9\n  s_add_u32 s54, s54, s35\n  s_add_u32 s54, s54, %d" % (s(sG), QG))
    A("  v_lshrrev_b32 %s, 4, %s" % (v(T[6]), v(vLane)))
    A("  v_and_b32 %s, 15, %s" % (v(T[7]), v(vLane)))
    A("  v_xor_b32 %s, %s, %s" % (v(T[8]), v(T[6]), v(T[7])))
    A("  v_lshlrev_b32 %s, 4, %s" % (v(T[8]), v(T[8])))
    A("  v_lshl_add_u32 %s, %s, 8, %s" % (v(vKd[0]), v(T[6]), v(T[8])))
    for g in range(1, 4): A("  v_xor_b32 %s, %d, %s" % (v(vKd[g]), 64 * g, v(vKd[0])))
    E = X - 128
    assert Y == 128 - 7 * E
    if P["bmap"]:
        A("  s_lshr_b32 s34, s2, 3\n  s_and_b32 s34, s34, 3\n  s_andn2_b32 s35, s2, 31\n  s_or_b32 s34, s34, s35")
        A("  s_lshl_b32 %s, s34, 19\n  s_lshl_b32 s35, s32, 2\n  s_or_b32 s34, s34, s35\n  s_lshl_b32 %s, s34, 19" % (s(sOffX), s(sOff0)))
    else:
        A("  s_lshl_b32 %s, s2, 19\n  s_andn2_b32 s34, s2, 7\n  s_lshl_b32 %s, s34, 19" % (s(sOff0), s(sOffX)))
    A("  s_cmp_eq_u32 %s, 1\n  s_cselect_b32 %s, 0, %d\n  s_cselect_b32 s34, %d, %d" % (s(sTail), s(sThr), E, 128 - Y, -E))
    A("  s_mul_i32 s35, s2, %d\n  s_add_u32 %s, s34, s35" % (P["rot"], s(sC0)))
    A("  s_andn2_b32 s34, s2, 7\n  s_mul_i32 s34, s34, %d\n  s_mul_i32 s35, s32, %d\n  s_add_u32 s34, s34, s35\n  s_sub_u32 %s, s34, %d" % (P["rot"], E, s(sCX), E + P["P0"]))
    A("  s_mov_b32 %s, s33\n  s_lshl_b32 %s, s33, 1" % (s(sCnt1), s(sCnt2)))
    A("  s_lshl_b32 %s, %s, 14" % (s(sWB), s(sWave)))
    A("  s_mov_b32 %s, %s\n  s_mov_b32 %s, %s\n  s_mov_b32 %s, %s" % (s(sSlotC), s(sWB), s(sSlotI), s(sWB), s(sOff), s(sWave)))
    A("  s_mov_b32 s6, 0x8000000\n  s_mov_b32 s7, 0x20000\n  s_mov_b32 s10, 0x8000000\n  s_mov_b32 s11, 0x20000")
    A("  s_waitcnt lgkmcnt(0)")
    stamp("a")
    XD = U[0]; XP = U[4]; WA = F; WB_ = F + 4
    A("  global_load_dwordx4 %s, %s, s[44:45]" % (v(XD, 4), v(vL16)))
    A("  global_load_dword %s, %s, s[44:45]" % (v(XP), v(T[2])))
    A("  global_load_dwordx4 %s, %s, s[50:51] %s" % (v(WA, 4), v(T[1]), P["wqflag"]))
    A("  global_load_dwordx4 %s, %s, s[50:51] %s" % (v(WB_, 4), v(T[5]), P["wqflag"]))
    A("  s_load_dword %s, s[12:13], %d" % (s(sTag), EPOCH))
    A("  s_mov_b32 s4, s46\n  s_and_b32 s5, s47, 0xffff\n  s_mov_b32 s8, s48\n  s_and_b32 s9, s49, 0xffff")
    A("  s_mov_b64 s[50:51], s[44:45]")
    def s3prep():
        A("  s_movk_i32 s34, 3584\n  v_mul_lo_u32 %s, %s, s34" % (v(U[5]), v(T[3])))
        A("  v_lshlrev_b32 %s, 4, %s" % (v(U[6]), v(T[4])))
        A("  s_cmp_lt_u32 %s, 28\n  s_cselect_b32 s66, 1835008, 0\n  s_mov_b32 s67, 0x20000" % s(sJ))
    def s3dma(mat, k0, k1):
        A("  s_mov_b32 s64, s%d\n  s_and_b32 s65, s%d, 0xffff" % (56 + 2 * mat, 57 + 2 * mat))
        A("  s_mul_i32 s34, %s, %d\n  s_lshl_b32 s35, %s, 7\n  s_add_u32 s34, s34, s35\n  s_add_u32 s34, s34, %d" % (s(sWave), 64 * 3584, s(sJ), k0 * 8 * 3584))
        A("  s_lshl_b32 s35, %s, 13\n  s_add_u32 s35, s35, %d" % (s(sWave), mat * 65536 + k0 * 1024))
        for k in range(k0, k1):
            A("  v_xor_b32 %s, %d, %s\n  v_add_u32 %s, %s, %s" % (v(U[7]), 16 * k, v(U[6]), v(U[7]), v(U[5]), v(U[7])))
            A("  s_mov_b32 m0, s35")
            A("  buffer_load_dwordx4 %s, s[64:67], s34 offen %s lds" % (v(U[7]), P["wflag"]))
            A("  s_add_u32 s34, s34, %d\n  s_add_u32 s35, s35, 1024" % (8 * 3584))
    if P["ordbar"]: A("  s_barrier")
    A("  s_cmp_eq_u32 %s, 1\n  s_cbranch_scc1 L_tburst" % s(sTail))
    issueK()
    A("L_tburstret:")
    Lsave = L; L = []; A = L.append
    A("L_tburst:")
    s3prep(); s3dma(0, 0, 4)
    A("  s_branch L_tburstret")
    late.append("\n".join(L)); L = Lsave; A = L.append
    A("  v_lshlrev_b32 %s, 8, %s" % (v(vKrd), v(T[7])))
    A("  v_add_u32 %s, %s, %s" % (v(vKrd), v(vKrd), v(T[8])))
    A("  v_lshlrev_b32 %s, 10, %s" % (v(vVrd), v(T[6])))
    A("  v_lshl_add_u32 %s, %s, 3, %s" % (v(vVrd), v(T[7]), v(vVrd)))
    A("  v_bfe_u32 %s, %s, 1, 2" % (v(T[9]), v(vLane)))
    A("  v_lshlrev_b32 %s, 8, %s" % (v(vVd), v(T[9])))
    A("  v_lshl_add_u32 %s, %s, 5, %s" % (v(vVd), v(T[3]), v(vVd)))
    A("  v_and_b32 %s, 1, %s" % (v(T[9]), v(vLane)))
    A("  v_lshl_add_u32 %s, %s, 4, %s" % (v(vVd), v(T[9]), v(vVd)))
    A("  s_mul_i32 s34, %s, 2560\n  s_add_u32 s34, s34, %d" % (s(sWave), SC))
    A("  v_and_b32 %s, 3, %s" % (v(T[9]), v(vLane)))
    A("  v_lshl_add_u32 %s, %s, 2, %s" % (v(T[10]), v(T[6]), v(T[9])))
    A("  v_lshlrev_b32 %s, 3, %s" % (v(T[10]), v(T[10])))
    A("  v_add_u32 %s, %d, %s" % (v(vSb), SC, v(T[10])))
    A("  v_add_u32 %s, s34, %s" % (v(vSr), v(T[10])))
    A("  v_bfe_u32 %s, %s, 2, 2" % (v(T[10]), v(vLane)))
    A("  v_lshl_add_u32 %s, %s, 7, %s" % (v(vSr), v(T[10]), v(vSr)))
    A("  v_mov_b32 %s, %d\n  v_mov_b32 %s, %d" % (v(vTkA), TK, v(vTk), 32 + 8 * NR))
    A("  ds_write_b32 %s, %s" % (v(vTkA), v(vTk)))
    A("  v_mov_b32 %s, 0xff80ff80\n  v_mov_b32 %s, 0xff80ff80" % (v(T[10]), v(T[11])))
    for k in range(5): A("  ds_write_b64 %s, %s offset:%d" % (v(vSr), v(T[10], 2), k * 512))
    A("  v_lshrrev_b32 %s, 5, %s" % (v(T[12]), v(vLane)))
    A("  v_lshlrev_b32 %s, 3, %s" % (v(T[15]), v(T[4])))
    A("  v_lshl_add_u32 %s, %s, 2, %s" % (v(T[15]), v(T[12]), v(T[15])))
    A("  v_bfe_u32 %s, %s, 4, 1" % (v(T[12]), v(vLane)))
    A("  v_lshl_add_u32 %s, %s, 1, %s" % (v(T[15]), v(T[12]), v(T[15])))
    A("  v_bfe_u32 %s, %s, 3, 1" % (v(T[12]), v(vLane)))
    A("  v_add_u32 %s, %s, %s" % (v(T[15]), v(T[12]), v(T[15])))
    A("  s_lshl_b32 s34, %s, 2\n  s_add_u32 s34, s34, %d" % (s(sWave), RED0))
    A("  v_lshl_add_u32 %s, %s, 5, s34" % (v(T[15]), v(T[15])))
    A("  s_mov_b32 %s, 0x05040100\n  s_mov_b32 %s, 0x07060302\n  s_movk_i32 %s, 0xff" % (s(sSelLo), s(sSelHi), s(sFF)))
    A("  s_mov_b32 %s, %d\n  s_mov_b32 %s, 0" % (s(sSpin), P["spin"], s(sFast)))
    A("  s_sub_u32 s34, %s, %d\n  s_cmp_eq_u32 %s, 0\n  s_cselect_b32 %s, s34, -1" % (s(sCnt2), max(P["gthr"], P["deepV"]), s(sWave), s(sTrig)))
    A("  s_getreg_b32 %s, hwreg(HW_REG_XCC_ID, 0, 4)" % s(sXcc))
    stamp("b")
    A("  s_waitcnt vmcnt(7)")
    f = T[0:8]; d = T[8:12]; vMean = T[12]; vSd = T[13]; vR = T[14]
    for k in range(4): unpack(f[2 * k], f[2 * k + 1], XD + k)
    ln_stats(f, d, vMean, vSd, vR)
    A("  s_waitcnt vmcnt(6)")
    unpack(f[0], f[1], XP)
    ln_apply(XP, f[0], f[1], vMean, vSd, vR, [f[2], f[3]], True)
    A("  s_waitcnt vmcnt(4) lgkmcnt(0)")
    stamp("e")
    A("  s_add_u32 %s, %s, 1\n  s_and_b32 %s, %s, 0xff" % (s(sTag), s(sTag), s(sT8), s(sTag)))
    A("  v_mov_b32 %s, %s" % (v(vT8), s(sT8)))
    a = T[0:8]
    wperm(F + 8, F, 1)
    for e in range(8):
        A("  v_dot2_f32_bf16 %s, %s, %s, 0" % (v(a[e]), v(F + 8 + e), v(XP)))
    red345(a)
    A("  ds_write_b32 %s, %s" % (v(T[15]), v(a[2])))
    stamp("f")
    A("  s_waitcnt lgkmcnt(0)\n  s_barrier")
    stamp("g")
    A("  s_cmp_lg_u32 %s, 0\n  s_cbranch_scc1 L_noq" % s(sWave))
    A("  v_lshlrev_b32 %s, 5, %s\n  v_add_u32 %s, %d, %s" % (v(T[0]), v(vLane), v(T[0]), RED0, v(T[0])))
    A("  ds_read_b128 %s, %s" % (v(F, 4), v(T[0])))
    A("  ds_read_b128 %s, %s offset:16" % (v(F + 4, 4), v(T[0])))
    A("  v_lshl_add_u32 %s, %s, 3, s54" % (v(T[1]), v(vLane)))
    A("  s_waitcnt lgkmcnt(0)")
    sum8(F)
    A("  v_mov_b32 %s, %s" % (v(F + 1), s(sTag)))
    A("  global_store_dwordx2 %s, %s, s[12:13] sc1" % (v(T[1]), v(F, 2)))
    if P["p1bf"]:
        A("  v_lshrrev_b32 %s, 4, %s\n  v_and_b32 %s, 15, %s" % (v(T[2]), v(vLane), v(T[3]), v(vLane)))
        A("  s_lshl_b32 s34, %s, 15\n  s_lshl_b32 s35, %s, 8\n  s_add_u32 s34, s34, s35\n  s_add_u32 s34, s34, %d" % (s(sG), s(sI), P1))
        A("  v_lshl_add_u32 %s, %s, 13, s34\n  v_lshl_add_u32 %s, %s, 4, %s" % (v(T[2]), v(T[2]), v(T[2]), v(T[3]), v(T[2])))
        for k in range(4): A("  v_mov_b32 %s, -1" % v(F + 4 + k))
        A("  global_store_dwordx4 %s, %s, s[12:13] sc1" % (v(T[2]), v(F + 4, 4)))
    A("L_noq:")
    if P["vtouch"]:
        A("  s_cmp_lg_u32 %s, 2\n  s_cbranch_scc1 L_novt" % s(sWave))
        A("  s_mov_b64 exec, 1")
        A("  buffer_load_dword %s, %s, s[8:11], %s offen nt" % (v(U[12]), v(vL16), s(sOff0)))
        A("  buffer_load_dword %s, %s, s[8:11], %s offen nt" % (v(U[12]), v(vL16), s(sOffX)))
        A("  s_mov_b64 exec, -1")
        A("L_novt:")
    A("  s_barrier")
    stamp(1)
    A("  s_lshl_b32 s34, %s, 14\n  s_lshl_b32 s35, %s, 9\n  s_add_u32 s34, s34, s35\n  s_add_u32 s34, s34, %d" % (s(sG), s(sWave), QG))
    A("  v_lshrrev_b32 %s, 4, %s\n  v_and_b32 %s, 15, %s" % (v(T[2]), v(vLane), v(T[3]), v(vLane)))
    A("  v_lshl_add_u32 %s, %s, 12, s34\n  v_lshl_add_u32 %s, %s, 5, %s" % (v(T[0]), v(T[2]), v(T[0]), v(T[3]), v(T[0])))
    A("  s_lshl_b32 s34, %s, 7\n  s_add_u32 s34, s34, %d" % (s(sWave), QL))
    A("  v_lshl_add_u32 %s, %s, 3, s34" % (v(T[1]), v(T[3])))
    A("  v_lshrrev_b32 %s, 1, %s\n  v_and_b32 %s, 1, %s" % (v(T[3]), v(T[2]), v(T[2]), v(T[2])))
    A("  v_lshl_add_u32 %s, %s, 2, %s\n  v_lshl_add_u32 %s, %s, 1, %s" % (v(T[1]), v(T[3]), v(T[1]), v(T[1]), v(T[2]), v(T[1])))
    G0 = U[0]; G1 = U[4]
    GQ = F + 8
    def qpoll_issue():
        A("  global_load_dwordx4 %s, %s, s[12:13] sc1" % (v(GQ, 4), v(T[0])))
        A("  global_load_dwordx4 %s, %s, s[12:13] offset:16 sc1" % (v(GQ + 4, 4), v(T[0])))
    def qpoll_check():
        chk_tag([GQ + 1, GQ + 3, GQ + 5, GQ + 7], T[2], sTag)
    def qwrite():
        G0 = GQ
        for e in range(2): A("  v_permlane32_swap_b32 %s, %s" % (v(G0 + 2 * e), v(G0 + 2 * e + 4)))
        for e in range(2): A("  v_add_f32 %s, %s, %s" % (v(G0 + 2 * e), v(G0 + 2 * e), v(G0 + 2 * e + 4)))
        A("  v_permlane16_swap_b32 %s, %s" % (v(G0), v(G0 + 2)))
        A("  v_add_f32 %s, %s, %s" % (v(G0), v(G0), v(G0 + 2)))
        A("  v_cvt_pk_bf16_f32 %s, %s, %s" % (v(G0), v(G0), v(G0)))
        A("  ds_write_b16 %s, %s" % (v(T[1]), v(G0)))
    Lsave = L; L = []; A = L.append
    A("L_tailpro:")
    A("  s_cmp_lg_u32 %s, 7\n  s_cbranch_scc1 L_noreg" % s(sWave))
    A("  s_lshl_b32 s34, %s, 3\n  s_add_u32 s34, s34, %d" % (s(sJ), REG))
    A("  v_mov_b32 %s, s34\n  v_mov_b32 %s, %s\n  v_mov_b32 %s, %s" % (v(T[9]), v(T[10]), s(sXcc), v(T[11]), s(sTag)))
    A("  s_mov_b64 exec, 1")
    A("  global_store_dwordx2 %s, %s, s[12:13] sc1" % (v(T[9]), v(T[10], 2)))
    A("  s_mov_b64 exec, -1")
    A("L_noreg:")
    s3dma(0, 4, 8)
    A("  s_waitcnt vmcnt(4)")
    s3dma(1, 0, 8)
    A("  s_lshl_b32 s34, %s, 5" % s(sJ))
    A("  v_and_b32 %s, 1, %s\n  v_lshrrev_b32 %s, 5, %s\n  v_lshlrev_b32 %s, 3, %s" % (v(T[5]), v(vLane), v(T[6]), v(vLane), v(T[5]), v(T[5])))
    A("  v_lshl_add_u32 %s, %s, 2, %s\n  v_bfe_u32 %s, %s, 4, 1" % (v(T[5]), v(T[6]), v(T[5]), v(T[6]), v(vLane)))
    A("  v_lshl_add_u32 %s, %s, 1, %s\n  v_bfe_u32 %s, %s, 3, 1" % (v(T[5]), v(T[6]), v(T[5]), v(T[6]), v(vLane)))
    A("  v_add_u32 %s, %s, %s\n  v_lshl_add_u32 %s, %s, 1, s34" % (v(T[5]), v(T[6]), v(T[5]), v(T[5]), v(T[5])))
    A("  global_load_ushort %s, %s, s[50:51]" % (v(vXres), v(T[5])))
    nA = P["nA"]
    vWd = U[13]; vWr = U[14]
    def wprep():
        A("  v_lshrrev_b32 %s, 3, %s\n  v_and_b32 %s, 7, %s" % (v(vWd), v(vLane), v(T[5]), v(vLane)))
        A("  v_lshlrev_b32 %s, 10, %s\n  v_lshl_add_u32 %s, %s, 4, %s" % (v(vWd), v(vWd), v(vWd), v(T[5]), v(vWd)))
        A("  v_bfe_u32 %s, %s, 5, 1\n  v_lshlrev_b32 %s, 4, %s" % (v(T[5]), v(vLane), v(vWr), v(T[5])))
        A("  v_bfe_u32 %s, %s, 4, 1\n  v_lshl_add_u32 %s, %s, 2, %s" % (v(T[5]), v(vLane), v(vWr), v(T[5]), v(vWr)))
        A("  v_bfe_u32 %s, %s, 2, 1\n  v_add_u32 %s, %s, %s" % (v(T[5]), v(vLane), v(vWr), v(T[5]), v(vWr)))
        A("  v_bfe_u32 %s, %s, 3, 1\n  v_lshl_add_u32 %s, %s, 3, %s" % (v(T[5]), v(vLane), v(vWr), v(T[5]), v(vWr)))
        A("  v_lshlrev_b32 %s, 7, %s" % (v(vWr), v(vWr)))
    def wround_issue(k, sslot):
        if k in (0, 4) or k == nA:
            if k < 4:
                A("  s_mov_b32 s64, s52\n  s_and_b32 s65, s53, 0xffff\n  s_mov_b32 s66, 0x400000\n  s_mov_b32 s67, 0x20000")
                A("  s_lshl_b32 s46, %s, 17\n  s_lshl_b32 s35, %s, 7\n  s_add_u32 s46, s46, s35\n  s_add_u32 s46, s46, %d" % (s(sJ), s(sWave), k * 32768))
            else:
                A("  s_mov_b32 s64, s60\n  s_and_b32 s65, s61, 0xffff\n  s_mov_b32 s66, 1835008\n  s_mov_b32 s67, 0x20000")
                A("  s_lshl_b32 s46, %s, 16\n  s_lshl_b32 s35, %s, 7\n  s_add_u32 s46, s46, s35\n  s_add_u32 s46, s46, %d" % (s(sJ), s(sWave), (k - 4) * 32768))
        for q_ in range(4):
            A("  s_add_u32 m0, %s, %d" % (s(sslot), 1024 * q_))
            A("  buffer_load_dwordx4 %s, s[64:67], s46 offen %s lds" % (v(vWd), P["wflag"]))
            A("  s_add_u32 s46, s46, 8192")
    def wround_read(k, sslot):
        A("  v_and_b32 %s, 3, %s\n  v_lshl_add_u32 %s, %s, 3, %s\n  v_add_u32 %s, %s, %s" % (v(T[5]), v(vLane), v(T[5]), v(T[5]), v(vWr), v(T[5]), s(sslot), v(T[5])))
        for t in range(4):
            dst = (W2 + 8 * (2 * t + (k >> 1)) + 4 * (k & 1)) if k < 4 else (W4 + 8 * t + 4 * (k & 1))
            for hh in range(2):
                A("  ds_read_b64_tr_b16 %s, %s offset:%d" % (v(dst + 2 * hh, 2), v(T[5]), 256 * hh + 32 * t))
        A("  s_waitcnt lgkmcnt(0)")
    def wrun(k0, k1):
        A("  s_mov_b32 s48, %s\n  s_add_u32 s49, s48, 4096\n  s_and_b32 s49, s49, 0x3fff\n  s_or_b32 s49, s49, %s" % (s(sSlotI), s(sWB)))
        ks = list(range(k0, k1))
        for n, k in enumerate(ks):
            wround_issue(k, 48 + n % 2)
            if n > 0:
                A("  s_waitcnt vmcnt(4)"); wround_read(ks[n - 1], 48 + (n - 1) % 2)
        A("  s_waitcnt vmcnt(0)"); wround_read(ks[-1], 48 + (len(ks) - 1) % 2)
    wprep()
    A("  s_waitcnt vmcnt(0)")
    A("  v_lshlrev_b32 %s, 16, %s" % (v(vXres), v(vXres)))
    A("L_tqpoll:")
    qpoll_issue()
    A("  s_waitcnt vmcnt(0)")
    qpoll_check()
    poll_end("L_tqpoll")
    qwrite()
    A("  s_waitcnt lgkmcnt(0)\n  s_barrier")
    A("  v_bfe_u32 %s, %s, 5, 1\n  v_bfe_u32 %s, %s, 3, 1\n  v_lshl_add_u32 %s, %s, 1, %s" % (v(T[3]), v(vLane), v(T[4]), v(vLane), v(T[3]), v(T[3]), v(T[4])))
    A("  v_xor_b32 %s, %s, %s\n  v_lshl_add_u32 %s, %s, 4, %s" % (v(T[3]), s(sWave), v(T[3]), v(T[3]), v(T[3]), v(vWr)))
    A("  v_and_b32 %s, 1, %s\n  v_lshl_add_u32 %s, %s, 3, %s" % (v(T[4]), v(vLane), v(T[3]), v(T[4]), v(T[3])))
    A("  v_bfe_u32 %s, %s, 1, 1\n  v_lshl_add_u32 %s, %s, 16, %s" % (v(T[4]), v(vLane), v(T[3]), v(T[4]), v(T[3])))
    A("  v_xor_b32 %s, 64, %s" % (v(T[4]), v(T[3])))
    for R in range(16):
        for hh in range(2):
            A("  ds_read_b64_tr_b16 %s, %s offset:%d" % (v(W3A + 4 * R + 2 * hh, 2), v(T[3 + (R & 1)]), 4096 * R + 256 * hh))
        if R % 4 == 3: A("  s_waitcnt lgkmcnt(0)")
    A("  s_barrier")
    if nA: wrun(0, nA)
    for k in range(4): issueK()
    for r in range(NR):
        A("  s_waitcnt vmcnt(8)")
        issueR(r)
    A("  s_branch L_qops")
    late.append("\n".join(L)); L = Lsave; A = L.append

    A("  s_cmp_eq_u32 %s, 1\n  s_cbranch_scc1 L_tailpro" % s(sTail))
    if P["paced"]:
        sQ = 55
        A("  s_lshl_b32 s34, %s, 14\n  s_lshl_b32 s35, %s, 9\n  s_add_u32 s34, s34, s35\n  s_add_u32 s34, s34, %d" % (s(sG), s(sWave), QG))
        A("  s_add_u32 s44, s12, s34\n  s_addc_u32 s45, s13, 0\n  s_mov_b32 %s, 0" % s(sQ))
        nst = 3 + NR
        for k in range(1, nst + 1):
            A("  s_cmp_eq_u32 %s, 1\n  s_cbranch_scc1 L_ps%dq" % (s(sQ), k))
            A("  s_waitcnt vmcnt(%d)" % P["pw"])
            if k <= 3: issueK()
            else: issueR(k - 4)
            A("L_ps%dr:" % k)
            blk = []
            Lsave = L; L = blk; A = L.append
            A("L_ps%dq:" % k)
            A("  s_waitcnt vmcnt(%d)" % (2 + P["pw"]))
            if k <= 3: issueK()
            else: issueR(k - 4)
            A("  s_waitcnt vmcnt(4)")
            qpoll_check()
            A("  s_cselect_b32 %s, 2, 0\n  s_cbranch_scc0 L_ps%dr" % (s(sQ), k))
            qwrite()
            A("  s_branch L_ps%dr" % k)
            L = Lsave; A = L.append
            late.append("\n".join(blk))
            if k < nst:
                A("  s_cmp_lg_u32 %s, 0\n  s_cbranch_scc1 L_ps%de" % (s(sQ), k))
                for j in range(4): A("  s_load_dword s%d, s[44:45], %d glc" % (64 + j, 4096 * j + 508))
                A("  s_waitcnt lgkmcnt(0)")
                for j in range(4): A("  s_xor_b32 s%d, s%d, %s" % (64 + j, 64 + j, s(sTag)))
                A("  s_or_b32 s64, s64, s65\n  s_or_b32 s66, s66, s67\n  s_or_b32 s64, s64, s66\n  s_cmp_eq_u32 s64, 0")
                A("  s_cbranch_scc0 L_ps%de" % k)
                qpoll_issue()
                A("  s_mov_b32 %s, 1" % s(sQ))
                A("L_ps%de:" % k)
        stamp("h")
        A("  s_cmp_eq_u32 %s, 2\n  s_cbranch_scc1 L_qdone" % s(sQ))
        A("L_qpoll:")
        qpoll_issue()
        A("  s_waitcnt vmcnt(0)")
        qpoll_check()
        poll_end("L_qpoll")
        qwrite()
    A("L_qdone:")
    A("  s_waitcnt lgkmcnt(0)\n  s_barrier")
    A("L_qops:")
    stamp(2)
    A("  v_and_b32 %s, 3, %s\n  v_lshlrev_b32 %s, 8, %s" % (v(T[0]), v(vLane), v(T[0]), v(T[0])))
    A("  v_lshrrev_b32 %s, 4, %s\n  v_lshl_add_u32 %s, %s, 4, %s" % (v(T[1]), v(vLane), v(T[0]), v(T[1]), v(T[0])))
    A("  v_add_u32 %s, %d, %s" % (v(T[0]), QL, v(T[0])))
    for t in range(4): A("  ds_read_b128 %s, %s offset:%d" % (v(ACC + 4 * t, 4), v(T[0]), 64 * t))
    S = T[4:8]
    assert S[0] % 2 == 0
    nis = [0]
    def ticket_req():
        A("  s_mov_b64 exec, 1")
        A("  ds_add_rtn_u32 %s, %s, %s" % (v(vTk), v(vTkA), v(vOne)))
        A("  s_mov_b64 exec, -1")
    def issue_dyn(nyoung, kpossible, depth=None, push=False, vwait=None):
        k = nis[0]; nis[0] += 1
        A("  s_waitcnt lgkmcnt(%d)" % nyoung)
        A("  v_readfirstlane_b32 %s, %s" % (s(sTk), v(vTk)))
        ticket_req()
        if kpossible:
            A("  s_cmp_lt_u32 %s, %s\n  s_cbranch_scc0 L_isV%d" % (s(sTk), s(sCnt1), k))
            off_of(s(sTk))
            A("  s_mov_b32 m0, %s" % s(sSlotI))
            if vwait is not None: A("  s_waitcnt vmcnt(%d)" % vwait)
            for g in range(4):
                A("  buffer_load_dwordx4 %s, s[4:7], s34 offen offset:%d %s lds" % (v(vKd[g]), g * 1024, P["kvflag"]))
            A("L_isret%d:" % k)
            blk = ["L_isV%d:" % k]; B = blk.append
        else:
            B = A
        B("  s_sub_u32 s34, %s, %s" % (s(sTk), s(sCnt1)))
        off_of("s34", B)
        assert W == 1 and P["early"] == 0 and not P["deepV"]
        B("  s_mov_b32 m0, %s" % s(sSlotI))
        if not kpossible: B("  s_cmp_lt_u32 %s, %s" % (s(sTk), s(sCnt2)))
        if vwait is not None: B("  s_waitcnt vmcnt(%d)" % vwait)
        if not kpossible: B("  s_cbranch_scc0 L_isno%d" % k)
        for g in range(4):
            B("  buffer_load_dwordx4 %s, s[8:11], s34 offen offset:%d %s lds" % (v(vVd), g * 1024, P["kvflag"]))
        if not kpossible:
            B("L_isno%d:" % k)
        if kpossible:
            B("  s_branch L_isret%d" % k)
            late.append("\n".join(blk))
        next_slot(sSlotI)
        if push:
            A("  s_mov_b32 %s, %s" % (s(sF[depth]), s(sTk)))
        else:
            WW = depth or W
            for i in range(WW - 1): A("  s_mov_b32 %s, %s" % (s(sF[i]), s(sF[i + 1])))
            A("  s_mov_b32 %s, %s" % (s(sF[WW - 1]), s(sTk)))
    def kbody(wait, issue, sid):
        A("  s_lshl_b32 s34, %s, 7" % s(sid))
        A("  v_add_u32 %s, s34, %s" % (v(T[14]), v(vSb)))
        A("  v_add_u32 %s, %s, %s" % (v(T[0]), s(sSlotC), v(vKrd)))
        for t in range(1, 4): A("  v_xor_b32 %s, %d, %s" % (v(T[t]), 64 * t, v(T[0])))
        if issue:
            issue_dyn(0, True, vwait=wait)
        else:
            A("  s_waitcnt vmcnt(%d)" % wait)
        for t in range(4): A("  ds_read_b128 %s, %s" % (v(F + 4 * t, 4), v(T[t])))
        next_slot(sSlotC)
        for t in range(4):
            A("  s_waitcnt lgkmcnt(%d)" % (3 - t))
            A("  v_mfma_f32_16x16x32_bf16 %s, %s, %s, %s" % (v(S[0], 4), v(F + 4 * t, 4), v(ACC + 4 * t, 4), "0" if t == 0 else v(S[0], 4)))
        A("  v_cvt_pk_bf16_f32 %s, %s, %s" % (v(T[8]), v(S[0]), v(S[1])))
        A("  v_cvt_pk_bf16_f32 %s, %s, %s" % (v(T[9]), v(S[2]), v(S[3])))
        unpack(T[10], T[11], T[8]); unpack(T[12], T[13], T[9])
        for k in range(4): A("  v_mul_f32 %s, %s, %s" % (v(T[10 + k]), SCALE, v(T[10 + k])))
        A("  v_cvt_pk_bf16_f32 %s, %s, %s" % (v(T[8]), v(T[10]), v(T[11])))
        A("  v_cvt_pk_bf16_f32 %s, %s, %s" % (v(T[9]), v(T[12]), v(T[13])))
        setexec(0x000F000F000F000F)
        A("  ds_write_b64 %s, %s" % (v(T[14]), v(T[8], 2)))
        setexec(-1)
        A("  v_max3_f32 %s, %s, %s, %s" % (v(vMx), v(vMx), v(T[10]), v(T[11])))
        A("  v_max3_f32 %s, %s, %s, %s" % (v(vMx), v(vMx), v(T[12]), v(T[13])))
    assert T[8] % 2 == 0
    A("  v_mov_b32 %s, 0xff800000\n  v_mov_b32 %s, 1" % (v(vMx), v(vOne)))
    if P["nstream"] < 8:
        A("  s_cmp_ge_u32 %s, %d\n  s_cbranch_scc1 L_notk" % (s(sWave), P["nstream"]))
    ticket_req()
    A("L_notk:")
    A("  s_mov_b32 %s, %s" % (s(sF[0]), s(sWave)))
    A("  s_waitcnt lgkmcnt(0)")
    if NR:
        assert W == 1
        for i in range(4):
            kbody(4 * (3 - i + NR), False, sF[0])
            A("  s_add_u32 %s, %s, 8" % (s(sF[0]), s(sF[0])))
        A("  v_add_u32 %s, %s, %s" % (v(T[14]), s(sWB), v(vL16)))
        for r in range(NR):
            A("  s_waitcnt vmcnt(%d)" % (4 * (NR - 1 - r)))
            for g in range(4):
                A("  ds_write_b128 %s, %s offset:%d" % (v(T[14]), v(RT + 16 * r + 4 * g, 4), 4096 * r + 1024 * g))
            next_slot(sSlotI)
            if r < NR - 1:
                kbody(4 * (NR - 1 - r), False, sF[0])
                A("  s_add_u32 %s, %s, 8" % (s(sF[0]), s(sF[0])))
                A("  v_add_u32 %s, %s, %s" % (v(T[14]), s(sWB), v(vL16)))
    else:
      for i in range(4 - W):
        kbody(4 * (3 - i), False, sF[0])
        A("  s_add_u32 %s, %s, 8" % (s(sF[0]), s(sF[0])))
    for i in range(1, W): A("  s_add_u32 %s, %s, %d" % (s(sF[i]), s(sF[0]), 8 * i))
    if P["stouch"]:
        A("  s_cmp_lg_u32 %s, 3\n  s_cbranch_scc1 L_nost" % s(sWave))
        A("  s_buffer_load_dword s44, s[8:11], %s" % s(sOff0))
        A("  s_buffer_load_dword s45, s[8:11], %s" % s(sOffX))
        A("  s_buffer_load_dword s48, s[4:7], %s" % s(sOffX))
        A("  s_cmp_eq_u32 %s, 0\n  s_cbranch_scc1 L_nost2" % s(sTail))
        A("  s_load_dword s49, s[62:63], 0\n  s_load_dword s50, s[60:61], 0")
        A("L_nost2:")
        A("  s_waitcnt lgkmcnt(0)")
        A("L_nost:")
    if P["nstream"] < 8:
        A("  s_cmp_ge_u32 %s, %d\n  s_cbranch_scc1 L_idlek" % (s(sWave), P["nstream"]))
        Lsave = L; L = []; A = L.append
        A("L_idlek:")
        kbody(0, False, sF[0])
        A("  s_mov_b32 %s, 0x7fffffff\n  s_branch L_kdone" % s(sF[0]))
        late.append("\n".join(L)); L = Lsave; A = L.append
    A("L_kloop:")
    A("  s_mov_b32 s36, %s" % s(sF[0]))
    kbody(4 * (W - 1), True, 36)
    A("  s_cmp_lt_u32 %s, %s\n  s_cbranch_scc1 L_kloop" % (s(sF[0]), s(sCnt1)))
    A("L_kdone:")
    stamp(3)
    PK = F
    FL = ACC
    vM = T[0]; vLs = T[1]
    XV = P["extraV"]
    assert W + XV <= 4
    for i in range(XV): issue_dyn(0, False, depth=W + i, push=True)
    bfly_hi("v_max_f32", vMx, T[2])
    round_bf16(vMx, vMx)
    A("  s_lshl_b32 s34, %s, 2\n  s_add_u32 s34, s34, %d" % (s(sWave), MLT))
    A("  v_and_b32 %s, 3, %s\n  v_lshlrev_b32 %s, 5, %s" % (v(T[3]), v(vLane), v(T[3]), v(T[3])))
    A("  v_add_u32 %s, s34, %s\n  v_add_u32 %s, %d, %s" % (v(T[2]), v(T[3]), v(T[3]), MLT, v(T[3])))
    A("  s_mov_b64 exec, 0xf")
    A("  ds_write_b32 %s, %s" % (v(T[2]), v(vMx)))
    A("  s_mov_b64 exec, -1")
    A("  s_waitcnt lgkmcnt(0)" + ("" if P["notrans"] else "\n  s_barrier"))
    A("  ds_read_b128 %s, %s" % (v(U[0], 4), v(T[3])))
    A("  ds_read_b128 %s, %s offset:16" % (v(U[4], 4), v(T[3])))
    for k in range(5): A("  ds_read_b64 %s, %s offset:%d" % (v(PK + 2 * k, 2), v(vSr), 512 * k))
    A("  s_waitcnt lgkmcnt(5)")
    A("  v_max3_f32 %s, %s, %s, %s" % (v(vM), v(U[0]), v(U[1]), v(U[2])))
    A("  v_max3_f32 %s, %s, %s, %s" % (v(U[3]), v(U[3]), v(U[4]), v(U[5])))
    A("  v_max3_f32 %s, %s, %s, %s" % (v(vM), v(vM), v(U[6]), v(U[7])))
    A("  v_max_f32 %s, %s, %s" % (v(vM), v(vM), v(U[3])))
    A("  s_mov_b32 s34, %s" % LOG2E)
    A("  v_mul_f32 %s, s34, %s" % (v(T[4]), v(vM)))
    for k in range(5):
        A("  s_waitcnt lgkmcnt(%d)" % (4 - k))
        unpack(FL + 4 * k, FL + 4 * k + 1, PK + 2 * k); unpack(FL + 4 * k + 2, FL + 4 * k + 3, PK + 2 * k + 1)
    for k in range(20): A("  v_fma_f32 %s, %s, s34, -%s" % (v(FL + k), v(FL + k), v(T[4])))
    for k in range(20): A("  v_exp_f32 %s, %s" % (v(FL + k), v(FL + k)))
    for k in range(10): A("  v_cvt_pk_bf16_f32 %s, %s, %s" % (v(PK + k), v(FL + 2 * k), v(FL + 2 * k + 1)))
    for k in range(5): A("  ds_write_b64 %s, %s offset:%d" % (v(vSr), v(PK + 2 * k, 2), 512 * k))
    for k in range(10): A("  v_add_f32 %s, %s, %s" % (v(FL + k), v(FL + k), v(FL + 10 + k)))
    for k in range(5): A("  v_add_f32 %s, %s, %s" % (v(FL + k), v(FL + k), v(FL + 5 + k)))
    A("  v_add_f32 %s, %s, %s" % (v(FL), v(FL), v(FL + 1)))
    A("  v_add_f32 %s, %s, %s" % (v(FL + 2), v(FL + 2), v(FL + 3)))
    A("  v_add_f32 %s, %s, %s" % (v(FL), v(FL), v(FL + 4)))
    A("  v_add_f32 %s, %s, %s" % (v(vLs), v(FL), v(FL + 2)))
    allred_b2345("v_add_f32", vLs, T[5])
    A("  s_mov_b64 exec, 0xf")
    A("  ds_write_b32 %s, %s offset:128" % (v(T[2]), v(vLs)))
    A("  s_mov_b64 exec, -1")
    A("  v_mov_b32 %s, %s" % (v(vMx), v(vM)))
    aW = T[10]; aRd = T[11]; aRd2 = T[12]; aFt = T[13]; aSt = T[14]
    A("  v_and_b32 %s, 3, %s\n  s_movk_i32 s34, 576\n  v_mul_lo_u32 %s, %s, s34" % (v(aW), v(vLane), v(aW), v(aW)))
    A("  v_lshrrev_b32 %s, 4, %s\n  v_lshl_add_u32 %s, %s, 4, %s\n  v_add_u32 %s, %s, %s" % (v(aRd), v(vLane), v(aW), v(aRd), v(aW), v(aW), s(sWB), v(aW)))
    A("  s_lshr_b32 s34, %s, 1\n  s_and_b32 s35, %s, 1\n  s_lshl_b32 s35, s35, 8" % (s(sWave), s(sWave)))
    A("  s_mul_i32 s36, s34, 576\n  s_add_u32 s36, s36, s35")
    A("  v_lshl_add_u32 %s, %s, 2, s36" % (v(aRd), v(vLane)))
    A("  v_add_u32 %s, 0x10000, %s" % (v(aRd2), v(aRd)))
    A("  s_lshl_b32 s36, s34, 4\n  s_add_u32 s36, s36, %d\n  v_mov_b32 %s, s36" % (FT + 8, v(aFt)))
    if P["p1bf"]:
        A("  s_lshl_b32 s36, %s, 2\n  s_add_u32 s36, s36, s34\n  s_lshl_b32 s36, s36, 13\n  s_lshr_b32 s35, s35, 1\n  s_add_u32 s36, s36, s35" % s(sG))
        A("  s_lshl_b32 s34, %s, 8\n  s_add_u32 s36, s36, s34\n  s_add_u32 s36, s36, %d" % (s(sI), P1))
        A("  v_lshl_add_u32 %s, %s, 1, s36" % (v(aSt), v(vLane)))
    else:
        A("  s_lshl_b32 s36, %s, 2\n  s_add_u32 s36, s36, s34\n  s_lshl_b32 s36, s36, 14\n  s_add_u32 s36, s36, s35" % s(sG))
        A("  s_lshl_b32 s34, %s, 9\n  s_add_u32 s36, s36, s34\n  s_add_u32 s36, s36, %d" % (s(sI), P1))
        A("  v_lshl_add_u32 %s, %s, 2, s36" % (v(aSt), v(vLane)))
    A("  s_waitcnt lgkmcnt(0)" + ("" if P["notrans"] else "\n  s_barrier"))
    A("  s_cmp_lg_u32 %s, 0\n  s_cbranch_scc1 L_noml" % s(sWave))
    A("  ds_read_b128 %s, %s offset:128" % (v(U[0], 4), v(T[3])))
    A("  ds_read_b128 %s, %s offset:144" % (v(U[4], 4), v(T[3])))
    A("  s_lshl_b32 s34, %s, 11\n  s_lshl_b32 s35, %s, 6\n  s_add_u32 s34, s34, s35\n  s_add_u32 s34, s34, %d" % (s(sG), s(sI), ML))
    A("  v_add_u32 %s, s34, %s" % (v(T[2]), v(vL16)))
    A("  v_mov_b32 %s, %s\n  v_mov_b32 %s, %s\n  v_mov_b32 %s, %s" % (v(T[6]), v(vMx), v(T[7]), s(sTag), v(T[9]), s(sTag)))
    A("  s_waitcnt lgkmcnt(0)")
    sum8(U[0])
    A("  v_mov_b32 %s, %s" % (v(T[8]), v(U[0])))
    A("  s_mov_b64 exec, 0xf")
    assert T[6] % 2 == 0
    A("  global_store_dwordx4 %s, %s, s[12:13] sc1" % (v(T[2]), v(T[6], 4)))
    A("  s_mov_b64 exec, -1")
    A("L_noml:")
    if nA < 6:
        A("  s_cmp_eq_u32 %s, 1\n  s_cbranch_scc1 L_wB" % s(sTail))
        A("L_wBret:")
        Lsave = L; L = []; A = L.append
        A("L_wB:")
        wrun(nA, 6)
        A("  s_branch L_wBret")
        late.append("\n".join(L)); L = Lsave; A = L.append
    for k in range(32): A("  v_mov_b32 %s, 0" % v(ACC + k))
    stamp(4)
    PB_ = T[2]
    assert PB_ % 2 == 0
    A("  s_lshl_b32 s34, %s, 7\n  v_subrev_u32 %s, s34, %s" % (s(sCnt1), v(vSb), v(vSb)))
    def vbody(wait, issue, depth=None):
        A("  s_lshl_b32 s34, %s, 7" % s(sF[0]))
        A("  v_add_u32 %s, s34, %s" % (v(T[1]), v(vSb)))
        A("  v_add_u32 %s, %s, %s" % (v(T[0]), s(sSlotC), v(vVrd)))
        A("  ds_read_b64 %s, %s" % (v(PB_, 2), v(T[1])))
        if issue: issue_dyn(0, False, depth=depth, vwait=wait)
        else: A("  s_waitcnt vmcnt(%d)" % wait)
        for b in range(8): A("  ds_read_b64_tr_b16 %s, %s offset:%d" % (v(F + 2 * b, 2), v(T[0]), 128 * b))
        next_slot(sSlotC)
        for b in range(8):
            A("  s_waitcnt lgkmcnt(%d)" % (7 - b))
            A("  v_mfma_f32_16x16x16_bf16 %s, %s, %s, %s" % (v(ACC + 4 * b, 4), v(F + 2 * b, 2), v(PB_, 2), v(ACC + 4 * b, 4)))
    for i in range(XV):
        vbody(4 * (W + XV - 1 - i), False)
        for k in range(W + XV - 1 - i): A("  s_mov_b32 %s, %s" % (s(sF[k]), s(sF[k + 1])))
    A("  s_branch L_vtest")
    A("L_vloop:")
    vbody(4 * (W - 1), True)
    A("L_vtest:")
    A("  s_cmp_ge_u32 %s, %s\n  s_cbranch_scc1 L_gather" % (s(sF[0]), s(sTrig)))
    A("L_gatherret:")
    if P["deepV"]:
        A("  s_sub_u32 s36, %s, %d" % (s(sCnt2), P["deepV"]))
        A("  s_cmp_lt_u32 %s, s36\n  s_cbranch_scc1 L_vloop" % s(sF[0]))
        issue_dyn(0, False, depth=W, push=True)
        A("  s_branch L_vtest2")
        A("L_vloop2:")
        vbody(4 * W, True, depth=W + 1)
        A("L_vtest2:")
        A("  s_cmp_lt_u32 %s, %s\n  s_cbranch_scc1 L_vloop2" % (s(sF[0]), s(sCnt2)))
    else:
        A("  s_cmp_lt_u32 %s, %s\n  s_cbranch_scc1 L_vloop" % (s(sF[0]), s(sCnt2)))
    stamp(5)
    Lsave = L; L = []; A = L.append
    A("L_gather:")
    A("  s_mov_b32 %s, -1" % s(sTrig))
    A("  s_lshl_b32 s34, %s, 11\n  s_add_u32 s34, s34, %d" % (s(sG), ML))
    A("  v_add_u32 %s, s34, %s" % (v(T[4]), v(vL16)))
    if P["pf2"]:
        A("  s_getpc_b64 s[44:45]")
        A("L_pc2:")
        A("  s_sub_u32 s44, s44, L_pc2-L_vloop\n  s_subb_u32 s45, s45, 0")
        A("  v_mov_b32 %s, %s" % (v(T[7]), v(vL16)))
        for k in range(P["pf2"]):
            A("  global_load_dwordx4 %s, %s, s[44:45]" % (v(U[8], 4), v(T[7])))
            A("  v_add_u32 %s, 1024, %s" % (v(T[7]), v(T[7])))
    A("L_gpoll:")
    A("  global_load_dwordx4 %s, %s, s[12:13] sc1" % (v(G0, 4), v(T[4])))
    A("  global_load_dwordx4 %s, %s, s[12:13] offset:1024 sc1" % (v(G1, 4), v(T[4])))
    A("  s_waitcnt vmcnt(0)")
    chk_tag([G0 + 1, G0 + 3, G1 + 1, G1 + 3], T[7], sTag)
    poll_end("L_gpoll")
    A("  v_max_f32 %s, %s, %s" % (v(T[8]), v(G0), v(G1)))
    allred_b2345("v_max_f32", T[8], T[7])
    A("  v_sub_f32 %s, %s, %s\n  v_sub_f32 %s, %s, %s" % (v(G0), v(G0), v(T[8]), v(G1), v(G1), v(T[8])))
    A("  v_sub_f32 %s, %s, %s" % (v(U[8]), v(vMx), v(T[8])))
    for r in (G0, G1, U[8]): A("  v_mul_f32 %s, %s, %s" % (v(r), LOG2E, v(r)))
    for r in (G0, G1, U[8]): A("  v_exp_f32 %s, %s" % (v(r), v(r)))
    A("  v_mul_f32 %s, %s, %s" % (v(T[9]), v(G0), v(G0 + 2)))
    A("  v_fmac_f32 %s, %s, %s" % (v(T[9]), v(G1), v(G1 + 2)))
    allred_b2345("v_add_f32", T[9], T[7])
    A("  v_rcp_f32 %s, %s" % (v(U[10]), v(T[9])))
    A("  v_mul_f32 %s, %s, %s" % (v(U[10]), v(U[10]), v(U[8])))
    A("  v_mov_b32 %s, 0" % v(U[11]))
    A("  s_cmp_eq_u32 %s, 0\n  s_cbranch_scc1 L_gfin" % s(sTail))
    A("  v_and_b32 %s, 31, %s\n  v_lshlrev_b32 %s, 3, %s\n  v_add_u32 %s, %d, %s" % (v(T[5]), v(vLane), v(T[5]), v(T[5]), v(T[5]), REG, v(T[5])))
    A("L_rpoll:")
    A("  global_load_dwordx2 %s, %s, s[12:13] sc1" % (v(G0, 2), v(T[5])))
    A("  s_waitcnt vmcnt(0)")
    A("  v_cmp_eq_u32 vcc, %s, %s" % (s(sTag), v(G0 + 1)))
    A("  s_cmp_eq_u64 vcc, -1")
    poll_end("L_rpoll")
    A("  v_cmp_eq_u32 vcc, %s, %s" % (s(sXcc), v(G0)))
    A("  s_cmp_eq_u64 vcc, -1\n  s_cselect_b32 s34, %d, 0" % (0 if P["forceslow"] else 1))
    A("  v_mov_b32 %s, s34" % v(U[11]))
    A("L_gfin:")
    A("  v_add_u32 %s, %d, %s" % (v(T[7]), FT, v(vL16)))
    A("  s_mov_b64 exec, 0xf")
    A("  ds_write_b128 %s, %s" % (v(T[7]), v(U[8], 4)))
    A("  s_mov_b64 exec, -1")
    A("  s_branch L_gatherret")
    late.append("\n".join(L)); L = Lsave; A = L.append
    setexec(0x000F000F000F000F)
    for b in range(8): A("  ds_write_b128 %s, %s offset:%d" % (v(aW), v(ACC + 4 * b, 4), 64 * b))
    setexec(-1)
    A("  s_waitcnt lgkmcnt(0)\n  s_barrier")
    O8 = F; F8 = F + 8
    def read8(dst, a0, a1, st):
        A("  ds_read2st64_b32 %s, %s offset0:%d offset1:%d" % (v(dst, 2), v(a0), st, st + 64))
        A("  ds_read2st64_b32 %s, %s offset0:%d offset1:%d" % (v(dst + 2, 2), v(a0), st + 128, st + 192))
        A("  ds_read2st64_b32 %s, %s offset0:%d offset1:%d" % (v(dst + 4, 2), v(a1), st, st + 64))
        A("  ds_read2st64_b32 %s, %s offset0:%d offset1:%d" % (v(dst + 6, 2), v(a1), st + 128, st + 192))
    read8(O8, aRd, aRd2, 0)
    A("  ds_read_b64 %s, %s" % (v(F8, 2), v(aFt)))
    A("  s_waitcnt lgkmcnt(0)")
    A("  v_readfirstlane_b32 %s, %s" % (s(sFast), v(F8 + 1)))
    sum8(O8)
    A("  v_mul_f32 %s, %s, %s" % (v(O8), v(O8), v(F8)))
    if P["p1bf"]:
        A("  v_mov_b32_dpp %s, %s quad_perm:[1,1,3,3] row_mask:0xf bank_mask:0xf" % (v(O8 + 1), v(O8)))
        A("  v_cvt_pk_bf16_f32 %s, %s, %s" % (v(O8 + 4), v(O8), v(O8 + 1)))
        A("  v_min_u32 %s, -2, %s" % (v(O8 + 4), v(O8 + 4)))
        for k in range(1, 4):
            A("  v_mov_b32_dpp %s, %s row_shl:%d row_mask:0xf bank_mask:0xf" % (v(O8 + 4 + k), v(O8 + 4), 2 * k))
        setexec(0x0101010101010101)
        if P["p1fast"]:
            A("  s_cmp_eq_u32 %s, 1\n  s_cbranch_scc1 L_p1f" % s(sFast))
            late.append("L_p1f:\n  global_store_dwordx4 %s, %s, s[12:13]\n  s_branch L_p1r" % (v(aSt), v(O8 + 4, 4)))
        A("  global_store_dwordx4 %s, %s, s[12:13] sc1" % (v(aSt), v(O8 + 4, 4)))
        A("L_p1r:")
        setexec(-1)
    else:
        A("  v_bfi_b32 %s, %s, %s, %s" % (v(O8), s(sFF), v(vT8), v(O8)))
        A("  global_store_dword %s, %s, s[12:13] sc1" % (v(aSt), v(O8)))
    stamp(6)
    for k in [7, "p", "q", 8, "r", 9, "s", "t", "u", 10, 11]: stamp(k)
    A("  s_cmp_eq_u32 %s, 0\n  s_cbranch_scc1 L_end" % s(sTail))
    aP1 = T[0]; aPA = T[1]; aR3 = T[2]; aLw = T[3]; aLr = T[4]; vIdx = T[5]; aSP = T[6]; aH = T[7]
    A("  v_lshrrev_b32 %s, 1, %s\n  v_and_b32 %s, 1, %s" % (v(T[8]), v(vLane), v(T[9]), v(vLane)))
    A8 = [F + k for k in range(8)]
    assert P["p1bf"]
    A("  s_lshl_b32 s34, %s, 13\n  s_lshl_b32 s35, %s, 5\n  s_add_u32 s34, s34, s35\n  s_add_u32 s34, s34, %d" % (s(sJ), s(sWave), P1))
    A("  v_lshl_add_u32 %s, %s, 8, s34\n  v_lshl_add_u32 %s, %s, 4, %s" % (v(aP1), v(T[8]), v(aP1), v(T[9]), v(aP1)))
    if P["palay"]:
        A("  s_lshl_b32 s34, %s, 11\n  s_add_u32 s34, s34, %d" % (s(sJ), PA))
        A("  v_lshl_add_u32 %s, %s, 5, s34" % (v(aPA), v(vLane)))
    else:
        A("  s_lshl_b32 s34, %s, 6\n  s_add_u32 s34, s34, %d" % (s(sJ), PA))
        A("  v_lshl_add_u32 %s, %s, 11, s34\n  v_lshl_add_u32 %s, %s, 5, %s" % (v(aPA), v(T[8]), v(aPA), v(T[9]), v(aPA)))
    A("  v_lshlrev_b32 %s, 5, %s\n  v_add_u32 %s, %d, %s" % (v(aR3), v(vLane), v(aR3), R3, v(aR3)))
    A("  v_lshrrev_b32 %s, 5, %s\n  v_bfe_u32 %s, %s, 4, 1\n  v_lshl_add_u32 %s, %s, 1, %s" % (v(aLw), v(vLane), v(T[10]), v(vLane), v(aLw), v(aLw), v(T[10])))
    A("  v_lshl_add_u32 %s, %s, 2, %s\n  s_lshl_b32 s34, %s, 5\n  s_add_u32 s34, s34, %d\n  v_lshl_add_u32 %s, %s, 2, s34" % (v(aLw), v(T[9]), v(aLw), s(sWave), OL, v(aLw), v(aLw)))
    A("  v_lshrrev_b32 %s, 4, %s\n  v_lshlrev_b32 %s, 5, %s\n  v_lshl_add_u32 %s, %s, 4, %s\n  v_add_u32 %s, %d, %s" % (v(aLr), v(vLane), v(aLr), v(aLr), v(aLr), v(T[9]), v(aLr), v(aLr), QL, v(aLr)))
    A("  s_mov_b32 s34, 0xaaaaaaaa\n  v_mul_lo_u32 %s, %s, s34\n  v_add_u32 %s, 0x44444444, %s" % (v(vIdx), v(T[9]), v(vIdx), v(vIdx)))
    A("  global_load_dwordx4 %s, %s, s[12:13] sc1" % (v(ACC + 4, 4), v(aPA)))
    A("  global_load_dwordx4 %s, %s, s[12:13] sc1" % (v(ACC + 8, 4), v(aR3)))
    A("  v_add_u32 %s, %d, %s" % (v(T[10]), PB - PA, v(aPA)))
    A("  global_load_dwordx4 %s, %s, s[12:13] sc1" % (v(ACC + 12, 4), v(T[10])))
    if P["palay"]:
        A("  s_lshl_b32 s34, %s, 6\n  s_lshl_b32 s35, %s, 13\n  s_add_u32 s34, s34, s35\n  s_add_u32 s34, s34, %d" % (s(sJ), s(sWave), PA))
        A("  v_lshrrev_b32 %s, 4, %s\n  v_lshl_add_u32 %s, %s, 11, s34\n  v_and_b32 %s, 15, %s\n  v_lshl_add_u32 %s, %s, 2, %s" % (v(aSP), v(vLane), v(aSP), v(aSP), v(T[10]), v(vLane), v(aSP), v(T[10]), v(aSP)))
    else:
        A("  s_lshl_b32 s34, %s, 11\n  s_lshl_b32 s35, %s, 8\n  s_add_u32 s34, s34, s35\n  s_add_u32 s34, s34, %d\n  v_lshl_add_u32 %s, %s, 2, s34" % (s(sJ), s(sWave), PA, v(aSP), v(vLane)))
    A("  v_lshrrev_b32 %s, 5, %s\n  v_lshlrev_b32 %s, 3, %s\n  v_lshl_add_u32 %s, %s, 2, %s" % (v(T[10]), v(vLane), v(aH), v(T[9]), v(aH), v(T[10]), v(aH)))
    A("  v_bfe_u32 %s, %s, 4, 1\n  v_lshl_add_u32 %s, %s, 1, %s" % (v(T[10]), v(vLane), v(aH), v(T[10]), v(aH)))
    A("  v_bfe_u32 %s, %s, 3, 1\n  v_add_u32 %s, %s, %s" % (v(T[10]), v(vLane), v(aH), v(T[10]), v(aH)))
    A("  s_lshl_b32 s34, %s, 4\n  v_add_u32 %s, s34, %s" % (s(sJ), v(aH), v(aH)))
    A("  v_lshlrev_b32 %s, 1, %s" % (v(T[17]), v(aH)))
    if P["otouch"]:
        A("  global_load_ushort %s, %s, s[62:63]" % (v(ACC), v(T[17])))
    A("  v_lshlrev_b32 %s, 2, %s\n  v_add_u32 %s, %d, %s" % (v(aH), v(aH), v(aH), R3, v(aH)))
    A("  s_lshl_b32 s34, %s, 4\n  s_add_u32 s34, s34, %d\n  v_lshl_add_u32 %s, %s, 1, s34" % (s(sWave), HL, v(T[11]), v(vLane)))
    A("  s_and_b32 s55, %s, 0xffff\n  v_mov_b32 %s, s55\n  s_mov_b32 s54, 0xffff" % (s(sTag), v(T[16])))
    assert P["npoll"] == 1 and P["npoll1"] == 1
    for k in range(16): A("  v_mov_b32 %s, 0" % v(U[0] + k))
    for k in range(8): A("  v_mov_b32 %s, 0" % v(F + 8 + k))
    A("  v_add_u32 %s, %d, %s" % (v(T[15]), QL, v(vL16)))
    for k in range(16): A("  v_mov_b32 %s, %s" % (v(ACC + 16 + k), v(vT8)))
    def ld1(k): A("  global_load_dwordx4 %s, %s, s[12:13] sc1" % (v(ACC + 4 * k, 4), v(aP1)))
    def ck1(k):
        H4 = ACC + 4 * k
        A("  v_max3_u32 %s, %s, %s, %s" % (v(T[8]), v(H4), v(H4 + 1), v(H4 + 2)))
        A("  v_max_u32 %s, %s, %s" % (v(T[8]), v(T[8]), v(H4 + 3)))
        A("  v_cmp_ne_u32 vcc, -1, %s" % v(T[8]))
        for q_ in range(4): unpack(A8[2 * q_], A8[2 * q_ + 1], H4 + q_)
        A("  s_cmp_eq_u64 vcc, -1")
    if P["h1mask"]:
        ld1(0)
        A("L_h1:")
        A("  s_waitcnt vmcnt(0)")
        A("  v_max3_u32 %s, %s, %s, %s" % (v(T[8]), v(ACC), v(ACC + 1), v(ACC + 2)))
        A("  v_max_u32 %s, %s, %s" % (v(T[8]), v(T[8]), v(ACC + 3)))
        A("  v_cmp_eq_u32 vcc, -1, %s" % v(T[8]))
        A("  s_and_b64 exec, exec, vcc")
        A("  s_cbranch_execz L_h1_ok")
        if P["h1sleep"]: A("  s_sleep %d" % P["h1sleep"])
        ld1(0)
        A("  s_sub_u32 %s, %s, 1\n  s_cmp_lg_u32 %s, 0\n  s_cbranch_scc1 L_h1" % (s(sSpin), s(sSpin), s(sSpin)))
        A("  s_mov_b32 %s, 1\n  s_waitcnt vmcnt(0)" % s(sSpin))
        A("L_h1_ok:")
        A("  s_mov_b64 exec, -1")
        for q_ in range(4): unpack(A8[2 * q_], A8[2 * q_ + 1], ACC + q_)
    else:
        poll_pipe("L_h1", P["npoll1"], 1, ld1, ck1, sleep=P["h1sleep"])
    stamp(7)
    red16p(A8, A8[0])
    stamp("m")
    setexec(0x0003000300030003)
    A("  ds_write_b32 %s, %s" % (v(aLw), v(A8[0])))
    setexec(-1)
    DD = U[0]
    A("  s_waitcnt lgkmcnt(0)\n  s_barrier")
    stamp("n")
    A("  ds_read_b128 %s, %s offset:%d" % (v(F, 4), v(aLr), OL - QL))
    A("  ds_read_b128 %s, %s offset:%d" % (v(F + 4, 4), v(aLr), OL - QL + 128))
    for u in range(2):
        A("  s_waitcnt lgkmcnt(%d)" % (1 - u))
        for t in range(4):
            A("  v_smfmac_f32_16x16x64_bf16 %s, %s, %s, %s" % (v(DD + 4 * t, 4), v(F + 4 * u, 4), v(W2 + 8 * (2 * t + u), 8), v(vIdx)))
    def select4():
        for t in range(4):
            setexec(0xffff << (16 * t))
            A("  v_add_f32 %s, %s, %s" % (v(O8), v(DD + 4 * t), v(DD + 4 * t + 1)))
        setexec(-1)
    stamp("p")
    select4()
    A("  v_bfi_b32 %s, %s, %s, %s" % (v(O8), s(sFF), v(vT8), v(O8)))
    hstore("global_store_dword %s, %s, s[12:13]" % (v(aSP), v(O8)))
    stamp("q")
    A("  s_cmp_lg_u32 %s, 0\n  s_cbranch_scc1 L_h3w" % s(sWave))
    zero16 = "\n".join("  v_mov_b32 %s, 0" % v(DD + k) for k in range(16)) + "\n  v_add_u32 %s, %d, %s" % (v(aSP), PB - PA, v(aSP))
    late.append("L_h3w:\n  s_cmp_ge_u32 %s, 28\n  s_cbranch_scc1 L_end\n%s\n  s_branch L_h3j" % (s(sJ), zero16))
    def ld8(addr, base=ACC):
        def f_(k):
            A("  global_load_dwordx4 %s, %s, s[12:13] sc1" % (v(base + 8 * k, 4), v(addr)))
            A("  global_load_dwordx4 %s, %s, s[12:13] offset:16 sc1" % (v(base + 8 * k + 4, 4), v(addr)))
        return f_
    def ck8(dst, stag, mask, base=ACC):
        return lambda k: chk_clean2(dst, [base + 8 * k + q_ for q_ in range(8)], T[8], stag, mask)
    ld8(aPA)(0)
    A(zero16)
    poll_pipe("L_hA", 1, 2, ld8(aPA), ck8(A8, sT8, s(sFF)), preissued=1)
    stamp(8)
    red16(A8)
    round_bf16(A8[1], A8[1])
    A("  v_add_f32 %s, %s, %s" % (v(vXres), v(vXres), v(A8[1])))
    A("  v_cvt_pk_bf16_f32 %s, %s, %s" % (v(vXres), v(vXres), v(vXres)))
    A("  v_bfi_b32 %s, s54, %s, %s" % (v(A8[2]), v(T[16]), v(vXres)))
    setexec(0x0303030303030303)
    hstore("global_store_dword %s, %s, s[12:13]" % (v(aH), v(A8[2])))
    setexec(-1)
    A("  v_and_b32 %s, 0xffff0000, %s" % (v(vXres), v(vXres)))
    stamp("r")
    A("L_h3:")
    A("  s_cmp_ge_u32 %s, 28\n  s_cbranch_scc1 L_hB0" % s(sJ))
    f = [F + k for k in range(8)]; d = [T[8], T[9], T[10], U[4]]
    poll_pipe("L_h3p", P["npoll"], 2, ld8(aR3), ck8(f, 55, "s54"))
    stamp(9)
    XO = ACC + 8; E8 = ACC + 12
    D8 = W2 + 32
    A("  v_readfirstlane_b32 s36, %s" % v(f[0]))
    A("  v_mov_b32 %s, %s" % (v(T[10]), INV512))
    A("  s_mov_b32 s32, s36\n  s_mov_b32 s33, s36")
    for k in range(4): A("  v_pk_add_f32 %s, %s, s[32:33] neg_lo:[0,1] neg_hi:[0,1]" % (v(D8 + 2 * k, 2), v(f[2 * k], 2)))
    A("  v_pk_mul_f32 %s, %s, %s" % (v(E8, 2), v(D8, 2), v(D8, 2)))
    A("  v_pk_add_f32 %s, %s, %s" % (v(E8 + 2, 2), v(D8, 2), v(D8 + 2, 2)))
    for k in range(1, 4): A("  v_pk_fma_f32 %s, %s, %s, %s" % (v(E8, 2), v(D8 + 2 * k, 2), v(D8 + 2 * k, 2), v(E8, 2)))
    A("  v_pk_add_f32 %s, %s, %s" % (v(D8 + 4, 2), v(D8 + 4, 2), v(D8 + 6, 2)))
    A("  v_pk_add_f32 %s, %s, %s" % (v(E8 + 2, 2), v(E8 + 2, 2), v(D8 + 4, 2)))
    s1 = T[8]; s2 = T[9]
    A("  v_add_f32 %s, %s, %s" % (v(s2), v(E8), v(E8 + 1)))
    A("  v_add_f32 %s, %s, %s" % (v(s1), v(E8 + 2), v(E8 + 3)))
    for ctrl, rm in (("quad_perm:[1,0,3,2]", "0xf"), ("quad_perm:[2,3,0,1]", "0xf"), ("row_half_mirror", "0xf"),
                     ("row_mirror", "0xf"), ("row_bcast:15", "0xa"), ("row_bcast:31", "0xc")):
        dpp("v_add_f32", s2, s2, s2, ctrl, rm=rm)
        dpp("v_add_f32", s1, s1, s1, ctrl, rm=rm)
    A("  v_readlane_b32 s33, %s, 63" % v(s2))
    A("  v_readlane_b32 s32, %s, 63" % v(s1))
    vMean = E8; vR = E8 + 2
    A("  v_mul_f32 %s, s33, %s" % (v(s2), v(T[10])))
    A("  v_mul_f32 %s, s32, %s" % (v(s1), v(T[10])))
    A("  v_fma_f32 %s, -%s, %s, %s" % (v(s2), v(s1), v(s1), v(s2)))
    A("  v_add_f32 %s, s36, %s" % (v(s1), v(s1)))
    A("  v_max_f32 %s, 0, %s" % (v(s2), v(s2)))
    A("  v_cvt_pk_bf16_f32 %s, %s, %s" % (v(T[10]), v(s1), v(s2)))
    A("  v_and_b32 %s, 0xffff0000, %s" % (v(s2), v(T[10])))
    A("  v_lshlrev_b32 %s, 16, %s" % (v(vMean), v(T[10])))
    A("  v_add_f32 %s, %s, %s" % (v(s2), EPS, v(s2)))
    A("  v_lshlrev_b32 %s, 16, %s" % (v(vMean + 1), v(T[10])))
    A("  v_cvt_pk_bf16_f32 %s, %s, %s" % (v(s2), v(s2), v(s2)))
    A("  v_pk_add_f32 %s, %s, %s neg_lo:[0,1] neg_hi:[0,1]" % (v(f[0], 2), v(f[0], 2), v(vMean, 2)))
    A("  v_and_b32 %s, 0xffff0000, %s" % (v(s2), v(s2)))
    A("  v_sqrt_f32 %s, %s" % (v(s2), v(s2)))
    for k in range(1, 4): A("  v_pk_add_f32 %s, %s, %s neg_lo:[0,1] neg_hi:[0,1]" % (v(f[2 * k], 2), v(f[2 * k], 2), v(vMean, 2)))
    A("  v_cvt_pk_bf16_f32 %s, %s, %s" % (v(s2), v(s2), v(s2)))
    A("  v_cvt_pk_bf16_f32 %s, %s, %s" % (v(XO), v(f[0]), v(f[1])))
    A("  v_and_b32 %s, 0xffff0000, %s" % (v(s2), v(s2)))
    A("  v_rcp_f32 %s, %s" % (v(vR), v(s2)))
    for k in range(1, 4): A("  v_cvt_pk_bf16_f32 %s, %s, %s" % (v(XO + k), v(f[2 * k]), v(f[2 * k + 1])))
    A("  v_mov_b32 %s, %s" % (v(vR + 1), v(vR)))
    for k in range(4): unpack(f[2 * k], f[2 * k + 1], XO + k)
    for k in range(4): A("  v_pk_mul_f32 %s, %s, %s" % (v(f[2 * k], 2), v(f[2 * k], 2), v(vR, 2)))
    for k in range(4): A("  v_cvt_pk_bf16_f32 %s, %s, %s" % (v(XO + k), v(f[2 * k]), v(f[2 * k + 1])))
    stamp("l")
    A("  ds_write_b128 %s, %s" % (v(T[15]), v(XO, 4)))
    A("  s_waitcnt lgkmcnt(0)")
    A("L_h3j:")
    A("  s_barrier")
    XA = W2
    for u in range(8): A("  ds_read_b128 %s, %s offset:%d" % (v(XA + 4 * u, 4), v(aLr), 128 * u))
    stamp("s")
    for u in range(8):
        A("  s_waitcnt lgkmcnt(%d)" % (7 - u))
        A("  v_smfmac_f32_16x16x64_bf16 %s, %s, %s, %s" % (v(F + 8 + 4 * (u & 1), 4), v(XA + 4 * u, 4), v(W3A + 8 * u, 8), v(vIdx)))
    GA = [F + k for k in range(8)]
    A("  v_pk_add_f32 %s, %s, %s" % (v(GA[0], 2), v(F + 8, 2), v(F + 12, 2)))
    A("  v_add_f32 %s, %s, %s" % (v(GA[0]), v(GA[0]), v(GA[1])))
    stamp("y")
    round_bf16(GA[0], GA[0])
    A("  v_mul_f32 %s, 0xbfb8aa3b, %s" % (v(GA[2]), v(GA[0])))
    A("  v_exp_f32 %s, %s" % (v(GA[2]), v(GA[2])))
    A("  v_mov_b32_dpp %s, %s row_ror:8 row_mask:0xf bank_mask:0xf" % (v(GA[1]), v(GA[0])))
    A("  v_add_f32 %s, 1.0, %s" % (v(GA[2]), v(GA[2])))
    A("  v_rcp_f32 %s, %s" % (v(GA[2]), v(GA[2])))
    A("  v_mul_f32 %s, %s, %s" % (v(GA[0]), v(GA[0]), v(GA[2])))
    round_bf16(GA[0], GA[0])
    A("  v_mul_f32 %s, %s, %s" % (v(GA[0]), v(GA[0]), v(GA[1])))
    A("  v_cvt_pk_bf16_f32 %s, %s, %s" % (v(GA[0]), v(GA[0]), v(GA[0])))
    A("  s_mov_b64 exec, 0xff")
    A("  ds_write_b16 %s, %s" % (v(T[11]), v(GA[0])))
    A("  s_mov_b64 exec, -1")
    stamp("t")
    A("  s_waitcnt lgkmcnt(0)\n  s_barrier")
    stamp("z")
    A("  ds_read_b128 %s, %s offset:%d" % (v(F, 4), v(aLr), HL - QL))
    A("  s_waitcnt lgkmcnt(0)")
    for t in range(4):
        A("  v_smfmac_f32_16x16x64_bf16 %s, %s, %s, %s" % (v(DD + 4 * t, 4), v(F, 4), v(W4 + 8 * t, 8), v(vIdx)))
    select4()
    A("  v_bfi_b32 %s, %s, %s, %s" % (v(O8), s(sFF), v(vT8), v(O8)))
    hstore("global_store_dword %s, %s, s[12:13]" % (v(aSP), v(O8)))
    stamp("u")
    A("L_hB0:")
    A("  s_cmp_lg_u32 %s, 0\n  s_cbranch_scc1 L_end" % s(sWave))
    A("  v_add_u32 %s, %d, %s" % (v(aPA), PB - PA, v(aPA)))
    def ldB(k):
        A("  s_mov_b32 exec_hi, 0xffffff")
        ld8(aPA, ACC + 16)(k)
        A("  s_mov_b64 exec, -1")
    poll_pipe("L_hB", P["npoll"], 2, ldB, ck8(A8, sT8, s(sFF), ACC + 16))
    stamp(10)
    red16(A8)
    round_bf16(A8[1], A8[1])
    A("  v_add_f32 %s, %s, %s" % (v(A8[1]), v(vXres), v(A8[1])))
    if P["err"]:
        A("  v_mul_f32 %s, 0x%08x, %s" % (v(A8[1]), struct.unpack("<I", struct.pack("<f", 1.0 + P["err"] / 1000.0))[0], v(A8[1])))
    A("  v_mov_b32_dpp %s, %s row_ror:8 row_mask:0xf bank_mask:0xf" % (v(A8[2]), v(A8[1])))
    A("  v_cvt_pk_bf16_f32 %s, %s, %s" % (v(A8[0]), v(A8[1]), v(A8[2])))
    setexec(0x0003000300030003)
    A("  global_store_dword %s, %s, s[62:63]" % (v(T[17]), v(A8[0])))
    A("  s_mov_b64 exec, 1")
    A("  s_cmp_lg_u32 %s, 0\n  s_cbranch_scc1 L_noepoch" % s(sJ))
    A("  v_mov_b32 %s, %d\n  v_mov_b32 %s, %s" % (v(A8[5]), EPOCH, v(A8[6]), s(sTag)))
    A("  global_store_dword %s, %s, s[12:13]" % (v(A8[5]), v(A8[6])))
    A("L_noepoch:")
    A("  s_mov_b64 exec, -1")
    stamp(11)
    A("L_end:")
    if SLIST:
        A("  s_cmp_lg_u32 %s, %d\n  s_cbranch_scc1 L_done" % (s(sWave), P["sw"]))
        A("  s_waitcnt vmcnt(0)")
        stamp(12)
        A("  s_waitcnt lgkmcnt(0)")
        ns = len(SLIST)
        if P["dbgwg"] >= 0:
            A("  s_cmp_lg_u32 s2, %d\n  s_cbranch_scc1 L_done" % P["dbgwg"])
            A("  s_load_dwordx2 s[12:13], s[0:1], 80\n  s_waitcnt lgkmcnt(0)")
            A("  v_mov_b32 v14, 0\n  s_mov_b64 exec, 1")
            for k in range(ns):
                A("  s_sub_u32 s34, s%d, s68\n  v_mov_b32 v16, s34" % (68 + 2 * k))
                A("  global_store_dword v14, v16, s[12:13] offset:%d" % (4 * k))
            A("  s_waitcnt vmcnt(0)\n  s_branch L_done")
        A("  s_add_u32 s12, s12, 0x10000000\n  s_addc_u32 s13, s13, 0")
        A("  s_mul_i32 s34, s2, %d\n  v_mov_b32 v14, s34" % (8 * (ns + 1)))
        A("  s_getreg_b32 s%d, hwreg(HW_REG_XCC_ID)\n  s_getreg_b32 s%d, hwreg(HW_REG_HW_ID)" % (68 + 2 * ns, 69 + 2 * ns))
        A("  s_mov_b64 exec, 1")
        for k in range(ns + 1):
            A("  v_mov_b32 v16, s%d\n  v_mov_b32 v17, s%d" % (68 + 2 * k, 69 + 2 * k))
            A("  global_store_dwordx2 v14, v[16:17], s[12:13] offset:%d" % (8 * k))
        A("  s_waitcnt vmcnt(0)")
    A("L_done:\n  s_endpgm")
    for blk in late: A(blk)
    A("L_codeend:")
    body = auto_nop(L)
    out = HEAD + body
    out.append('.section .rodata,"a"\n.p2align 6\n.amdhsa_kernel %s' % NAME)
    out.append("  .amdhsa_next_free_vgpr 256\n  .amdhsa_next_free_sgpr 102\n  .amdhsa_accum_offset 256")
    out.append("  .amdhsa_group_segment_fixed_size 0\n  .amdhsa_kernarg_size 96\n  .amdhsa_user_sgpr_count 2\n  .amdhsa_user_sgpr_kernarg_segment_ptr 1\n  .amdhsa_system_sgpr_workgroup_id_x 1")
    out.append("  .amdhsa_float_denorm_mode_32 3\n.end_amdhsa_kernel")
    return "\n".join(out) + "\n"

if __name__ == "__main__":
    kw = {}
    for kv in sys.argv[2:]:
        k, val = kv.split("=")
        if k == "stamps": pass
        elif val.lstrip("-").isdigit(): val = int(val)
        else: val = val.replace("+", " ").replace("none", "")
        kw[k] = val
    open(sys.argv[1], "w").write(gen(**kw))
```

```python
import sys, struct
from asmlib import auto_nop
NAME = "sequential_preLN__gqa_block_cached__glu_gated_swiglu__decode_kernel"

DEF = dict(X=133, W=1, early=0, PW=4, stamps="", wqflag="nt", wflag="nt", kvflag="nt", spin=400000, gtrig=3,
           psleep=1, codepf=1, err=0, forceslow=0, sw=0, ordbar=1, k1early=1, dbgwg=-1, pf2=4, gthr=24, smemq=1, extraV=0, deepV=0, nA=1, NR=0, S=24, p1bf=1, npoll=1, npoll1=1, scflag="sc1 nt", diag=0, noq=0, notrans=0, h1sleep=1, paced=1, pw=3, palay=1, red2=1, nstream=8, p1fast=1, otouch=1, h1mask=1, bmap=1, rot=8, vtouch=0, qmap=1, P0=48, stouch=1)

EPOCH = 0; QG = 0x100000; ML = 0x8000; REG = 0xC000; R3 = 0xD000; P1 = 0x20000; PA = 0xA0000; PB = 0xB0000; PC = 0xE000; SG = 0x200000
SC = 131072; QL = SC + 8 * 2560; MLT = QL + 1024; FT = MLT + 256; FLAG = FT + 128; TK = FLAG + 16; OL = RED0_ = 153088; HL = OL + 256; RED0 = 153088; LDS_TOTAL = RED0 + 2048
LOG2E = "0x3fb8aa3b"; SCALE = "0x3db504f3"; EPS = "0x3727c5ac"; INV512 = "0x3b000000"

vLane = 1; vL16 = 2; vKd = [3, 4, 5, 6]; vVd = 7; vKrd = 8; vVrd = 9; vSb = 10; vSr = 11; vXres = 12; vT8 = 13
T = list(range(14, 32))
F = 32
ACC = 48
U = list(range(80, 96))
W2 = 96; W3A = 160; W3B = 192; W4 = 224
sWave = 3; sG = 18; sI = 19; sTail = 20; sJ = 21; sCnt1 = 22; sCnt2 = 23; sOff = 24; sOff0 = 25; sSlotC = 26; sSlotI = 27
sWB = 28; sTag = 29; sT8 = 30; sSpin = 31; sDone = 40; sFast = 41; sTrig = 42; sXcc = 43
sSelLo = 37; sSelHi = 38; sFF = 39; sF = [16, 17, 55, 54]; sTk = 33; sOffX = 40; sThr = 15; sC0 = 14; sCX = 17
vTkA = 30; vTk = 31; vOne = 95; vMx = 29

DOC = """
One persistent launch, 256 workgroups x 8 waves (one workgroup per CU), generated by a script of mine.
 1. every workgroup: LayerNorm(x), a 128x64 slice of x@wq, partials handed over through d_ws (tag = epoch word + 1)
 2. kv head = wg>>5; each workgroup streams its K tiles (16 keys, LDS-DMA ring, tickets from an LDS counter), scores -> LDS
 3. workgroup max / exp / sum, (max,sum) published; V tiles streamed, P@V by MFMA; partial scaled with the global max/sum
 4. the 32 workgroups with wg&7==0 hold wo / w1 / w3 / w2 slices in registers and run the rest:
    combine -> wo -> reduce -> h -> LayerNorm -> gate/up -> silu*up -> w2 -> reduce -> out
    Their mutual hand-offs use plain stores when a run-time check shows they share one XCD, write-through otherwise.
All spins are bounded.
"""

def v(i, n=1): return "v%d" % i if n == 1 else "v[%d:%d]" % (i, i + n - 1)
def s(i, n=1): return "s%d" % i if n == 1 else "s[%d:%d]" % (i, i + n - 1)

def gen(**kw):
    P = dict(DEF); P.update(kw)
    X = P["X"]; Y = 1024 - 7 * X; W = P["W"]
    assert 0 < Y <= X and (X + 7) // 8 <= 20 and Y >= 8 * 5
    L = []; A = L.append
    late = []
    SLIST = P["stamps"].split(",") if P["stamps"] else []
    def stamp(k):
        k = str(k)
        if k in SLIST:
            A("  s_memrealtime %s" % s(68 + 2 * SLIST.index(k), 2))
        if k + "c" in SLIST:
            A("  s_memtime %s" % s(68 + 2 * SLIST.index(k + "c"), 2))
    def setexec(mask):
        if mask == -1:
            A("  s_mov_b64 exec, -1")
        else:
            lo = mask & 0xffffffff; hi = mask >> 32
            A("  s_mov_b32 exec_lo, 0x%x\n  s_mov_b32 exec_hi, 0x%x" % (lo, hi))
    def round_bf16(dst, src):
        A("  v_cvt_pk_bf16_f32 %s, %s, %s" % (v(dst), v(src), v(src)))
        A("  v_and_b32 %s, 0xffff0000, %s" % (v(dst), v(dst)))
    def unpack(lo, hi, src):
        A("  v_lshlrev_b32 %s, 16, %s" % (v(lo), v(src)))
        A("  v_and_b32 %s, 0xffff0000, %s" % (v(hi), v(src)))
    def dpp(op, d, a, b, ctrl, rm="0xf", bm="0xf"):
        A("  %s_dpp %s, %s, %s %s row_mask:%s bank_mask:%s" % (op, v(d), v(a), v(b), ctrl, rm, bm))
    def bfly_hi(op, x, t):
        A("  v_mov_b32 %s, %s" % (v(t), v(x)))
        A("  v_permlane16_swap_b32 %s, %s" % (v(x), v(t)))
        A("  %s %s, %s, %s" % (op, v(x), v(x), v(t)))
        A("  v_mov_b32 %s, %s" % (v(t), v(x)))
        A("  v_permlane32_swap_b32 %s, %s" % (v(x), v(t)))
        A("  %s %s, %s, %s" % (op, v(x), v(x), v(t)))
    def allred_b2345(op, x, t):
        dpp(op, x, x, x, "row_ror:4")
        dpp(op, x, x, x, "row_ror:8")
        bfly_hi(op, x, t)
    def red345(a):
        for e in range(4): A("  v_permlane32_swap_b32 %s, %s" % (v(a[e]), v(a[e + 4])))
        for e in range(4): A("  v_add_f32 %s, %s, %s" % (v(a[e]), v(a[e]), v(a[e + 4])))
        for e in range(2): A("  v_permlane16_swap_b32 %s, %s" % (v(a[e]), v(a[e + 2])))
        for e in range(2): A("  v_add_f32 %s, %s, %s" % (v(a[e]), v(a[e]), v(a[e + 2])))
        dpp("v_add_f32", a[2], a[0], a[0], "row_ror:8", bm="0x3")
        dpp("v_add_f32", a[2], a[1], a[1], "row_ror:8", bm="0xc")
    def red16(a):
        red345(a)
        dpp("v_add_f32", a[0], a[2], a[2], "row_shl:4")
        dpp("v_add_f32", a[1], a[0], a[0], "quad_perm:[2,3,0,1]")
    def red16p(a, dst):
        for e in range(4): A("  v_permlane32_swap_b32 %s, %s" % (v(a[e]), v(a[e + 4])))
        for e in range(4): A("  v_add_f32 %s, %s, %s" % (v(a[e]), v(a[e]), v(a[e + 4])))
        for e in range(2): A("  v_permlane16_swap_b32 %s, %s" % (v(a[e]), v(a[e + 2])))
        for e in range(2): A("  v_add_f32 %s, %s, %s" % (v(a[e]), v(a[e]), v(a[e + 2])))
        for ctrl in ("row_ror:8", "row_shl:4", "quad_perm:[2,3,0,1]"):
            for e in range(2): dpp("v_add_f32", a[e], a[e], a[e], ctrl)
        A("  v_cvt_pk_bf16_f32 %s, %s, %s" % (v(dst), v(a[0]), v(a[1])))
    def sum8(q):
        A("  v_pk_add_f32 %s, %s, %s" % (v(q, 2), v(q, 2), v(q + 2, 2)))
        A("  v_pk_add_f32 %s, %s, %s" % (v(q + 4, 2), v(q + 4, 2), v(q + 6, 2)))
        A("  v_pk_add_f32 %s, %s, %s" % (v(q, 2), v(q, 2), v(q + 4, 2)))
        A("  v_add_f32 %s, %s, %s" % (v(q), v(q), v(q + 1)))
    def ln_stats(f, d, vMean, vSd, vR):
        A("  v_readfirstlane_b32 s36, %s" % v(f[0]))
        s1 = d[0]; s2 = d[1]; t = d[2]; t2 = d[3]
        A("  v_subrev_f32 %s, s36, %s" % (v(s1), v(f[1])))
        A("  v_subrev_f32 %s, s36, %s" % (v(t), v(f[0])))
        A("  v_mul_f32 %s, %s, %s" % (v(s2), v(s1), v(s1)))
        A("  v_add_f32 %s, %s, %s" % (v(s1), v(s1), v(t)))
        A("  v_fmac_f32 %s, %s, %s" % (v(s2), v(t), v(t)))
        for k in range(2, 8):
            tt = t if k % 2 else t2
            A("  v_subrev_f32 %s, s36, %s" % (v(tt), v(f[k])))
            A("  v_add_f32 %s, %s, %s" % (v(s1), v(s1), v(tt)))
            A("  v_fmac_f32 %s, %s, %s" % (v(s2), v(tt), v(tt)))
        for ctrl, rm in (("quad_perm:[1,0,3,2]", "0xf"), ("quad_perm:[2,3,0,1]", "0xf"), ("row_half_mirror", "0xf"),
                         ("row_mirror", "0xf"), ("row_bcast:15", "0xa"), ("row_bcast:31", "0xc")):
            dpp("v_add_f32", s1, s1, s1, ctrl, rm=rm)
            dpp("v_add_f32", s2, s2, s2, ctrl, rm=rm)
        A("  v_readlane_b32 s32, %s, 63" % v(s1))
        A("  v_readlane_b32 s33, %s, 63" % v(s2))
        A("  v_mov_b32 %s, %s" % (v(t), INV512))
        A("  v_mul_f32 %s, s32, %s" % (v(s1), v(t)))
        A("  v_mul_f32 %s, s33, %s" % (v(s2), v(t)))
        A("  v_add_f32 %s, s36, %s" % (v(vMean), v(s1)))
        A("  v_fma_f32 %s, -%s, %s, %s" % (v(s2), v(s1), v(s1), v(s2)))
        A("  v_max_f32 %s, 0, %s" % (v(s2), v(s2)))
        A("  v_cvt_pk_bf16_f32 %s, %s, %s" % (v(t), v(vMean), v(s2)))
        A("  v_lshlrev_b32 %s, 16, %s" % (v(vMean), v(t)))
        A("  v_and_b32 %s, 0xffff0000, %s" % (v(s2), v(t)))
        A("  v_add_f32 %s, %s, %s" % (v(s2), EPS, v(s2)))
        round_bf16(s2, s2)
        A("  v_sqrt_f32 %s, %s" % (v(s2), v(s2)))
        round_bf16(vSd, s2)
        A("  v_rcp_f32 %s, %s" % (v(vR), v(vSd)))
    def ln_apply(dst, flo, fhi, vMean, vSd, vR, t, newton):
        A("  v_sub_f32 %s, %s, %s" % (v(flo), v(flo), v(vMean)))
        A("  v_sub_f32 %s, %s, %s" % (v(fhi), v(fhi), v(vMean)))
        A("  v_cvt_pk_bf16_f32 %s, %s, %s" % (v(dst), v(flo), v(fhi)))
        unpack(flo, fhi, dst)
        if newton:
            A("  v_mul_f32 %s, %s, %s" % (v(t[0]), v(flo), v(vR)))
            A("  v_mul_f32 %s, %s, %s" % (v(t[1]), v(fhi), v(vR)))
            A("  v_fma_f32 %s, -%s, %s, %s" % (v(flo), v(t[0]), v(vSd), v(flo)))
            A("  v_fma_f32 %s, -%s, %s, %s" % (v(fhi), v(t[1]), v(vSd), v(fhi)))
            A("  v_fma_f32 %s, %s, %s, %s" % (v(flo), v(flo), v(vR), v(t[0])))
            A("  v_fma_f32 %s, %s, %s, %s" % (v(fhi), v(fhi), v(vR), v(t[1])))
        else:
            A("  v_mul_f32 %s, %s, %s" % (v(flo), v(flo), v(vR)))
            A("  v_mul_f32 %s, %s, %s" % (v(fhi), v(fhi), v(vR)))
        A("  v_cvt_pk_bf16_f32 %s, %s, %s" % (v(dst), v(flo), v(fhi)))
    def next_slot(r):
        A("  s_add_u32 %s, %s, 4096\n  s_and_b32 %s, %s, 0x3fff\n  s_or_b32 %s, %s, %s" % (s(r), s(r), s(r), s(r), s(r), s(r), s(sWB)))
    def off_of(sid, O=None):
        O = O or A
        O("  s_cmp_lt_u32 %s, %d\n  s_cselect_b32 s35, %s, 0\n  s_add_u32 s36, s35, %s" % (sid, P["P0"], s(sThr), s(sC0)))
        O("  s_sub_u32 s35, %s, %d\n  s_cmp_lt_u32 s35, %s" % (sid, P["P0"], s(sThr)))
        O("  s_cselect_b32 s35, %s, %s\n  s_cselect_b32 s36, %s, s36" % (s(sOffX), s(sOff0), s(sCX)))
        O("  s_add_u32 s34, %s, s36\n  s_and_b32 s34, s34, 127\n  s_lshl_b32 s34, s34, 12\n  s_add_u32 s34, s34, s35" % sid)
    def issueK():
        off_of(s(sOff))
        A("  s_mov_b32 m0, %s" % s(sSlotI))
        for g in range(4):
            A("  buffer_load_dwordx4 %s, s[4:7], s34 offen offset:%d %s lds" % (v(vKd[g]), g * 1024, P["kvflag"]))
        A("  s_add_u32 %s, %s, 8" % (s(sOff), s(sOff)))
        next_slot(sSlotI)
    def issueV():
        A("  s_mov_b32 m0, %s" % s(sSlotI))
        for g in range(4):
            A("  buffer_load_dwordx4 %s, s[8:11], %s offen offset:%d %s lds" % (v(vVd), s(sOff), g * 1024, P["kvflag"]))
        A("  s_add_u32 %s, %s, 32768" % (s(sOff), s(sOff)))
        next_slot(sSlotI)
    RT = 112
    NR = P["NR"]
    def issueR(r):
        for g in range(4):
            A("  buffer_load_dwordx4 %s, %s, s[4:7], %s offen offset:%d %s" % (v(RT + 16 * r + 4 * g, 4), v(vKd[g]), s(sOff), g * 1024, P["kvflag"]))
        A("  s_add_u32 %s, %s, 32768" % (s(sOff), s(sOff)))
    nslow = [0]
    def hstore(text):
        k = nslow[0]; nslow[0] += 1
        A("  s_cmp_eq_u32 %s, 1" % s(sFast))
        A("  s_cbranch_scc0 L_slow%d" % k)
        A("  " + text)
        A("L_slowret%d:" % k)
        late.append("L_slow%d:\n  %s sc1\n  s_branch L_slowret%d" % (k, text, k))
    def poll_end(label):
        A("  s_cbranch_scc1 %s_ok" % label)
        if P["psleep"]: A("  s_sleep %d" % P["psleep"])
        A("  s_sub_u32 %s, %s, 1" % (s(sSpin), s(sSpin)))
        A("  s_cmp_lg_u32 %s, 0" % s(sSpin))
        A("  s_cbranch_scc1 %s" % label)
        A("  s_mov_b32 %s, 1" % s(sSpin))
        A("%s_ok:" % label)
    def chk_tag(regs, t, stag, mask=None):
        A("  v_xor_b32 %s, %s, %s" % (v(t), s(stag), v(regs[0])))
        for r in regs[1:]: A("  v_bitop3_b32 %s, %s, %s, %s bitop3:0xf6" % (v(t), v(t), v(r), s(stag)))
        if mask: A("  v_and_b32 %s, %s, %s" % (v(t), mask, v(t)))
        A("  v_cmp_eq_u32 vcc, 0, %s" % v(t))
        A("  s_cmp_eq_u64 vcc, -1")
    def chk_clean(regs, t, stag, mask):
        for r in regs: A("  v_xor_b32 %s, %s, %s" % (v(r), s(stag), v(r)))
        if len(regs) == 8:
            A("  v_or3_b32 %s, %s, %s, %s" % (v(t), v(regs[0]), v(regs[1]), v(regs[2])))
            A("  v_or3_b32 %s, %s, %s, %s" % (v(t + 1), v(regs[3]), v(regs[4]), v(regs[5])))
            A("  v_or3_b32 %s, %s, %s, %s" % (v(t), v(t), v(regs[6]), v(regs[7])))
            A("  v_bitop3_b32 %s, %s, %s, %s bitop3:0xa8" % (v(t), v(t), v(t + 1), mask))
        else:
            A("  v_or3_b32 %s, %s, %s, %s" % (v(t), v(regs[0]), v(regs[1]), v(regs[2])))
            A("  v_bitop3_b32 %s, %s, %s, %s bitop3:0xa8" % (v(t), v(t), v(regs[3]), mask))
        A("  v_cmp_eq_u32 vcc, 0, %s" % v(t))
        A("  s_cmp_eq_u64 vcc, -1")
    def chk_clean2(dst, src, t, stag, mask):
        for d_, r in zip(dst, src): A("  v_xor_b32 %s, %s, %s" % (v(d_), s(stag), v(r)))
        A("  v_or3_b32 %s, %s, %s, %s" % (v(t), v(dst[0]), v(dst[1]), v(dst[2])))
        A("  v_or3_b32 %s, %s, %s, %s" % (v(t + 1), v(dst[3]), v(dst[4]), v(dst[5])))
        A("  v_or3_b32 %s, %s, %s, %s" % (v(t), v(t), v(dst[6]), v(dst[7])))
        A("  v_bitop3_b32 %s, %s, %s, %s bitop3:0xa8" % (v(t), v(t), v(t + 1), mask))
        A("  v_cmp_eq_u32 vcc, 0, %s" % v(t))
        A("  s_cmp_eq_u64 vcc, -1")
    def poll_pipe(label, nsets, nld, load, check, preissued=0, sleep=0):
        for k in range(preissued, nsets): load(k)
        A("%s:" % label)
        for k in range(nsets):
            A("  s_waitcnt vmcnt(%d)" % (nld * (nsets - 1)))
            check(k)
            A("  s_cbranch_scc1 %s_ok" % label)
            if sleep: A("  s_sleep %d" % sleep)
            load(k)
        A("  s_sub_u32 %s, %s, 1" % (s(sSpin), s(sSpin)))
        A("  s_cmp_lg_u32 %s, 0" % s(sSpin))
        A("  s_cbranch_scc1 %s" % label)
        A("  s_mov_b32 %s, 1" % s(sSpin))
        A("%s_ok:" % label)
    def wperm(dst, tb, n=2):
        for h in range(n):
            for c in range(4):
                A("  v_perm_b32 %s, %s, %s, %s" % (v(dst + 8 * h + 2 * c), v(tb + 8 * h + 4 + c), v(tb + 8 * h + c), s(sSelLo)))
                A("  v_perm_b32 %s, %s, %s, %s" % (v(dst + 8 * h + 2 * c + 1), v(tb + 8 * h + 4 + c), v(tb + 8 * h + c), s(sSelHi)))

    hdr = open("cdna_kernels/%s.s.ref" % NAME.replace("_kernel", "")).read().split("\n")
    for h in hdr:
        if h.startswith(";") and "@launch" not in h and "Override" not in h and "grid=ceil" not in h: A(h)
    for ln in DOC.strip("\n").split("\n"): A("; " + ln)
    A("; @launch grid=(256,1,1) block=(512,1,1) lds=%d" % LDS_TOTAL)
    A('.amdgcn_target "amdgcn-amd-amdhsa--gfx950"')
    A(".text\n.globl %s\n.p2align 8\n.type %s,@function\n%s:" % (NAME, NAME, NAME))
    HEAD = L; L = []; A = L.append
    stamp(0)
    A("  s_cmp_ge_u32 s2, 256\n  s_cbranch_scc1 L_done")
    A("  s_load_dwordx8 s[44:51], s[0:1], 0")
    A("  s_load_dwordx2 s[12:13], s[0:1], 88")
    A("  s_load_dwordx2 s[52:53], s[0:1], 32")
    A("  s_load_dwordx8 s[56:63], s[0:1], 48")
    if P["codepf"]:
        A("  s_getpc_b64 s[16:17]")
        A("L_pc:")
        A("  s_sub_u32 s16, s16, L_pc-%s\n  s_subb_u32 s17, s17, 0" % NAME)
        A("  v_lshlrev_b32 %s, 4, v0" % v(T[9]))
        A("  global_load_dwordx4 %s, %s, s[16:17]" % (v(U[8], 4), v(T[9])))
        A("  v_add_u32 %s, 0x2000, %s" % (v(T[9]), v(T[9])))
        A("  v_min_u32 %s, L_codeend-%s-16, %s" % (v(T[9]), NAME, v(T[9])))
        A("  global_load_dwordx4 %s, %s, s[16:17]" % (v(U[12], 4), v(T[9])))
    A("  v_and_b32 %s, 63, v0" % v(vLane))
    A("  v_lshrrev_b32 %s, 6, v0" % v(T[0]))
    A("  v_readfirstlane_b32 %s, %s" % (s(sWave), v(T[0])))
    A("  v_lshlrev_b32 %s, 4, %s" % (v(vL16), v(vLane)))
    A("  s_lshr_b32 %s, s2, 5\n  s_and_b32 %s, s2, 31\n  s_lshr_b32 %s, s2, 3" % (s(sG), s(sI), s(sJ)))
    A("  s_and_b32 s32, s2, 7\n  s_cmp_eq_u32 s32, 0\n  s_cselect_b32 %s, 1, 0" % s(sTail))
    A("  s_movk_i32 s33, %d\n  s_cselect_b32 s33, %d, s33" % (X, Y))
    A("  v_lshrrev_b32 %s, 3, %s" % (v(T[3]), v(vLane)))
    A("  v_and_b32 %s, 7, %s" % (v(T[4]), v(vLane)))
    if P["qmap"]:
        A("  s_lshr_b32 s35, s32, 1\n  s_and_b32 s55, s32, 1\n  s_lshl_b32 s55, s55, 2\n  s_lshr_b32 s36, %s, 3\n  s_or_b32 s55, s55, s36" % s(sI))
    else:
        A("  s_lshr_b32 s35, %s, 3\n  s_mov_b32 s55, s32" % s(sI))
    A("  s_lshl_b32 s34, s35, 6\n  s_lshl_b32 s36, %s, 3\n  s_add_u32 s34, s34, s36" % s(sWave))
    A("  v_add_u32 %s, s34, %s" % (v(T[2]), v(T[3])))
    A("  v_lshlrev_b32 %s, 14, %s" % (v(T[1]), v(T[2])))
    A("  v_lshl_add_u32 %s, %s, 4, %s" % (v(T[1]), v(T[4]), v(T[1])))
    A("  v_lshlrev_b32 %s, 2, %s" % (v(T[2]), v(T[2])))
    A("  s_lshl_b32 s34, %s, 10\n  s_lshl_b32 s36, s55, 7\n  s_add_u32 s34, s34, s36" % s(sG))
    A("  v_add_u32 %s, s34, %s" % (v(T[1]), v(T[1])))
    A("  v_add_u32 %s, 0x2000, %s" % (v(T[5]), v(T[1])))
    A("  s_lshl_b32 s54, %s, 14\n  s_lshl_b32 s35, s35, 12\n  s_add_u32 s54, s54, s35\n  s_lshl_b32 s35, s55, 9\n  s_add_u32 s54, s54, s35\n  s_add_u32 s54, s54, %d" % (s(sG), QG))
    A("  v_lshrrev_b32 %s, 4, %s" % (v(T[6]), v(vLane)))
    A("  v_and_b32 %s, 15, %s" % (v(T[7]), v(vLane)))
    A("  v_xor_b32 %s, %s, %s" % (v(T[8]), v(T[6]), v(T[7])))
    A("  v_lshlrev_b32 %s, 4, %s" % (v(T[8]), v(T[8])))
    A("  v_lshl_add_u32 %s, %s, 8, %s" % (v(vKd[0]), v(T[6]), v(T[8])))
    for g in range(1, 4): A("  v_xor_b32 %s, %d, %s" % (v(vKd[g]), 64 * g, v(vKd[0])))
    E = X - 128
    assert Y == 128 - 7 * E
    if P["bmap"]:
        A("  s_lshr_b32 s34, s2, 3\n  s_and_b32 s34, s34, 3\n  s_andn2_b32 s35, s2, 31\n  s_or_b32 s34, s34, s35")
        A("  s_lshl_b32 %s, s34, 19\n  s_lshl_b32 s35, s32, 2\n  s_or_b32 s34, s34, s35\n  s_lshl_b32 %s, s34, 19" % (s(sOffX), s(sOff0)))
    else:
        A("  s_lshl_b32 %s, s2, 19\n  s_andn2_b32 s34, s2, 7\n  s_lshl_b32 %s, s34, 19" % (s(sOff0), s(sOffX)))
    A("  s_cmp_eq_u32 %s, 1\n  s_cselect_b32 %s, 0, %d\n  s_cselect_b32 s34, %d, %d" % (s(sTail), s(sThr), E, 128 - Y, -E))
    A("  s_mul_i32 s35, s2, %d\n  s_add_u32 %s, s34, s35" % (P["rot"], s(sC0)))
    A("  s_andn2_b32 s34, s2, 7\n  s_mul_i32 s34, s34, %d\n  s_mul_i32 s35, s32, %d\n  s_add_u32 s34, s34, s35\n  s_sub_u32 %s, s34, %d" % (P["rot"], E, s(sCX), E + P["P0"]))
    A("  s_mov_b32 %s, s33\n  s_lshl_b32 %s, s33, 1" % (s(sCnt1), s(sCnt2)))
    A("  s_lshl_b32 %s, %s, 14" % (s(sWB), s(sWave)))
    A("  s_mov_b32 %s, %s\n  s_mov_b32 %s, %s\n  s_mov_b32 %s, %s" % (s(sSlotC), s(sWB), s(sSlotI), s(sWB), s(sOff), s(sWave)))
    A("  s_mov_b32 s6, 0x8000000\n  s_mov_b32 s7, 0x20000\n  s_mov_b32 s10, 0x8000000\n  s_mov_b32 s11, 0x20000")
    A("  s_waitcnt lgkmcnt(0)")
    stamp("a")
    XD = U[0]; XP = U[4]; WA = F; WB_ = F + 4
    A("  global_load_dwordx4 %s, %s, s[44:45]" % (v(XD, 4), v(vL16)))
    A("  global_load_dword %s, %s, s[44:45]" % (v(XP), v(T[2])))
    A("  global_load_dwordx4 %s, %s, s[50:51] %s" % (v(WA, 4), v(T[1]), P["wqflag"]))
    A("  global_load_dwordx4 %s, %s, s[50:51] %s" % (v(WB_, 4), v(T[5]), P["wqflag"]))
    A("  s_load_dword %s, s[12:13], %d" % (s(sTag), EPOCH))
    A("  s_mov_b32 s4, s46\n  s_and_b32 s5, s47, 0xffff\n  s_mov_b32 s8, s48\n  s_and_b32 s9, s49, 0xffff")
    A("  s_mov_b64 s[50:51], s[44:45]")
    def s3prep():
        A("  s_movk_i32 s34, 3584\n  v_mul_lo_u32 %s, %s, s34" % (v(U[5]), v(T[3])))
        A("  v_lshlrev_b32 %s, 4, %s" % (v(U[6]), v(T[4])))
        A("  s_cmp_lt_u32 %s, 28\n  s_cselect_b32 s66, 1835008, 0\n  s_mov_b32 s67, 0x20000" % s(sJ))
    def s3dma(mat, k0, k1):
        A("  s_mov_b32 s64, s%d\n  s_and_b32 s65, s%d, 0xffff" % (56 + 2 * mat, 57 + 2 * mat))
        A("  s_mul_i32 s34, %s, %d\n  s_lshl_b32 s35, %s, 7\n  s_add_u32 s34, s34, s35\n  s_add_u32 s34, s34, %d" % (s(sWave), 64 * 3584, s(sJ), k0 * 8 * 3584))
        A("  s_lshl_b32 s35, %s, 13\n  s_add_u32 s35, s35, %d" % (s(sWave), mat * 65536 + k0 * 1024))
        for k in range(k0, k1):
            A("  v_xor_b32 %s, %d, %s\n  v_add_u32 %s, %s, %s" % (v(U[7]), 16 * k, v(U[6]), v(U[7]), v(U[5]), v(U[7])))
            A("  s_mov_b32 m0, s35")
            A("  buffer_load_dwordx4 %s, s[64:67], s34 offen %s lds" % (v(U[7]), P["wflag"]))
            A("  s_add_u32 s34, s34, %d\n  s_add_u32 s35, s35, 1024" % (8 * 3584))
    if P["ordbar"]: A("  s_barrier")
    A("  s_cmp_eq_u32 %s, 1\n  s_cbranch_scc1 L_tburst" % s(sTail))
    issueK()
    A("L_tburstret:")
    Lsave = L; L = []; A = L.append
    A("L_tburst:")
    s3prep(); s3dma(0, 0, 4)
    A("  s_branch L_tburstret")
    late.append("\n".join(L)); L = Lsave; A = L.append
    A("  v_lshlrev_b32 %s, 8, %s" % (v(vKrd), v(T[7])))
    A("  v_add_u32 %s, %s, %s" % (v(vKrd), v(vKrd), v(T[8])))
    A("  v_lshlrev_b32 %s, 10, %s" % (v(vVrd), v(T[6])))
    A("  v_lshl_add_u32 %s, %s, 3, %s" % (v(vVrd), v(T[7]), v(vVrd)))
    A("  v_bfe_u32 %s, %s, 1, 2" % (v(T[9]), v(vLane)))
    A("  v_lshlrev_b32 %s, 8, %s" % (v(vVd), v(T[9])))
    A("  v_lshl_add_u32 %s, %s, 5, %s" % (v(vVd), v(T[3]), v(vVd)))
    A("  v_and_b32 %s, 1, %s" % (v(T[9]), v(vLane)))
    A("  v_lshl_add_u32 %s, %s, 4, %s" % (v(vVd), v(T[9]), v(vVd)))
    A("  s_mul_i32 s34, %s, 2560\n  s_add_u32 s34, s34, %d" % (s(sWave), SC))
    A("  v_and_b32 %s, 3, %s" % (v(T[9]), v(vLane)))
    A("  v_lshl_add_u32 %s, %s, 2, %s" % (v(T[10]), v(T[6]), v(T[9])))
    A("  v_lshlrev_b32 %s, 3, %s" % (v(T[10]), v(T[10])))
    A("  v_add_u32 %s, %d, %s" % (v(vSb), SC, v(T[10])))
    A("  v_add_u32 %s, s34, %s" % (v(vSr), v(T[10])))
    A("  v_bfe_u32 %s, %s, 2, 2" % (v(T[10]), v(vLane)))
    A("  v_lshl_add_u32 %s, %s, 7, %s" % (v(vSr), v(T[10]), v(vSr)))
    A("  v_mov_b32 %s, %d\n  v_mov_b32 %s, %d" % (v(vTkA), TK, v(vTk), 32 + 8 * NR if P["noq"] < 2 else 8))
    A("  ds_write_b32 %s, %s" % (v(vTkA), v(vTk)))
    A("  v_mov_b32 %s, 0xff80ff80\n  v_mov_b32 %s, 0xff80ff80" % (v(T[10]), v(T[11])))
    for k in range(5): A("  ds_write_b64 %s, %s offset:%d" % (v(vSr), v(T[10], 2), k * 512))
    A("  v_lshrrev_b32 %s, 5, %s" % (v(T[12]), v(vLane)))
    A("  v_lshlrev_b32 %s, 3, %s" % (v(T[15]), v(T[4])))
    A("  v_lshl_add_u32 %s, %s, 2, %s" % (v(T[15]), v(T[12]), v(T[15])))
    A("  v_bfe_u32 %s, %s, 4, 1" % (v(T[12]), v(vLane)))
    A("  v_lshl_add_u32 %s, %s, 1, %s" % (v(T[15]), v(T[12]), v(T[15])))
    A("  v_bfe_u32 %s, %s, 3, 1" % (v(T[12]), v(vLane)))
    A("  v_add_u32 %s, %s, %s" % (v(T[15]), v(T[12]), v(T[15])))
    A("  s_lshl_b32 s34, %s, 2\n  s_add_u32 s34, s34, %d" % (s(sWave), RED0))
    A("  v_lshl_add_u32 %s, %s, 5, s34" % (v(T[15]), v(T[15])))
    A("  s_mov_b32 %s, 0x05040100\n  s_mov_b32 %s, 0x07060302\n  s_movk_i32 %s, 0xff" % (s(sSelLo), s(sSelHi), s(sFF)))
    A("  s_mov_b32 %s, %d\n  s_mov_b32 %s, 0" % (s(sSpin), P["spin"], s(sFast)))
    A("  s_sub_u32 s34, %s, %d\n  s_cmp_eq_u32 %s, 0\n  s_cselect_b32 %s, s34, -1" % (s(sCnt2), max(P["gthr"], P["deepV"]), s(sWave), s(sTrig)))
    A("  s_getreg_b32 %s, hwreg(HW_REG_XCC_ID, 0, 4)" % s(sXcc))
    stamp("b")
    A("  s_waitcnt vmcnt(7)")
    f = T[0:8]; d = T[8:12]; vMean = T[12]; vSd = T[13]; vR = T[14]
    for k in range(4): unpack(f[2 * k], f[2 * k + 1], XD + k)
    ln_stats(f, d, vMean, vSd, vR)
    A("  s_waitcnt vmcnt(6)")
    unpack(f[0], f[1], XP)
    ln_apply(XP, f[0], f[1], vMean, vSd, vR, [f[2], f[3]], True)
    A("  s_waitcnt vmcnt(4) lgkmcnt(0)")
    stamp("e")
    A("  s_add_u32 %s, %s, 1\n  s_and_b32 %s, %s, 0xff" % (s(sTag), s(sTag), s(sT8), s(sTag)))
    A("  v_mov_b32 %s, %s" % (v(vT8), s(sT8)))
    a = T[0:8]
    wperm(F + 8, F, 1)
    for e in range(8):
        A("  v_dot2_f32_bf16 %s, %s, %s, 0" % (v(a[e]), v(F + 8 + e), v(XP)))
    red345(a)
    A("  ds_write_b32 %s, %s" % (v(T[15]), v(a[2])))
    stamp("f")
    A("  s_waitcnt lgkmcnt(0)\n  s_barrier")
    stamp("g")
    A("  s_cmp_lg_u32 %s, 0\n  s_cbranch_scc1 L_noq" % s(sWave))
    A("  v_lshlrev_b32 %s, 5, %s\n  v_add_u32 %s, %d, %s" % (v(T[0]), v(vLane), v(T[0]), RED0, v(T[0])))
    A("  ds_read_b128 %s, %s" % (v(F, 4), v(T[0])))
    A("  ds_read_b128 %s, %s offset:16" % (v(F + 4, 4), v(T[0])))
    A("  v_lshl_add_u32 %s, %s, 3, s54" % (v(T[1]), v(vLane)))
    A("  s_waitcnt lgkmcnt(0)")
    sum8(F)
    A("  v_mov_b32 %s, %s" % (v(F + 1), s(sTag)))
    A("  global_store_dwordx2 %s, %s, s[12:13] sc1" % (v(T[1]), v(F, 2)))
    if P["p1bf"]:
        A("  v_lshrrev_b32 %s, 4, %s\n  v_and_b32 %s, 15, %s" % (v(T[2]), v(vLane), v(T[3]), v(vLane)))
        A("  s_lshl_b32 s34, %s, 15\n  s_lshl_b32 s35, %s, 8\n  s_add_u32 s34, s34, s35\n  s_add_u32 s34, s34, %d" % (s(sG), s(sI), P1))
        A("  v_lshl_add_u32 %s, %s, 13, s34\n  v_lshl_add_u32 %s, %s, 4, %s" % (v(T[2]), v(T[2]), v(T[2]), v(T[3]), v(T[2])))
        for k in range(4): A("  v_mov_b32 %s, -1" % v(F + 4 + k))
        A("  global_store_dwordx4 %s, %s, s[12:13] sc1" % (v(T[2]), v(F + 4, 4)))
    A("L_noq:")
    if P["vtouch"]:
        A("  s_cmp_lg_u32 %s, 2\n  s_cbranch_scc1 L_novt" % s(sWave))
        A("  s_mov_b64 exec, 1")
        A("  buffer_load_dword %s, %s, s[8:11], %s offen nt" % (v(U[12]), v(vL16), s(sOff0)))
        A("  buffer_load_dword %s, %s, s[8:11], %s offen nt" % (v(U[12]), v(vL16), s(sOffX)))
        A("  s_mov_b64 exec, -1")
        A("L_novt:")
    A("  s_barrier")
    stamp(1)
    A("  s_lshl_b32 s34, %s, 14\n  s_lshl_b32 s35, %s, 9\n  s_add_u32 s34, s34, s35\n  s_add_u32 s34, s34, %d" % (s(sG), s(sWave), QG))
    A("  v_lshrrev_b32 %s, 4, %s\n  v_and_b32 %s, 15, %s" % (v(T[2]), v(vLane), v(T[3]), v(vLane)))
    A("  v_lshl_add_u32 %s, %s, 12, s34\n  v_lshl_add_u32 %s, %s, 5, %s" % (v(T[0]), v(T[2]), v(T[0]), v(T[3]), v(T[0])))
    A("  s_lshl_b32 s34, %s, 7\n  s_add_u32 s34, s34, %d" % (s(sWave), QL))
    A("  v_lshl_add_u32 %s, %s, 3, s34" % (v(T[1]), v(T[3])))
    A("  v_lshrrev_b32 %s, 1, %s\n  v_and_b32 %s, 1, %s" % (v(T[3]), v(T[2]), v(T[2]), v(T[2])))
    A("  v_lshl_add_u32 %s, %s, 2, %s\n  v_lshl_add_u32 %s, %s, 1, %s" % (v(T[1]), v(T[3]), v(T[1]), v(T[1]), v(T[2]), v(T[1])))
    G0 = U[0]; G1 = U[4]
    GQ = F + 8
    def qpoll_issue():
        A("  global_load_dwordx4 %s, %s, s[12:13] sc1" % (v(GQ, 4), v(T[0])))
        A("  global_load_dwordx4 %s, %s, s[12:13] offset:16 sc1" % (v(GQ + 4, 4), v(T[0])))
    def qpoll_check():
        chk_tag([GQ + 1, GQ + 3, GQ + 5, GQ + 7], T[2], sTag)
    def qwrite():
        G0 = GQ
        for e in range(2): A("  v_permlane32_swap_b32 %s, %s" % (v(G0 + 2 * e), v(G0 + 2 * e + 4)))
        for e in range(2): A("  v_add_f32 %s, %s, %s" % (v(G0 + 2 * e), v(G0 + 2 * e), v(G0 + 2 * e + 4)))
        A("  v_permlane16_swap_b32 %s, %s" % (v(G0), v(G0 + 2)))
        A("  v_add_f32 %s, %s, %s" % (v(G0), v(G0), v(G0 + 2)))
        A("  v_cvt_pk_bf16_f32 %s, %s, %s" % (v(G0), v(G0), v(G0)))
        A("  ds_write_b16 %s, %s" % (v(T[1]), v(G0)))
    Lsave = L; L = []; A = L.append
    A("L_tailpro:")
    A("  s_cmp_lg_u32 %s, 7\n  s_cbranch_scc1 L_noreg" % s(sWave))
    A("  s_lshl_b32 s34, %s, 3\n  s_add_u32 s34, s34, %d" % (s(sJ), REG))
    A("  v_mov_b32 %s, s34\n  v_mov_b32 %s, %s\n  v_mov_b32 %s, %s" % (v(T[9]), v(T[10]), s(sXcc), v(T[11]), s(sTag)))
    A("  s_mov_b64 exec, 1")
    A("  global_store_dwordx2 %s, %s, s[12:13] sc1" % (v(T[9]), v(T[10], 2)))
    A("  s_mov_b64 exec, -1")
    A("L_noreg:")
    s3dma(0, 4, 8)
    A("  s_waitcnt vmcnt(4)")
    s3dma(1, 0, 8)
    A("  s_lshl_b32 s34, %s, 5" % s(sJ))
    A("  v_and_b32 %s, 1, %s\n  v_lshrrev_b32 %s, 5, %s\n  v_lshlrev_b32 %s, 3, %s" % (v(T[5]), v(vLane), v(T[6]), v(vLane), v(T[5]), v(T[5])))
    A("  v_lshl_add_u32 %s, %s, 2, %s\n  v_bfe_u32 %s, %s, 4, 1" % (v(T[5]), v(T[6]), v(T[5]), v(T[6]), v(vLane)))
    A("  v_lshl_add_u32 %s, %s, 1, %s\n  v_bfe_u32 %s, %s, 3, 1" % (v(T[5]), v(T[6]), v(T[5]), v(T[6]), v(vLane)))
    A("  v_add_u32 %s, %s, %s\n  v_lshl_add_u32 %s, %s, 1, s34" % (v(T[5]), v(T[6]), v(T[5]), v(T[5]), v(T[5])))
    A("  global_load_ushort %s, %s, s[50:51]" % (v(vXres), v(T[5])))
    nA = P["nA"]
    vWd = U[13]; vWr = U[14]
    def wprep():
        A("  v_lshrrev_b32 %s, 3, %s\n  v_and_b32 %s, 7, %s" % (v(vWd), v(vLane), v(T[5]), v(vLane)))
        A("  v_lshlrev_b32 %s, 10, %s\n  v_lshl_add_u32 %s, %s, 4, %s" % (v(vWd), v(vWd), v(vWd), v(T[5]), v(vWd)))
        A("  v_bfe_u32 %s, %s, 5, 1\n  v_lshlrev_b32 %s, 4, %s" % (v(T[5]), v(vLane), v(vWr), v(T[5])))
        A("  v_bfe_u32 %s, %s, 4, 1\n  v_lshl_add_u32 %s, %s, 2, %s" % (v(T[5]), v(vLane), v(vWr), v(T[5]), v(vWr)))
        A("  v_bfe_u32 %s, %s, 2, 1\n  v_add_u32 %s, %s, %s" % (v(T[5]), v(vLane), v(vWr), v(T[5]), v(vWr)))
        A("  v_bfe_u32 %s, %s, 3, 1\n  v_lshl_add_u32 %s, %s, 3, %s" % (v(T[5]), v(vLane), v(vWr), v(T[5]), v(vWr)))
        A("  v_lshlrev_b32 %s, 7, %s" % (v(vWr), v(vWr)))
    def wround_issue(k, sslot):
        if k in (0, 4) or k == nA:
            if k < 4:
                A("  s_mov_b32 s64, s52\n  s_and_b32 s65, s53, 0xffff\n  s_mov_b32 s66, 0x400000\n  s_mov_b32 s67, 0x20000")
                A("  s_lshl_b32 s46, %s, 17\n  s_lshl_b32 s35, %s, 7\n  s_add_u32 s46, s46, s35\n  s_add_u32 s46, s46, %d" % (s(sJ), s(sWave), k * 32768))
            else:
                A("  s_mov_b32 s64, s60\n  s_and_b32 s65, s61, 0xffff\n  s_mov_b32 s66, 1835008\n  s_mov_b32 s67, 0x20000")
                A("  s_lshl_b32 s46, %s, 16\n  s_lshl_b32 s35, %s, 7\n  s_add_u32 s46, s46, s35\n  s_add_u32 s46, s46, %d" % (s(sJ), s(sWave), (k - 4) * 32768))
        for q_ in range(4):
            A("  s_add_u32 m0, %s, %d" % (s(sslot), 1024 * q_))
            A("  buffer_load_dwordx4 %s, s[64:67], s46 offen %s lds" % (v(vWd), P["wflag"]))
            A("  s_add_u32 s46, s46, 8192")
    def wround_read(k, sslot):
        A("  v_and_b32 %s, 3, %s\n  v_lshl_add_u32 %s, %s, 3, %s\n  v_add_u32 %s, %s, %s" % (v(T[5]), v(vLane), v(T[5]), v(T[5]), v(vWr), v(T[5]), s(sslot), v(T[5])))
        for t in range(4):
            dst = (W2 + 8 * (2 * t + (k >> 1)) + 4 * (k & 1)) if k < 4 else (W4 + 8 * t + 4 * (k & 1))
            for hh in range(2):
                A("  ds_read_b64_tr_b16 %s, %s offset:%d" % (v(dst + 2 * hh, 2), v(T[5]), 256 * hh + 32 * t))
        A("  s_waitcnt lgkmcnt(0)")
    def wrun(k0, k1):
        A("  s_mov_b32 s48, %s\n  s_add_u32 s49, s48, 4096\n  s_and_b32 s49, s49, 0x3fff\n  s_or_b32 s49, s49, %s" % (s(sSlotI), s(sWB)))
        ks = list(range(k0, k1))
        for n, k in enumerate(ks):
            wround_issue(k, 48 + n % 2)
            if n > 0:
                A("  s_waitcnt vmcnt(4)"); wround_read(ks[n - 1], 48 + (n - 1) % 2)
        A("  s_waitcnt vmcnt(0)"); wround_read(ks[-1], 48 + (len(ks) - 1) % 2)
    wprep()
    A("  s_waitcnt vmcnt(0)")
    A("  v_lshlrev_b32 %s, 16, %s" % (v(vXres), v(vXres)))
    A("L_tqpoll:")
    qpoll_issue()
    A("  s_waitcnt vmcnt(0)")
    qpoll_check()
    poll_end("L_tqpoll")
    qwrite()
    A("  s_waitcnt lgkmcnt(0)\n  s_barrier")
    A("  v_bfe_u32 %s, %s, 5, 1\n  v_bfe_u32 %s, %s, 3, 1\n  v_lshl_add_u32 %s, %s, 1, %s" % (v(T[3]), v(vLane), v(T[4]), v(vLane), v(T[3]), v(T[3]), v(T[4])))
    A("  v_xor_b32 %s, %s, %s\n  v_lshl_add_u32 %s, %s, 4, %s" % (v(T[3]), s(sWave), v(T[3]), v(T[3]), v(T[3]), v(vWr)))
    A("  v_and_b32 %s, 1, %s\n  v_lshl_add_u32 %s, %s, 3, %s" % (v(T[4]), v(vLane), v(T[3]), v(T[4]), v(T[3])))
    A("  v_bfe_u32 %s, %s, 1, 1\n  v_lshl_add_u32 %s, %s, 16, %s" % (v(T[4]), v(vLane), v(T[3]), v(T[4]), v(T[3])))
    A("  v_xor_b32 %s, 64, %s" % (v(T[4]), v(T[3])))
    for R in range(16):
        for hh in range(2):
            A("  ds_read_b64_tr_b16 %s, %s offset:%d" % (v(W3A + 4 * R + 2 * hh, 2), v(T[3 + (R & 1)]), 4096 * R + 256 * hh))
        if R % 4 == 3: A("  s_waitcnt lgkmcnt(0)")
    A("  s_barrier")
    if nA: wrun(0, nA)
    for k in range(4 if P["noq"] < 2 else 1): issueK()
    for r in range(NR):
        A("  s_waitcnt vmcnt(8)")
        issueR(r)
    A("  s_branch L_qops")
    late.append("\n".join(L)); L = Lsave; A = L.append

    A("  s_cmp_eq_u32 %s, 1\n  s_cbranch_scc1 L_tailpro" % s(sTail))
    if P["paced"]:
        sQ = 55
        A("  s_lshl_b32 s34, %s, 14\n  s_lshl_b32 s35, %s, 9\n  s_add_u32 s34, s34, s35\n  s_add_u32 s34, s34, %d" % (s(sG), s(sWave), QG))
        A("  s_add_u32 s44, s12, s34\n  s_addc_u32 s45, s13, 0\n  s_mov_b32 %s, %d" % (s(sQ), 2 if P["noq"] else 0))
        nst = 3 + NR if P["noq"] < 2 else 0
        if P["noq"] == 2:
            A("  s_add_u32 %s, %s, 24" % (s(sOff), s(sOff)))
        for k in range(1, nst + 1):
            A("  s_cmp_eq_u32 %s, 1\n  s_cbranch_scc1 L_ps%dq" % (s(sQ), k))
            A("  s_waitcnt vmcnt(%d)" % P["pw"])
            if k <= 3: issueK()
            else: issueR(k - 4)
            A("L_ps%dr:" % k)
            blk = []
            Lsave = L; L = blk; A = L.append
            A("L_ps%dq:" % k)
            A("  s_waitcnt vmcnt(%d)" % (2 + P["pw"]))
            if k <= 3: issueK()
            else: issueR(k - 4)
            A("  s_waitcnt vmcnt(4)")
            qpoll_check()
            A("  s_cselect_b32 %s, 2, 0\n  s_cbranch_scc0 L_ps%dr" % (s(sQ), k))
            qwrite()
            A("  s_branch L_ps%dr" % k)
            L = Lsave; A = L.append
            late.append("\n".join(blk))
            if k < nst:
                A("  s_cmp_lg_u32 %s, 0\n  s_cbranch_scc1 L_ps%de" % (s(sQ), k))
                for j in range(4): A("  s_load_dword s%d, s[44:45], %d glc" % (64 + j, 4096 * j + 508))
                A("  s_waitcnt lgkmcnt(0)")
                for j in range(4): A("  s_xor_b32 s%d, s%d, %s" % (64 + j, 64 + j, s(sTag)))
                A("  s_or_b32 s64, s64, s65\n  s_or_b32 s66, s66, s67\n  s_or_b32 s64, s64, s66\n  s_cmp_eq_u32 s64, 0")
                A("  s_cbranch_scc0 L_ps%de" % k)
                qpoll_issue()
                A("  s_mov_b32 %s, 1" % s(sQ))
                A("L_ps%de:" % k)
        stamp("h")
        A("  s_cmp_eq_u32 %s, 2\n  s_cbranch_scc1 L_qdone" % s(sQ))
        A("L_qpoll:")
        qpoll_issue()
        A("  s_waitcnt vmcnt(0)")
        qpoll_check()
        poll_end("L_qpoll")
        qwrite()
    A("L_qdone:")
    A("  s_waitcnt lgkmcnt(0)\n  s_barrier")
    A("L_qops:")
    stamp(2)
    A("  v_and_b32 %s, 3, %s\n  v_lshlrev_b32 %s, 8, %s" % (v(T[0]), v(vLane), v(T[0]), v(T[0])))
    A("  v_lshrrev_b32 %s, 4, %s\n  v_lshl_add_u32 %s, %s, 4, %s" % (v(T[1]), v(vLane), v(T[0]), v(T[1]), v(T[0])))
    A("  v_add_u32 %s, %d, %s" % (v(T[0]), QL, v(T[0])))
    for t in range(4): A("  ds_read_b128 %s, %s offset:%d" % (v(ACC + 4 * t, 4), v(T[0]), 64 * t))
    S = T[4:8]
    assert S[0] % 2 == 0
    nis = [0]
    def ticket_req():
        A("  s_mov_b64 exec, 1")
        A("  ds_add_rtn_u32 %s, %s, %s" % (v(vTk), v(vTkA), v(vOne)))
        A("  s_mov_b64 exec, -1")
    def issue_dyn(nyoung, kpossible, depth=None, push=False, vwait=None):
        k = nis[0]; nis[0] += 1
        A("  s_waitcnt lgkmcnt(%d)" % nyoung)
        A("  v_readfirstlane_b32 %s, %s" % (s(sTk), v(vTk)))
        ticket_req()
        if kpossible:
            A("  s_cmp_lt_u32 %s, %s\n  s_cbranch_scc0 L_isV%d" % (s(sTk), s(sCnt1), k))
            off_of(s(sTk))
            A("  s_mov_b32 m0, %s" % s(sSlotI))
            if vwait is not None: A("  s_waitcnt vmcnt(%d)" % vwait)
            for g in range(4):
                A("  buffer_load_dwordx4 %s, s[4:7], s34 offen offset:%d %s lds" % (v(vKd[g]), g * 1024, P["kvflag"]))
            A("L_isret%d:" % k)
            blk = ["L_isV%d:" % k]; B = blk.append
        else:
            B = A
        B("  s_sub_u32 s34, %s, %s" % (s(sTk), s(sCnt1)))
        off_of("s34", B)
        assert W == 1 and P["early"] == 0 and not P["deepV"]
        B("  s_mov_b32 m0, %s" % s(sSlotI))
        if not kpossible: B("  s_cmp_lt_u32 %s, %s" % (s(sTk), s(sCnt2)))
        if vwait is not None: B("  s_waitcnt vmcnt(%d)" % vwait)
        if not kpossible: B("  s_cbranch_scc0 L_isno%d" % k)
        for g in range(4):
            B("  buffer_load_dwordx4 %s, s[8:11], s34 offen offset:%d %s lds" % (v(vVd), g * 1024, P["kvflag"]))
        if not kpossible:
            B("L_isno%d:" % k)
        if kpossible:
            B("  s_branch L_isret%d" % k)
            late.append("\n".join(blk))
        next_slot(sSlotI)
        if push:
            A("  s_mov_b32 %s, %s" % (s(sF[depth]), s(sTk)))
        else:
            WW = depth or W
            for i in range(WW - 1): A("  s_mov_b32 %s, %s" % (s(sF[i]), s(sF[i + 1])))
            A("  s_mov_b32 %s, %s" % (s(sF[WW - 1]), s(sTk)))
    def kbody(wait, issue, sid):
        A("  s_lshl_b32 s34, %s, 7" % s(sid))
        A("  v_add_u32 %s, s34, %s" % (v(T[14]), v(vSb)))
        A("  v_add_u32 %s, %s, %s" % (v(T[0]), s(sSlotC), v(vKrd)))
        for t in range(1, 4): A("  v_xor_b32 %s, %d, %s" % (v(T[t]), 64 * t, v(T[0])))
        if issue:
            issue_dyn(0, True, vwait=wait)
        else:
            A("  s_waitcnt vmcnt(%d)" % wait)
        for t in range(4): A("  ds_read_b128 %s, %s" % (v(F + 4 * t, 4), v(T[t])))
        next_slot(sSlotC)
        for t in range(4):
            A("  s_waitcnt lgkmcnt(%d)" % (3 - t))
            A("  v_mfma_f32_16x16x32_bf16 %s, %s, %s, %s" % (v(S[0], 4), v(F + 4 * t, 4), v(ACC + 4 * t, 4), "0" if t == 0 else v(S[0], 4)))
        A("  v_cvt_pk_bf16_f32 %s, %s, %s" % (v(T[8]), v(S[0]), v(S[1])))
        A("  v_cvt_pk_bf16_f32 %s, %s, %s" % (v(T[9]), v(S[2]), v(S[3])))
        unpack(T[10], T[11], T[8]); unpack(T[12], T[13], T[9])
        for k in range(4): A("  v_mul_f32 %s, %s, %s" % (v(T[10 + k]), SCALE, v(T[10 + k])))
        A("  v_cvt_pk_bf16_f32 %s, %s, %s" % (v(T[8]), v(T[10]), v(T[11])))
        A("  v_cvt_pk_bf16_f32 %s, %s, %s" % (v(T[9]), v(T[12]), v(T[13])))
        setexec(0x000F000F000F000F)
        A("  ds_write_b64 %s, %s" % (v(T[14]), v(T[8], 2)))
        setexec(-1)
        A("  v_max3_f32 %s, %s, %s, %s" % (v(vMx), v(vMx), v(T[10]), v(T[11])))
        A("  v_max3_f32 %s, %s, %s, %s" % (v(vMx), v(vMx), v(T[12]), v(T[13])))
    assert T[8] % 2 == 0
    A("  v_mov_b32 %s, 0xff800000\n  v_mov_b32 %s, 1" % (v(vMx), v(vOne)))
    if P["nstream"] < 8:
        A("  s_cmp_ge_u32 %s, %d\n  s_cbranch_scc1 L_notk" % (s(sWave), P["nstream"]))
    ticket_req()
    A("L_notk:")
    A("  s_mov_b32 %s, %s" % (s(sF[0]), s(sWave)))
    A("  s_waitcnt lgkmcnt(0)")
    if NR:
        assert W == 1
        for i in range(4):
            kbody(4 * (3 - i + NR), False, sF[0])
            A("  s_add_u32 %s, %s, 8" % (s(sF[0]), s(sF[0])))
        A("  v_add_u32 %s, %s, %s" % (v(T[14]), s(sWB), v(vL16)))
        for r in range(NR):
            A("  s_waitcnt vmcnt(%d)" % (4 * (NR - 1 - r)))
            for g in range(4):
                A("  ds_write_b128 %s, %s offset:%d" % (v(T[14]), v(RT + 16 * r + 4 * g, 4), 4096 * r + 1024 * g))
            next_slot(sSlotI)
            if r < NR - 1:
                kbody(4 * (NR - 1 - r), False, sF[0])
                A("  s_add_u32 %s, %s, 8" % (s(sF[0]), s(sF[0])))
                A("  v_add_u32 %s, %s, %s" % (v(T[14]), s(sWB), v(vL16)))
    else:
      for i in range(4 - W if P["noq"] < 2 else 0):
        kbody(4 * (3 - i), False, sF[0])
        A("  s_add_u32 %s, %s, 8" % (s(sF[0]), s(sF[0])))
    for i in range(1, W): A("  s_add_u32 %s, %s, %d" % (s(sF[i]), s(sF[0]), 8 * i))
    if P["stouch"]:
        A("  s_cmp_lg_u32 %s, 3\n  s_cbranch_scc1 L_nost" % s(sWave))
        A("  s_buffer_load_dword s44, s[8:11], %s" % s(sOff0))
        A("  s_buffer_load_dword s45, s[8:11], %s" % s(sOffX))
        A("  s_buffer_load_dword s48, s[4:7], %s" % s(sOffX))
        A("  s_cmp_eq_u32 %s, 0\n  s_cbranch_scc1 L_nost2" % s(sTail))
        A("  s_load_dword s49, s[62:63], 0\n  s_load_dword s50, s[60:61], 0")
        A("L_nost2:")
        A("  s_waitcnt lgkmcnt(0)")
        A("L_nost:")
    if P["nstream"] < 8:
        A("  s_cmp_ge_u32 %s, %d\n  s_cbranch_scc1 L_idlek" % (s(sWave), P["nstream"]))
        Lsave = L; L = []; A = L.append
        A("L_idlek:")
        kbody(0, False, sF[0])
        A("  s_mov_b32 %s, 0x7fffffff\n  s_branch L_kdone" % s(sF[0]))
        late.append("\n".join(L)); L = Lsave; A = L.append
    A("L_kloop:")
    A("  s_mov_b32 s36, %s" % s(sF[0]))
    kbody(4 * (W - 1), True, 36)
    A("  s_cmp_lt_u32 %s, %s\n  s_cbranch_scc1 L_kloop" % (s(sF[0]), s(sCnt1)))
    A("L_kdone:")
    stamp(3)
    PK = F
    FL = ACC
    vM = T[0]; vLs = T[1]
    XV = P["extraV"]
    assert W + XV <= 4
    for i in range(XV): issue_dyn(0, False, depth=W + i, push=True)
    bfly_hi("v_max_f32", vMx, T[2])
    round_bf16(vMx, vMx)
    A("  s_lshl_b32 s34, %s, 2\n  s_add_u32 s34, s34, %d" % (s(sWave), MLT))
    A("  v_and_b32 %s, 3, %s\n  v_lshlrev_b32 %s, 5, %s" % (v(T[3]), v(vLane), v(T[3]), v(T[3])))
    A("  v_add_u32 %s, s34, %s\n  v_add_u32 %s, %d, %s" % (v(T[2]), v(T[3]), v(T[3]), MLT, v(T[3])))
    A("  s_mov_b64 exec, 0xf")
    A("  ds_write_b32 %s, %s" % (v(T[2]), v(vMx)))
    A("  s_mov_b64 exec, -1")
    A("  s_waitcnt lgkmcnt(0)" + ("" if P["notrans"] else "\n  s_barrier"))
    A("  ds_read_b128 %s, %s" % (v(U[0], 4), v(T[3])))
    A("  ds_read_b128 %s, %s offset:16" % (v(U[4], 4), v(T[3])))
    for k in range(5): A("  ds_read_b64 %s, %s offset:%d" % (v(PK + 2 * k, 2), v(vSr), 512 * k))
    A("  s_waitcnt lgkmcnt(5)")
    A("  v_max3_f32 %s, %s, %s, %s" % (v(vM), v(U[0]), v(U[1]), v(U[2])))
    A("  v_max3_f32 %s, %s, %s, %s" % (v(U[3]), v(U[3]), v(U[4]), v(U[5])))
    A("  v_max3_f32 %s, %s, %s, %s" % (v(vM), v(vM), v(U[6]), v(U[7])))
    A("  v_max_f32 %s, %s, %s" % (v(vM), v(vM), v(U[3])))
    A("  s_mov_b32 s34, %s" % LOG2E)
    A("  v_mul_f32 %s, s34, %s" % (v(T[4]), v(vM)))
    for k in range(5):
        A("  s_waitcnt lgkmcnt(%d)" % (4 - k))
        unpack(FL + 4 * k, FL + 4 * k + 1, PK + 2 * k); unpack(FL + 4 * k + 2, FL + 4 * k + 3, PK + 2 * k + 1)
    for k in range(20): A("  v_fma_f32 %s, %s, s34, -%s" % (v(FL + k), v(FL + k), v(T[4])))
    for k in range(20): A("  v_exp_f32 %s, %s" % (v(FL + k), v(FL + k)))
    for k in range(10): A("  v_cvt_pk_bf16_f32 %s, %s, %s" % (v(PK + k), v(FL + 2 * k), v(FL + 2 * k + 1)))
    for k in range(5): A("  ds_write_b64 %s, %s offset:%d" % (v(vSr), v(PK + 2 * k, 2), 512 * k))
    for k in range(10): A("  v_add_f32 %s, %s, %s" % (v(FL + k), v(FL + k), v(FL + 10 + k)))
    for k in range(5): A("  v_add_f32 %s, %s, %s" % (v(FL + k), v(FL + k), v(FL + 5 + k)))
    A("  v_add_f32 %s, %s, %s" % (v(FL), v(FL), v(FL + 1)))
    A("  v_add_f32 %s, %s, %s" % (v(FL + 2), v(FL + 2), v(FL + 3)))
    A("  v_add_f32 %s, %s, %s" % (v(FL), v(FL), v(FL + 4)))
    A("  v_add_f32 %s, %s, %s" % (v(vLs), v(FL), v(FL + 2)))
    allred_b2345("v_add_f32", vLs, T[5])
    A("  s_mov_b64 exec, 0xf")
    A("  ds_write_b32 %s, %s offset:128" % (v(T[2]), v(vLs)))
    A("  s_mov_b64 exec, -1")
    A("  v_mov_b32 %s, %s" % (v(vMx), v(vM)))
    aW = T[10]; aRd = T[11]; aRd2 = T[12]; aFt = T[13]; aSt = T[14]
    A("  v_and_b32 %s, 3, %s\n  s_movk_i32 s34, 576\n  v_mul_lo_u32 %s, %s, s34" % (v(aW), v(vLane), v(aW), v(aW)))
    A("  v_lshrrev_b32 %s, 4, %s\n  v_lshl_add_u32 %s, %s, 4, %s\n  v_add_u32 %s, %s, %s" % (v(aRd), v(vLane), v(aW), v(aRd), v(aW), v(aW), s(sWB), v(aW)))
    A("  s_lshr_b32 s34, %s, 1\n  s_and_b32 s35, %s, 1\n  s_lshl_b32 s35, s35, 8" % (s(sWave), s(sWave)))
    A("  s_mul_i32 s36, s34, 576\n  s_add_u32 s36, s36, s35")
    A("  v_lshl_add_u32 %s, %s, 2, s36" % (v(aRd), v(vLane)))
    A("  v_add_u32 %s, 0x10000, %s" % (v(aRd2), v(aRd)))
    A("  s_lshl_b32 s36, s34, 4\n  s_add_u32 s36, s36, %d\n  v_mov_b32 %s, s36" % (FT + 8, v(aFt)))
    if P["p1bf"]:
        A("  s_lshl_b32 s36, %s, 2\n  s_add_u32 s36, s36, s34\n  s_lshl_b32 s36, s36, 13\n  s_lshr_b32 s35, s35, 1\n  s_add_u32 s36, s36, s35" % s(sG))
        A("  s_lshl_b32 s34, %s, 8\n  s_add_u32 s36, s36, s34\n  s_add_u32 s36, s36, %d" % (s(sI), P1))
        A("  v_lshl_add_u32 %s, %s, 1, s36" % (v(aSt), v(vLane)))
    else:
        A("  s_lshl_b32 s36, %s, 2\n  s_add_u32 s36, s36, s34\n  s_lshl_b32 s36, s36, 14\n  s_add_u32 s36, s36, s35" % s(sG))
        A("  s_lshl_b32 s34, %s, 9\n  s_add_u32 s36, s36, s34\n  s_add_u32 s36, s36, %d" % (s(sI), P1))
        A("  v_lshl_add_u32 %s, %s, 2, s36" % (v(aSt), v(vLane)))
    A("  s_waitcnt lgkmcnt(0)" + ("" if P["notrans"] else "\n  s_barrier"))
    A("  s_cmp_lg_u32 %s, 0\n  s_cbranch_scc1 L_noml" % s(sWave))
    A("  ds_read_b128 %s, %s offset:128" % (v(U[0], 4), v(T[3])))
    A("  ds_read_b128 %s, %s offset:144" % (v(U[4], 4), v(T[3])))
    A("  s_lshl_b32 s34, %s, 11\n  s_lshl_b32 s35, %s, 6\n  s_add_u32 s34, s34, s35\n  s_add_u32 s34, s34, %d" % (s(sG), s(sI), ML))
    A("  v_add_u32 %s, s34, %s" % (v(T[2]), v(vL16)))
    A("  v_mov_b32 %s, %s\n  v_mov_b32 %s, %s\n  v_mov_b32 %s, %s" % (v(T[6]), v(vMx), v(T[7]), s(sTag), v(T[9]), s(sTag)))
    A("  s_waitcnt lgkmcnt(0)")
    sum8(U[0])
    A("  v_mov_b32 %s, %s" % (v(T[8]), v(U[0])))
    A("  s_mov_b64 exec, 0xf")
    assert T[6] % 2 == 0
    A("  global_store_dwordx4 %s, %s, s[12:13] sc1" % (v(T[2]), v(T[6], 4)))
    A("  s_mov_b64 exec, -1")
    A("L_noml:")
    if nA < 6:
        A("  s_cmp_eq_u32 %s, 1\n  s_cbranch_scc1 L_wB" % s(sTail))
        A("L_wBret:")
        Lsave = L; L = []; A = L.append
        A("L_wB:")
        wrun(nA, 6)
        A("  s_branch L_wBret")
        late.append("\n".join(L)); L = Lsave; A = L.append
    for k in range(32): A("  v_mov_b32 %s, 0" % v(ACC + k))
    stamp(4)
    PB_ = T[2]
    assert PB_ % 2 == 0
    A("  s_lshl_b32 s34, %s, 7\n  v_subrev_u32 %s, s34, %s" % (s(sCnt1), v(vSb), v(vSb)))
    def vbody(wait, issue, depth=None):
        A("  s_lshl_b32 s34, %s, 7" % s(sF[0]))
        A("  v_add_u32 %s, s34, %s" % (v(T[1]), v(vSb)))
        A("  v_add_u32 %s, %s, %s" % (v(T[0]), s(sSlotC), v(vVrd)))
        A("  ds_read_b64 %s, %s" % (v(PB_, 2), v(T[1])))
        if issue: issue_dyn(0, False, depth=depth, vwait=wait)
        else: A("  s_waitcnt vmcnt(%d)" % wait)
        for b in range(8): A("  ds_read_b64_tr_b16 %s, %s offset:%d" % (v(F + 2 * b, 2), v(T[0]), 128 * b))
        next_slot(sSlotC)
        for b in range(8):
            A("  s_waitcnt lgkmcnt(%d)" % (7 - b))
            A("  v_mfma_f32_16x16x16_bf16 %s, %s, %s, %s" % (v(ACC + 4 * b, 4), v(F + 2 * b, 2), v(PB_, 2), v(ACC + 4 * b, 4)))
    for i in range(XV):
        vbody(4 * (W + XV - 1 - i), False)
        for k in range(W + XV - 1 - i): A("  s_mov_b32 %s, %s" % (s(sF[k]), s(sF[k + 1])))
    A("  s_branch L_vtest")
    A("L_vloop:")
    vbody(4 * (W - 1), True)
    A("L_vtest:")
    A("  s_cmp_ge_u32 %s, %s\n  s_cbranch_scc1 L_gather" % (s(sF[0]), s(sTrig)))
    A("L_gatherret:")
    if P["deepV"]:
        A("  s_sub_u32 s36, %s, %d" % (s(sCnt2), P["deepV"]))
        A("  s_cmp_lt_u32 %s, s36\n  s_cbranch_scc1 L_vloop" % s(sF[0]))
        issue_dyn(0, False, depth=W, push=True)
        A("  s_branch L_vtest2")
        A("L_vloop2:")
        vbody(4 * W, True, depth=W + 1)
        A("L_vtest2:")
        A("  s_cmp_lt_u32 %s, %s\n  s_cbranch_scc1 L_vloop2" % (s(sF[0]), s(sCnt2)))
    else:
        A("  s_cmp_lt_u32 %s, %s\n  s_cbranch_scc1 L_vloop" % (s(sF[0]), s(sCnt2)))
    stamp(5)
    Lsave = L; L = []; A = L.append
    A("L_gather:")
    A("  s_mov_b32 %s, -1" % s(sTrig))
    A("  s_lshl_b32 s34, %s, 11\n  s_add_u32 s34, s34, %d" % (s(sG), ML))
    A("  v_add_u32 %s, s34, %s" % (v(T[4]), v(vL16)))
    if P["pf2"]:
        A("  s_getpc_b64 s[44:45]")
        A("L_pc2:")
        A("  s_sub_u32 s44, s44, L_pc2-L_vloop\n  s_subb_u32 s45, s45, 0")
        A("  v_mov_b32 %s, %s" % (v(T[7]), v(vL16)))
        for k in range(P["pf2"]):
            A("  global_load_dwordx4 %s, %s, s[44:45]" % (v(U[8], 4), v(T[7])))
            A("  v_add_u32 %s, 1024, %s" % (v(T[7]), v(T[7])))
    A("L_gpoll:")
    A("  global_load_dwordx4 %s, %s, s[12:13] sc1" % (v(G0, 4), v(T[4])))
    A("  global_load_dwordx4 %s, %s, s[12:13] offset:1024 sc1" % (v(G1, 4), v(T[4])))
    A("  s_waitcnt vmcnt(0)")
    chk_tag([G0 + 1, G0 + 3, G1 + 1, G1 + 3], T[7], sTag)
    poll_end("L_gpoll")
    A("  v_max_f32 %s, %s, %s" % (v(T[8]), v(G0), v(G1)))
    allred_b2345("v_max_f32", T[8], T[7])
    A("  v_sub_f32 %s, %s, %s\n  v_sub_f32 %s, %s, %s" % (v(G0), v(G0), v(T[8]), v(G1), v(G1), v(T[8])))
    A("  v_sub_f32 %s, %s, %s" % (v(U[8]), v(vMx), v(T[8])))
    for r in (G0, G1, U[8]): A("  v_mul_f32 %s, %s, %s" % (v(r), LOG2E, v(r)))
    for r in (G0, G1, U[8]): A("  v_exp_f32 %s, %s" % (v(r), v(r)))
    A("  v_mul_f32 %s, %s, %s" % (v(T[9]), v(G0), v(G0 + 2)))
    A("  v_fmac_f32 %s, %s, %s" % (v(T[9]), v(G1), v(G1 + 2)))
    allred_b2345("v_add_f32", T[9], T[7])
    A("  v_rcp_f32 %s, %s" % (v(U[10]), v(T[9])))
    A("  v_mul_f32 %s, %s, %s" % (v(U[10]), v(U[10]), v(U[8])))
    A("  v_mov_b32 %s, 0" % v(U[11]))
    A("  s_cmp_eq_u32 %s, 0\n  s_cbranch_scc1 L_gfin" % s(sTail))
    A("  v_and_b32 %s, 31, %s\n  v_lshlrev_b32 %s, 3, %s\n  v_add_u32 %s, %d, %s" % (v(T[5]), v(vLane), v(T[5]), v(T[5]), v(T[5]), REG, v(T[5])))
    A("L_rpoll:")
    A("  global_load_dwordx2 %s, %s, s[12:13] sc1" % (v(G0, 2), v(T[5])))
    A("  s_waitcnt vmcnt(0)")
    A("  v_cmp_eq_u32 vcc, %s, %s" % (s(sTag), v(G0 + 1)))
    A("  s_cmp_eq_u64 vcc, -1")
    poll_end("L_rpoll")
    A("  v_cmp_eq_u32 vcc, %s, %s" % (s(sXcc), v(G0)))
    A("  s_cmp_eq_u64 vcc, -1\n  s_cselect_b32 s34, %d, 0" % (0 if P["forceslow"] else 1))
    A("  v_mov_b32 %s, s34" % v(U[11]))
    A("L_gfin:")
    A("  v_add_u32 %s, %d, %s" % (v(T[7]), FT, v(vL16)))
    A("  s_mov_b64 exec, 0xf")
    A("  ds_write_b128 %s, %s" % (v(T[7]), v(U[8], 4)))
    A("  s_mov_b64 exec, -1")
    A("  s_branch L_gatherret")
    late.append("\n".join(L)); L = Lsave; A = L.append
    setexec(0x000F000F000F000F)
    for b in range(8): A("  ds_write_b128 %s, %s offset:%d" % (v(aW), v(ACC + 4 * b, 4), 64 * b))
    setexec(-1)
    A("  s_waitcnt lgkmcnt(0)\n  s_barrier")
    O8 = F; F8 = F + 8
    def read8(dst, a0, a1, st):
        A("  ds_read2st64_b32 %s, %s offset0:%d offset1:%d" % (v(dst, 2), v(a0), st, st + 64))
        A("  ds_read2st64_b32 %s, %s offset0:%d offset1:%d" % (v(dst + 2, 2), v(a0), st + 128, st + 192))
        A("  ds_read2st64_b32 %s, %s offset0:%d offset1:%d" % (v(dst + 4, 2), v(a1), st, st + 64))
        A("  ds_read2st64_b32 %s, %s offset0:%d offset1:%d" % (v(dst + 6, 2), v(a1), st + 128, st + 192))
    read8(O8, aRd, aRd2, 0)
    A("  ds_read_b64 %s, %s" % (v(F8, 2), v(aFt)))
    A("  s_waitcnt lgkmcnt(0)")
    A("  v_readfirstlane_b32 %s, %s" % (s(sFast), v(F8 + 1)))
    sum8(O8)
    A("  v_mul_f32 %s, %s, %s" % (v(O8), v(O8), v(F8)))
    if P["p1bf"]:
        A("  v_mov_b32_dpp %s, %s quad_perm:[1,1,3,3] row_mask:0xf bank_mask:0xf" % (v(O8 + 1), v(O8)))
        A("  v_cvt_pk_bf16_f32 %s, %s, %s" % (v(O8 + 4), v(O8), v(O8 + 1)))
        A("  v_min_u32 %s, -2, %s" % (v(O8 + 4), v(O8 + 4)))
        for k in range(1, 4):
            A("  v_mov_b32_dpp %s, %s row_shl:%d row_mask:0xf bank_mask:0xf" % (v(O8 + 4 + k), v(O8 + 4), 2 * k))
        setexec(0x0101010101010101)
        if P["p1fast"]:
            A("  s_cmp_eq_u32 %s, 1\n  s_cbranch_scc1 L_p1f" % s(sFast))
            late.append("L_p1f:\n  global_store_dwordx4 %s, %s, s[12:13]\n  s_branch L_p1r" % (v(aSt), v(O8 + 4, 4)))
        A("  global_store_dwordx4 %s, %s, s[12:13] sc1" % (v(aSt), v(O8 + 4, 4)))
        A("L_p1r:")
        setexec(-1)
    else:
        A("  v_bfi_b32 %s, %s, %s, %s" % (v(O8), s(sFF), v(vT8), v(O8)))
        A("  global_store_dword %s, %s, s[12:13] sc1" % (v(aSt), v(O8)))
    stamp(6)
    for k in [7, "p", "q", 8, "r", 9, "s", "t", "u", 10, 11]: stamp(k)
    A("  s_cmp_eq_u32 %s, 0\n  s_cbranch_scc1 L_end" % s(sTail))
    aP1 = T[0]; aPA = T[1]; aR3 = T[2]; aLw = T[3]; aLr = T[4]; vIdx = T[5]; aSP = T[6]; aH = T[7]
    A("  v_lshrrev_b32 %s, 1, %s\n  v_and_b32 %s, 1, %s" % (v(T[8]), v(vLane), v(T[9]), v(vLane)))
    A8 = [F + k for k in range(8)]
    assert P["p1bf"]
    A("  s_lshl_b32 s34, %s, 13\n  s_lshl_b32 s35, %s, 5\n  s_add_u32 s34, s34, s35\n  s_add_u32 s34, s34, %d" % (s(sJ), s(sWave), P1))
    A("  v_lshl_add_u32 %s, %s, 8, s34\n  v_lshl_add_u32 %s, %s, 4, %s" % (v(aP1), v(T[8]), v(aP1), v(T[9]), v(aP1)))
    if P["palay"]:
        A("  s_lshl_b32 s34, %s, 11\n  s_add_u32 s34, s34, %d" % (s(sJ), PA))
        A("  v_lshl_add_u32 %s, %s, 5, s34" % (v(aPA), v(vLane)))
    else:
        A("  s_lshl_b32 s34, %s, 6\n  s_add_u32 s34, s34, %d" % (s(sJ), PA))
        A("  v_lshl_add_u32 %s, %s, 11, s34\n  v_lshl_add_u32 %s, %s, 5, %s" % (v(aPA), v(T[8]), v(aPA), v(T[9]), v(aPA)))
    A("  v_lshlrev_b32 %s, 5, %s\n  v_add_u32 %s, %d, %s" % (v(aR3), v(vLane), v(aR3), R3, v(aR3)))
    A("  v_lshrrev_b32 %s, 5, %s\n  v_bfe_u32 %s, %s, 4, 1\n  v_lshl_add_u32 %s, %s, 1, %s" % (v(aLw), v(vLane), v(T[10]), v(vLane), v(aLw), v(aLw), v(T[10])))
    A("  v_lshl_add_u32 %s, %s, 2, %s\n  s_lshl_b32 s34, %s, 5\n  s_add_u32 s34, s34, %d\n  v_lshl_add_u32 %s, %s, 2, s34" % (v(aLw), v(T[9]), v(aLw), s(sWave), OL, v(aLw), v(aLw)))
    A("  v_lshrrev_b32 %s, 4, %s\n  v_lshlrev_b32 %s, 5, %s\n  v_lshl_add_u32 %s, %s, 4, %s\n  v_add_u32 %s, %d, %s" % (v(aLr), v(vLane), v(aLr), v(aLr), v(aLr), v(T[9]), v(aLr), v(aLr), QL, v(aLr)))
    A("  s_mov_b32 s34, 0xaaaaaaaa\n  v_mul_lo_u32 %s, %s, s34\n  v_add_u32 %s, 0x44444444, %s" % (v(vIdx), v(T[9]), v(vIdx), v(vIdx)))
    A("  global_load_dwordx4 %s, %s, s[12:13] sc1" % (v(ACC + 4, 4), v(aPA)))
    A("  global_load_dwordx4 %s, %s, s[12:13] sc1" % (v(ACC + 8, 4), v(aR3)))
    A("  v_add_u32 %s, %d, %s" % (v(T[10]), PB - PA, v(aPA)))
    A("  global_load_dwordx4 %s, %s, s[12:13] sc1" % (v(ACC + 12, 4), v(T[10])))
    if P["palay"]:
        A("  s_lshl_b32 s34, %s, 6\n  s_lshl_b32 s35, %s, 13\n  s_add_u32 s34, s34, s35\n  s_add_u32 s34, s34, %d" % (s(sJ), s(sWave), PA))
        A("  v_lshrrev_b32 %s, 4, %s\n  v_lshl_add_u32 %s, %s, 11, s34\n  v_and_b32 %s, 15, %s\n  v_lshl_add_u32 %s, %s, 2, %s" % (v(aSP), v(vLane), v(aSP), v(aSP), v(T[10]), v(vLane), v(aSP), v(T[10]), v(aSP)))
    else:
        A("  s_lshl_b32 s34, %s, 11\n  s_lshl_b32 s35, %s, 8\n  s_add_u32 s34, s34, s35\n  s_add_u32 s34, s34, %d\n  v_lshl_add_u32 %s, %s, 2, s34" % (s(sJ), s(sWave), PA, v(aSP), v(vLane)))
    A("  v_lshrrev_b32 %s, 5, %s\n  v_lshlrev_b32 %s, 3, %s\n  v_lshl_add_u32 %s, %s, 2, %s" % (v(T[10]), v(vLane), v(aH), v(T[9]), v(aH), v(T[10]), v(aH)))
    A("  v_bfe_u32 %s, %s, 4, 1\n  v_lshl_add_u32 %s, %s, 1, %s" % (v(T[10]), v(vLane), v(aH), v(T[10]), v(aH)))
    A("  v_bfe_u32 %s, %s, 3, 1\n  v_add_u32 %s, %s, %s" % (v(T[10]), v(vLane), v(aH), v(T[10]), v(aH)))
    A("  s_lshl_b32 s34, %s, 4\n  v_add_u32 %s, s34, %s" % (s(sJ), v(aH), v(aH)))
    A("  v_lshlrev_b32 %s, 1, %s" % (v(T[17]), v(aH)))
    if P["otouch"]:
        A("  global_load_ushort %s, %s, s[62:63]" % (v(ACC), v(T[17])))
    A("  v_lshlrev_b32 %s, 2, %s\n  v_add_u32 %s, %d, %s" % (v(aH), v(aH), v(aH), R3, v(aH)))
    A("  s_lshl_b32 s34, %s, 4\n  s_add_u32 s34, s34, %d\n  v_lshl_add_u32 %s, %s, 1, s34" % (s(sWave), HL, v(T[11]), v(vLane)))
    A("  s_and_b32 s55, %s, 0xffff\n  v_mov_b32 %s, s55\n  s_mov_b32 s54, 0xffff" % (s(sTag), v(T[16])))
    assert P["npoll"] == 1 and P["npoll1"] == 1
    A("  s_mov_b64 s[44:45], 0xffff\n  s_lshl_b64 s[46:47], s[44:45], 16\n  s_lshl_b64 s[48:49], s[44:45], 32\n  s_lshl_b64 s[50:51], s[44:45], 48")
    for k in range(16): A("  v_mov_b32 %s, 0" % v(U[0] + k))
    for k in range(8): A("  v_mov_b32 %s, 0" % v(F + 8 + k))
    A("  v_add_u32 %s, %d, %s" % (v(T[15]), QL, v(vL16)))
    for k in range(16): A("  v_mov_b32 %s, %s" % (v(ACC + 16 + k), v(vT8)))
    def ld1(k): A("  global_load_dwordx4 %s, %s, s[12:13] sc1" % (v(ACC + 4 * k, 4), v(aP1)))
    def ck1(k):
        H4 = ACC + 4 * k
        A("  v_max3_u32 %s, %s, %s, %s" % (v(T[8]), v(H4), v(H4 + 1), v(H4 + 2)))
        A("  v_max_u32 %s, %s, %s" % (v(T[8]), v(T[8]), v(H4 + 3)))
        A("  v_cmp_ne_u32 vcc, -1, %s" % v(T[8]))
        for q_ in range(4): unpack(A8[2 * q_], A8[2 * q_ + 1], H4 + q_)
        A("  s_cmp_eq_u64 vcc, -1")
    if P["h1mask"]:
        ld1(0)
        A("L_h1:")
        A("  s_waitcnt vmcnt(0)")
        A("  v_max3_u32 %s, %s, %s, %s" % (v(T[8]), v(ACC), v(ACC + 1), v(ACC + 2)))
        A("  v_max_u32 %s, %s, %s" % (v(T[8]), v(T[8]), v(ACC + 3)))
        A("  v_cmp_eq_u32 vcc, -1, %s" % v(T[8]))
        A("  s_and_b64 exec, exec, vcc")
        A("  s_cbranch_execz L_h1_ok")
        if P["h1sleep"]: A("  s_sleep %d" % P["h1sleep"])
        ld1(0)
        A("  s_sub_u32 %s, %s, 1\n  s_cmp_lg_u32 %s, 0\n  s_cbranch_scc1 L_h1" % (s(sSpin), s(sSpin), s(sSpin)))
        A("  s_mov_b32 %s, 1\n  s_waitcnt vmcnt(0)" % s(sSpin))
        A("L_h1_ok:")
        A("  s_mov_b64 exec, -1")
        for q_ in range(4): unpack(A8[2 * q_], A8[2 * q_ + 1], ACC + q_)
    else:
        poll_pipe("L_h1", P["npoll1"], 1, ld1, ck1, sleep=P["h1sleep"])
    stamp(7)
    red16p(A8, A8[0])
    stamp("m")
    setexec(0x0003000300030003)
    A("  ds_write_b32 %s, %s" % (v(aLw), v(A8[0])))
    setexec(-1)
    DD = U[0]
    A("  s_waitcnt lgkmcnt(0)\n  s_barrier")
    stamp("n")
    A("  ds_read_b128 %s, %s offset:%d" % (v(F, 4), v(aLr), OL - QL))
    A("  ds_read_b128 %s, %s offset:%d" % (v(F + 4, 4), v(aLr), OL - QL + 128))
    for u in range(2):
        A("  s_waitcnt lgkmcnt(%d)" % (1 - u))
        for t in range(4):
            A("  v_smfmac_f32_16x16x64_bf16 %s, %s, %s, %s" % (v(DD + 4 * t, 4), v(F + 4 * u, 4), v(W2 + 8 * (2 * t + u), 8), v(vIdx)))
    def select4():
        for t in range(4):
            A("  s_mov_b64 exec, %s" % s(44 + 2 * t, 2))
            A("  v_add_f32 %s, %s, %s" % (v(O8), v(DD + 4 * t), v(DD + 4 * t + 1)))
        setexec(-1)
    stamp("p")
    select4()
    A("  v_bfi_b32 %s, %s, %s, %s" % (v(O8), s(sFF), v(vT8), v(O8)))
    hstore("global_store_dword %s, %s, s[12:13]" % (v(aSP), v(O8)))
    stamp("q")
    A("  s_cmp_lg_u32 %s, 0\n  s_cbranch_scc1 L_h3w" % s(sWave))
    zero16 = "\n".join("  v_mov_b32 %s, 0" % v(DD + k) for k in range(16)) + "\n  v_add_u32 %s, %d, %s" % (v(aSP), PB - PA, v(aSP))
    late.append("L_h3w:\n  s_cmp_ge_u32 %s, 28\n  s_cbranch_scc1 L_end\n%s\n  s_branch L_h3j" % (s(sJ), zero16))
    def ld8(addr, base=ACC):
        def f_(k):
            A("  global_load_dwordx4 %s, %s, s[12:13] sc1" % (v(base + 8 * k, 4), v(addr)))
            A("  global_load_dwordx4 %s, %s, s[12:13] offset:16 sc1" % (v(base + 8 * k + 4, 4), v(addr)))
        return f_
    def ck8(dst, stag, mask, base=ACC):
        return lambda k: chk_clean2(dst, [base + 8 * k + q_ for q_ in range(8)], T[8], stag, mask)
    ld8(aPA)(0)
    A(zero16)
    poll_pipe("L_hA", 1, 2, ld8(aPA), ck8(A8, sT8, s(sFF)), preissued=1)
    stamp(8)
    red16(A8)
    round_bf16(A8[1], A8[1])
    A("  v_add_f32 %s, %s, %s" % (v(vXres), v(vXres), v(A8[1])))
    A("  v_cvt_pk_bf16_f32 %s, %s, %s" % (v(vXres), v(vXres), v(vXres)))
    A("  v_bfi_b32 %s, s54, %s, %s" % (v(A8[2]), v(T[16]), v(vXres)))
    setexec(0x0303030303030303)
    hstore("global_store_dword %s, %s, s[12:13]" % (v(aH), v(A8[2])))
    setexec(-1)
    A("  v_and_b32 %s, 0xffff0000, %s" % (v(vXres), v(vXres)))
    stamp("r")
    A("L_h3:")
    A("  s_cmp_ge_u32 %s, 28\n  s_cbranch_scc1 L_hB0" % s(sJ))
    f = [F + k for k in range(8)]; d = [T[8], T[9], T[10], U[4]]
    poll_pipe("L_h3p", P["npoll"], 2, ld8(aR3), ck8(f, 55, "s54"))
    stamp(9)
    XO = ACC + 8; E8 = ACC + 12
    D8 = W2 + 32
    A("  v_readfirstlane_b32 s36, %s" % v(f[0]))
    A("  v_mov_b32 %s, %s" % (v(T[10]), INV512))
    A("  s_mov_b32 s32, s36\n  s_mov_b32 s33, s36")
    for k in range(4): A("  v_pk_add_f32 %s, %s, s[32:33] neg_lo:[0,1] neg_hi:[0,1]" % (v(D8 + 2 * k, 2), v(f[2 * k], 2)))
    A("  v_pk_mul_f32 %s, %s, %s" % (v(E8, 2), v(D8, 2), v(D8, 2)))
    A("  v_pk_add_f32 %s, %s, %s" % (v(E8 + 2, 2), v(D8, 2), v(D8 + 2, 2)))
    for k in range(1, 4): A("  v_pk_fma_f32 %s, %s, %s, %s" % (v(E8, 2), v(D8 + 2 * k, 2), v(D8 + 2 * k, 2), v(E8, 2)))
    A("  v_pk_add_f32 %s, %s, %s" % (v(D8 + 4, 2), v(D8 + 4, 2), v(D8 + 6, 2)))
    A("  v_pk_add_f32 %s, %s, %s" % (v(E8 + 2, 2), v(E8 + 2, 2), v(D8 + 4, 2)))
    s1 = T[8]; s2 = T[9]
    A("  v_add_f32 %s, %s, %s" % (v(s2), v(E8), v(E8 + 1)))
    A("  v_add_f32 %s, %s, %s" % (v(s1), v(E8 + 2), v(E8 + 3)))
    for ctrl, rm in (("quad_perm:[1,0,3,2]", "0xf"), ("quad_perm:[2,3,0,1]", "0xf"), ("row_half_mirror", "0xf"),
                     ("row_mirror", "0xf"), ("row_bcast:15", "0xa"), ("row_bcast:31", "0xc")):
        dpp("v_add_f32", s2, s2, s2, ctrl, rm=rm)
        dpp("v_add_f32", s1, s1, s1, ctrl, rm=rm)
    A("  v_readlane_b32 s33, %s, 63" % v(s2))
    A("  v_readlane_b32 s32, %s, 63" % v(s1))
    vMean = E8; vR = E8 + 2
    A("  v_mul_f32 %s, s33, %s" % (v(s2), v(T[10])))
    A("  v_mul_f32 %s, s32, %s" % (v(s1), v(T[10])))
    A("  v_fma_f32 %s, -%s, %s, %s" % (v(s2), v(s1), v(s1), v(s2)))
    A("  v_add_f32 %s, s36, %s" % (v(s1), v(s1)))
    A("  v_max_f32 %s, 0, %s" % (v(s2), v(s2)))
    A("  v_cvt_pk_bf16_f32 %s, %s, %s" % (v(T[10]), v(s1), v(s2)))
    A("  v_and_b32 %s, 0xffff0000, %s" % (v(s2), v(T[10])))
    A("  v_lshlrev_b32 %s, 16, %s" % (v(vMean), v(T[10])))
    A("  v_add_f32 %s, %s, %s" % (v(s2), EPS, v(s2)))
    A("  v_lshlrev_b32 %s, 16, %s" % (v(vMean + 1), v(T[10])))
    A("  v_cvt_pk_bf16_f32 %s, %s, %s" % (v(s2), v(s2), v(s2)))
    A("  v_pk_add_f32 %s, %s, %s neg_lo:[0,1] neg_hi:[0,1]" % (v(f[0], 2), v(f[0], 2), v(vMean, 2)))
    A("  v_and_b32 %s, 0xffff0000, %s" % (v(s2), v(s2)))
    A("  v_sqrt_f32 %s, %s" % (v(s2), v(s2)))
    for k in range(1, 4): A("  v_pk_add_f32 %s, %s, %s neg_lo:[0,1] neg_hi:[0,1]" % (v(f[2 * k], 2), v(f[2 * k], 2), v(vMean, 2)))
    A("  v_cvt_pk_bf16_f32 %s, %s, %s" % (v(s2), v(s2), v(s2)))
    A("  v_cvt_pk_bf16_f32 %s, %s, %s" % (v(XO), v(f[0]), v(f[1])))
    A("  v_and_b32 %s, 0xffff0000, %s" % (v(s2), v(s2)))
    A("  v_rcp_f32 %s, %s" % (v(vR), v(s2)))
    for k in range(1, 4): A("  v_cvt_pk_bf16_f32 %s, %s, %s" % (v(XO + k), v(f[2 * k]), v(f[2 * k + 1])))
    A("  v_mov_b32 %s, %s" % (v(vR + 1), v(vR)))
    for k in range(4): unpack(f[2 * k], f[2 * k + 1], XO + k)
    for k in range(4): A("  v_pk_mul_f32 %s, %s, %s" % (v(f[2 * k], 2), v(f[2 * k], 2), v(vR, 2)))
    for k in range(4): A("  v_cvt_pk_bf16_f32 %s, %s, %s" % (v(XO + k), v(f[2 * k]), v(f[2 * k + 1])))
    stamp("l")
    A("  ds_write_b128 %s, %s" % (v(T[15]), v(XO, 4)))
    A("  s_waitcnt lgkmcnt(0)")
    A("L_h3j:")
    A("  s_barrier")
    XA = W2
    for u in range(8): A("  ds_read_b128 %s, %s offset:%d" % (v(XA + 4 * u, 4), v(aLr), 128 * u))
    stamp("s")
    for u in range(8):
        A("  s_waitcnt lgkmcnt(%d)" % (7 - u))
        A("  v_smfmac_f32_16x16x64_bf16 %s, %s, %s, %s" % (v(F + 8 + 4 * (u & 1), 4), v(XA + 4 * u, 4), v(W3A + 8 * u, 8), v(vIdx)))
    GA = [F + k for k in range(8)]
    A("  v_pk_add_f32 %s, %s, %s" % (v(GA[0], 2), v(F + 8, 2), v(F + 12, 2)))
    A("  v_add_f32 %s, %s, %s" % (v(GA[0]), v(GA[0]), v(GA[1])))
    stamp("y")
    round_bf16(GA[0], GA[0])
    A("  v_mul_f32 %s, 0xbfb8aa3b, %s" % (v(GA[2]), v(GA[0])))
    A("  v_exp_f32 %s, %s" % (v(GA[2]), v(GA[2])))
    A("  v_mov_b32_dpp %s, %s row_ror:8 row_mask:0xf bank_mask:0xf" % (v(GA[1]), v(GA[0])))
    A("  v_add_f32 %s, 1.0, %s" % (v(GA[2]), v(GA[2])))
    A("  v_rcp_f32 %s, %s" % (v(GA[2]), v(GA[2])))
    A("  v_mul_f32 %s, %s, %s" % (v(GA[0]), v(GA[0]), v(GA[2])))
    round_bf16(GA[0], GA[0])
    A("  v_mul_f32 %s, %s, %s" % (v(GA[0]), v(GA[0]), v(GA[1])))
    A("  v_cvt_pk_bf16_f32 %s, %s, %s" % (v(GA[0]), v(GA[0]), v(GA[0])))
    A("  s_mov_b64 exec, 0xff")
    A("  ds_write_b16 %s, %s" % (v(T[11]), v(GA[0])))
    A("  s_mov_b64 exec, -1")
    stamp("t")
    A("  s_waitcnt lgkmcnt(0)\n  s_barrier")
    stamp("z")
    A("  ds_read_b128 %s, %s offset:%d" % (v(F, 4), v(aLr), HL - QL))
    A("  s_waitcnt lgkmcnt(0)")
    for t in range(4):
        A("  v_smfmac_f32_16x16x64_bf16 %s, %s, %s, %s" % (v(DD + 4 * t, 4), v(F, 4), v(W4 + 8 * t, 8), v(vIdx)))
    select4()
    A("  v_bfi_b32 %s, %s, %s, %s" % (v(O8), s(sFF), v(vT8), v(O8)))
    hstore("global_store_dword %s, %s, s[12:13]" % (v(aSP), v(O8)))
    stamp("u")
    A("L_hB0:")
    A("  s_cmp_lg_u32 %s, 0\n  s_cbranch_scc1 L_end" % s(sWave))
    A("  v_add_u32 %s, %d, %s" % (v(aPA), PB - PA, v(aPA)))
    def ldB(k):
        A("  s_mov_b32 exec_hi, 0xffffff")
        ld8(aPA, ACC + 16)(k)
        A("  s_mov_b64 exec, -1")
    poll_pipe("L_hB", P["npoll"], 2, ldB, ck8(A8, sT8, s(sFF), ACC + 16))
    stamp(10)
    red16(A8)
    round_bf16(A8[1], A8[1])
    A("  v_add_f32 %s, %s, %s" % (v(A8[1]), v(vXres), v(A8[1])))
    if P["err"]:
        A("  v_mul_f32 %s, 0x%08x, %s" % (v(A8[1]), struct.unpack("<I", struct.pack("<f", 1.0 + P["err"] / 1000.0))[0], v(A8[1])))
    A("  v_mov_b32_dpp %s, %s row_ror:8 row_mask:0xf bank_mask:0xf" % (v(A8[2]), v(A8[1])))
    A("  v_cvt_pk_bf16_f32 %s, %s, %s" % (v(A8[0]), v(A8[1]), v(A8[2])))
    setexec(0x0003000300030003)
    A("  global_store_dword %s, %s, s[62:63]" % (v(T[17]), v(A8[0])))
    A("  s_mov_b64 exec, 1")
    A("  s_cmp_lg_u32 %s, 0\n  s_cbranch_scc1 L_noepoch" % s(sJ))
    A("  v_mov_b32 %s, %d\n  v_mov_b32 %s, %s" % (v(A8[5]), EPOCH, v(A8[6]), s(sTag)))
    A("  global_store_dword %s, %s, s[12:13]" % (v(A8[5]), v(A8[6])))
    A("L_noepoch:")
    A("  s_mov_b64 exec, -1")
    stamp(11)
    A("L_end:")
    if SLIST:
        A("  s_cmp_lg_u32 %s, %d\n  s_cbranch_scc1 L_done" % (s(sWave), P["sw"]))
        A("  s_waitcnt vmcnt(0)")
        stamp(12)
        A("  s_waitcnt lgkmcnt(0)")
        ns = len(SLIST)
        if P["dbgwg"] >= 0:
            A("  s_cmp_lg_u32 s2, %d\n  s_cbranch_scc1 L_done" % P["dbgwg"])
            A("  s_load_dwordx2 s[12:13], s[0:1], 80\n  s_waitcnt lgkmcnt(0)")
            A("  v_mov_b32 v14, 0\n  s_mov_b64 exec, 1")
            for k in range(ns):
                A("  s_sub_u32 s34, s%d, s68\n  v_mov_b32 v16, s34" % (68 + 2 * k))
                A("  global_store_dword v14, v16, s[12:13] offset:%d" % (4 * k))
            A("  s_waitcnt vmcnt(0)\n  s_branch L_done")
        A("  s_add_u32 s12, s12, 0x10000000\n  s_addc_u32 s13, s13, 0")
        A("  s_mul_i32 s34, s2, %d\n  v_mov_b32 v14, s34" % (8 * (ns + 1)))
        A("  s_getreg_b32 s%d, hwreg(HW_REG_XCC_ID)\n  s_getreg_b32 s%d, hwreg(HW_REG_HW_ID)" % (68 + 2 * ns, 69 + 2 * ns))
        A("  s_mov_b64 exec, 1")
        for k in range(ns + 1):
            A("  v_mov_b32 v16, s%d\n  v_mov_b32 v17, s%d" % (68 + 2 * k, 69 + 2 * k))
            A("  global_store_dwordx2 v14, v[16:17], s[12:13] offset:%d" % (8 * k))
        A("  s_waitcnt vmcnt(0)")
    A("L_done:\n  s_endpgm")
    near = [b for b in late if b.startswith(("L_h3w", "L_p1f", "L_slow"))]
    for blk in near + [b for b in late if b not in near]: A(blk)
    A("L_codeend:")
    body = auto_nop(L)
    out = HEAD + body
    out.append('.section .rodata,"a"\n.p2align 6\n.amdhsa_kernel %s' % NAME)
    out.append("  .amdhsa_next_free_vgpr 256\n  .amdhsa_next_free_sgpr 102\n  .amdhsa_accum_offset 256")
    out.append("  .amdhsa_group_segment_fixed_size 0\n  .amdhsa_kernarg_size 96\n  .amdhsa_user_sgpr_count 2\n  .amdhsa_user_sgpr_kernarg_segment_ptr 1\n  .amdhsa_system_sgpr_workgroup_id_x 1")
    out.append("  .amdhsa_float_denorm_mode_32 3\n.end_amdhsa_kernel")
    return "\n".join(out) + "\n"

if __name__ == "__main__":
    kw = {}
    for kv in sys.argv[2:]:
        k, val = kv.split("=")
        if k == "stamps": pass
        elif val.lstrip("-").isdigit(): val = int(val)
        else: val = val.replace("+", " ").replace("none", "")
        kw[k] = val
    open(sys.argv[1], "w").write(gen(**kw))
```
